```python
import torch

def _softmax(x, axis=-1):
    return torch.softmax(x, dim=axis)
def _gelu(x):
    return torch.nn.functional.gelu(x, approximate="tanh")
def _silu(x):
    return torch.nn.functional.silu(x)
def _sigmoid(x):
    return torch.sigmoid(x)
def _layernorm(x, axis=-1, eps=1e-5):
    m = x.mean(dim=axis, keepdim=True)
    v = x.var(dim=axis, keepdim=True, unbiased=False)
    return (x - m) / torch.sqrt(v + eps)
def _scatter_add(tgt, idx, src, axis=0):
    return tgt.clone().index_add_(axis, idx, src)
def _segment_sum(src, seg, n):
    out = torch.zeros((n,) + src.shape[1:], dtype=src.dtype)
    return out.index_add_(0, seg, src)
def _pad(x, pw):
    flat = tuple(v for pair in reversed(pw) for v in pair)
    return torch.nn.functional.pad(x, flat)

kernel_name = 'parallel_sum__softmax_full_mha__dense_activation_gelu__prompt'

def setup_inputs():

    _w = (lambda a: (lambda t: t.to(torch.bfloat16) if t.is_floating_point() else t)(torch.as_tensor(a)))
    def _A_setup():
        B, S, D = 1, 2048, 512
        return {
            "x": _w((lambda *s: torch.randn(*s, dtype=torch.bfloat16) * 0.05)(B, S, D)),
            "wqkv": _w((lambda *s: torch.randn(*s, dtype=torch.bfloat16) * 0.05)(D, 3 * D)),
            "wo": _w((lambda *s: torch.randn(*s, dtype=torch.bfloat16) * 0.05)(D, D)),
        }
    _A_in = _A_setup()

    def _B_setup():
        B, S, D, F = 1, 2048, 512, 1792
        return {
            "x": _w((lambda *s: torch.randn(*s, dtype=torch.bfloat16) * 0.05)(B, S, D)),
            "w1": _w((lambda *s: torch.randn(*s, dtype=torch.bfloat16) * 0.8)(D, F) * (D ** -0.5)),
            "b1": _w((lambda *s: torch.randn(*s, dtype=torch.bfloat16) * 12.8)(F) * 0.01),
            "w2": _w((lambda *s: torch.randn(*s, dtype=torch.bfloat16) * 0.8)(F, D) * (F ** -0.5)),
            "b2": _w((lambda *s: torch.randn(*s, dtype=torch.bfloat16) * 12.8)(D) * 0.01),
        }
    _B_in = _B_setup()

    return {
        "A_x": _A_in["x"],
        "A_wqkv": _A_in["wqkv"],
        "A_wo": _A_in["wo"],
        "B_x": _B_in["x"],
        "B_w1": _B_in["w1"],
        "B_b1": _B_in["b1"],
        "B_w2": _B_in["w2"],
        "B_b2": _B_in["b2"],
    }

def reference(A_x, A_wqkv, A_wo, B_x, B_w1, B_b1, B_w2, B_b2):
    def _A_ref(x, wqkv, wo):
        B, S, D = x.shape
        H = 32; Dh = D // H
        qkv = (lambda x, *d: x.permute(*d))((x @ wqkv).reshape(B, S, 3, H, Dh), 2, 0, 3, 1, 4)
        q, k, v = qkv[0], qkv[1], qkv[2]
        scale = Dh ** -0.5
        scores = torch.einsum("bhqd,bhkd->bhqk", q, k) * scale
        p = _softmax(scores, axis=-1)
        o = torch.einsum("bhqk,bhkd->bhqd", p, v)
        return (lambda x, *d: x.permute(*d))(o, 0, 2, 1, 3).reshape(B, S, D) @ wo

    def _B_ref(x, w1, b1, w2, b2):
        h = torch.einsum("bsd,df->bsf", x, w1) + b1
        h = _gelu(h)
        return torch.einsum("bsf,fd->bsd", h, w2) + b2

    x = A_x
    xn = _layernorm(x, axis=-1)
    return x + _A_ref(xn, A_wqkv, A_wo) + _B_ref(xn, B_w1, B_b1, B_w2, B_b2)
```

```python
class Asm:
    def __init__(self):
        self.lines = []
    def __call__(self, s):
        for l in s.strip("\n").split("\n"):
            l = l.strip()
            if not l:
                continue
            if l.endswith(":") or l.startswith("."):
                self.lines.append(l)
            else:
                self.lines.append("    " + l)
    def text(self):
        return "\n".join(self.lines) + "\n"

def vr(b, n):
    return f"v[{b}:{b+n-1}]" if n > 1 else f"v{b}"
def sr(b, n):
    return f"s[{b}:{b+n-1}]" if n > 1 else f"s{b}"

def mfma(d, a, b, c=None):
    cs = vr(d, 16) if c is None else (c if isinstance(c, str) else vr(c, 16))
    return f"v_mfma_f32_32x32x16_bf16 {vr(d,16)}, {vr(a,4)}, {vr(b,4)}, {cs}"

def kernel_begin(A, name):
    A(f".globl {name}\n.p2align 8\n.type {name},@function\n{name}:")

def kernel_desc(name, nvgpr, nsgpr=96):
    acc = (nvgpr + 3) // 4 * 4
    return f""".section .rodata,"a"
.p2align 6
.amdhsa_kernel {name}
  .amdhsa_next_free_vgpr {nvgpr}
  .amdhsa_next_free_sgpr {nsgpr}
  .amdhsa_accum_offset {acc}
  .amdhsa_group_segment_fixed_size 0
  .amdhsa_kernarg_size 88
  .amdhsa_user_sgpr_count 2
  .amdhsa_user_sgpr_kernarg_segment_ptr 1
  .amdhsa_system_sgpr_workgroup_id_x 1
.end_amdhsa_kernel
"""

def f32bits(x):
    import struct
    return "0x%08x" % struct.unpack("<I", struct.pack("<f", x))[0]

WS_Q = 0
WS_K = 2 << 20
WS_V = 4 << 20
WS_ACT = 8 << 20
ACT_TB = 144 * 1024
WS_WF = 20 << 20
WS_BYTES = 24 << 20
```

```python
from asm import *
import math

LOG2E = math.log2(math.e)
XST = 16384
WBASE = 49152
WST = 32768
XS = 0
WSC = 4096
RSC = 8192

def gen_path(A, typ):
    ffn = typ == "ffn"
    ntb, ncb = (1, 3) if ffn else (2, 2)
    pitch = 3584 if ffn else 3072
    nwd = 3 if ffn else 4
    nd = 2 + nwd
    L = f"L_g1_{typ}"
    vLane, vXD0, vXD1, vWD = 1, 2, 3, 4
    XA, WA, WA2 = 8, 12, 16
    vL16, vT, vT2, vT3 = 5, 6, 7, 20
    FR = [24, 40]
    ST = 56
    ACC = 64
    RL = 128
    RL2 = 196
    BI = 136
    E = 140
    SUM = [ST + t for t in range(ntb)]
    SQ = [ST + 2 + t for t in range(ntb)]
    CS = [ST + 4 + c for c in range(4)]
    def xf(s, t): return FR[s] + 4 * t
    def wf(s, c): return FR[s] + 4 * ntb + 4 * c
    def acc(t, c): return ACC + 16 * (t * ncb + c)

    A(f"{L}:")
    if ffn:
        A("""
        s_and_b32 s41, s40, 3
        s_lshr_b32 s44, s40, 2
        s_mul_i32 s42, s44, 3
        s_lshl_b32 s43, s44, 1
        s_xor_b32 s43, s43, s41
        s_mov_b32 s45, s44
        s_mov_b32 s46, s41
        s_add_u32 s56, s64, s42
        s_lshl_b32 s56, s56, 6
        """)
    else:
        A("""
        s_and_b32 s44, s40, 1
        s_lshl_b32 s41, s44, 1
        s_lshr_b32 s45, s40, 1
        s_lshl_b32 s42, s45, 1
        s_xor_b32 s43, s41, s45
        s_mov_b32 s46, s44
        """)
    A(f"""
    s_and_b32 s47, s40, 3
    s_lshr_b32 s48, s40, 2
    s_mul_i32 s48, s48, {nwd}
    v_lshrrev_b32 v{vT}, 2, v{vLane}
    s_lshl_b32 s49, s47, 4
    v_add_u32 v{vT}, s49, v{vT}
    v_mul_u32_u24 v{vWD}, {pitch}, v{vT}
    v_and_b32 v{vT}, 3, v{vLane}
    v_lshl_add_u32 v{vWD}, v{vT}, 4, v{vWD}
    s_lshl_b32 s49, s48, 6
    v_add_u32 v{vWD}, s49, v{vWD}
    s_lshl_b32 s50, s48, 12
    s_lshl_b32 s49, s47, 10
    s_add_u32 s50, s50, s49
    s_add_u32 s50, s50, {WBASE}
    s_lshl_b32 s51, s40, 11
    """)
    def dma(c):
        s = c % 3
        A(f"""
        s_add_u32 m0, s51, {s*XST}
        s_movk_i32 s52, {c*128}
        buffer_load_dwordx4 v{vXD0}, s[20:23], s52 offen lds
        s_add_u32 m0, s51, {s*XST+1024}
        s_mov_b32 s53, {c*64*pitch}
        buffer_load_dwordx4 v{vXD1}, s[20:23], s52 offen lds
        """)
        for i in range(nwd):
            A(f"""
            s_add_u32 m0, s50, {s*WST + i*4096 - i*64}
            s_nop 0
            buffer_load_dwordx4 v{vWD}, s[24:27], s53 offen offset:{i*64} lds
            """)
    for c in range(3):
        dma(c)
    A(f"""
    v_and_b32 v{vT}, 31, v{vLane}
    v_lshrrev_b32 v{vT2}, 1, v{vT}
    v_and_b32 v{vT2}, 7, v{vT2}
    v_lshrrev_b32 v{vT3}, 5, v{vLane}
    v_xor_b32 v{vT2}, v{vT2}, v{vT3}
    s_lshl_b32 s49, s41, 12
    v_lshlrev_b32 v{vT}, 7, v{vT}
    v_add_u32 v{vT}, s49, v{vT}
    """)
    for i in range(4):
        A(f"""
        s_xor_b32 s49, s43, {i}
        s_lshl_b32 s49, s49, 1
        v_xor_b32 v{XA+i}, s49, v{vT2}
        v_lshl_add_u32 v{XA+i}, v{XA+i}, 4, v{vT}
        """)
    A(f"""
    v_lshlrev_b32 v{vT}, 3, v{vT3}
    v_bfe_u32 v{vT2}, v{vLane}, 2, 2
    v_add_u32 v{vT}, v{vT}, v{vT2}
    v_lshlrev_b32 v{vT}, 6, v{vT}
    v_bfe_u32 v{vT2}, v{vLane}, 4, 1
    v_lshl_add_u32 v{vT}, v{vT2}, 5, v{vT}
    v_and_b32 v{vT2}, 3, v{vLane}
    v_lshl_add_u32 v{vT}, v{vT2}, 3, v{vT}
    s_lshl_b32 s54, s42, 12
    s_add_u32 s54, s54, {WBASE}
    """)
    for i in range(4):
        A(f"""
        s_xor_b32 s49, s43, {i}
        s_lshl_b32 s49, s49, 10
        s_add_u32 s49, s49, s54
        v_add_u32 v{WA+i}, s49, v{vT}
        v_add_u32 v{WA2+i}, 0x10000, v{WA+i}
        """)
    for i in range(16 * ntb * ncb):
        A(f"v_mov_b32 v{ACC+i}, 0")
    for i in range(8):
        A(f"v_mov_b32 v{ST+i}, 0")
    A("s_mov_b32 s55, 0x3f803f80")

    def reads(c, i, s):
        st = c % 3
        out = []
        for t in range(ntb):
            out.append(f"ds_read_b128 {vr(xf(s,t),4)}, v{XA+i} offset:{st*XST + t*4096}")
        for cb in range(ncb):
            a, o = (WA2 + i, 0) if st == 2 else (WA + i, st * WST)
            out.append(f"ds_read_b64_tr_b16 {vr(wf(s,cb),2)}, v{a} offset:{o + cb*4096}")
            out.append(f"ds_read_b64_tr_b16 {vr(wf(s,cb)+2,2)}, v{a} offset:{o + cb*4096 + 256}")
        return out
    def mfmas(s):
        out = []
        for t in range(ntb):
            for cb in range(ncb):
                if typ == "v":
                    out.append(mfma(acc(t, cb), xf(s, t), wf(s, cb)))
                else:
                    out.append(mfma(acc(t, cb), wf(s, cb), xf(s, t)))
        return out
    def stats(i, s):
        out = []
        xs = (i <= 1) if ffn else (i == 0)
        ws = (i == 0) if ffn else (i <= 1)
        if xs:
            for t in range(ntb):
                for r in range(4):
                    out.append(f"v_dot2c_f32_bf16 v{SUM[t]}, s55, v{xf(s,t)+r}")
                    out.append(f"v_dot2c_f32_bf16 v{SQ[t]}, v{xf(s,t)+r}, v{xf(s,t)+r}")
        if ws:
            for r in range(4):
                for cb in range(ncb):
                    out.append(f"v_dot2c_f32_bf16 v{CS[cb]}, s55, v{wf(s,cb)+r}")
        return out
    def step(rd, mm):
        k = (len(rd) + len(mm) - 1) // len(mm)
        for j, m in enumerate(mm):
            A(m)
            for r in rd[j*k:(j+1)*k]:
                A(r)

    A(f"s_waitcnt vmcnt({2*nd})\ns_barrier")
    for r in reads(0, 0, 0):
        A(r)
    for c in range(8):
        for i in range(4):
            s = i & 1
            A("s_waitcnt lgkmcnt(0)")
            rd = []
            if i < 3:
                rd = reads(c, i + 1, 1 - s)
            elif c < 7:
                A(f"s_waitcnt vmcnt({nd if c + 2 <= 7 else 0})\ns_barrier")
                if c + 3 <= 7:
                    dma(c + 3)
                if c == 6:
                    for f in range(2):
                        for j in range(8):
                            op = "buffer_load_ushort"
                            row = 8 * (j // 4) + (j % 4)
                            A(f"s_add_u32 s52, s{60+f}, {row*1024}")
                            A(f"{op} v{(RL2 if j & 1 else RL) + 4*f + j//2}, v21, {sr((36,72)[f],4)}, s52 offen")
                    if ffn:
                        for cb in range(3):
                            A(f"buffer_load_ushort v{BI+cb}, v22, s[32:35], s56 offen offset:{cb*64}")
                rd = reads(c + 1, 0, 1 - s)
            step(rd, mfmas(s))
            for x in stats(i, s):
                A(x)
    A(f"""
    s_nop 3
    s_lshl_b32 s49, s41, 10
    s_lshl_b32 s52, s45, 2
    s_add_u32 s49, s49, s52
    v_add_u32 v{vT}, s49, v{vL16}
    s_lshl_b32 s49, s42, 9
    s_lshl_b32 s52, s46, 2
    s_add_u32 s49, s49, s52
    v_add_u32 v{vT2}, s49, v{vL16}
    """)
    if ffn:
        A(f"v_mov_b32 v{CS[3]}, v{CS[2]}\ns_nop 1")
    for t in range(ntb):
        A(f"v_permlane32_swap_b32 v{SUM[t]}, v{SQ[t]}")
    for p in range((ncb + 1) // 2):
        A(f"v_permlane32_swap_b32 v{CS[2*p]}, v{CS[2*p+1]}")
    A("s_nop 1")
    for t in range(ntb):
        A(f"v_add_f32 v{SUM[t]}, v{SUM[t]}, v{SQ[t]}")
        A(f"ds_write_b32 v{vT}, v{SUM[t]} offset:{XS + t*1024}")
    A(f"v_add_f32 v{CS[0]}, v{CS[0]}, v{CS[1]}")
    A(f"ds_write_b32 v{vT2}, v{CS[0]} offset:{WSC}")
    if ffn:
        A(f"""
        v_add_f32 v{CS[2]}, v{CS[2]}, v{CS[3]}
        s_mov_b32 exec_hi, 0
        ds_write_b32 v{vT2}, v{CS[2]} offset:{WSC + 1024}
        s_mov_b64 exec, -1
        """)
    A(f"""
    v_and_b32 v{vT3}, 0x1f0, v{vL16}
    s_lshl_b32 s49, s41, 10
    v_add_u32 v{vT}, s49, v{vT3}
    s_lshl_b32 s49, s42, 9
    v_add_u32 v{vT2}, s49, v{vT3}
    s_waitcnt lgkmcnt(0)
    s_barrier
    """)
    nx, nw = (2, 4) if ffn else (4, 2)
    RX = FR[0]
    RW = FR[1]
    for t in range(ntb):
        for k in range(2):
            A(f"ds_read_b{32*nx} {vr(RX+8*t+4*k, nx)}, v{vT} offset:{XS + t*1024 + k*512}")
    for cb in range(ncb):
        A(f"ds_read_b{32*nw} {vr(RW+4*cb, nw)}, v{vT2} offset:{WSC + cb*512}")
    A("s_waitcnt lgkmcnt(0)")
    XP = E
    WP = E + 8
    RS = E + 20
    A(f"s_mov_b32 s57, 0xffff0000\ns_mov_b32 s58, {f32bits(1.0/512)}")
    for t in range(ntb):
        a, b = RX + 8*t, RX + 8*t + 4
        for rr in (a, b):
            A(f"v_add_f32 v{rr}, v{rr}, v{rr+1}")
            if nx == 4:
                A(f"v_add_f32 v{rr+2}, v{rr+2}, v{rr+3}\nv_add_f32 v{rr}, v{rr}, v{rr+2}")
        A(f"""
        v_mul_f32 v{a}, s58, v{a}
        v_mul_f32 v{b}, s58, v{b}
        v_fma_f32 v{b}, -v{a}, v{a}, v{b}
        v_max_f32 v{b}, 0, v{b}
        v_cvt_pk_bf16_f32 v{b}, v{b}, v{b}
        v_and_b32 v{b}, s57, v{b}
        v_add_f32 v{b}, {f32bits(1e-5)}, v{b}
        v_cvt_pk_bf16_f32 v{b}, v{b}, v{b}
        v_and_b32 v{b}, s57, v{b}
        v_sqrt_f32 v{b}, v{b}
        v_mul_f32 v{a}, -0.5, v{a}
        v_cvt_pk_bf16_f32 v{b}, v{b}, v{b}
        v_and_b32 v{b}, s57, v{b}
        v_rcp_f32 v{RS+t}, v{b}
        v_mul_f32 v{b}, 0.5, v{b}
        v_cvt_pk_bf16_f32 v{XP+4*t}, v{a}, v{a}
        v_cvt_pk_bf16_f32 v{XP+4*t+1}, v{a}, v{b}
        v_mov_b32 v{XP+4*t+2}, 0
        v_mov_b32 v{XP+4*t+3}, 0
        """)
    A("s_waitcnt vmcnt(0)")
    for cb in range(ncb):
        a = RW + 4 * cb
        A(f"v_add_f32 v{a}, v{a}, v{a+1}")
        if nw == 4:
            A(f"v_add_f32 v{a+2}, v{a+2}, v{a+3}\nv_add_f32 v{a}, v{a}, v{a+2}")
        A(f"""
        v_and_b32 v{a+1}, s57, v{a}
        v_sub_f32 v{a}, v{a}, v{a+1}
        v_and_b32 v{a+2}, s57, v{a}
        v_sub_f32 v{a}, v{a}, v{a+2}
        v_cvt_pk_bf16_f32 v{WP+4*cb}, v{a+1}, v{a+2}
        """)
        if ffn:
            A(f"v_lshlrev_b32 v{BI+cb}, 16, v{BI+cb}\nv_cvt_pk_bf16_f32 v{WP+4*cb+1}, v{a}, v{BI+cb}")
        else:
            A(f"v_cvt_pk_bf16_f32 v{WP+4*cb+1}, v{a}, 0")
        A(f"v_mov_b32 v{WP+4*cb+2}, 0\nv_mov_b32 v{WP+4*cb+3}, 0")
    for i in range(8):
        A(f"v_lshl_or_b32 v{RL+i}, v{RL2+i}, 16, v{RL+i}")
    A(f"""
    buffer_store_dwordx4 {vr(RL,4)}, v{vL16}, s[28:31], s62 offen
    buffer_store_dwordx4 {vr(RL+4,4)}, v{vL16}, s[28:31], s63 offen
    """)
    for t in range(ntb):
        for cb in range(ncb):
            if typ == "v":
                A(mfma(acc(t, cb), XP + 4*t, WP + 4*cb))
            else:
                A(mfma(acc(t, cb), WP + 4*cb, XP + 4*t))
    PK = FR[0]
    if typ == "qk":
        A(f"""
        v_mul_f32 v{RS}, s59, v{RS}
        v_mul_f32 v{RS+1}, s59, v{RS+1}
        s_add_u32 s49, s65, s41
        s_lshl_b32 s49, s49, 10
        s_add_u32 s49, s49, s64
        s_lshl_b32 s52, s42, 17
        s_add_u32 s49, s49, s52
        s_nop 7
        """)
        n = 0
        for t in range(ntb):
            for cb in range(ncb):
                a = acc(t, cb)
                pk = PK + 8 * (n & 3); n += 1
                for r in range(16):
                    A(f"v_mul_f32 v{a+r}, v{a+r}, v{RS+t}")
                for r in range(8):
                    A(f"v_cvt_pk_bf16_f32 v{pk+r}, v{a+2*r}, v{a+2*r+1}")
                for hh in range(2):
                    A(f"s_add_u32 s52, s49, {cb*131072 + hh*65536 + t*1024}")
                    A(f"buffer_store_dwordx4 {vr(pk+4*hh,4)}, v{vL16}, s[28:31], s52 offen")
    elif typ == "v":
        RT = E + 24
        A(f"""
        s_lshl_b32 s49, s40, 8
        s_add_u32 s49, s49, {RSC}
        v_and_b32 v{vT}, 31, v{vLane}
        v_lshl_add_u32 v{vT}, v{vT}, 2, s49
        ds_write_b32 v{vT}, v{RS}
        ds_write_b32 v{vT}, v{RS+1} offset:128
        v_lshrrev_b32 v{vT}, 5, v{vLane}
        v_lshl_add_u32 v{vT2}, v{vT}, 4, s49
        s_waitcnt lgkmcnt(0)
        """)
        for t in range(ntb):
            for g in range(4):
                A(f"ds_read_b128 {vr(RT+16*t+4*g,4)}, v{vT2} offset:{t*128 + g*32}")
        A(f"""
        v_bfe_u32 v{vT2}, v{vLane}, 4, 1
        v_lshlrev_b32 v{vT2}, 16, v{vT2}
        v_lshl_add_u32 v{vT2}, v{vT}, 8, v{vT2}
        v_and_b32 v{vT}, 15, v{vLane}
        v_lshl_add_u32 v{vT2}, v{vT}, 4, v{vT2}
        s_add_u32 s49, s65, s41
        s_lshl_b32 s49, s49, 10
        s_add_u32 s49, s49, s64
        s_lshl_b32 s52, s42, 17
        s_add_u32 s49, s49, s52
        s_waitcnt lgkmcnt(0)
        """)
        n = 0
        for t in range(ntb):
            for cb in range(ncb):
                a = acc(t, cb)
                pk = PK + 8 * (n & 3); n += 1
                for r in range(16):
                    A(f"v_mul_f32 v{a+r}, v{a+r}, v{RT+16*t+r}")
                for r in range(8):
                    A(f"v_cvt_pk_bf16_f32 v{pk+r}, v{a+2*r}, v{a+2*r+1}")
                A(f"s_add_u32 s52, s49, {cb*131072 + t*1024}")
                for mm in range(2):
                    A(f"buffer_store_dwordx4 {vr(pk+4*mm,4)}, v{vT2}, s[28:31], s52 offen offset:{mm*512}")
    else:
        c1 = -2.0 * LOG2E * math.sqrt(2.0 / math.pi)
        c3 = c1 * 0.044715
        A(f"""
        s_add_u32 s49, s65, s41
        s_mul_i32 s49, s49, {ACT_TB}
        s_add_u32 s52, s64, s42
        s_lshl_b32 s52, s52, 11
        s_add_u32 s49, s49, s52
        s_add_u32 s49, s49, {WS_ACT + 32*1024}
        s_mov_b32 s58, {f32bits(c3)}
        v_mov_b32 v{vT}, {f32bits(c1)}
        s_nop 7
        """)
        G = E + 24
        for cb in range(ncb):
            a = acc(0, cb)
            pk = PK + 8 * cb
            for r in range(16):
                A(f"v_mul_f32 v{a+r}, v{a+r}, v{RS}")
            for r in range(16):
                A(f"v_mul_f32 v{G+r}, v{a+r}, v{a+r}")
            for r in range(16):
                A(f"v_fma_f32 v{G+r}, v{G+r}, s58, v{vT}")
            for r in range(16):
                A(f"v_mul_f32 v{G+r}, v{G+r}, v{a+r}")
            for r in range(16):
                A(f"v_exp_f32 v{G+r}, v{G+r}")
            for r in range(16):
                A(f"v_add_f32 v{G+r}, 1.0, v{G+r}")
            for r in range(16):
                A(f"v_rcp_f32 v{G+r}, v{G+r}")
            for r in range(16):
                A(f"v_mul_f32 v{a+r}, v{a+r}, v{G+r}")
            for r in range(8):
                A(f"v_cvt_pk_bf16_f32 v{pk+r}, v{a+2*r}, v{a+2*r+1}")
            A(f"s_add_u32 s52, s49, {cb*2048}")
            for hh in range(2):
                A(f"buffer_store_dwordx4 {vr(pk+4*hh,4)}, v{vL16}, s[28:31], s52 offen offset:{hh*1024}")
    A("s_endpgm")

def gen_gemm1(A, name="gemm1_kernel"):
    kernel_begin(A, name)
    A(f"""
    s_cmp_ge_u32 s2, 256
    s_cbranch_scc1 L_g1_end
    s_load_dwordx4 s[4:7], s[0:1], 0
    s_load_dwordx2 s[8:9], s[0:1], 16
    s_load_dwordx4 s[12:15], s[0:1], 32
    s_load_dwordx2 s[10:11], s[0:1], 48
    s_load_dwordx2 s[16:17], s[0:1], 80
    v_and_b32 v1, 63, v0
    v_lshrrev_b32 v6, 6, v0
    v_lshlrev_b32 v5, 4, v1
    v_readfirstlane_b32 s40, v6
    s_and_b32 s66, s2, 7
    s_lshr_b32 s67, s2, 3
    s_and_b32 s68, s66, 1
    s_lshl_b32 s68, s68, 3
    s_and_b32 s69, s67, 7
    s_add_u32 s68, s68, s69
    s_lshr_b32 s69, s67, 3
    s_lshl_b32 s69, s69, 2
    s_lshr_b32 s66, s66, 1
    s_add_u32 s69, s69, s66
    s_lshl_b32 s65, s68, 2
    """)
    A(f"""
    v_lshrrev_b32 v6, 3, v1
    s_lshl_b32 s49, s40, 4
    v_add_u32 v6, s49, v6
    v_lshlrev_b32 v6, 10, v6
    v_and_b32 v7, 7, v1
    v_lshrrev_b32 v20, 4, v1
    v_xor_b32 v7, v7, v20
    v_lshl_add_u32 v2, v7, 4, v6
    v_xor_b32 v7, 4, v7
    v_lshl_add_u32 v3, v7, 4, v6
    v_add_u32 v3, 0x2000, v3
    v_and_b32 v22, 31, v1
    v_lshlrev_b32 v22, 1, v22
    v_lshrrev_b32 v21, 5, v1
    v_lshl_add_u32 v21, v21, 12, v22
    s_mov_b32 s22, 0x20000
    s_mov_b32 s23, 0x00020000
    s_mov_b32 s27, 0x00020000
    s_mov_b32 s30, {WS_BYTES}
    s_mov_b32 s31, 0x00020000
    s_mov_b32 s34, 3584
    s_mov_b32 s35, 0x00020000
    s_mov_b32 s39, 0x00020000
    s_mov_b32 s75, 0x00020000
    s_mov_b32 s70, 524288
    s_lshl_b32 s49, s68, 17
    s_waitcnt lgkmcnt(0)
    s_add_u32 s20, s4, s49
    s_addc_u32 s21, s5, 0
    s_mov_b32 s28, s16
    s_mov_b32 s29, s17
    s_mov_b32 s32, s14
    s_mov_b32 s33, s15
    """)
    for f in range(2):
        b = (36, 72)[f]
        A(f"s_mul_i32 s49, s2, 9")
        A("s_add_u32 s49, s49, s40" if f == 0 else "s_add_u32 s49, s49, 8")
        A(f"""
        s_lshl_b32 s{62+f}, s49, 10
        s_add_u32 s{62+f}, s{62+f}, {WS_WF}
        s_and_b32 s52, s49, 15
        s_lshl_b32 s52, s52, 6
        s_lshr_b32 s49, s49, 4
        s_sub_u32 s53, s49, 32
        s_cmp_lt_u32 s49, 32
        s_cselect_b32 s{b}, s8, s10
        s_cselect_b32 s{b+1}, s9, s11
        s_cselect_b32 s{b+2}, s70, 1835008
        s_cselect_b32 s49, s49, s53
        s_lshl_b32 s49, s49, 14
        s_add_u32 s{60+f}, s49, s52
        """)
    A(f"""
    s_cmp_eq_u32 s40, 0
    s_cselect_b32 s61, s61, 0x70000000
    s_cselect_b32 s63, s63, 0x70000000
    s_cmp_lt_u32 s69, 6
    s_cbranch_scc0 L_g1_sel_ffn
    s_lshl_b32 s49, s69, 9
    s_add_u32 s24, s6, s49
    s_addc_u32 s25, s7, 0
    s_sub_u32 s26, {512*3072}, s49
    s_lshl_b32 s64, s69, 20
    s_cmp_lt_u32 s69, 2
    s_cselect_b32 s59, {f32bits(LOG2E/4)}, 1.0
    s_cmp_lt_u32 s69, 4
    s_cbranch_scc1 L_g1_qk
    s_branch L_g1_v
    L_g1_sel_ffn:
    s_sub_u32 s64, s69, 6
    s_mul_i32 s64, s64, 6
    s_min_u32 s64, s64, 50
    s_lshl_b32 s49, s64, 6
    s_add_u32 s24, s12, s49
    s_addc_u32 s25, s13, 0
    s_sub_u32 s26, {512*3584}, s49
    """)
    gen_path(A, "ffn")
    gen_path(A, "qk")
    gen_path(A, "v")
    A("L_g1_end:\ns_endpgm")
    return kernel_desc(name, 204), f"; @launch kernel={name} grid=(256,1,1) block=(512,1,1) lds={WBASE+3*WST}"
```

```python
from asm import *

def gen_attn(A, name="attn_kernel"):
    vLane16, vK, vV, vVg = 3, 5, 4, 6
    Q, K, Va, Vb, P, C, O = 8, 12, 16, 20, 24, 32, 48
    S = [64, 80]
    T0, T1, T2 = 96, 97, 98
    kernel_begin(A, name)
    A(f"""
    s_cmp_ge_u32 s2, 256
    s_cbranch_scc1 L_at_end
    s_load_dwordx2 s[4:5], s[0:1], 80
    s_and_b32 s6, s2, 7
    s_lshr_b32 s7, s2, 3
    s_lshr_b32 s8, s7, 3
    s_lshl_b32 s6, s6, 2
    s_add_u32 s6, s6, s8
    s_and_b32 s7, s7, 7
    v_and_b32 v1, 63, v0
    v_lshrrev_b32 v2, 6, v0
    v_lshlrev_b32 v{vLane16}, 4, v1
    v_readfirstlane_b32 s9, v2
    v_and_b32 v{vVg}, 15, v1
    v_lshlrev_b32 v{vVg}, 4, v{vVg}
    v_lshrrev_b32 v7, 5, v1
    v_lshl_add_u32 v{vVg}, v7, 8, v{vVg}
    v_add_u32 v{vV}, 0x10000, v{vVg}
    v_mov_b32 v{vK}, v{vLane16}
    s_lshl_b32 s8, s6, 16
    s_lshl_b32 s10, s7, 3
    s_add_u32 s10, s10, s9
    s_lshl_b32 s24, s10, 10
    s_add_u32 s24, s24, s8
    s_lshl_b32 s30, s9, 10
    s_mov_b32 s26, 0x0000ffff
    s_mov_b32 s27, 0x0000ffff
    s_mov_b32 s14, 0x10000
    s_mov_b32 s15, 0x00020000
    s_mov_b32 s18, 0x10000
    s_mov_b32 s19, 0x00020000
    s_mov_b32 s22, {WS_BYTES}
    s_mov_b32 s23, 0x00020000
    s_add_u32 s11, s8, {WS_K}
    s_add_u32 s8, s8, {WS_V}
    s_waitcnt lgkmcnt(0)
    s_mov_b32 s20, s4
    s_mov_b32 s21, s5
    s_add_u32 s12, s4, s11
    s_addc_u32 s13, s5, 0
    s_add_u32 s16, s4, s8
    s_addc_u32 s17, s5, 0
    buffer_load_dwordx4 {vr(Q,4)}, v{vLane16}, s[20:23], s24 offen
    """)
    def dma_chunk():
        A(f"""
        s_and_b32 s28, s30, 0xffff
        s_mov_b32 m0, s28
        s_add_u32 s28, s28, 0x10000
        buffer_load_dwordx4 v{vLane16}, s[12:15], s30 offen lds
        s_mov_b32 m0, s28
        s_nop 0
        buffer_load_dwordx4 v{vLane16}, s[16:19], s30 offen lds
        s_add_u32 s30, s30, 8192
        """)
    for _ in range(3):
        dma_chunk()
    A(f"""
    v_and_b32 v7, 27, v1
    v_mov_b32 v{T0}, 0x3f803f80
    v_cmp_eq_u32 vcc, 16, v7
    s_nop 1
    v_cndmask_b32 v{Va}, 0, v{T0}, vcc
    """)
    for i in range(1, 8):
        A(f"v_mov_b32 v{Va+i}, v{Va}")
    for i in range(16):
        A(f"v_mov_b32 v{O+i}, 0")
    for i in range(4, 8):
        A(f"v_mov_b32 v{P+i}, 0")
    A(f"""
    s_waitcnt vmcnt(4)
    s_barrier
    ds_read_b128 {vr(K,4)}, v{vK}
    s_waitcnt lgkmcnt(0)
    {mfma(S[0], K, Q, "0")}
    s_nop 15
    s_nop 3
    """)
    def rowmax(src, dst):
        A(f"v_max3_f32 v{dst}, v{src}, v{src+1}, v{src+2}")
        for i in range(3, 15, 2):
            A(f"v_max3_f32 v{dst}, v{dst}, v{src+i}, v{src+i+1}")
        A(f"""
        v_max_f32 v{dst}, v{dst}, v{src+15}
        v_mov_b32 v{T1}, v{dst}
        s_nop 1
        v_permlane32_swap_b32 v{dst}, v{T1}
        s_nop 1
        v_max_f32 v{dst}, v{dst}, v{T1}
        """)
    rowmax(S[0], T0)
    A(f"v_sub_f32 v{C}, 0, v{T0}")
    for i in range(1, 16):
        A(f"v_mov_b32 v{C+i}, v{C}")
    A(f"""
    s_nop 1
    {mfma(S[0], K, Q, C)}
    ds_read_b128 {vr(K,4)}, v{vK} offset:1024
    s_mov_b64 exec, s[26:27]
    ds_read_b128 {vr(Va,4)}, v{vV}
    s_mov_b64 exec, -1
    s_mov_b32 s25, 8
    s_waitcnt lgkmcnt(0)
    s_nop 15
    .p2align 6
    L_at_loop:
    """)
    def ex(s, i): return f"v_exp_f32 v{s+i}, v{s+i}"
    def cv(s, i): return f"v_cvt_pk_bf16_f32 v{P+i}, v{s+2*i}, v{s+2*i+1}"
    for j in range(8):
        cur, nxt = S[j & 1], S[1 - (j & 1)]
        if j == 6:
            A("s_waitcnt vmcnt(2)\ns_barrier")
            dma_chunk()
        A(f"""
        s_waitcnt lgkmcnt(2)
        {mfma(nxt, K, Q, C)}
        ds_read_b128 {vr(K,4)}, v{vK} offset:{(j+2)*1024}
        {ex(cur,0)}
        {ex(cur,1)}
        {ex(cur,2)}
        {ex(cur,3)}
        s_waitcnt lgkmcnt(2)
        {mfma(O, Vb, P+4)}
        s_mov_b64 exec, s[26:27]
        ds_read_b128 {vr(Vb,4)}, v{vV} offset:{j*1024+512}
        s_mov_b64 exec, -1
        {ex(cur,4)}
        {cv(cur,0)}
        {ex(cur,5)}
        {cv(cur,1)}
        {ex(cur,6)}
        {ex(cur,7)}
        {ex(cur,8)}
        {cv(cur,2)}
        {ex(cur,9)}
        {cv(cur,3)}
        {ex(cur,10)}
        {ex(cur,11)}
        s_waitcnt lgkmcnt(2)
        {mfma(O, Va, P)}
        s_mov_b64 exec, s[26:27]
        ds_read_b128 {vr(Va,4)}, v{vV} offset:{(j+1)*1024}
        s_mov_b64 exec, -1
        {ex(cur,12)}
        {cv(cur,4)}
        {ex(cur,13)}
        {cv(cur,5)}
        {ex(cur,14)}
        {ex(cur,15)}
        {cv(cur,6)}
        {cv(cur,7)}
        """)
    A(f"""
    v_add_u32 v{vK}, 0x2000, v{vK}
    v_add_u32 v{vV}, 0x2000, v{vV}
    s_sub_u32 s25, s25, 1
    s_cmp_lg_u32 s25, 0
    s_cbranch_scc1 L_at_loop
    s_waitcnt lgkmcnt(0)
    {mfma(O, Vb, P+4)}
    s_nop 15
    s_nop 3
    v_add_f32 v{T0}, abs(v{O}), abs(v{O+1})
    """)
    for i in range(2, 9):
        A(f"v_add_f32 v{T0}, v{T0}, abs(v{O+i})")
    A(f"""
    v_mov_b32 v{T1}, 0x7f000000
    v_cmp_lt_f32 vcc, v{T0}, v{T1}
    s_nop 4
    s_cmp_eq_u64 vcc, -1
    s_cbranch_scc0 L_at_fallback
    L_at_fin:
    v_rcp_f32 v{T0}, v{O+8}
    s_mul_i32 s24, s10, {ACT_TB}
    s_lshl_b32 s28, s6, 10
    s_add_u32 s24, s24, s28
    s_add_u32 s24, s24, {WS_ACT}
    """)
    for i in range(8):
        A(f"v_mul_f32 v{O+i}, v{O+i}, v{T0}")
    for i in range(4):
        A(f"v_cvt_pk_bf16_f32 v{P+i}, v{O+2*i}, v{O+2*i+1}")
    A(f"""
    buffer_store_dwordx4 {vr(P,4)}, v{vLane16}, s[20:23], s24 offen
    L_at_end:
    s_endpgm
    """)
    A(f"""
    L_at_fallback:
    v_mov_b32 v{C}, 0xff7fffff
    """)
    for i in range(16):
        A(f"v_mov_b32 v{O+i}, 0")
    A(f"""
    s_mov_b32 s25, 0
    L_at_fb_loop:
    buffer_load_dwordx4 {vr(K,4)}, v{vLane16}, s[12:15], s25 offen
    s_mov_b64 exec, s[26:27]
    buffer_load_dwordx4 {vr(Va,4)}, v{vVg}, s[16:19], s25 offen
    buffer_load_dwordx4 {vr(Vb,4)}, v{vVg}, s[16:19], s25 offen offset:512
    s_mov_b64 exec, -1
    s_waitcnt vmcnt(0)
    {mfma(S[0], K, Q, "0")}
    s_nop 15
    s_nop 3
    """)
    rowmax(S[0], T0)
    A(f"""
    v_max_f32 v{T0}, v{T0}, v{C}
    v_sub_f32 v{T2}, v{C}, v{T0}
    v_exp_f32 v{T2}, v{T2}
    v_mov_b32 v{C}, v{T0}
    """)
    for i in range(16):
        A(f"v_mul_f32 v{O+i}, v{O+i}, v{T2}")
    for i in range(16):
        A(f"v_sub_f32 v{S[0]+i}, v{S[0]+i}, v{T0}")
    for i in range(16):
        A(ex(S[0], i))
    A("s_nop 0")
    for i in range(8):
        A(cv(S[0], i))
    A(f"""
    s_nop 1
    {mfma(O, Va, P)}
    {mfma(O, Vb, P+4)}
    s_nop 15
    s_nop 3
    s_add_u32 s25, s25, 1024
    s_cmp_lt_u32 s25, 0x10000
    s_cbranch_scc1 L_at_fb_loop
    s_branch L_at_fin
    """)
    return kernel_desc(name, 100), f"; @launch kernel={name} grid=(256,1,1) block=(512,1,1) lds={131072+2048}"
```

```python
from asm import *

def gen_out(A, name="out_kernel", ks0=0, nks=144):
    per = nks // 8
    ACC, FB, DEPTH = 64, 128, 4
    kernel_begin(A, name)
    A(f"""
    s_cmp_ge_u32 s2, 256
    s_cbranch_scc1 L_o_end
    s_load_dwordx2 s[4:5], s[0:1], 0
    s_load_dwordx4 s[8:11], s[0:1], 56
    s_load_dwordx2 s[6:7], s[0:1], 80
    v_and_b32 v1, 63, v0
    v_lshrrev_b32 v2, 6, v0
    v_lshlrev_b32 v3, 4, v1
    v_readfirstlane_b32 s40, v2
    v_add_u32 v4, {ACT_TB}, v3
    s_and_b32 s41, s2, 7
    s_lshr_b32 s42, s2, 3
    s_lshl_b32 s41, s41, 2
    s_and_b32 s43, s42, 3
    s_add_u32 s41, s41, s43
    s_lshr_b32 s42, s42, 2
    s_mul_i32 s44, s40, {per}
    s_add_u32 s44, s44, {ks0}
    s_mul_i32 s45, s41, {2*ACT_TB}
    s_lshl_b32 s46, s44, 10
    s_add_u32 s45, s45, s46
    s_add_u32 s45, s45, {WS_ACT}
    s_lshl_b32 s46, s44, 14
    s_lshl_b32 s47, s42, 11
    s_add_u32 s46, s46, s47
    s_add_u32 s46, s46, {WS_WF}
    s_mov_b32 s14, {WS_BYTES}
    s_mov_b32 s15, 0x00020000
    s_mov_b32 s18, 0x200000
    s_mov_b32 s19, 0x00020000
    s_mov_b32 s22, 1024
    s_mov_b32 s23, 0x00020000
    s_mov_b32 s26, 0x200000
    s_mov_b32 s27, 0x00020000
    s_waitcnt lgkmcnt(0)
    s_mov_b32 s12, s6
    s_mov_b32 s13, s7
    s_mov_b32 s16, s4
    s_mov_b32 s17, s5
    s_mov_b32 s20, s8
    s_mov_b32 s21, s9
    s_mov_b32 s24, s10
    s_mov_b32 s25, s11
    """)
    def loads(st):
        b = FB + 16 * (st % DEPTH)
        A(f"""
        buffer_load_dwordx4 {vr(b,4)}, v3, s[12:15], s46 offen
        buffer_load_dwordx4 {vr(b+8,4)}, v3, s[12:15], s45 offen
        buffer_load_dwordx4 {vr(b+4,4)}, v3, s[12:15], s46 offen offset:1024
        buffer_load_dwordx4 {vr(b+12,4)}, v4, s[12:15], s45 offen
        s_add_u32 s45, s45, 1024
        s_add_u32 s46, s46, 16384
        """)
    A(f"""
    s_lshr_b32 s48, s40, 1
    s_and_b32 s49, s48, 1
    s_lshr_b32 s50, s48, 1
    s_and_b32 s51, s40, 1
    s_lshl_b32 s52, s41, 6
    s_lshl_b32 s53, s49, 5
    s_add_u32 s52, s52, s53
    v_and_b32 v5, 31, v1
    v_add_u32 v5, s52, v5
    v_lshlrev_b32 v5, 10, v5
    s_lshl_b32 s52, s42, 7
    s_lshl_b32 s53, s50, 6
    s_add_u32 s52, s52, s53
    s_lshl_b32 s53, s51, 5
    s_add_u32 s52, s52, s53
    v_lshrrev_b32 v6, 5, v1
    v_lshl_add_u32 v6, v6, 3, s52
    v_add_u32 v5, v5, v6
    buffer_load_dwordx2 v[8:9], v5, s[16:19], 0 offen
    buffer_load_dwordx2 v[10:11], v5, s[16:19], 0 offen offset:16
    buffer_load_dwordx2 v[12:13], v6, s[20:23], 0 offen
    buffer_load_dwordx2 v[14:15], v6, s[20:23], 0 offen offset:16
    """)
    for st in range(min(DEPTH, per)):
        loads(st)
    for i in range(64):
        A(f"v_mov_b32 v{ACC+i}, 0")
    for st in range(per):
        rem = min(per - 1 - st, DEPTH - 1)
        b = FB + 16 * (st % DEPTH)
        A(f"s_waitcnt vmcnt({4*rem})")
        for cbi in range(2):
            for tbi in range(2):
                A(mfma(ACC + 16 * (2*cbi + tbi), b + 4*cbi, b + 8 + 4*tbi))
        if st + DEPTH < per:
            loads(st + DEPTH)
    A(f"""
    s_lshl_b32 s52, s40, 14
    v_add_u32 v7, s52, v3
    s_lshl_b32 s52, s40, 11
    v_add_u32 v16, s52, v3
    v_add_u32 v17, 0x10000, v16
    s_nop 15
    """)
    for q in range(16):
        A(f"ds_write_b128 v7, {vr(ACC+4*q,4)} offset:{q*1024}")
    A("s_waitcnt lgkmcnt(0)\ns_barrier")
    for src in range(8):
        for g in range(2):
            a = 16 if src < 4 else 17
            A(f"ds_read_b128 {vr(FB+8*src+4*g,4)}, v{a} offset:{(src%4)*16384 + g*1024}")
    A("s_mov_b32 s57, 0xffff0000")
    for g in range(2):
        for d in range(2):
            A(f"""
            v_lshlrev_b32 v{20+4*g+2*d}, 16, v{8+2*g+d}
            v_and_b32 v{21+4*g+2*d}, s57, v{8+2*g+d}
            v_lshlrev_b32 v{28}, 16, v{12+2*g+d}
            v_and_b32 v{29}, s57, v{12+2*g+d}
            v_add_f32 v{20+4*g+2*d}, v{20+4*g+2*d}, v28
            v_add_f32 v{21+4*g+2*d}, v{21+4*g+2*d}, v29
            """)
    for src in range(8):
        A(f"s_waitcnt lgkmcnt({14-2*src})")
        for i in range(8):
            A(f"v_add_f32 v{20+i}, v{20+i}, v{FB+8*src+i}")
    for i in range(4):
        A(f"v_cvt_pk_bf16_f32 v{30+i}, v{20+2*i}, v{21+2*i}")
    A(f"""
    buffer_store_dwordx2 v[30:31], v5, s[24:27], 0 offen
    buffer_store_dwordx2 v[32:33], v5, s[24:27], 0 offen offset:16
    L_o_end:
    s_endpgm
    """)
    return kernel_desc(name, 192), f"; @launch kernel={name} grid=(256,1,1) block=(512,1,1) lds=131072"
```

```python
import sys
sys.path.insert(0, "gen")
from asm import *
from k1_gemm import gen_gemm1
from k2_attn import gen_attn
from k3_out import gen_out

NAME = "parallel_sum__softmax_full_mha__dense_activation_gelu__prompt"
def build(path):
    A = Asm()
    parts = [gen_gemm1(A), gen_attn(A), gen_out(A)]
    head = open(f"cdna_kernels/{NAME}.s.ref").read().split("; Override launch")[0]
    s = head + "".join(p[1] + "\n" for p in parts)
    s += '.amdgcn_target "amdgcn-amd-amdhsa--gfx950"\n.text\n' + A.text() + "".join(p[0] for p in parts)
    open(path, "w").write(s)
if __name__ == "__main__":
    build(sys.argv[1] if len(sys.argv) > 1 else f"cdna_kernels/{NAME}.s")
```

```python
class Asm:
    def __init__(self):
        self.lines = []
    def __call__(self, s):
        for l in s.strip("\n").split("\n"):
            l = l.strip()
            if not l:
                continue
            if l.endswith(":") or l.startswith("."):
                self.lines.append(l)
            else:
                self.lines.append("    " + l)
    def region(self, name):
        self.lines.append(f";@region {name}")
    def text(self):
        return "\n".join(self.lines) + "\n"

def vr(b, n):
    return f"v[{b}:{b+n-1}]" if n > 1 else f"v{b}"
def sr(b, n):
    return f"s[{b}:{b+n-1}]" if n > 1 else f"s{b}"

def mfma(d, a, b, c=None):
    cs = vr(d, 16) if c is None else (c if isinstance(c, str) else vr(c, 16))
    return f"v_mfma_f32_32x32x16_bf16 {vr(d,16)}, {vr(a,4)}, {vr(b,4)}, {cs}"

def kernel_begin(A, name):
    A(f".globl {name}\n.p2align 8\n.type {name},@function\n{name}:")

def kernel_desc(name, nvgpr, nsgpr=80):
    if STAMPS:
        nvgpr, nsgpr = 256, 102
    acc = (nvgpr + 3) // 4 * 4
    return f""".section .rodata,"a"
.p2align 6
.amdhsa_kernel {name}
  .amdhsa_next_free_vgpr {nvgpr}
  .amdhsa_next_free_sgpr {nsgpr}
  .amdhsa_accum_offset {acc}
  .amdhsa_group_segment_fixed_size 0
  .amdhsa_kernarg_size 88
  .amdhsa_user_sgpr_count 2
  .amdhsa_user_sgpr_kernarg_segment_ptr 1
  .amdhsa_system_sgpr_workgroup_id_x 1
.end_amdhsa_kernel
"""

def f32bits(x):
    import struct
    return "0x%08x" % struct.unpack("<I", struct.pack("<f", x))[0]

WS_Q = 0
WS_K = 2 << 20
WS_V = 4 << 20
WS_ACT = 8 << 20
ACT_TB = 144 * 1024
WS_WF = 20 << 20
WS_BYTES = 24 << 20

WS_STAMP = 23 << 20
STAMPS = False
def stamp(A, i, real=False):
    if not STAMPS:
        return
    A(f"{'s_memrealtime' if real else 's_memtime'} s[80:81]\ns_waitcnt lgkmcnt(0)\nv_writelane_b32 v250, s80, {i}")
def stamp_flush(A, kidx, srd, wave_sgpr, n=16, vt=250):
    if not STAMPS:
        return
    A(f"""
    v_mbcnt_lo_u32_b32 v{vt+1}, -1, 0
    v_mbcnt_hi_u32_b32 v{vt+1}, -1, v{vt+1}
    v_lshlrev_b32 v{vt+1}, 2, v{vt+1}
    s_lshl_b32 s82, s2, 4
    s_add_u32 s82, s82, s{wave_sgpr}
    s_lshl_b32 s82, s82, 6
    s_add_u32 s82, s82, {WS_STAMP + kidx*262144}
    s_mov_b64 exec, 0xffff
    buffer_store_dword v{vt}, v{vt+1}, s[{srd}:{srd+3}], s82 offen
    s_mov_b64 exec, -1
    """)

class VmQ:
    def __init__(self, A):
        self.A, self.q = A, []
    def issue(self, text, tag):
        self.A(text)
        self.q.append(tag)
    def wait(self, *tags):
        idx = max((i for i, t in enumerate(self.q) if t in tags), default=-1)
        if idx < 0:
            return
        n = len(self.q) - 1 - idx
        assert n <= 63
        self.A(f"s_waitcnt vmcnt({n})")
        self.q = self.q[idx + 1:]
    def drain(self):
        self.A("s_waitcnt vmcnt(0)")
        self.q = []

WS_CTL = 20 << 20
WS_F2 = WS_CTL + 4096
WS_F3 = WS_CTL + 8192
WS_FR = WS_CTL + 16384
WS_XG = 21 << 20
WS_CG = WS_XG + (512 << 10)

def insert_pads(lines, spacing, assemble):
    import re
    sizes = assemble(lines)
    out, reg, acc, pads = [], None, 0, []
    def close():
        for k, idx in enumerate(pads):
            tgt = f"PAD_{reg}_{k+1}" if k + 1 < len(pads) else "L_tour_ret"
            lab = f"TOUR_{reg}" if k == 0 else f"PAD_{reg}_{k}"
            out[idx] = f"{lab}:\n    s_cbranch_execz {tgt}"
    n = len(lines)
    for i, l in enumerate(lines):
        m = re.match(r";@region (\S+)", l)
        if m:
            if reg:
                close()
            reg = None if m.group(1) == "None" else m.group(1)
            pads, acc = [], 0
            if reg:
                pads.append(len(out)); out.append("")
            continue
        out.append(l)
        acc += sizes[i]
        if reg and acc >= spacing and sizes[i]:
            near = any("v_mfma" in x for x in lines[i+1:i+14])
            nxt = next((x for x in lines[i+1:] if x.startswith("    ")), "")
            if near and not ("v_mfma" in l and nxt.strip().startswith("v_") and "v_mfma" not in nxt) and acc < spacing + 200:
                continue
            pads.append(len(out)); out.append("")
            acc = 0
    if reg:
        close()
    return out
```

```python
from asm import *
import asm, math, os
OPT = os.environ.get('MOPT', '').split(',')
def optval(k, d):
    for o in OPT:
        if o.startswith(k + "="):
            return o.split("=")[1]
    return d
LOG2E = math.log2(math.e)

XST, WBASE, WST = 16384, 49152, 28672
VST = 1056
LDS_V = 65536
QA = LDS_V + 66 * VST
CTL = QA + 3 * 8192
LDS_BYTES = 163840
C_KV, C_Q, C_H = CTL, CTL + 64, CTL + 96
T_XP, T_RS, T_WP = CTL + 128, CTL + 128 + 1024, CTL + 128 + 2048
T_PART = QA

sWAVE, sW4, sTBK, sG, sTYPE, sHEAD, sQB, sTB2, sNB, sC = range(64, 74)
SRD_K, SRD_V = 84, 88

def prologue(A):
    A("s_cmp_ge_u32 s2, 256\ns_cbranch_scc1 L_end")
    stamp(A, 0, True); stamp(A, 1)
    A(f"""
    s_load_dwordx16 s[4:19], s[0:1], 0
    s_load_dwordx4 s[20:23], s[0:1], 64
    s_load_dwordx2 s[24:25], s[0:1], 80
    s_getpc_b64 s[44:45]
    L_pc:
    s_mov_b32 s46, L_code_end-L_pc
    s_mov_b32 s47, 0x00020000
    v_lshlrev_b32 v5, 6, v0
    buffer_load_dword v253, v5, s[44:47], 0 offen
    v_and_b32 v1, 63, v0
    v_lshrrev_b32 v2, 6, v0
    v_lshlrev_b32 v3, 4, v1
    v_readfirstlane_b32 s{sWAVE}, v2
    v_mov_b32 v4, 0
    s_and_b32 s74, s2, 7
    s_lshr_b32 s75, s2, 3
    s_and_b32 s{sQB}, s75, 7
    s_and_b32 s77, s74, 1
    s_lshl_b32 s77, s77, 3
    s_add_u32 s{sTBK}, s77, s{sQB}
    s_lshr_b32 s77, s75, 3
    s_lshr_b32 s{sTYPE}, s77, 1
    s_and_b32 s78, s77, 1
    s_and_b32 s{sG}, s74, 6
    s_add_u32 s{sG}, s{sG}, s78
    s_lshl_b32 s74, s74, 2
    s_add_u32 s{sHEAD}, s74, s77
    s_and_b32 s78, s75, 3
    s_add_u32 s{sTB2}, s74, s78
    s_lshr_b32 s{sNB}, s75, 2
    """)
    rot = optval("rot", "grp")
    if rot == "grp":
        A(f"s_lshl_b32 s{sC}, s77, 1")
    elif rot == "tbk":
        A(f"s_mov_b32 s{sC}, s{sQB}")
    elif rot == "full":
        A(f"s_lshl_b32 s{sC}, s77, 1\ns_add_u32 s{sC}, s{sC}, s{sQB}\ns_and_b32 s{sC}, s{sC}, 7")
    elif rot == "mix":
        A(f"s_lshl_b32 s{sC}, s77, 1\ns_and_b32 s78, s{sQB}, 1\ns_add_u32 s{sC}, s{sC}, s78")
    else:
        A(f"s_mov_b32 s{sC}, 0")
    A(f"""
    s_and_b32 s{sW4}, s{sWAVE}, 3
    s_mov_b32 s30, {WS_BYTES}
    s_mov_b32 s31, 0x00020000
    s_mov_b32 s3, {WS_CTL}
    v_and_b32 v2, 31, v1
    v_lshrrev_b32 v7, 5, v1
    s_cmp_lt_u32 s{sWAVE}, 4
    s_cbranch_scc1 L_m
    """)

def lanepart_tr(A, dst, t1):
    A(f"""
    v_lshlrev_b32 v{dst}, 3, v7
    v_bfe_u32 v{t1}, v1, 2, 2
    v_add_u32 v{dst}, v{dst}, v{t1}
    v_lshlrev_b32 v{dst}, 6, v{dst}
    v_bfe_u32 v{t1}, v1, 4, 1
    v_lshl_add_u32 v{dst}, v{t1}, 5, v{dst}
    v_and_b32 v{t1}, 3, v1
    v_lshl_add_u32 v{dst}, v{t1}, 3, v{dst}
    """)

XA0, XA1, WAa, WAb = 8, 12, 16, 17
FS = [20, 44]
ACC = 68
XPF, WPF, RS, SD, RT = 180, 188, 204, 206, 208
vFLG, vTAG = 240, 242
sP, sE, sT0, sT1 = 4, 5, 6, 7

def m_common(A, a_setup):
    XR = 44
    A(f"""
    L_m:
    s_lshl_b32 s74, s{sTYPE}, 3
    s_add_u32 s74, s74, s{sG}
    s_lshl_b32 s74, s74, 2
    s_add_u32 s74, s74, s{sW4}
    s_lshl_b32 s74, s74, 1
    s_lshl_b32 s75, s{sTBK}, 7
    s_add_u32 s79, s74, s75
    s_lshl_b32 s74, s79, 10
    s_mov_b32 s54, 0x200000
    s_mov_b32 s55, 0x00020000
    s_waitcnt lgkmcnt(0)
    s_mov_b32 s28, s24
    s_mov_b32 s29, s25
    s_mov_b32 s52, s4
    s_mov_b32 s53, s5
    buffer_load_dwordx2 v[{vTAG}:{vTAG+1}], v4, s[28:31], s3 offen sc1
    buffer_load_dwordx4 {vr(XR,4)}, v3, s[52:55], s74 offen
    buffer_load_dwordx4 {vr(XR+4,4)}, v3, s[52:55], s74 offen offset:1024
    s_mov_b32 s40, s22
    s_mov_b32 s41, s23
    s_mov_b32 s42, 256
    s_mov_b32 s43, 0x00020000
    v_mov_b32 v20, -1
    v_mov_b32 v21, -1
    v_mov_b32 v22, -1
    v_mov_b32 v23, -1
    s_lshl_b32 s74, s{sQB}, 3
    s_lshl_b32 s75, s{sW4}, 1
    s_add_u32 s74, s74, s75
    s_mul_i32 s8, s74, {ACT_TB}
    s_lshl_b32 s75, s{sHEAD}, 10
    s_add_u32 s8, s8, s75
    s_add_u32 s8, s8, {WS_ACT}
    s_add_u32 s9, s8, {ACT_TB}
    buffer_store_dwordx4 v[20:23], v3, s[28:31], s8 offen sc1
    buffer_store_dwordx4 v[20:23], v3, s[28:31], s9 offen sc1
    s_lshr_b32 s{sP}, s{sW4}, 1
    s_and_b32 s{sE}, s{sW4}, 1
    s_lshl_b32 s74, s{sTBK}, 2
    s_add_u32 s{sT0}, s74, s{sW4}
    s_xor_b32 s{sT1}, s{sT0}, 1
    v_bfe_u32 v24, v1, 1, 3
    v_xor_b32 v24, v24, v7
    v_lshlrev_b32 v{XA0}, 7, v2
    v_lshl_add_u32 v{XA0}, v24, 4, v{XA0}
    s_lshl_b32 s74, s{sW4}, 12
    v_add_u32 v{XA0}, s74, v{XA0}
    """)
    for ks in range(1, 4):
        A(f"v_xor_b32 v{XA0+ks}, {ks << 5}, v{XA0}")
    for ks in range(4):
        A(f"v_xor_b32 v{XA1+ks}, 0x1000, v{XA0+ks}")
    lanepart_tr(A, WAb, 24)
    for i in range(0, 112, 2):
        A(f"v_mov_b64 {vr(ACC+i,2)}, 0")
    for i in range(6):
        A(f"v_mov_b64 {vr(XPF+4*i+2,2)}, 0")
    a_setup(A)
    A(f"""
    s_lshl_b32 s74, s{sQB}, 2
    s_add_u32 s74, s74, s{sW4}
    s_lshl_b32 s74, s74, 5
    s_add_u32 s74, s74, s{sHEAD}
    s_lshl_b32 s74, s74, 3
    s_add_u32 s74, s74, {WS_FR}
    v_mov_b32 v{vFLG}, s74
    """)
    if 'notour' not in OPT:
        A(f"""
        s_lshl_b32 s74, s{sW4}, 1
        s_add_u32 s74, s74, s{sTYPE}
        s_waitcnt vmcnt(5)
        s_mov_b64 exec, 0
        s_cmp_eq_u32 s74, 0
        s_cbranch_scc1 TOUR_hq
        s_cmp_eq_u32 s74, 1
        s_cbranch_scc1 TOUR_hf
        s_cmp_eq_u32 s74, 2
        s_cbranch_scc1 TOUR_mq
        s_cmp_eq_u32 s74, 3
        s_cbranch_scc1 TOUR_mf
        s_cmp_lt_u32 s74, 6
        s_cbranch_scc1 TOUR_a
        s_branch TOUR_f
        L_tour_ret:
        s_mov_b64 exec, -1
        """)
    else:
        A("L_tour_ret:")
    stamp(A, 11)
    S0, Q0, S1, Q1 = 24, 25, 26, 27
    A("s_mov_b32 s75, 0xffff0000\ns_waitcnt vmcnt(2)")
    for row, (s_, q_) in enumerate(((S0, Q0), (S1, Q1))):
        for r in range(4):
            x = XR + 4 * row + r
            A(f"v_lshlrev_b32 v28, 16, v{x}\nv_and_b32 v29, s75, v{x}")
            if r == 0:
                A(f"v_add_f32 v{s_}, v28, v29\nv_mul_f32 v{q_}, v28, v28\nv_fmac_f32 v{q_}, v29, v29")
            else:
                A(f"v_add_f32 v{s_}, v{s_}, v28\nv_fmac_f32 v{q_}, v28, v28\nv_add_f32 v{s_}, v{s_}, v29\nv_fmac_f32 v{q_}, v29, v29")
    A(f"""
    v_add_u32 v{vTAG}, 1, v{vTAG}
    v_add_u32 v{vTAG+1}, 1, v{vTAG+1}
    v_permlane32_swap_b32 v{S0}, v{S1}
    v_permlane32_swap_b32 v{Q0}, v{Q1}
    v_bfe_u32 v30, v1, 4, 1
    v_add_f32 v{S0}, v{S0}, v{S1}
    v_add_f32 v{Q0}, v{Q0}, v{Q1}
    v_cmp_eq_u32 vcc, 1, v30
    v_lshrrev_b32 v30, 4, v1
    v_permlane16_swap_b32 v{S0}, v{Q0}
    s_lshl_b32 s74, s79, 4
    s_add_u32 s74, s74, {WS_XG}
    v_add_f32 v28, v{S0}, v{Q0}
    v_cndmask_b32 v29, v{vTAG}, v{vTAG+1}, vcc
    v_lshlrev_b32 v30, 3, v30
    """)
    for sh in (8, 4, 2, 1):
        A(f"v_add_f32_dpp v28, v28, v28 row_ror:{sh} row_mask:0xf bank_mask:0xf\ns_nop 1")
    A(f"""
    s_mov_b32 exec_lo, 0x00010001
    s_mov_b32 exec_hi, 0x00010001
    buffer_store_dwordx2 v[28:29], v30, s[28:31], s74 offen sc1
    s_mov_b64 exec, -1
    s_mov_b32 s10, 0
    s_mov_b32 s11, 8
    s_mov_b32 s14, {XST}
    s_mov_b32 s15, {WST}
    s_setprio 3
    s_cmp_lg_u32 s{sTYPE}, 0
    s_cbranch_scc1 L_m_ffn
    """)

def m_path(A, ffn):
    nm = "ffn" if ffn else "qkv"
    ncb = 4 if ffn else 3
    def xf(s, t): return FS[s] + 4 * t
    def wf(s, c): return FS[s] + 8 + 4 * c
    blocks = [(t, c) for c in range(3) for t in range(2)] + ([(0, 3)] if ffn else [])
    def acc(i): return ACC + 16 * i
    A(f"L_m_{nm}:")
    A.region("mf" if ffn else "mq")
    if ffn:
        A(f"""
        s_mul_i32 s74, s{sE}, 12288
        s_add_u32 s74, s74, {WBASE}
        v_add_u32 v{WAa}, s74, v{WAb}
        v_add_u32 v{WAb}, {WBASE + 6*4096}, v{WAb}
        s_lshl_b32 s74, s{sTBK}, 1
        s_add_u32 s74, s74, s{sP}
        s_lshl_b32 s74, s74, 3
        s_add_u32 s74, s74, s{sG}
        s_lshl_b32 s74, s74, 1
        s_add_u32 s74, s74, s{sE}
        s_lshl_b32 s74, s74, 3
        s_add_u32 s74, s74, {WS_F3}
        """)
    else:
        A(f"""
        s_lshl_b32 s74, s{sE}, 12
        s_add_u32 s74, s74, {WBASE}
        v_add_u32 v{WAa}, s74, v{WAb}
        s_lshl_b32 s74, s{sG}, 1
        s_add_u32 s74, s74, s{sE}
        s_lshl_b32 s74, s74, 4
        s_add_u32 s74, s74, s{sTBK}
        s_lshl_b32 s74, s74, 1
        s_add_u32 s74, s74, s{sP}
        s_lshl_b32 s74, s74, 3
        s_add_u32 s74, s74, {WS_F2}
        """)
    A(f"v_writelane_b32 v{vFLG}, s74, 0")
    cbs = 4096 if ffn else 8192
    def reads(ks, s):
        o = [f"ds_read_b128 {vr(xf(s,0),4)}, v{XA0+ks}", f"ds_read_b128 {vr(xf(s,1),4)}, v{XA1+ks}"]
        w = []
        for c in range(ncb):
            a, off = (WAb, ks * 1024) if c == 3 else (WAa, c * cbs + ks * 1024)
            w.append([f"ds_read_b64_tr_b16 {vr(wf(s,c),2)}, v{a} offset:{off}",
                      f"ds_read_b64_tr_b16 {vr(wf(s,c)+2,2)}, v{a} offset:{off+256}"])
        return [o[0]] + w[0] + [o[1]] + [x for p in w[1:] for x in p]
    def mm(i, xr, wr):
        t, c = blocks[i]
        if (not ffn) and c == 2:
            return mfma(acc(i), xr(t), wr(c))
        return mfma(acc(i), wr(c), xr(t))
    def kstep(s, fill, first=0, per=3):
        k = 0
        for i in range(first, len(blocks)):
            A(mm(i, lambda t: xf(s, t), lambda c: wf(s, c)))
            for x in fill[k:k+per]:
                A(x)
            k += per
        for x in fill[k:]:
            A(x)
    stamp(A, 2)
    A("s_barrier")
    stamp(A, 3)
    for r in reads(0, 0):
        A(r)
    A(f"""
    s_cmp_lg_u32 s{sWAVE}, 0
    s_cbranch_scc1 L_m_{nm}_loop
    v_mov_b32 v{vFLG+1}, 1
    s_mov_b64 exec, 1
    buffer_atomic_add v{vFLG+1}, v4, s[40:43], 0 offen sc0 sc1
    s_mov_b64 exec, -1
    .p2align 6
    L_m_{nm}_loop:
    """)
    for ks in range(3):
        s = ks & 1
        A("s_waitcnt lgkmcnt(0)")
        fill = reads(ks + 1, 1 - s)
        if ks == 0:
            fill = fill + ["s_add_u32 s10, s10, 1", "s_cmp_eq_u32 s10, 3", f"s_cselect_b32 s12, {-2*XST}, s14", f"s_cselect_b32 s13, {-2*WST}, s15", "s_cselect_b32 s10, 0, s10"]
        if ks == 2:
            fill = fill + ["s_sub_u32 s11, s11, 1", "s_cmp_eq_u32 s11, 0"]
        kstep(s, fill)
    A("s_waitcnt lgkmcnt(0)")
    A(mm(0, lambda t: xf(1, t), lambda c: wf(1, c)))
    A(f"s_cbranch_scc1 L_m_{nm}_last\ns_barrier")
    upd = [f"v_add_u32 v{XA0}, s12, v{XA0}", f"v_add_u32 v{WAa}, s13, v{WAa}", f"v_add_u32 v{XA1}, s12, v{XA1}"]
    if ffn:
        upd.append(f"v_add_u32 v{WAb}, s13, v{WAb}")
    for x in upd:
        A(x)
    upd2 = [f"v_add_u32 v{b+k}, s12, v{b+k}" for k in range(1, 4) for b in (XA0, XA1)]
    kstep(1, reads(0, 0) + upd2, first=1)
    A(f"s_branch L_m_{nm}_loop\nL_m_{nm}_last:")
    fill = f"""
    s_lshl_b32 s74, s{sW4}, 8
    v_lshl_add_u32 v{XA0}, v2, 3, s74
    v_xor_b32 v{XA0+1}, 0x100, v{XA0}
    v_lshrrev_b32 v{XA0+2}, 1, v{XA0}
    v_lshrrev_b32 v{XA0+3}, 1, v{XA0+1}
    s_mul_i32 s74, s{sE}, {768 if ffn else 256}
    v_lshl_add_u32 v{XA1}, v2, 3, s74
    v_add_u32 v{XA0}, {T_XP}, v{XA0}
    v_add_u32 v{XA0+1}, {T_XP}, v{XA0+1}
    v_add_u32 v{XA0+2}, {T_RS}, v{XA0+2}
    v_add_u32 v{XA0+3}, {T_RS}, v{XA0+3}
    v_add_u32 v{XA1}, {T_WP}, v{XA1}
    """
    if ffn:
        fill += f"""
        v_lshlrev_b32 v{XA1+1}, 3, v2
        v_add_u32 v{XA1+1}, {T_WP + 6*256}, v{XA1+1}
        s_mul_i32 s74, s{sG}, {7*2048}
        s_add_u32 s74, s74, {WS_ACT + 32*1024}
        s_mul_i32 s12, s{sT0}, {ACT_TB}
        s_add_u32 s12, s12, s74
        s_mul_i32 s13, s{sT1}, {ACT_TB}
        s_add_u32 s13, s13, s74
        s_add_u32 s14, s12, {6*2048}
        s_mul_i32 s74, s{sE}, 6144
        s_add_u32 s12, s12, s74
        s_add_u32 s13, s13, s74
        """
    else:
        fill += f"""
        s_lshl_b32 s74, s{sW4}, 7
        v_lshl_add_u32 v{XA1+2}, v7, 4, s74
        v_xor_b32 v{XA1+3}, 0x80, v{XA1+2}
        v_add_u32 v{XA1+2}, {T_RS}, v{XA1+2}
        v_add_u32 v{XA1+3}, {T_RS}, v{XA1+3}
        s_lshl_b32 s74, s{sG}, 1
        s_add_u32 s74, s74, s{sE}
        s_lshl_b32 s74, s74, 17
        s_lshl_b32 s12, s{sT0}, 10
        s_add_u32 s12, s12, s74
        s_lshl_b32 s13, s{sT1}, 10
        s_add_u32 s13, s13, s74
        """
    fill = [l.strip() for l in fill.split("\n") if l.strip()]
    kstep(1, fill, first=1, per=5)
    A("s_barrier")
    rd = [f"ds_read_b64 {vr(XPF,2)}, v{XA0}", f"ds_read_b64 {vr(XPF+4,2)}, v{XA0+1}"]
    for c in range(3):
        rd.append(f"ds_read_b64 {vr(WPF+4*c,2)}, v{XA1} offset:{c*(256 if ffn else 512)}")
    if ffn:
        rd.append(f"ds_read_b64 {vr(WPF+12,2)}, v{XA1+1}")
    nfr = len(rd)
    rd += [f"ds_read_b32 v{RS}, v{XA0+2}", f"ds_read_b32 v{RS+1}, v{XA0+3}"]
    if ffn:
        rd += [f"ds_read_b32 v{SD}, v{XA0+2} offset:512", f"ds_read_b32 v{SD+1}, v{XA0+3} offset:512"]
    else:
        for t in range(2):
            for gq in range(4):
                rd.append(f"ds_read_b128 {vr(RT+16*t+4*gq,4)}, v{XA1+2+t} offset:{gq*32}")
    for r in rd:
        A(r)
    A(f"s_waitcnt lgkmcnt({len(rd) - nfr})")
    stamp(A, 4)
    order = list(range(len(blocks)))
    if not ffn:
        order = [2, 3, 4, 5, 0, 1]
    PK = FS[0]
    for n, i in enumerate(order):
        A(mm(i, lambda t: XPF + 4*t, lambda c: WPF + 4*c))
        if n == 0:
            A("s_waitcnt lgkmcnt(0)")
    if not ffn:
        A(f"""
        v_mul_f32 v{SD}, {f32bits(LOG2E/4)}, v{RS}
        v_mul_f32 v{SD+1}, {f32bits(LOG2E/4)}, v{RS+1}
        v_bfe_u32 v{XA0}, v1, 4, 1
        v_lshlrev_b32 v{XA0}, 16, v{XA0}
        v_lshl_add_u32 v{XA0}, v7, 8, v{XA0}
        v_and_b32 v{XA0+1}, 15, v1
        v_lshl_add_u32 v{XA0}, v{XA0+1}, 4, v{XA0}
        """)
        for n, i in enumerate(order):
            t, c = blocks[i]
            a, pk = acc(i), PK + 8 * n
            for r in range(16):
                sc = (SD + t, RS + t, RT + 16*t + r)[c]
                A(f"v_mul_f32 v{a+r}, v{a+r}, v{sc}")
                if r & 1:
                    A(f"v_cvt_pk_bf16_f32 v{pk+r//2}, v{a+r-1}, v{a+r}")
            if c < 2:
                for hh in range(2):
                    A(f"s_add_u32 s74, s{12+t}, {c*(2<<20) + hh*65536}")
                    A(f"buffer_store_dwordx4 {vr(pk+4*hh,4)}, v3, s[28:31], s74 offen sc1")
            else:
                A(f"s_add_u32 s74, s{12+t}, {WS_V}")
                for m2 in range(2):
                    A(f"buffer_store_dwordx4 {vr(pk+4*m2,4)}, v{XA0}, s[28:31], s74 offen offset:{m2*512} sc1")
        stamp(A, 5)
        A("s_waitcnt vmcnt(0)")
        stamp(A, 10)
        A(f"""
        s_mov_b64 exec, 3
        buffer_store_dwordx2 v[{vTAG}:{vTAG+1}], v{vFLG}, s[28:31], 0 offen sc1
        s_mov_b64 exec, -1
        s_branch L_a
        """)
    else:
        c1 = -2.0 * LOG2E * math.sqrt(2.0 / math.pi)
        c3 = c1 * 0.044715
        K1, K3, SP = XA0, XA1, RT
        for t in range(2):
            A(f"""
            v_mul_f32 v{K1+2*t}, {f32bits(c1)}, v{RS+t}
            v_mul_f32 v{K3+2*t}, v{RS+t}, v{RS+t}
            v_mul_f32 v{K3+2*t}, v{K3+2*t}, v{RS+t}
            v_mul_f32 v{K3+2*t}, {f32bits(c3)}, v{K3+2*t}
            v_mov_b32 v{K1+2*t+1}, v{K1+2*t}
            v_mov_b32 v{K3+2*t+1}, v{K3+2*t}
            v_mov_b32 v{SP+2*t}, v{SD+t}
            v_mov_b32 v{SP+2*t+1}, v{SD+t}
            """)
        G = FS[1]
        p2 = lambda r: vr(r, 2)
        for n, (t, c) in enumerate(blocks):
            a, pk = acc(n), PK + 8 * (n % 3)
            for r in range(0, 16, 2):
                A(f"v_pk_mul_f32 {p2(G+r)}, {p2(a+r)}, {p2(a+r)}")
            for r in range(0, 16, 2):
                A(f"v_pk_fma_f32 {p2(G+r)}, {p2(G+r)}, {p2(K3+2*t)}, {p2(K1+2*t)}")
            for r in range(0, 16, 2):
                A(f"v_pk_mul_f32 {p2(G+r)}, {p2(G+r)}, {p2(a+r)}")
            for r in range(16):
                A(f"v_exp_f32 v{G+r}, v{G+r}")
            for r in range(0, 16, 2):
                A(f"v_pk_fma_f32 {p2(G+r)}, {p2(G+r)}, {p2(SP+2*t)}, {p2(SP+2*t)}")
            for r in range(16):
                A(f"v_rcp_f32 v{G+r}, v{G+r}")
            for r in range(0, 16, 2):
                A(f"v_pk_mul_f32 {p2(a+r)}, {p2(a+r)}, {p2(G+r)}")
            for r in range(8):
                A(f"v_cvt_pk_bf16_f32 v{pk+r}, v{a+2*r}, v{a+2*r+1}")
            if c == 3:
                so = 14
            else:
                A(f"s_add_u32 s74, s{12+t}, {c*2048}")
                so = 74
            for hh in range(2):
                A(f"buffer_store_dwordx4 {vr(pk+4*hh,4)}, v3, s[28:31], s{so} offen offset:{hh*1024} sc1")
        stamp(A, 5)

hXD, hWD, hRA, hGA, hEP = 224, 226, 227, 228, 230
hWR, hCS, hGR, hBI, hT = 96, 128, 144, 148, 152

def h_common(A):
    A(f"""
    v_lshrrev_b32 v8, 3, v1
    s_lshl_b32 s74, s{sW4}, 5
    v_add_u32 v8, s74, v8
    v_lshlrev_b32 v8, 10, v8
    v_and_b32 v9, 7, v1
    v_lshrrev_b32 v10, 4, v1
    v_xor_b32 v9, v9, v10
    v_lshl_add_u32 v{hXD}, v9, 4, v8
    v_xor_b32 v9, 4, v9
    v_lshl_add_u32 v{hXD+1}, v9, 4, v8
    v_add_u32 v{hXD+1}, 0x2000, v{hXD+1}
    v_lshrrev_b32 v8, 2, v1
    s_lshl_b32 s74, s{sW4}, 4
    v_add_u32 v8, s74, v8
    v_and_b32 v9, 3, v1
    v_lshlrev_b32 v9, 4, v9
    s_mov_b32 s34, 0x20000
    s_mov_b32 s35, 0x00020000
    s_mov_b32 s39, 0x00020000
    s_lshl_b32 s75, s{sTBK}, 17
    s_lshl_b32 s92, s{sW4}, 12
    s_lshl_b32 s93, s{sW4}, 10
    s_add_u32 s93, s93, {WBASE}
    s_mov_b32 s94, 2
    s_lshl_b32 s74, s{sG}, 7
    s_mul_i32 s76, s{sG}, 448
    s_waitcnt lgkmcnt(0)
    s_mov_b32 s28, s24
    s_mov_b32 s29, s25
    s_add_u32 s32, s4, s75
    s_addc_u32 s33, s5, 0
    s_cmp_lg_u32 s{sTYPE}, 0
    s_cbranch_scc1 L_h0_ffn
    """)

def dma_ops(ffn):
    pitch = 3584 if ffn else 3072
    imms = [c * 64 for c in range(7)] if ffn else [0, 64, 1024, 1088, 2048, 2112]
    head = [f"s_lshl_b32 s74, s{sC}, 7", "s_add_u32 s75, s74, 16384", f"s_mul_i32 s76, s{sC}, {64*pitch}",
            f"s_add_u32 s{sC}, s{sC}, 1", f"s_and_b32 s{sC}, s{sC}, 7"]
    ops = [("x", a) for a in range(4)] + [("w", c) for c in range(len(imms))]
    ops = [ops[0], ops[4], ops[5], ops[1], ops[6], ops[7], ops[2], ops[8], ops[9], ops[3]] + ops[10:]
    out = []
    for k, j in ops:
        if k == "x":
            out.append((f"s_add_u32 m0, s92, {j*1024}", f"buffer_load_dwordx4 v{hXD + (j & 1)}, s[32:35], s{74 + (j >> 1)} offen lds"))
        else:
            out.append((f"s_add_u32 m0, s93, {j*4096 - imms[j]}", f"buffer_load_dwordx4 v{hWD}, s[36:39], s76 offen offset:{imms[j]} lds"))
    return head, out

def h_start(A, ffn):
    nm = "ffn" if ffn else "qkv"
    pitch = 3584 if ffn else 3072
    A(f"L_h0_{nm}:")
    if ffn:
        A(f"s_add_u32 s36, s12, s76\ns_addc_u32 s37, s13, 0\ns_sub_u32 s38, {512*3584}, s76")
    else:
        A(f"s_add_u32 s36, s6, s74\ns_addc_u32 s37, s7, 0\ns_sub_u32 s38, {512*3072}, s74")
    A(f"v_mul_u32_u24 v{hWD}, {pitch}, v8\nv_add_u32 v{hWD}, v{hWD}, v9")
    A(f"buffer_load_dwordx2 v[{hEP}:{hEP+1}], v4, s[28:31], s3 offen sc1")
    head, ops = dma_ops(ffn)
    A(f"L_h0_{nm}_dma:")
    for x in head:
        A(x)
    for m, l in ops:
        A(f"{m}\ns_nop 0\n{l}")
    A(f"""
    s_add_u32 s92, s92, {XST}
    s_add_u32 s93, s93, {WST}
    s_sub_u32 s94, s94, 1
    s_cmp_lg_u32 s94, 0
    s_cbranch_scc1 L_h0_{nm}_dma
    """)
    if not ffn:
        A("s_branch L_h1")

def h_mid(A, f_setup):
    A("L_h1:")
    stamp(A, 11)
    lanepart_tr(A, hRA, 8)
    A(f"""
    s_lshl_b32 s74, s{sW4}, 10
    s_add_u32 s74, s74, {WBASE}
    v_add_u32 v{hRA}, s74, v{hRA}
    s_lshl_b32 s74, s{sTBK}, 2
    s_add_u32 s74, s74, s{sW4}
    s_lshl_b32 s74, s74, 9
    s_add_u32 s74, s74, {WS_XG}
    v_lshl_add_u32 v{hGA}, v2, 4, s74
    v_mov_b32 v8, {CTL}
    v_lshl_add_u32 v8, v2, 2, v8
    v_mov_b32 v9, 4
    v_cmp_eq_u32 vcc, 8, v2
    s_mov_b32 s40, s14
    s_mov_b32 s41, s15
    v_cndmask_b32 v9, 0, v9, vcc
    ds_write_b32 v8, v9
    s_mov_b32 s42, 3584
    s_mov_b32 s43, 0x00020000
    s_mov_b32 s3, 0xffff0000
    s_mov_b32 s94, 0
    s_mov_b32 s95, 2
    s_mov_b32 s96, 0
    s_mov_b32 s98, {XST}
    s_mov_b32 s99, {WST}
    """)
    for i in range(0, 14, 2):
        A(f"v_mov_b64 {vr(hCS+i,2)}, 0")
    f_setup(A)
    A(f"s_cmp_lg_u32 s{sTYPE}, 0\ns_cbranch_scc1 L_h_ffn")

def h_path(A, ffn):
    nm = "ffn" if ffn else "qkv"
    ncb = 7 if ffn else 6
    n = 4 + ncb
    A(f"L_h_{nm}:")
    A.region("hf" if ffn else "hq")
    def reads():
        for c in range(ncb):
            A(f"ds_read_b64_tr_b16 {vr(hWR+4*c,2)}, v{hRA} offset:{c*4096}\nds_read_b64_tr_b16 {vr(hWR+4*c+2,2)}, v{hRA} offset:{c*4096+256}")
    def bstamp():
        if asm.STAMPS:
            A("s_memtime s[80:81]\ns_waitcnt lgkmcnt(0)\ns_sub_u32 m0, 7, s94\ns_nop 0\nv_writelane_b32 v252, s80, m0")
    stamp(A, 2)
    A(f"s_waitcnt vmcnt({n})\ns_barrier")
    stamp(A, 3)
    reads()
    A(f"""
    v_readfirstlane_b32 s26, v{hEP}
    v_readfirstlane_b32 s27, v{hEP+1}
    s_add_u32 s26, s26, 1
    s_add_u32 s27, s27, 1
    L_h_{nm}_loop:
    s_cmp_lt_u32 s94, 6
    s_cselect_b32 s34, s34, 0
    s_cselect_b32 s38, s38, 0
    """)
    head, ops = dma_ops(ffn)
    for x in head:
        A(x)
    valu = []
    for c in range(ncb):
        for r in range(4):
            t = hT + 2 * (r & 1)
            valu += [f"v_lshlrev_b32 v{t}, 16, v{hWR+4*c+r}", f"v_and_b32 v{t+1}, s3, v{hWR+4*c+r}",
                     f"v_add_f32 v{hCS+2*c}, v{hCS+2*c}, v{t}", f"v_add_f32 v{hCS+2*c+1}, v{hCS+2*c+1}, v{t+1}"]
    per = (len(valu) + n - 1) // n
    for j, (m, l) in enumerate(ops):
        A(f"{m}\ns_nop 0\n{l}")
        if j == 0:
            A("s_waitcnt lgkmcnt(0)")
        for x in valu[j*per:(j+1)*per]:
            A(x)
    A(f"""
    s_cmp_lg_u32 s94, 5
    s_cbranch_scc1 L_h_{nm}_nog
    buffer_load_dwordx4 {vr(hGR,4)}, v{hGA}, s[28:31], 0 offen sc1
    """)
    if ffn:
        A(f"""
        s_mul_i32 s74, s{sG}, 448
        s_lshl_b32 s75, s{sW4}, 6
        s_add_u32 s74, s74, s75
        v_lshlrev_b32 v{hT}, 1, v2
        v_lshl_add_u32 v{hT}, v7, 8, v{hT}
        buffer_load_ushort v{hBI}, v{hT}, s[40:43], s74 offen
        """)
    A(f"""
    L_h_{nm}_nog:
    s_add_u32 s95, s95, 1
    s_cmp_eq_u32 s95, 3
    s_cselect_b32 s95, 0, s95
    s_cselect_b32 s74, {-2*XST}, s98
    s_cselect_b32 s75, {-2*WST}, s99
    s_add_u32 s92, s92, s74
    s_add_u32 s93, s93, s75
    s_add_u32 s96, s96, 1
    s_cmp_eq_u32 s96, 3
    s_cselect_b32 s96, 0, s96
    s_cselect_b32 s75, {-2*WST}, s99
    v_add_u32 v{hRA}, s75, v{hRA}
    s_waitcnt vmcnt({n})
    s_barrier
    """)
    bstamp()
    reads()
    A(f"""
    s_add_u32 s94, s94, 1
    s_cmp_lt_u32 s94, 7
    s_cbranch_scc1 L_h_{nm}_loop
    s_mov_b32 s74, 0x3f803f80
    s_lshl_b32 s75, s{sW4}, 3
    s_add_u32 s75, s75, {T_PART}
    v_lshlrev_b32 v{hT}, 5, v2
    v_lshl_add_u32 v{hT+1}, v7, 2, v{hT}
    v_add_u32 v{hT+1}, s75, v{hT+1}
    s_lshl_b32 s75, s{sW4}, 10
    s_add_u32 s75, s75, {T_PART}
    v_lshl_add_u32 v{hT}, v7, 12, v{hT}
    v_add_u32 v{hT}, s75, v{hT}
    """)
    for c in range(ncb):
        A(f"v_add_f32 v{hCS+2*c}, v{hCS+2*c}, v{hCS+2*c+1}")
    A("s_waitcnt lgkmcnt(0)")
    for r in range(4):
        for c in range(ncb):
            A(f"v_dot2c_f32_bf16 v{hCS+2*c}, s74, v{hWR+4*c+r}")
    A(f"v_mov_b32 v{hT+2}, {C_H}\nv_mov_b32 v{hT+3}, 1\ns_nop 0")
    for c in range(ncb):
        A(f"ds_write_b32 v{hT+1}, v{hCS+2*c} offset:{c*1024}")
    A(f"s_mov_b64 exec, 1\nds_add_u32 v{hT+2}, v{hT+3}\ns_mov_b64 exec, -1")
    A(f"""
    s_mov_b32 s79, 0x4000
    L_h_{nm}_chk:
    v_xor_b32 v{hGR+1}, s26, v{hGR+1}
    v_xor_b32 v{hGR+3}, s27, v{hGR+3}
    v_or_b32 v{hGR+1}, v{hGR+1}, v{hGR+3}
    v_cmp_ne_u32 vcc, 0, v{hGR+1}
    s_sub_u32 s79, s79, 1
    s_cmp_eq_u32 s79, 0
    s_cbranch_scc1 L_h_{nm}_got
    s_cbranch_vccz L_h_{nm}_got
    buffer_load_dwordx4 {vr(hGR,4)}, v{hGA}, s[28:31], 0 offen sc1
    s_waitcnt vmcnt(0)
    s_branch L_h_{nm}_chk
    L_h_{nm}_got:
    """)
    a, b, r_, h_, X0, A0 = hWR, hWR + 1, hWR + 2, hWR + 3, hWR + 4, hWR + 6
    A(f"""
    s_mov_b32 s74, {f32bits(1.0/512)}
    v_mul_f32 v{a}, s74, v{hGR}
    v_mul_f32 v{b}, s74, v{hGR+2}
    v_fma_f32 v{b}, -v{a}, v{a}, v{b}
    v_max_f32 v{b}, 0, v{b}
    v_cvt_pk_bf16_f32 v{b}, v{b}, v{b}
    v_and_b32 v{b}, s3, v{b}
    v_add_f32 v{b}, {f32bits(1e-5)}, v{b}
    v_cvt_pk_bf16_f32 v{b}, v{b}, v{b}
    v_and_b32 v{b}, s3, v{b}
    v_sqrt_f32 v{b}, v{b}
    v_mul_f32 v{a}, -0.5, v{a}
    v_cvt_pk_bf16_f32 v{b}, v{b}, v{b}
    v_and_b32 v{b}, s3, v{b}
    v_rcp_f32 v{r_}, v{b}
    v_mul_f32 v{h_}, 0.5, v{b}
    v_cvt_pk_bf16_f32 v{X0}, v{a}, v{a}
    v_cvt_pk_bf16_f32 v{X0+1}, v{a}, v{h_}
    s_lshl_b32 s74, s{sW4}, 8
    v_lshl_add_u32 v{A0}, v2, 3, s74
    v_lshrrev_b32 v{A0+1}, 1, v{A0}
    v_add_u32 v{A0}, {T_XP}, v{A0}
    v_add_u32 v{A0+1}, {T_RS}, v{A0+1}
    ds_write_b64 v{A0}, {vr(X0,2)}
    ds_write_b32 v{A0+1}, v{r_}
    ds_write_b32 v{A0+1}, v{b} offset:512
    v_lshl_add_u32 v{A0}, v7, 10, v{A0}
    L_h_{nm}_sync:
    ds_read_b32 v{hT+3}, v{hT+2}
    ds_read_b128 {vr(hWR+8,4)}, v{hT}
    ds_read_b128 {vr(hWR+12,4)}, v{hT} offset:16
    s_waitcnt lgkmcnt(0)
    v_readfirstlane_b32 s74, v{hT+3}
    s_cmp_lg_u32 s74, 4
    s_cbranch_scc1 L_h_{nm}_sync
    """)
    c = hWR + 8
    for k in (0, 2, 4, 6):
        A(f"v_add_f32 v{c+k}, v{c+k}, v{c+k+1}")
    A(f"""
    v_add_f32 v{c}, v{c}, v{c+2}
    v_add_f32 v{c+4}, v{c+4}, v{c+6}
    v_add_f32 v{c}, v{c}, v{c+4}
    v_and_b32 v{c+1}, s3, v{c}
    v_sub_f32 v{c}, v{c}, v{c+1}
    v_and_b32 v{c+2}, s3, v{c}
    v_sub_f32 v{c}, v{c}, v{c+2}
    v_cvt_pk_bf16_f32 v{c+4}, v{c+1}, v{c+2}
    """)
    if ffn:
        A(f"v_lshlrev_b32 v{hBI}, 16, v{hBI}\nv_cvt_pk_bf16_f32 v{c+5}, v{c}, v{hBI}")
    else:
        A(f"v_cvt_pk_bf16_f32 v{c+5}, v{c}, 0")
    A(f"""
    ds_write_b64 v{A0}, {vr(c+4,2)} offset:{T_WP - T_XP}
    s_waitcnt vmcnt(0) lgkmcnt(0)
    s_barrier
    """)
    bstamp()
    if not ffn:
        A("s_branch L_f")
```

```python
from asm import *
from mega1 import *
import asm

vL16, vK, vVa, vVb, vVg, vCNT, vQA, vCQ, vONE = 3, 244, 245, 246, 247, 248, 249, 18, 19
XB = 8
Q2 = [20, 24]
KB = [28, 32]
VA = 36
VB = [40, 44]
P = 48
T0, T1, T2, T3 = 56, 57, 58, 59
C = [64, 80]
O = [96, 112]
S = [128, 144]

def ex(s, i): return f"v_exp_f32 v{s+i}, v{s+i}"
def cv(s, i): return f"v_cvt_pk_bf16_f32 v{P+i}, v{s+2*i}, v{s+2*i+1}"

def rowmax(A, src, dst):
    A(f"v_max3_f32 v{dst}, v{src}, v{src+1}, v{src+2}")
    for i in range(3, 15, 2):
        A(f"v_max3_f32 v{dst}, v{dst}, v{src+i}, v{src+i+1}")
    A(f"""
    v_max_f32 v{dst}, v{dst}, v{src+15}
    v_mov_b32 v{T1}, v{dst}
    s_nop 1
    v_permlane32_swap_b32 v{dst}, v{T1}
    s_nop 1
    v_max_f32 v{dst}, v{dst}, v{T1}
    """)

def out_setup(A):
    A(f"""
    s_lshr_b32 s74, s{sWAVE}, 1
    s_and_b32 s75, s74, 1
    s_lshr_b32 s74, s74, 1
    s_lshl_b32 s76, s{sTB2}, 1
    s_add_u32 s76, s76, s75
    s_lshl_b32 s76, s76, 5
    v_add_u32 v5, s76, v2
    v_lshlrev_b32 v5, 10, v5
    s_lshl_b32 s76, s{sNB}, 1
    s_add_u32 s76, s76, s74
    s_lshl_b32 s76, s76, 1
    s_and_b32 s75, s{sWAVE}, 1
    s_add_u32 s76, s76, s75
    s_lshl_b32 s76, s76, 5
    v_lshl_add_u32 v6, v7, 3, s76
    v_add_u32 v5, v5, v6
    s_mov_b32 s56, s18
    s_mov_b32 s57, s19
    s_mov_b32 s58, 1024
    s_mov_b32 s59, 0x00020000
    s_mov_b32 s60, s20
    s_mov_b32 s61, s21
    s_mov_b32 s62, 0x200000
    s_mov_b32 s63, 0x00020000
    """)

def kv_srds(A):
    A(f"""
    s_lshl_b32 s74, s{sHEAD}, 16
    s_add_u32 s75, s74, {WS_K}
    s_add_u32 s84, s24, s75
    s_addc_u32 s85, s25, 0
    s_mov_b32 s86, 0x10000
    s_mov_b32 s87, 0x00020000
    s_add_u32 s75, s74, {WS_V}
    s_add_u32 s88, s24, s75
    s_addc_u32 s89, s25, 0
    s_mov_b32 s90, 0x10000
    s_mov_b32 s91, 0x00020000
    """)

XB_LOADS = [f"buffer_load_dwordx2 v[{XB}:{XB+1}], v5, s[52:55], 0 offen",
            f"buffer_load_dwordx2 v[{XB+2}:{XB+3}], v5, s[52:55], 0 offen offset:16",
            f"buffer_load_dwordx2 v[{XB+4}:{XB+5}], v6, s[56:59], 0 offen",
            f"buffer_load_dwordx2 v[{XB+6}:{XB+7}], v6, s[56:59], 0 offen offset:16"]

def a_setup(A):
    A(f"""
    v_and_b32 v{vVg}, 15, v1
    v_lshlrev_b32 v{vVg}, 4, v{vVg}
    v_lshl_add_u32 v{vVg}, v7, 8, v{vVg}
    v_and_b32 v{T0}, 16, v1
    v_cmp_eq_u32 vcc, 0, v{T0}
    v_and_b32 v{T1}, 11, v1
    v_cmp_ne_u32 s[74:75], 0, v{T1}
    v_add_u32 v{vVa}, {LDS_V}, v{vVg}
    v_add_u32 v{vVb}, {LDS_V+512}, v{vVg}
    v_mov_b32 v{T0}, {LDS_V+1024}
    v_mov_b32 v{T1}, {LDS_V+1040}
    v_cndmask_b32 v{T0}, v{T0}, v{T1}, s[74:75]
    v_cndmask_b32 v{vVa}, v{T0}, v{vVa}, vcc
    v_cndmask_b32 v{vVb}, v{T0}, v{vVb}, vcc
    v_mov_b32 v{vK}, v{vL16}
    v_mov_b32 v{vCNT}, {C_KV}
    s_lshl_b32 s74, s{sW4}, 11
    s_add_u32 s74, s74, {QA}
    v_add_u32 v{vQA}, s74, v{vL16}
    s_lshl_b32 s74, s{sW4}, 2
    s_add_u32 s74, s74, {C_Q}
    v_mov_b32 v{vCQ}, s74
    v_mov_b32 v{vONE}, 1
    """)
    out_setup(A)

def gen_a(A, spi=8):
    A("L_a:")
    A.region("a")
    for i in range(0, 32, 2):
        A(f"v_mov_b64 {vr(O[0]+i,2)}, 0")
    for i in range(0, 4, 2):
        A(f"v_mov_b64 {vr(P+4+i,2)}, 0\nv_mov_b64 {vr(VB[1]+i,2)}, 0")
    A(f"""
    L_a_wait0:
    ds_read_b32 v{T3}, v{vCNT}
    s_waitcnt lgkmcnt(0)
    v_readfirstlane_b32 s74, v{T3}
    s_cmp_lg_u32 s74, 4
    s_cbranch_scc1 L_a_wait0
    """)
    stamp(A, 6)
    A(f"""
    ds_read_b128 {vr(KB[0],4)}, v{vK}
    ds_read_b128 {vr(Q2[0],4)}, v{vQA}
    ds_read_b128 {vr(Q2[1],4)}, v{vQA} offset:1024
    ds_read_b128 {vr(KB[1],4)}, v{vK} offset:1024
    ds_read_b128 {vr(VA,4)}, v{vVa}
    ds_read_b128 {vr(VB[0],4)}, v{vVb}
    s_waitcnt lgkmcnt(3)
    {mfma(S[0], KB[0], Q2[0], "0")}
    {mfma(S[1], KB[0], Q2[1], "0")}
    ds_write_b32 v{vCQ}, v{vONE}
    s_nop 10
    """)
    for q in range(2):
        rowmax(A, S[q], T0)
        A(f"v_sub_f32 v{C[q]}, 0, v{T0}")
        for i in range(1, 16):
            A(f"v_mov_b32 v{C[q]+i}, v{C[q]}")
        if q == 0:
            A(f"s_nop 1\n{mfma(S[0], KB[0], Q2[0], C[0])}")
    A(f"""
    s_waitcnt vmcnt(0)
    s_mov_b64 exec, 3
    buffer_store_dwordx2 v[{vTAG}:{vTAG+1}], v{vFLG}, s[28:31], 0 offen sc1
    s_mov_b64 exec, -1
    s_cmp_lg_u32 s{sWAVE}, 0
    s_cbranch_scc1 L_a_noep
    v_readfirstlane_b32 s74, v{vFLG+1}
    s_cmp_lg_u32 s74, 255
    s_cbranch_scc1 L_a_noep
    s_mov_b64 exec, 1
    buffer_store_dwordx2 v[{vTAG}:{vTAG+1}], v4, s[28:31], s3 offen sc1
    s_mov_b64 exec, -1
    L_a_noep:
    s_mov_b32 s11, {64 // spi}
    s_waitcnt lgkmcnt(0)
    """)
    stamp(A, 7)
    A(".p2align 6\nL_a_loop:")
    for t in range(spi):
        for h in range(2):
            cur, nxt = S[h], S[1 - h]
            kf = KB[t & 1] if h == 0 else KB[(t + 1) & 1]
            vb = VB[(t + 1) & 1] if h == 0 else VB[t & 1]
            m1 = m2 = m3 = pre3 = ""
            if h == 0:
                m2 = "s_waitcnt lgkmcnt(0)"
                m3 = f"ds_read_b128 {vr(KB[t & 1],4)}, v{vK} offset:{(t+2)*1024}"
                if t == 6:
                    pre3 = f"v_readfirstlane_b32 s74, v{T3}"
                    m3 = f"s_cmp_lg_u32 s74, 4\ns_cbranch_scc1 L_a_spin\nL_a_spun:\n" + m3
            else:
                if t == 5:
                    m1 = f"ds_read_b32 v{T3}, v{vCNT} offset:4"
                m2 = f"ds_read_b128 {vr(VB[(t+1) & 1],4)}, v{vVb} offset:{(t+1)*VST}"
                m3 = f"ds_read_b128 {vr(VA,4)}, v{vVa} offset:{(t+1)*VST}"
                if t == spi - 1:
                    m1 = "s_sub_u32 s11, s11, 1"
            A(f"""
            {mfma(nxt, kf, Q2[1-h], C[1-h])}
            {m1}
            {ex(cur,0)}
            {ex(cur,1)}
            {ex(cur,2)}
            {ex(cur,3)}
            {ex(cur,4)}
            {ex(cur,5)}
            {cv(cur,0)}
            {mfma(O[1-h], vb, P+4)}
            {m2}
            {cv(cur,1)}
            {ex(cur,6)}
            {ex(cur,7)}
            {cv(cur,2)}
            {cv(cur,3)}
            {ex(cur,8)}
            {pre3}
            {ex(cur,9)}
            {ex(cur,10)}
            {mfma(O[h], VA, P)}
            {m3}
            {ex(cur,11)}
            {cv(cur,4)}
            {ex(cur,12)}
            {cv(cur,5)}
            {ex(cur,13)}
            {ex(cur,14)}
            {ex(cur,15)}
            {cv(cur,6)}
            {cv(cur,7)}
            """)
    A(f"""
    v_add_u32 v{vK}, {spi*1024}, v{vK}
    v_add_u32 v{vVa}, {spi*VST}, v{vVa}
    v_add_u32 v{vVb}, {spi*VST}, v{vVb}
    v_add_u32 v{vCNT}, 4, v{vCNT}
    """)
    if asm.STAMPS:
        A("s_memtime s[80:81]\ns_waitcnt lgkmcnt(0)\ns_mov_b32 m0, s11\ns_nop 0\nv_writelane_b32 v252, s80, m0")
    A(f"""
    s_cmp_lg_u32 s11, 0
    s_cbranch_scc1 L_a_loop
    {mfma(O[1], VB[(spi-1) & 1], P+4)}
    """)
    stamp(A, 8)
    for x in XB_LOADS:
        A(x)
    A(f"v_add_f32 v{T0}, abs(v{O[0]}), abs(v{O[0]+1})")
    for i in range(2, 9):
        A(f"v_add_f32 v{T0}, v{T0}, abs(v{O[0]+i})")
    for i in range(0, 9):
        A(f"v_add_f32 v{T0}, v{T0}, abs(v{O[1]+i})")
    A(f"""
    v_mov_b32 v{T1}, 0x7f000000
    v_cmp_lt_f32 vcc, v{T0}, v{T1}
    s_nop 4
    s_cmp_eq_u64 vcc, -1
    s_cbranch_scc0 L_fallback
    L_a_fin:
    v_rcp_f32 v{T0}, v{O[0]+8}
    v_rcp_f32 v{T1}, v{O[1]+8}
    """)
    for q in range(2):
        for i in range(8):
            A(f"v_mul_f32 v{O[q]+i}, v{O[q]+i}, v{(T0,T1)[q]}")
        for i in range(4):
            A(f"v_cvt_pk_bf16_f32 v{P+4*q+i}, v{O[q]+2*i}, v{O[q]+2*i+1}")
        for i in range(4):
            A(f"v_min_u32 v{P+4*q+i}, -2, v{P+4*q+i}")
        A(f"buffer_store_dwordx4 {vr(P+4*q,4)}, v{vL16}, s[28:31], s{8+q} offen sc1")
    stamp(A, 9)
    A(f"""
    s_barrier
    s_waitcnt vmcnt(2)
    s_branch L_final
    L_a_spin:
    ds_read_b32 v{T3}, v{vCNT} offset:4
    s_waitcnt lgkmcnt(0)
    v_readfirstlane_b32 s74, v{T3}
    s_cmp_lg_u32 s74, 4
    s_cbranch_scc1 L_a_spin
    s_branch L_a_spun
    """)

FACC, HB, WF, FB, WO = 32, 96, 120, 96, 160

def poll(A, name, vaddr, sleep=4):
    A(f"""
    s_mov_b32 s79, 0x8000
    L_{name}:
    buffer_load_dwordx2 v[24:25], v{vaddr}, s[28:31], 0 offen sc1
    s_sub_u32 s79, s79, 1
    s_waitcnt vmcnt(0)
    v_xor_b32 v24, s26, v24
    v_xor_b32 v25, s27, v25
    v_or_b32 v24, v24, v25
    v_cmp_ne_u32 vcc, 0, v24
    s_cmp_eq_u32 s79, 0
    s_cbranch_scc1 L_{name}_done
    s_cbranch_vccz L_{name}_done
    s_sleep {sleep}
    s_branch L_{name}
    L_{name}_done:
    """)

def f_setup(A):
    kv_srds(A)
    out_setup(A)
    f = sW4
    A(f"""
    s_mov_b32 s52, s4
    s_mov_b32 s53, s5
    s_mov_b32 s54, 0x200000
    s_mov_b32 s55, 0x00020000
    s_lshl_b32 s74, s{sNB}, 7
    s_add_u32 s44, s16, s74
    s_addc_u32 s45, s17, 0
    s_sub_u32 s46, {1792*1024}, s74
    s_mov_b32 s47, 0x00020000
    s_add_u32 s48, s8, s74
    s_addc_u32 s49, s9, 0
    s_sub_u32 s50, {512*1024}, s74
    s_mov_b32 s51, 0x00020000
    v_mul_u32_u24 v16, {VST}, v1
    v_add_u32 v16, {LDS_V+1024}, v16
    v_mov_b32 v20, 0x3f803f80
    v_mov_b32 v21, v20
    v_mov_b32 v22, v20
    v_mov_b32 v23, v20
    v_mov_b32 v17, 1
    v_mov_b32 v19, {C_KV}
    s_lshr_b32 s74, s{sHEAD}, 1
    s_lshl_b32 s74, s74, 8
    s_add_u32 s74, s74, {WS_F2}
    v_lshl_add_u32 v18, v2, 3, s74
    v_add_u32 v31, {ACT_TB}, v3
    v_lshrrev_b32 v26, 3, v1
    v_bfe_u32 v27, v1, 4, 1
    v_lshlrev_b32 v27, 2, v27
    v_and_b32 v28, 7, v1
    v_xor_b32 v27, v27, v28
    v_lshlrev_b32 v26, 10, v26
    v_lshl_add_u32 v26, v27, 4, v26
    v_add_u32 v27, 0x2000, v26
    v_bfe_u32 v28, v1, 2, 2
    v_lshl_add_u32 v28, v7, 2, v28
    v_lshlrev_b32 v28, 7, v28
    v_bfe_u32 v29, v1, 3, 1
    v_lshl_add_u32 v28, v29, 6, v28
    v_bfe_u32 v29, v1, 4, 1
    v_lshl_add_u32 v28, v29, 5, v28
    v_and_b32 v29, 3, v1
    v_lshl_add_u32 v28, v29, 3, v28
    v_xor_b32 v29, 64, v28
    s_lshl_b32 s77, s{f}, 11
    s_add_u32 s77, s77, {QA}
    v_add_u32 v28, s77, v28
    v_add_u32 v29, s77, v29
    s_mul_i32 s12, s{f}, {28*16384}
    s_lshl_b32 s13, s{f}, 17
    s_mul_i32 s14, s{sTB2}, {2*ACT_TB}
    s_add_u32 s14, s14, {WS_ACT}
    s_lshl_b32 s74, s{f}, 13
    s_add_u32 s15, s14, s74
    s_mul_i32 s74, s{f}, {28*1024}
    s_add_u32 s14, s14, s74
    s_add_u32 s14, s14, {32*1024}
    s_lshl_b32 s10, s{f}, 10
    s_mul_i32 s11, s{f}, {VST}
    s_add_u32 s11, s11, {LDS_V}
    s_lshl_b32 s74, s{sQB}, 2
    s_add_u32 s74, s74, s{f}
    s_lshl_b32 s74, s74, 11
    s_lshl_b32 s75, s{sHEAD}, 16
    s_add_u32 s78, s74, s75
    """)
    for i in range(0, 64, 2):
        A(f"v_mov_b64 {vr(FACC+i,2)}, 0")

def gen_f(A):
    Q = VmQ(A)
    f = sW4
    A("L_f:")
    A.region("f")
    stamp(A, 4)
    A(f"ds_write_b128 v16, v[20:23]\nds_write_b128 v16, {vr(FACC,4)} offset:16")
    def wdma(step, srd, so, tag):
        sl = (step + 1) % 3
        A(f"s_add_u32 m0, s77, {sl*8192}\ns_nop 0")
        Q.issue(f"buffer_load_dwordx4 v26, s[{srd}:{srd+3}], s{so} offen lds", tag)
        A(f"s_add_u32 m0, s77, {sl*8192+1024}\ns_nop 0")
        Q.issue(f"buffer_load_dwordx4 v27, s[{srd}:{srd+3}], s{so} offen lds", tag)
        A(f"s_add_u32 s{so}, s{so}, 16384")
    wdma(0, 44, 12, "w"); wdma(1, 44, 12, "w")
    poll(A, "f_p2", 18, 2)
    Q.q = []
    stamp(A, 5)
    def kv_dma(i):
        A(f"s_mov_b32 m0, s10\ns_add_u32 s74, s11, {i*4*VST}")
        Q.issue("buffer_load_dwordx4 v3, s[84:87], s10 offen sc1 lds", i // 2)
        A("s_mov_b32 m0, s74\ns_nop 0")
        Q.issue("buffer_load_dwordx4 v3, s[88:91], s10 offen sc1 lds", i // 2)
        A("s_add_u32 s10, s10, 4096")
    def chunk_done(c):
        Q.wait(c)
        A(f"s_mov_b64 exec, 1\nds_add_u32 v19, v17 offset:{4*c}\ns_mov_b64 exec, -1")
    A("s_mov_b32 m0, s77\ns_nop 0")
    Q.issue("buffer_load_dwordx4 v3, s[28:31], s78 offen sc1 lds", 0)
    Q.issue("buffer_load_dwordx4 v3, s[28:31], s78 offen offset:1024 sc1 lds", 0)
    for i in range(6):
        kv_dma(i)
    chunk_done(0)
    stamp(A, 6)
    for i in range(6, 10):
        kv_dma(i)
    chunk_done(1)
    for i in range(10, 16):
        kv_dma(i)
    for c in range(2, 8):
        chunk_done(c)
    stamp(A, 7)
    A(f"""
    s_lshl_b32 s74, s{f}, 2
    s_add_u32 s74, s74, {C_Q}
    v_mov_b32 v30, s74
    s_lshl_b32 s74, s{sTB2}, 7
    s_lshl_b32 s75, s{f}, 5
    s_add_u32 s74, s74, s75
    s_add_u32 s74, s74, {WS_F3}
    v_and_b32 v18, 3, v1
    v_lshl_add_u32 v18, v18, 3, s74
    L_f_qw:
    ds_read_b32 v24, v30
    s_waitcnt lgkmcnt(0)
    v_readfirstlane_b32 s74, v24
    s_cmp_eq_u32 s74, 1
    s_cbranch_scc1 L_f_qw_done
    s_sleep 2
    s_branch L_f_qw
    L_f_qw_done:
    """)
    wdma(2, 44, 12, "w")
    poll(A, "f_p3", 18, 8)
    Q.q = []
    def hload(step, t, tag):
        b = HB + 8 * (step % 3) + 4 * t
        Q.issue(f"buffer_load_dwordx4 {vr(b,4)}, v{(3,31)[t]}, s[28:31], s14 offen sc1", tag)
        if t == 1:
            A("s_add_u32 s14, s14, 1024")
    def trreads(step, dst):
        sl = (step + 1) % 3
        for cb in range(2):
            A(f"ds_read_b64_tr_b16 {vr(dst+4*cb,2)}, v{28+cb} offset:{sl*8192}")
            A(f"ds_read_b64_tr_b16 {vr(dst+4*cb+2,2)}, v{28+cb} offset:{sl*8192+1024}")
        A("s_waitcnt lgkmcnt(0)")
    for s in range(3):
        hload(s, 0, s); hload(s, 1, s)
    Q.drain()
    stamp(A, 8)
    def fstep(s, nxt):
        h = HB + 8 * (s % 3)
        trreads(s, WF)
        if nxt == "h":
            wdma(s + 3, 44, 12, s + 3)
        elif nxt == "o":
            wdma(s + 3, 48, 13, s + 3)
        A(mfma(FACC, WF, h)); A(mfma(FACC + 32, WF + 4, h))
        if nxt == "h":
            hload(s + 3, 0, s + 3)
        A(mfma(FACC + 16, WF, h + 4)); A(mfma(FACC + 48, WF + 4, h + 4))
        if nxt == "h":
            hload(s + 3, 1, s + 3)
    A("s_mov_b32 s79, 8\nL_f_loop:")
    for s in range(3):
        A("s_waitcnt vmcnt(8)")
        fstep(s, "h")
    A("s_sub_u32 s79, s79, 1\ns_cmp_lg_u32 s79, 0\ns_cbranch_scc1 L_f_loop")
    Q.q = [24]*4 + [25]*4 + [26]*4
    for s in range(24, 28):
        Q.wait(s)
        fstep(s, "h" if s == 24 else "o")
    for k in range(8):
        s = 28 + k
        Q.wait(s)
        trreads(s, WO + 8 * k)
        if k + 3 < 8:
            wdma(s + 3, 48, 13, s + 3)
    for x in XB_LOADS:
        A(x)
    A(f"""
    s_lshl_b32 s74, s{sTB2}, 8
    s_lshl_b32 s75, s{f}, 6
    s_add_u32 s74, s74, s75
    s_add_u32 s74, s74, {WS_FR}
    v_and_b32 v18, 7, v1
    v_lshl_add_u32 v18, v18, 3, s74
    """)
    poll(A, "f_pr", 18, 8)
    stamp(A, 9)
    A(f"""
    s_lshl_b32 s74, s{f}, 14
    v_add_u32 v16, s74, v3
    s_add_u32 s14, s15, 4096
    s_mov_b32 s79, 0x8000
    s_mov_b32 s78, 0
    s_barrier
    """)
    stamp(A, 10)
    for k in range(8):
        so, im = (15, k * 1024) if k < 4 else (14, (k - 4) * 1024)
        A(f"""
        L_f_ld{k}:
        buffer_load_dwordx4 {vr(FB+8*k,4)}, v3, s[28:31], s{so} offen offset:{im} sc1
        buffer_load_dwordx4 {vr(FB+8*k+4,4)}, v31, s[28:31], s{so} offen offset:{im} sc1
        """)
    for k in range(1, 8):
        A(f"s_cmp_eq_u32 s78, {k}\ns_cbranch_scc1 L_f_ck{k}")
    for k in range(8):
        b, w = FB + 8 * k, WO + 8 * k
        A(f"""
        L_f_ck{k}:
        s_waitcnt vmcnt({14 - 2*k})
        v_max3_u32 v17, v{b}, v{b+1}, v{b+2}
        v_max3_u32 v18, v{b+3}, v{b+4}, v{b+5}
        v_max3_u32 v17, v17, v{b+6}, v{b+7}
        v_max_u32 v17, v17, v18
        v_cmp_eq_u32 vcc, -1, v17
        s_mov_b32 s78, {k}
        s_cbranch_vccz L_f_go{k}
        s_sub_u32 s79, s79, 1
        s_cmp_lg_u32 s79, 0
        s_cbranch_scc1 L_f_ld{k}
        s_mov_b32 s79, 1
        L_f_go{k}:
        {mfma(FACC, w, b)}
        {mfma(FACC+16, w, b+4)}
        {mfma(FACC+32, w+4, b)}
        {mfma(FACC+48, w+4, b+4)}
        """)
    stamp(A, 11)
    A("s_nop 11")
    for q in range(16):
        A(f"ds_write_b128 v16, {vr(FACC+4*q,4)} offset:{q*1024}")
    A("s_waitcnt lgkmcnt(0)")

def gen_final(A):
    R = 96
    A(f"""
    L_final:
    s_lshl_b32 s74, s{sWAVE}, 11
    v_add_u32 v16, s74, v3
    s_mov_b32 s75, 0xffff0000
    """)
    for g in range(2):
        for d in range(2):
            A(f"""
            v_lshlrev_b32 v{20+4*g+2*d}, 16, v{XB+2*g+d}
            v_and_b32 v{21+4*g+2*d}, s75, v{XB+2*g+d}
            v_lshlrev_b32 v28, 16, v{XB+4+2*g+d}
            v_and_b32 v29, s75, v{XB+4+2*g+d}
            v_add_f32 v{20+4*g+2*d}, v{20+4*g+2*d}, v28
            v_add_f32 v{21+4*g+2*d}, v{21+4*g+2*d}, v29
            """)
    A("s_barrier")
    stamp(A, 12)
    for src in range(4):
        for g in range(2):
            A(f"ds_read_b128 {vr(R+8*src+4*g,4)}, v16 offset:{src*16384 + g*1024}")
    for src in range(4):
        A(f"s_waitcnt lgkmcnt({6-2*src})")
        for i in range(8):
            A(f"v_add_f32 v{20+i}, v{20+i}, v{R+8*src+i}")
    for i in range(4):
        A(f"v_cvt_pk_bf16_f32 v{28+i}, v{20+2*i}, v{21+2*i}")
    A(f"""
    buffer_store_dwordx2 v[28:29], v5, s[60:63], 0 offen
    buffer_store_dwordx2 v[30:31], v5, s[60:63], 0 offen offset:16
    """)
    stamp(A, 13)
    if asm.STAMPS:
        A("s_waitcnt vmcnt(0)")
    stamp(A, 14); stamp(A, 15, True)
    stamp_flush(A, 0, 28, sWAVE)
    if asm.STAMPS:
        A("s_add_u32 s82, s82, 512\ns_mov_b64 exec, 0xffff\nbuffer_store_dword v252, v251, s[28:31], s82 offen")
    A("L_end:\ns_endpgm")

def gen_fallback(A):
    A("L_fallback:\ns_waitcnt lgkmcnt(0)")
    kv_srds(A)
    A(f"""
    v_mov_b32 v{C[0]}, 0xff7fffff
    v_mov_b32 v{C[1]}, 0xff7fffff
    v_mov_b32 v{VA}, 0x3f803f80
    s_mov_b32 s12, 0x0000ffff
    s_mov_b32 s13, 0x0000ffff
    """)
    for i in range(1, 4):
        A(f"v_mov_b32 v{VA+i}, v{VA}")
    for i in range(4):
        A(f"v_mov_b32 v{VB[0]+i}, v{VA}")
    for q in range(2):
        for i in range(16):
            A(f"v_mov_b32 v{O[q]+i}, 0")
    A(f"""
    s_mov_b32 s11, 0
    L_fb_loop:
    buffer_load_dwordx4 {vr(KB[0],4)}, v{vL16}, s[84:87], s11 offen sc1
    s_mov_b64 exec, s[12:13]
    buffer_load_dwordx4 {vr(VA,4)}, v{vVg}, s[88:91], s11 offen sc1
    buffer_load_dwordx4 {vr(VB[0],4)}, v{vVg}, s[88:91], s11 offen offset:512 sc1
    s_mov_b64 exec, -1
    s_waitcnt vmcnt(0)
    """)
    for q in range(2):
        A(f"{mfma(S[0], KB[0], Q2[q], '0')}\ns_nop 15\ns_nop 3")
        rowmax(A, S[0], T0)
        A(f"""
        v_max_f32 v{T0}, v{T0}, v{C[q]}
        v_sub_f32 v{T2}, v{C[q]}, v{T0}
        v_exp_f32 v{T2}, v{T2}
        v_mov_b32 v{C[q]}, v{T0}
        """)
        for i in range(16):
            A(f"v_mul_f32 v{O[q]+i}, v{O[q]+i}, v{T2}")
        for i in range(16):
            A(f"v_sub_f32 v{S[0]+i}, v{S[0]+i}, v{T0}")
        for i in range(16):
            A(ex(S[0], i))
        A("s_nop 0")
        for i in range(8):
            A(cv(S[0], i))
        A(f"s_nop 1\n{mfma(O[q], VA, P)}\n{mfma(O[q], VB[0], P+4)}")
    A(f"""
    s_nop 15
    s_nop 3
    s_add_u32 s11, s11, 1024
    s_cmp_lt_u32 s11, 0x10000
    s_cbranch_scc1 L_fb_loop
    s_branch L_a_fin
    """)
```

```python
from asm import *
import asm, math, os
OPT = os.environ.get('MOPT', '').split(',')
def optval(k, d):
    for o in OPT:
        if o.startswith(k + "="):
            return o.split("=")[1]
    return d
LOG2E = math.log2(math.e)

XST, WBASE, WST = 16384, 49152, 28672
VST = 1056
LDS_V = 65536
QA = LDS_V + 66 * VST
CTL = QA + 3 * 8192
LDS_BYTES = 163840
C_KV, C_Q, C_H = CTL, CTL + 64, CTL + 96
T_XP, T_RS, T_WP = CTL + 128, CTL + 128 + 1024, CTL + 128 + 2048
T_PART = QA

sWAVE, sW4, sTBK, sG, sTYPE, sHEAD, sQB, sTB2, sNB, sC = range(64, 74)
SRD_K, SRD_V = 84, 88

def prologue(A):
    A("s_cmp_ge_u32 s2, 256\ns_cbranch_scc1 L_end")
    stamp(A, 0, True); stamp(A, 1)
    A(f"""
    s_load_dwordx16 s[4:19], s[0:1], 0
    s_load_dwordx4 s[20:23], s[0:1], 64
    s_load_dwordx2 s[24:25], s[0:1], 80
    s_getpc_b64 s[44:45]
    L_pc:
    s_mov_b32 s46, L_code_end-L_pc
    s_mov_b32 s47, 0x00020000
    v_lshlrev_b32 v5, 6, v0
    buffer_load_dword v253, v5, s[44:47], 0 offen
    v_and_b32 v1, 63, v0
    v_lshrrev_b32 v2, 6, v0
    v_lshlrev_b32 v3, 4, v1
    v_readfirstlane_b32 s{sWAVE}, v2
    v_mov_b32 v4, 0
    s_and_b32 s74, s2, 7
    s_lshr_b32 s75, s2, 3
    s_and_b32 s{sQB}, s75, 7
    s_and_b32 s77, s74, 1
    s_lshl_b32 s77, s77, 3
    s_add_u32 s{sTBK}, s77, s{sQB}
    s_lshr_b32 s77, s75, 3
    s_lshr_b32 s{sTYPE}, s77, 1
    s_and_b32 s78, s77, 1
    s_and_b32 s{sG}, s74, 6
    s_add_u32 s{sG}, s{sG}, s78
    s_lshl_b32 s74, s74, 2
    s_add_u32 s{sHEAD}, s74, s77
    s_and_b32 s78, s75, 3
    s_add_u32 s{sTB2}, s74, s78
    s_lshr_b32 s{sNB}, s75, 2
    """)
    rot = optval("rot", "tbk")
    if rot == "grp":
        A(f"s_lshl_b32 s{sC}, s77, 1")
    elif rot == "tbk":
        A(f"s_mov_b32 s{sC}, s{sQB}")
    elif rot == "full":
        A(f"s_lshl_b32 s{sC}, s77, 1\ns_add_u32 s{sC}, s{sC}, s{sQB}\ns_and_b32 s{sC}, s{sC}, 7")
    elif rot == "mix":
        A(f"s_lshl_b32 s{sC}, s77, 1\ns_and_b32 s78, s{sQB}, 1\ns_add_u32 s{sC}, s{sC}, s78")
    else:
        A(f"s_mov_b32 s{sC}, 0")
    A(f"""
    s_and_b32 s{sW4}, s{sWAVE}, 3
    s_mov_b32 s30, {WS_BYTES}
    s_mov_b32 s31, 0x00020000
    s_mov_b32 s3, {WS_CTL}
    v_and_b32 v2, 31, v1
    v_lshrrev_b32 v7, 5, v1
    s_cmp_lt_u32 s{sWAVE}, 4
    s_cbranch_scc1 L_m
    """)

def lanepart_tr(A, dst, t1):
    A(f"""
    v_lshlrev_b32 v{dst}, 3, v7
    v_bfe_u32 v{t1}, v1, 2, 2
    v_add_u32 v{dst}, v{dst}, v{t1}
    v_lshlrev_b32 v{dst}, 6, v{dst}
    v_bfe_u32 v{t1}, v1, 4, 1
    v_lshl_add_u32 v{dst}, v{t1}, 5, v{dst}
    v_and_b32 v{t1}, 3, v1
    v_lshl_add_u32 v{dst}, v{t1}, 3, v{dst}
    """)

XA0, XA1, WAa, WAb = 8, 12, 16, 17
FS = [20, 44]
ACC = 68
XPF, WPF, RS, SD, RT = 180, 188, 204, 206, 208
HP = 180
vFLG, vTAG = 240, 242
sP, sE, sT0, sT1 = 4, 5, 6, 7

def m_common(A, a_setup):
    A(f"""
    L_m:
    s_mov_b32 s54, 0x200000
    s_mov_b32 s55, 0x00020000
    s_mov_b32 s42, 256
    s_mov_b32 s43, 0x00020000
    v_bfe_u32 v24, v1, 1, 3
    v_xor_b32 v24, v24, v7
    v_lshlrev_b32 v{XA0}, 7, v2
    v_lshl_add_u32 v{XA0}, v24, 4, v{XA0}
    s_lshl_b32 s74, s{sW4}, 12
    v_add_u32 v{XA0}, s74, v{XA0}
    s_waitcnt lgkmcnt(0)
    s_mov_b32 s28, s24
    s_mov_b32 s29, s25
    s_mov_b32 s52, s4
    s_mov_b32 s53, s5
    s_mov_b32 s40, s22
    s_mov_b32 s41, s23
    buffer_load_dwordx2 v[{vTAG}:{vTAG+1}], v4, s[28:31], s3 offen sc1
    s_lshl_b32 s74, s{sQB}, 3
    s_lshl_b32 s75, s{sW4}, 1
    s_add_u32 s74, s74, s75
    s_mul_i32 s8, s74, {ACT_TB}
    s_lshl_b32 s75, s{sHEAD}, 10
    s_add_u32 s8, s8, s75
    s_add_u32 s8, s8, {WS_ACT}
    s_add_u32 s9, s8, {ACT_TB}
    s_lshr_b32 s{sP}, s{sW4}, 1
    s_and_b32 s{sE}, s{sW4}, 1
    s_lshl_b32 s74, s{sTBK}, 2
    s_add_u32 s{sT0}, s74, s{sW4}
    s_xor_b32 s{sT1}, s{sT0}, 1
    """)
    for ks in range(1, 4):
        A(f"v_xor_b32 v{XA0+ks}, {ks << 5}, v{XA0}")
    for ks in range(4):
        A(f"v_xor_b32 v{XA1+ks}, 0x1000, v{XA0+ks}")
    lanepart_tr(A, WAb, 24)
    for i in range(0, 112, 2):
        A(f"v_mov_b64 {vr(ACC+i,2)}, 0")
    for i in range(6):
        A(f"v_mov_b64 {vr(XPF+4*i+2,2)}, 0")
    a_setup(A)
    if 'notour' not in OPT:
        A(f"""
        s_lshl_b32 s74, s{sW4}, 1
        s_add_u32 s74, s74, s{sTYPE}
        s_waitcnt vmcnt(1)
        s_mov_b64 exec, 0
        s_cmp_eq_u32 s74, 0
        s_cbranch_scc1 TOUR_mq
        s_cmp_eq_u32 s74, 1
        s_cbranch_scc1 TOUR_mf
        s_cmp_lt_u32 s74, 4
        s_cbranch_scc1 TOUR_h
        s_cmp_lt_u32 s74, 6
        s_cbranch_scc1 TOUR_a
        s_branch TOUR_f
        L_tour_ret:
        s_mov_b64 exec, -1
        """)
    else:
        A("L_tour_ret:")
    stamp(A, 11)
    A(f"""
    s_mov_b32 s10, 0
    s_mov_b32 s11, 8
    s_mov_b32 s14, {XST}
    s_mov_b32 s15, {WST}
    s_waitcnt vmcnt(0)
    v_add_u32 v{vTAG}, 1, v{vTAG}
    v_add_u32 v{vTAG+1}, 1, v{vTAG+1}
    s_setprio 3
    s_cmp_lg_u32 s{sTYPE}, 0
    s_cbranch_scc1 L_m_ffn
    """)

def m_path(A, ffn):
    nm = "ffn" if ffn else "qkv"
    ncb = 4 if ffn else 3
    def xf(s, t): return FS[s] + 4 * t
    def wf(s, c): return FS[s] + 8 + 4 * c
    blocks = [(t, c) for c in range(3) for t in range(2)] + ([(0, 3)] if ffn else [])
    def acc(i): return ACC + 16 * i
    A(f"L_m_{nm}:")
    A.region("mf" if ffn else "mq")
    if ffn:
        A(f"""
        s_mul_i32 s74, s{sE}, 12288
        s_add_u32 s74, s74, {WBASE}
        v_add_u32 v{WAa}, s74, v{WAb}
        v_add_u32 v{WAb}, {WBASE + 6*4096}, v{WAb}
        s_lshl_b32 s74, s{sTBK}, 1
        s_add_u32 s74, s74, s{sP}
        s_lshl_b32 s74, s74, 3
        s_add_u32 s74, s74, s{sG}
        s_lshl_b32 s74, s74, 1
        s_add_u32 s74, s74, s{sE}
        s_lshl_b32 s74, s74, 3
        s_add_u32 s74, s74, {WS_F3}
        """)
    else:
        A(f"""
        s_lshl_b32 s74, s{sE}, 12
        s_add_u32 s74, s74, {WBASE}
        v_add_u32 v{WAa}, s74, v{WAb}
        s_lshl_b32 s74, s{sG}, 1
        s_add_u32 s74, s74, s{sE}
        s_lshl_b32 s74, s74, 4
        s_add_u32 s74, s74, s{sTBK}
        s_lshl_b32 s74, s74, 1
        s_add_u32 s74, s74, s{sP}
        s_lshl_b32 s74, s74, 3
        s_add_u32 s74, s74, {WS_F2}
        """)
    A(f"v_mov_b32 v{vFLG}, s74\nv_mov_b32 v{vFLG+1}, {C_H}")
    cbs = 4096 if ffn else 8192
    def reads(ks, s):
        o = [f"ds_read_b128 {vr(xf(s,0),4)}, v{XA0+ks}", f"ds_read_b128 {vr(xf(s,1),4)}, v{XA1+ks}"]
        w = []
        for c in range(ncb):
            a, off = (WAb, ks * 1024) if c == 3 else (WAa, c * cbs + ks * 1024)
            w.append([f"ds_read_b64_tr_b16 {vr(wf(s,c),2)}, v{a} offset:{off}",
                      f"ds_read_b64_tr_b16 {vr(wf(s,c)+2,2)}, v{a} offset:{off+256}"])
        return [o[0]] + w[0] + [o[1]] + [x for p in w[1:] for x in p]
    def mm(i, xr, wr):
        t, c = blocks[i]
        if (not ffn) and c == 2:
            return mfma(acc(i), xr(t), wr(c))
        return mfma(acc(i), wr(c), xr(t))
    def kstep(s, fill, first=0, per=3):
        k = 0
        for i in range(first, len(blocks)):
            A(mm(i, lambda t: xf(s, t), lambda c: wf(s, c)))
            for x in fill[k:k+per]:
                A(x)
            k += per
        for x in fill[k:]:
            A(x)
    stamp(A, 2)
    A("s_barrier")
    stamp(A, 3)
    for r in reads(0, 0):
        A(r)
    A(f".p2align 6\nL_m_{nm}_loop:")
    for ks in range(3):
        s = ks & 1
        A("s_waitcnt lgkmcnt(0)")
        fill = reads(ks + 1, 1 - s)
        if ks == 0:
            fill = fill + ["s_add_u32 s10, s10, 1", "s_cmp_eq_u32 s10, 3", f"s_cselect_b32 s12, {-2*XST}, s14", f"s_cselect_b32 s13, {-2*WST}, s15", "s_cselect_b32 s10, 0, s10"]
        if ks == 2:
            fill = fill + ["s_sub_u32 s11, s11, 1", "s_cmp_eq_u32 s11, 0"]
        kstep(s, fill)
    A("s_waitcnt lgkmcnt(0)")
    A(mm(0, lambda t: xf(1, t), lambda c: wf(1, c)))
    A(f"s_barrier\ns_cbranch_scc1 L_m_{nm}_last")
    upd = [f"v_add_u32 v{XA0}, s12, v{XA0}", f"v_add_u32 v{WAa}, s13, v{WAa}", f"v_add_u32 v{XA1}, s12, v{XA1}"]
    if ffn:
        upd.append(f"v_add_u32 v{WAb}, s13, v{WAb}")
    for x in upd:
        A(x)
    upd2 = [f"v_add_u32 v{b+k}, s12, v{b+k}" for k in range(1, 4) for b in (XA0, XA1)]
    kstep(1, reads(0, 0) + upd2, first=1)
    A(f"s_branch L_m_{nm}_loop\nL_m_{nm}_last:")
    fill = f"""
    s_lshl_b32 s74, s{sW4}, 8
    v_lshl_add_u32 v{XA0}, v2, 3, s74
    v_xor_b32 v{XA0+1}, 0x100, v{XA0}
    v_lshrrev_b32 v{XA0+2}, 1, v{XA0}
    v_lshrrev_b32 v{XA0+3}, 1, v{XA0+1}
    s_mul_i32 s74, s{sE}, {768 if ffn else 256}
    v_lshl_add_u32 v{XA1}, v2, 3, s74
    v_add_u32 v{XA0}, {T_XP}, v{XA0}
    v_add_u32 v{XA0+1}, {T_XP}, v{XA0+1}
    v_add_u32 v{XA0+2}, {T_RS}, v{XA0+2}
    v_add_u32 v{XA0+3}, {T_RS}, v{XA0+3}
    v_add_u32 v{XA1}, {T_WP}, v{XA1}
    """
    if ffn:
        fill += f"""
        v_lshlrev_b32 v{XA1+1}, 3, v2
        v_add_u32 v{XA1+1}, {T_WP + 6*256}, v{XA1+1}
        s_mul_i32 s74, s{sG}, {7*2048}
        s_add_u32 s74, s74, {WS_ACT + 32*1024}
        s_mul_i32 s12, s{sT0}, {ACT_TB}
        s_add_u32 s12, s12, s74
        s_mul_i32 s13, s{sT1}, {ACT_TB}
        s_add_u32 s13, s13, s74
        s_add_u32 s14, s12, {6*2048}
        s_mul_i32 s74, s{sE}, 6144
        s_add_u32 s12, s12, s74
        s_add_u32 s13, s13, s74
        s_add_u32 s15, s12, 4096
        s_add_u32 s16, s13, 4096
        """
    else:
        fill += f"""
        s_lshl_b32 s74, s{sW4}, 7
        v_lshl_add_u32 v{XA1+2}, v7, 4, s74
        v_xor_b32 v{XA1+3}, 0x80, v{XA1+2}
        v_add_u32 v{XA1+2}, {T_RS}, v{XA1+2}
        v_add_u32 v{XA1+3}, {T_RS}, v{XA1+3}
        s_lshl_b32 s74, s{sG}, 1
        s_add_u32 s74, s74, s{sE}
        s_lshl_b32 s74, s74, 17
        s_lshl_b32 s12, s{sT0}, 10
        s_add_u32 s12, s12, s74
        s_lshl_b32 s13, s{sT1}, 10
        s_add_u32 s13, s13, s74
        """
    fill = [l.strip() for l in fill.split("\n") if l.strip()]
    rd = [f"ds_read_b64 {vr(XPF,2)}, v{XA0}", f"ds_read_b64 {vr(XPF+4,2)}, v{XA0+1}"]
    for c in range(3):
        rd.append(f"ds_read_b64 {vr(WPF+4*c,2)}, v{XA1} offset:{c*(256 if ffn else 512)}")
    if ffn:
        rd.append(f"ds_read_b64 {vr(WPF+12,2)}, v{XA1+1}")
    nfr = len(rd)
    rd += [f"ds_read_b32 v{RS}, v{XA0+2}", f"ds_read_b32 v{RS+1}, v{XA0+3}"]
    if ffn:
        rd += [f"ds_read_b32 v{SD}, v{XA0+2} offset:512", f"ds_read_b32 v{SD+1}, v{XA0+3} offset:512"]
    else:
        for t in range(2):
            for gq in range(4):
                rd.append(f"ds_read_b128 {vr(RT+16*t+4*gq,4)}, v{XA1+2+t} offset:{gq*32}")
    nv = 14 if ffn else 17
    for x in fill[:5]:
        A(x)
    kstep(1, fill[5:nv] + rd + fill[nv:], first=1, per=6)
    A(f"s_waitcnt lgkmcnt({len(rd) - nfr})")
    stamp(A, 4)
    order = list(range(len(blocks)))
    if not ffn:
        order = [2, 3, 4, 5, 0, 1]
    PK = FS[0]
    for n, i in enumerate(order):
        A(mm(i, lambda t: XPF + 4*t, lambda c: WPF + 4*c))
        if n == 0:
            A("s_waitcnt lgkmcnt(0)")
    if not ffn:
        A(f"""
        v_mul_f32 v{SD}, {f32bits(LOG2E/4)}, v{RS}
        v_mul_f32 v{SD+1}, {f32bits(LOG2E/4)}, v{RS+1}
        v_bfe_u32 v{XA0}, v1, 4, 1
        v_lshlrev_b32 v{XA0}, 16, v{XA0}
        v_lshl_add_u32 v{XA0}, v7, 8, v{XA0}
        v_and_b32 v{XA0+1}, 15, v1
        v_lshl_add_u32 v{XA0}, v{XA0+1}, 4, v{XA0}
        """)
        for n, i in enumerate(order):
            t, c = blocks[i]
            a, pk = acc(i), PK + 8 * n
            for r in range(16):
                sc = (SD + t, RS + t, RT + 16*t + r)[c]
                A(f"v_mul_f32 v{a+r}, v{a+r}, v{sc}")
                if r & 1:
                    A(f"v_cvt_pk_bf16_f32 v{pk+r//2}, v{a+r-1}, v{a+r}")
            if c < 2:
                for hh in range(2):
                    A(f"s_add_u32 s74, s{12+t}, {c*(2<<20) + hh*65536}")
                    A(f"buffer_store_dwordx4 {vr(pk+4*hh,4)}, v3, s[28:31], s74 offen sc1")
            else:
                A(f"s_add_u32 s74, s{12+t}, {WS_V}")
                for m2 in range(2):
                    A(f"buffer_store_dwordx4 {vr(pk+4*m2,4)}, v{XA0}, s[28:31], s74 offen offset:{m2*512} sc1")
        stamp(A, 5)
        A("s_waitcnt vmcnt(0)")
        stamp(A, 10)
        A(f"""
        s_mov_b64 exec, 1
        buffer_store_dwordx2 v[{vTAG}:{vTAG+1}], v{vFLG}, s[28:31], 0 offen sc1
        ds_add_u32 v{vFLG+1}, v19
        s_mov_b64 exec, -1
        s_branch L_a
        """)
    else:
        c1 = -2.0 * LOG2E * math.sqrt(2.0 / math.pi)
        c3 = c1 * 0.044715
        K1, K3, SP = XA0, XA1, FS[0]
        for t in range(2):
            A(f"""
            v_mul_f32 v{K1+2*t}, {f32bits(c1)}, v{RS+t}
            v_mul_f32 v{K3+2*t}, v{RS+t}, v{RS+t}
            v_mul_f32 v{K3+2*t}, v{K3+2*t}, v{RS+t}
            v_mul_f32 v{K3+2*t}, {f32bits(c3)}, v{K3+2*t}
            v_mov_b32 v{K1+2*t+1}, v{K1+2*t}
            v_mov_b32 v{K3+2*t+1}, v{K3+2*t}
            v_mov_b32 v{SP+2*t}, v{SD+t}
            v_mov_b32 v{SP+2*t+1}, v{SD+t}
            """)
        G = FS[1]
        p2 = lambda r: vr(r, 2)
        for n, (t, c) in enumerate(blocks):
            a, pk = acc(n), HP + 8 * n
            for r in range(0, 16, 2):
                A(f"v_pk_mul_f32 {p2(G+r)}, {p2(a+r)}, {p2(a+r)}")
            for r in range(0, 16, 2):
                A(f"v_pk_fma_f32 {p2(G+r)}, {p2(G+r)}, {p2(K3+2*t)}, {p2(K1+2*t)}")
            for r in range(0, 16, 2):
                A(f"v_pk_mul_f32 {p2(G+r)}, {p2(G+r)}, {p2(a+r)}")
            for r in range(16):
                A(f"v_exp_f32 v{G+r}, v{G+r}")
            for r in range(0, 16, 2):
                A(f"v_pk_fma_f32 {p2(G+r)}, {p2(G+r)}, {p2(SP+2*t)}, {p2(SP+2*t)}")
            for r in range(16):
                A(f"v_rcp_f32 v{G+r}, v{G+r}")
            for r in range(0, 16, 2):
                A(f"v_pk_mul_f32 {p2(a+r)}, {p2(a+r)}, {p2(G+r)}")
            for r in range(8):
                A(f"v_cvt_pk_bf16_f32 v{pk+r}, v{a+2*r}, v{a+2*r+1}")
            if n == int(optval("sig", "2")):
                A(f"s_mov_b64 exec, 1\nds_add_u32 v{vFLG+1}, v19\ns_mov_b64 exec, -1")
        stamp(A, 5)

def h_stores():
    out = []
    for n, (t, c) in enumerate([(t, c) for c in range(3) for t in range(2)] + [(0, 3)]):
        so, im = (14, 0) if c == 3 else ((12 + t, c * 2048) if c < 2 else (15 + t, 0))
        for hh in range(2):
            out.append(f"buffer_store_dwordx4 {vr(HP+8*n+4*hh,4)}, v3, s[28:31], s{so} offen offset:{im+hh*1024} sc1")
    return out

hXD, hWD, hRA, hGA, hGC, hEP = 224, 226, 227, 228, 229, 230
hWR, hXR, hGR, hGX, hBI, hT = 96, 128, 136, 152, 156, 160

def xstamp(A, lane):
    if asm.STAMPS:
        A(f"s_memtime s[80:81]\ns_waitcnt lgkmcnt(0)\nv_writelane_b32 v252, s80, {lane}")

def dma_sub(A):
    A(f"""
    L_dma:
    s_lshl_b32 s74, s{sC}, 7
    s_add_u32 s75, s74, 16384
    s_mul_i32 s76, s{sC}, s97
    s_add_u32 s{sC}, s{sC}, 1
    s_and_b32 s{sC}, s{sC}, 7
    s_cmp_lg_u32 s{sTYPE}, 0
    s_cbranch_scc1 L_dma_ffn
    """)
    for ffn in (False, True):
        if ffn:
            A("L_dma_ffn:")
        imms = [c * 64 for c in range(7)] if ffn else [0, 64, 1024, 1088, 2048, 2112]
        ops = [("x", a) for a in range(4)] + [("w", c) for c in range(len(imms))]
        ops = [ops[0], ops[4], ops[5], ops[1], ops[6], ops[7], ops[2], ops[8], ops[9], ops[3]] + ops[10:]
        for k, j in ops:
            if k == "x":
                A(f"s_add_u32 m0, s92, {j*1024}\ns_nop 0\nbuffer_load_dwordx4 v{hXD + (j & 1)}, s[32:35], s{74 + (j >> 1)} offen lds")
            else:
                A(f"s_add_u32 m0, s93, {j*4096 - imms[j]}\ns_nop 0\nbuffer_load_dwordx4 v{hWD}, s[36:39], s76 offen offset:{imms[j]} lds")
        if not ffn:
            A("s_branch L_dma_adv")
    A(f"""
    L_dma_adv:
    s_add_u32 s95, s95, 1
    s_cmp_eq_u32 s95, 3
    s_cselect_b32 s95, 0, s95
    s_cselect_b32 s74, {-2*XST}, s98
    s_cselect_b32 s75, {-2*WST}, s99
    s_add_u32 s92, s92, s74
    s_add_u32 s93, s93, s75
    s_setpc_b64 s[100:101]
    """)

def h_all(A, f_setup):
    CALL = "s_call_b64 s[100:101], L_dma"
    A(f"""
    v_lshrrev_b32 v8, 3, v1
    s_lshl_b32 s74, s{sW4}, 5
    v_add_u32 v8, s74, v8
    v_lshlrev_b32 v8, 10, v8
    v_and_b32 v9, 7, v1
    v_lshrrev_b32 v10, 4, v1
    v_xor_b32 v9, v9, v10
    v_lshl_add_u32 v{hXD}, v9, 4, v8
    v_xor_b32 v9, 4, v9
    v_lshl_add_u32 v{hXD+1}, v9, 4, v8
    v_add_u32 v{hXD+1}, 0x2000, v{hXD+1}
    v_lshrrev_b32 v8, 2, v1
    s_lshl_b32 s74, s{sW4}, 4
    v_add_u32 v8, s74, v8
    v_and_b32 v9, 3, v1
    v_lshlrev_b32 v9, 4, v9
    s_mov_b32 s34, 0x20000
    s_mov_b32 s35, 0x00020000
    s_mov_b32 s39, 0x00020000
    s_lshl_b32 s75, s{sTBK}, 17
    s_lshl_b32 s92, s{sW4}, 12
    s_lshl_b32 s93, s{sW4}, 10
    s_add_u32 s93, s93, {WBASE}
    s_mov_b32 s95, 0
    s_mov_b32 s98, {XST}
    s_mov_b32 s99, {WST}
    s_lshl_b32 s96, s{sC}, 9
    s_lshl_b32 s94, s{sTYPE}, 3
    s_add_u32 s94, s94, s{sG}
    s_lshl_b32 s79, s94, 2
    s_add_u32 s79, s79, s{sW4}
    s_lshl_b32 s79, s79, 11
    s_movk_i32 s76, 3072
    s_movk_i32 s74, 128
    s_cmp_lg_u32 s{sTYPE}, 0
    s_cselect_b32 s76, 3584, s76
    s_cselect_b32 s74, 448, s74
    s_cselect_b32 s42, s76, 0
    s_mul_i32 s74, s74, s{sG}
    s_lshl_b32 s97, s76, 6
    s_lshl_b32 s38, s76, 9
    s_sub_u32 s38, s38, s74
    v_mul_lo_u32 v{hWD}, v8, s76
    v_add_u32 v{hWD}, v{hWD}, v9
    s_cmp_lg_u32 s{sTYPE}, 0
    s_waitcnt lgkmcnt(0)
    s_cselect_b32 s36, s12, s6
    s_cselect_b32 s37, s13, s7
    s_add_u32 s36, s36, s74
    s_addc_u32 s37, s37, 0
    s_mov_b32 s28, s24
    s_mov_b32 s29, s25
    s_add_u32 s32, s4, s75
    s_addc_u32 s33, s5, 0
    buffer_load_dwordx4 {vr(hXR,4)}, v3, s[32:35], s79 offen
    buffer_load_dwordx4 {vr(hXR+4,4)}, v3, s[32:35], s79 offen offset:1024
    buffer_load_dwordx2 v[{hEP}:{hEP+1}], v4, s[28:31], s3 offen sc1
    {CALL}
    """)
    xstamp(A, 8)
    lanepart_tr(A, hRA, 8)
    A(f"""
    s_lshl_b32 s74, s{sW4}, 12
    s_add_u32 s75, s74, {WBASE}
    v_add_u32 v{hRA}, s75, v{hRA}
    s_lshl_b32 s75, s94, 1
    s_lshr_b32 s76, s{sTBK}, 3
    s_add_u32 s75, s75, s76
    s_lshl_b32 s75, s75, 14
    s_add_u32 s75, s75, s74
    s_add_u32 s75, s75, {WS_CG}
    v_lshl_add_u32 v{hGC}, v1, 3, s75
    s_lshl_b32 s74, s{sTBK}, 2
    s_add_u32 s74, s74, s{sW4}
    s_lshl_b32 s74, s74, 9
    s_add_u32 s74, s74, {WS_XG}
    v_lshl_add_u32 v{hGA}, v2, 4, s74
    v_mov_b32 v8, {CTL}
    v_lshl_add_u32 v8, v2, 2, v8
    v_mov_b32 v9, 4
    v_cmp_eq_u32 vcc, 8, v2
    s_mov_b32 s40, s14
    s_mov_b32 s41, s15
    v_cndmask_b32 v9, 0, v9, vcc
    ds_write_b32 v8, v9
    s_mov_b32 s43, 0x00020000
    s_mov_b32 s3, 0xffff0000
    s_lshr_b32 s79, s79, 6
    s_lshl_b32 s74, s{sTBK}, 11
    s_add_u32 s79, s79, s74
    s_add_u32 s79, s79, {WS_XG}
    """)
    f_setup(A)
    A.region("h")
    S0, Q0, S1, Q1, t0, t1, t2 = hT, hT + 1, hT + 2, hT + 3, hT + 4, hT + 5, hT + 6
    A("s_waitcnt vmcnt(10)")
    xstamp(A, 9)
    for row, (s_, q_) in enumerate(((S0, Q0), (S1, Q1))):
        for r in range(4):
            x = hXR + 4 * row + r
            A(f"v_lshlrev_b32 v{t0}, 16, v{x}\nv_and_b32 v{t1}, s3, v{x}")
            if r == 0:
                A(f"v_add_f32 v{s_}, v{t0}, v{t1}\nv_mul_f32 v{q_}, v{t0}, v{t0}\nv_fmac_f32 v{q_}, v{t1}, v{t1}")
            else:
                A(f"v_add_f32 v{s_}, v{s_}, v{t0}\nv_fmac_f32 v{q_}, v{t0}, v{t0}\nv_add_f32 v{s_}, v{s_}, v{t1}\nv_fmac_f32 v{q_}, v{t1}, v{t1}")
    A(f"""
    v_add_u32 v{hEP}, 1, v{hEP}
    v_add_u32 v{hEP+1}, 1, v{hEP+1}
    v_permlane32_swap_b32 v{S0}, v{S1}
    v_permlane32_swap_b32 v{Q0}, v{Q1}
    v_bfe_u32 v{t2}, v1, 4, 1
    v_add_f32 v{S0}, v{S0}, v{S1}
    v_add_f32 v{Q0}, v{Q0}, v{Q1}
    v_cmp_eq_u32 vcc, 1, v{t2}
    v_lshrrev_b32 v{t2}, 4, v1
    v_permlane16_swap_b32 v{S0}, v{Q0}
    v_readfirstlane_b32 s26, v{hEP}
    v_readfirstlane_b32 s27, v{hEP+1}
    v_add_f32 v{t0}, v{S0}, v{Q0}
    v_cndmask_b32 v{t1}, v{hEP}, v{hEP+1}, vcc
    v_lshlrev_b32 v{t2}, 3, v{t2}
    """)
    for sh in (8, 4, 2, 1):
        A(f"v_add_f32_dpp v{t0}, v{t0}, v{t0} row_ror:{sh} row_mask:0xf bank_mask:0xf\ns_nop 1")
    A(f"""
    s_mov_b32 exec_lo, 0x00010001
    s_mov_b32 exec_hi, 0x00010001
    buffer_store_dwordx2 v[{t0}:{t1}], v{t2}, s[28:31], s79 offen sc1
    s_mov_b64 exec, -1
    v_cmp_eq_u32 vcc, 1, v7
    {CALL}
    v_cndmask_b32 v{hEP}, v{hEP}, v{hEP+1}, vcc
    """)
    nb = [0]
    def bar(n):
        A(f"s_waitcnt vmcnt({n})\ns_barrier")
        if nb[0] >= 1:
            xstamp(A, 8 - nb[0])
        nb[0] += 1
    stamp(A, 2)
    bar(11)
    stamp(A, 3)
    for half in range(2):
        for ks in range(4):
            o = half * 16384 + ks * 1024
            A(f"ds_read_b64_tr_b16 {vr(hWR+16*half+4*ks,2)}, v{hRA} offset:{o}\nds_read_b64_tr_b16 {vr(hWR+16*half+4*ks+2,2)}, v{hRA} offset:{o+256}")
        if half == 0:
            A("s_waitcnt lgkmcnt(4)")
    A(CALL)
    C0, C1 = hT, hT + 2
    def colsum(base, c):
        for r in range(16):
            if r == 0:
                A(f"v_lshlrev_b32 v{c}, 16, v{base}\nv_and_b32 v{c+1}, s3, v{base}")
            else:
                A(f"v_lshlrev_b32 v{t0}, 16, v{base+r}\nv_and_b32 v{t1}, s3, v{base+r}\nv_add_f32 v{c}, v{c}, v{t0}\nv_add_f32 v{c+1}, v{c+1}, v{t1}")
        A(f"v_add_f32 v{c}, v{c}, v{c+1}")
    A("s_waitcnt lgkmcnt(0)")
    colsum(hWR, C0)
    bar(10)
    A(CALL)
    colsum(hWR + 16, C1)
    A(f"""
    v_mov_b32 v{C0+1}, v{hEP}
    s_nop 0
    v_permlane32_swap_b32 v{C0}, v{C1}
    s_nop 0
    v_add_f32 v{C0}, v{C0}, v{C1}
    buffer_store_dwordx2 v[{C0}:{C0+1}], v{hGC}, s[28:31], s96 offen sc1
    """)
    bar(11)
    A(CALL)
    bar(10)
    A(CALL)
    bar(10)
    A(CALL)
    def gather():
        for c in range(8):
            A(f"buffer_load_dwordx2 {vr(hGR+2*c,2)}, v{hGC}, s[28:31], 0 offen offset:{c*512} sc1")
        A(f"buffer_load_dwordx4 {vr(hGX,4)}, v{hGA}, s[28:31], 0 offen sc1")
    gather()
    A(f"""
    s_mul_i32 s74, s{sG}, 448
    s_lshl_b32 s75, s{sW4}, 6
    s_add_u32 s74, s74, s75
    v_lshlrev_b32 v{t0}, 1, v2
    v_lshl_add_u32 v{t0}, v7, 8, v{t0}
    buffer_load_ushort v{hBI}, v{t0}, s[40:43], s74 offen
    """)
    bar(20)
    A(CALL)
    bar(10)
    A(f"""
    s_mov_b32 s79, 0x4000
    L_h_chk:
    v_xor_b32 v{hGX+1}, s26, v{hGX+1}
    v_xor_b32 v{hGX+3}, s27, v{hGX+3}
    v_or_b32 v{t0}, v{hGX+1}, v{hGX+3}
    """)
    for c in range(8):
        A(f"v_xor_b32 v{hGR+2*c+1}, v{hEP}, v{hGR+2*c+1}")
    for c in range(0, 8, 2):
        A(f"v_or3_b32 v{t0}, v{t0}, v{hGR+2*c+1}, v{hGR+2*c+3}")
    A(f"""
    v_cmp_ne_u32 vcc, 0, v{t0}
    s_sub_u32 s79, s79, 1
    s_cmp_eq_u32 s79, 0
    s_cbranch_scc1 L_h_got
    s_cbranch_vccz L_h_got
    """)
    gather()
    A("s_waitcnt vmcnt(0)\ns_branch L_h_chk\nL_h_got:")
    a, b, r_, h_, X0, A0 = hWR, hWR + 1, hWR + 2, hWR + 3, hWR + 4, hWR + 6
    c = hGR
    A(f"""
    s_mov_b32 s74, {f32bits(1.0/512)}
    v_mul_f32 v{a}, s74, v{hGX}
    v_mul_f32 v{b}, s74, v{hGX+2}
    v_add_f32 v{c}, v{c}, v{c+2}
    v_fma_f32 v{b}, -v{a}, v{a}, v{b}
    v_add_f32 v{c+4}, v{c+4}, v{c+6}
    v_max_f32 v{b}, 0, v{b}
    v_add_f32 v{c+8}, v{c+8}, v{c+10}
    v_cvt_pk_bf16_f32 v{b}, v{b}, v{b}
    v_add_f32 v{c+12}, v{c+12}, v{c+14}
    v_and_b32 v{b}, s3, v{b}
    v_add_f32 v{c}, v{c}, v{c+4}
    v_add_f32 v{b}, {f32bits(1e-5)}, v{b}
    v_add_f32 v{c+8}, v{c+8}, v{c+12}
    v_cvt_pk_bf16_f32 v{b}, v{b}, v{b}
    v_add_f32 v{c}, v{c}, v{c+8}
    v_and_b32 v{b}, s3, v{b}
    v_sqrt_f32 v{b}, v{b}
    v_mul_f32 v{a}, -0.5, v{a}
    v_and_b32 v{c+1}, s3, v{c}
    v_cvt_pk_bf16_f32 v{b}, v{b}, v{b}
    v_sub_f32 v{c}, v{c}, v{c+1}
    v_and_b32 v{b}, s3, v{b}
    v_and_b32 v{c+2}, s3, v{c}
    v_rcp_f32 v{r_}, v{b}
    v_mul_f32 v{h_}, 0.5, v{b}
    v_sub_f32 v{c}, v{c}, v{c+2}
    v_cvt_pk_bf16_f32 v{X0}, v{a}, v{a}
    v_cvt_pk_bf16_f32 v{X0+1}, v{a}, v{h_}
    v_cvt_pk_bf16_f32 v{c+4}, v{c+1}, v{c+2}
    v_lshlrev_b32 v{hBI}, 16, v{hBI}
    v_cvt_pk_bf16_f32 v{c+5}, v{c}, v{hBI}
    s_lshl_b32 s74, s{sW4}, 8
    v_lshl_add_u32 v{A0}, v2, 3, s74
    v_lshrrev_b32 v{A0+1}, 1, v{A0}
    v_add_u32 v{A0}, {T_XP}, v{A0}
    v_add_u32 v{A0+1}, {T_RS}, v{A0+1}
    v_lshl_add_u32 v{A0+2}, v7, 10, v{A0}
    ds_write_b64 v{A0}, {vr(X0,2)}
    ds_write_b32 v{A0+1}, v{r_}
    ds_write_b32 v{A0+1}, v{b} offset:512
    ds_write_b64 v{A0+2}, {vr(c+4,2)} offset:{T_WP - T_XP}
    """)
    bar(0)
    A("s_waitcnt lgkmcnt(0)")
    bar(0)
```

```python
from asm import *
from mega1 import *
import asm

vL16, vK, vVa, vVb, vVg, vCNT, vQA, vCQ, vONE = 3, 244, 245, 246, 247, 248, 249, 18, 19
XB = 8
Q2 = [20, 24]
KB = [28, 32]
VA = 36
VB = [40, 44]
P = 48
T0, T1, T2, T3 = 56, 57, 58, 59
C = [64, 80]
O = [96, 112]
S = [128, 144]

def ex(s, i): return f"v_exp_f32 v{s+i}, v{s+i}"
def cv(s, i): return f"v_cvt_pk_bf16_f32 v{P+i}, v{s+2*i}, v{s+2*i+1}"

def rowmax(A, src, dst):
    A(f"v_max3_f32 v{dst}, v{src}, v{src+1}, v{src+2}")
    for i in range(3, 15, 2):
        A(f"v_max3_f32 v{dst}, v{dst}, v{src+i}, v{src+i+1}")
    A(f"""
    v_max_f32 v{dst}, v{dst}, v{src+15}
    v_mov_b32 v{T1}, v{dst}
    s_nop 1
    v_permlane32_swap_b32 v{dst}, v{T1}
    s_nop 1
    v_max_f32 v{dst}, v{dst}, v{T1}
    """)

def out_setup(A):
    A(f"""
    s_lshr_b32 s74, s{sWAVE}, 1
    s_and_b32 s75, s74, 1
    s_lshr_b32 s74, s74, 1
    s_lshl_b32 s76, s{sTB2}, 1
    s_add_u32 s76, s76, s75
    s_lshl_b32 s76, s76, 5
    v_add_u32 v5, s76, v2
    v_lshlrev_b32 v5, 10, v5
    s_lshl_b32 s76, s{sNB}, 1
    s_add_u32 s76, s76, s74
    s_lshl_b32 s76, s76, 1
    s_and_b32 s75, s{sWAVE}, 1
    s_add_u32 s76, s76, s75
    s_lshl_b32 s76, s76, 5
    v_lshl_add_u32 v6, v7, 3, s76
    v_add_u32 v5, v5, v6
    s_mov_b32 s56, s18
    s_mov_b32 s57, s19
    s_mov_b32 s58, 1024
    s_mov_b32 s59, 0x00020000
    s_mov_b32 s60, s20
    s_mov_b32 s61, s21
    s_mov_b32 s62, 0x200000
    s_mov_b32 s63, 0x00020000
    """)

def kv_srds(A):
    A(f"""
    s_lshl_b32 s74, s{sHEAD}, 16
    s_add_u32 s75, s74, {WS_K}
    s_add_u32 s84, s24, s75
    s_addc_u32 s85, s25, 0
    s_mov_b32 s86, 0x10000
    s_mov_b32 s87, 0x00020000
    s_add_u32 s75, s74, {WS_V}
    s_add_u32 s88, s24, s75
    s_addc_u32 s89, s25, 0
    s_mov_b32 s90, 0x10000
    s_mov_b32 s91, 0x00020000
    """)

XB_LOADS = [f"buffer_load_dwordx2 v[{XB}:{XB+1}], v5, s[52:55], 0 offen",
            f"buffer_load_dwordx2 v[{XB+2}:{XB+3}], v5, s[52:55], 0 offen offset:16",
            f"buffer_load_dwordx2 v[{XB+4}:{XB+5}], v6, s[56:59], 0 offen",
            f"buffer_load_dwordx2 v[{XB+6}:{XB+7}], v6, s[56:59], 0 offen offset:16"]

def a_setup(A):
    A(f"""
    v_and_b32 v{vVg}, 15, v1
    v_lshlrev_b32 v{vVg}, 4, v{vVg}
    v_lshl_add_u32 v{vVg}, v7, 8, v{vVg}
    v_and_b32 v{T0}, 16, v1
    v_cmp_eq_u32 vcc, 0, v{T0}
    v_and_b32 v{T1}, 11, v1
    v_cmp_ne_u32 s[74:75], 0, v{T1}
    v_add_u32 v{vVa}, {LDS_V}, v{vVg}
    v_add_u32 v{vVb}, {LDS_V+512}, v{vVg}
    v_mov_b32 v{T0}, {LDS_V+1024}
    v_mov_b32 v{T1}, {LDS_V+1040}
    v_cndmask_b32 v{T0}, v{T0}, v{T1}, s[74:75]
    v_cndmask_b32 v{vVa}, v{T0}, v{vVa}, vcc
    v_cndmask_b32 v{vVb}, v{T0}, v{vVb}, vcc
    v_mov_b32 v{vK}, v{vL16}
    v_mov_b32 v{vCNT}, {C_KV}
    s_lshl_b32 s74, s{sW4}, 11
    s_add_u32 s74, s74, {QA}
    v_add_u32 v{vQA}, s74, v{vL16}
    s_lshl_b32 s74, s{sW4}, 2
    s_add_u32 s74, s74, {C_Q}
    v_mov_b32 v{vCQ}, s74
    v_mov_b32 v{vONE}, 1
    """)
    out_setup(A)

def gen_a(A, spi=8):
    A("L_a:")
    A.region("a")
    for i in range(0, 32, 2):
        A(f"v_mov_b64 {vr(O[0]+i,2)}, 0")
    for i in range(0, 4, 2):
        A(f"v_mov_b64 {vr(P+4+i,2)}, 0\nv_mov_b64 {vr(VB[1]+i,2)}, 0")
    A(f"""
    L_a_wait0:
    ds_read_b32 v{T3}, v{vCNT}
    s_waitcnt lgkmcnt(0)
    v_readfirstlane_b32 s74, v{T3}
    s_cmp_lg_u32 s74, 4
    s_cbranch_scc1 L_a_wait0
    """)
    stamp(A, 6)
    A(f"""
    ds_read_b128 {vr(KB[0],4)}, v{vK}
    ds_read_b128 {vr(Q2[0],4)}, v{vQA}
    ds_read_b128 {vr(Q2[1],4)}, v{vQA} offset:1024
    ds_read_b128 {vr(KB[1],4)}, v{vK} offset:1024
    ds_read_b128 {vr(VA,4)}, v{vVa}
    ds_read_b128 {vr(VB[0],4)}, v{vVb}
    s_waitcnt lgkmcnt(3)
    {mfma(S[0], KB[0], Q2[0], "0")}
    {mfma(S[1], KB[0], Q2[1], "0")}
    ds_write_b32 v{vCQ}, v{vONE}
    s_nop 10
    """)
    for q in range(2):
        rowmax(A, S[q], T0)
        A(f"v_sub_f32 v{C[q]}, 0, v{T0}")
        for i in range(1, 16):
            A(f"v_mov_b32 v{C[q]+i}, v{C[q]}")
        if q == 0:
            A(f"s_nop 1\n{mfma(S[0], KB[0], Q2[0], C[0])}")
    A(f"s_mov_b32 s11, {64 // spi}\ns_waitcnt lgkmcnt(0)")
    stamp(A, 7)
    def body(tag, extra):
        extra = list(extra)
        for t in range(spi):
            for h in range(2):
                cur, nxt = S[h], S[1 - h]
                kf = KB[t & 1] if h == 0 else KB[(t + 1) & 1]
                vb = VB[(t + 1) & 1] if h == 0 else VB[t & 1]
                m1 = m2 = m3 = pre3 = ""
                if h == 0:
                    m2 = "s_waitcnt lgkmcnt(0)"
                    m3 = f"ds_read_b128 {vr(KB[t & 1],4)}, v{vK} offset:{(t+2)*1024}"
                    if t == 6:
                        pre3 = f"v_readfirstlane_b32 s74, v{T3}"
                        m3 = f"s_cmp_lg_u32 s74, 4\ns_cbranch_scc1 L_a_spin{tag}\nL_a_spun{tag}:\n" + m3
                else:
                    if t == 5:
                        m1 = f"ds_read_b32 v{T3}, v{vCNT} offset:4"
                    m2 = f"ds_read_b128 {vr(VB[(t+1) & 1],4)}, v{vVb} offset:{(t+1)*VST}"
                    m3 = f"ds_read_b128 {vr(VA,4)}, v{vVa} offset:{(t+1)*VST}"
                    if t == spi - 1:
                        m1 = "s_sub_u32 s11, s11, 1"
                if extra and not m1:
                    m1 = extra.pop(0)
                A(f"""
                {mfma(nxt, kf, Q2[1-h], C[1-h])}
                {m1}
                {ex(cur,0)}
                {ex(cur,1)}
                {ex(cur,2)}
                {ex(cur,3)}
                {ex(cur,4)}
                {ex(cur,5)}
                {cv(cur,0)}
                {mfma(O[1-h], vb, P+4)}
                {m2}
                {cv(cur,1)}
                {ex(cur,6)}
                {ex(cur,7)}
                {cv(cur,2)}
                {cv(cur,3)}
                {ex(cur,8)}
                {pre3}
                {ex(cur,9)}
                {ex(cur,10)}
                {mfma(O[h], VA, P)}
                {m3}
                {ex(cur,11)}
                {cv(cur,4)}
                {ex(cur,12)}
                {cv(cur,5)}
                {ex(cur,13)}
                {ex(cur,14)}
                {ex(cur,15)}
                {cv(cur,6)}
                {cv(cur,7)}
                """)
        assert not extra
        A(f"""
        v_add_u32 v{vK}, {spi*1024}, v{vK}
        v_add_u32 v{vVa}, {spi*VST}, v{vVa}
        v_add_u32 v{vVb}, {spi*VST}, v{vVb}
        v_add_u32 v{vCNT}, 4, v{vCNT}
        """)
        if asm.STAMPS:
            A("s_memtime s[80:81]\ns_waitcnt lgkmcnt(0)\ns_mov_b32 m0, s11\ns_nop 0\nv_writelane_b32 v252, s80, m0")
    A(f"s_cmp_eq_u32 s{sTYPE}, 0\ns_cbranch_scc1 L_a_loop")
    body("x", h_stores())
    A(".p2align 6\nL_a_loop:")
    body("", [])
    A(f"""
    s_cmp_eq_u32 s11, 6
    s_cbranch_scc1 L_a_flag
    s_cmp_lg_u32 s11, 0
    s_cbranch_scc1 L_a_loop
    {mfma(O[1], VB[(spi-1) & 1], P+4)}
    """)
    stamp(A, 8)
    for x in XB_LOADS:
        A(x)
    A(f"v_add_f32 v{T0}, abs(v{O[0]}), abs(v{O[0]+1})")
    for i in range(2, 9):
        A(f"v_add_f32 v{T0}, v{T0}, abs(v{O[0]+i})")
    for i in range(0, 9):
        A(f"v_add_f32 v{T0}, v{T0}, abs(v{O[1]+i})")
    A(f"""
    v_mov_b32 v{T1}, 0x7f000000
    v_cmp_lt_f32 vcc, v{T0}, v{T1}
    s_nop 4
    s_cmp_eq_u64 vcc, -1
    s_cbranch_scc0 L_fallback
    L_a_fin:
    v_rcp_f32 v{T0}, v{O[0]+8}
    v_rcp_f32 v{T1}, v{O[1]+8}
    """)
    for q in range(2):
        for i in range(8):
            A(f"v_mul_f32 v{O[q]+i}, v{O[q]+i}, v{(T0,T1)[q]}")
        for i in range(4):
            A(f"v_cvt_pk_bf16_f32 v{P+4*q+i}, v{O[q]+2*i}, v{O[q]+2*i+1}")
        for i in range(4):
            A(f"v_min_u32 v{P+4*q+i}, -2, v{P+4*q+i}")
        A(f"buffer_store_dwordx4 {vr(P+4*q,4)}, v{vL16}, s[28:31], s{8+q} offen sc1")
    stamp(A, 9)
    A(f"""
    s_barrier
    s_waitcnt vmcnt(2)
    s_branch L_final
    """)
    for tag in ("", "x"):
        A(f"""
        L_a_spin{tag}:
        ds_read_b32 v{T3}, v{vCNT} offset:4
        s_waitcnt lgkmcnt(0)
        v_readfirstlane_b32 s74, v{T3}
        s_cmp_lg_u32 s74, 4
        s_cbranch_scc1 L_a_spin{tag}
        s_branch L_a_spun{tag}
        """)
    A(f"""
    L_a_flag:
    s_waitcnt vmcnt(0)
    s_mov_b64 exec, 1
    buffer_store_dwordx2 v[{vTAG}:{vTAG+1}], v{vFLG}, s[28:31], 0 offen sc1
    s_mov_b64 exec, -1
    s_cmp_lg_u32 s{sWAVE}, 0
    s_cbranch_scc1 L_a_loop
    s_mov_b64 exec, 1
    buffer_atomic_add v{vONE}, v4, s[40:43], 0 offen sc1
    s_mov_b64 exec, -1
    s_branch L_a_loop
    """)

FACC, HB, WF, FB, WO = 32, 96, 120, 96, 160

def poll(A, name, vaddr, sleep=4):
    A(f"""
    s_mov_b32 s79, 0x8000
    L_{name}:
    buffer_load_dwordx2 v[24:25], v{vaddr}, s[28:31], 0 offen sc1
    s_sub_u32 s79, s79, 1
    s_waitcnt vmcnt(0)
    v_xor_b32 v24, s26, v24
    v_xor_b32 v25, s27, v25
    v_or_b32 v24, v24, v25
    v_cmp_ne_u32 vcc, 0, v24
    s_cmp_eq_u32 s79, 0
    s_cbranch_scc1 L_{name}_done
    s_cbranch_vccz L_{name}_done
    s_sleep {sleep}
    s_branch L_{name}
    L_{name}_done:
    """)

def f_setup(A):
    kv_srds(A)
    out_setup(A)
    f = sW4
    A(f"""
    s_mov_b32 s52, s4
    s_mov_b32 s53, s5
    s_mov_b32 s54, 0x200000
    s_mov_b32 s55, 0x00020000
    s_lshl_b32 s74, s{sNB}, 7
    s_add_u32 s44, s16, s74
    s_addc_u32 s45, s17, 0
    s_sub_u32 s46, {1792*1024}, s74
    s_mov_b32 s47, 0x00020000
    s_add_u32 s48, s8, s74
    s_addc_u32 s49, s9, 0
    s_sub_u32 s50, {512*1024}, s74
    s_mov_b32 s51, 0x00020000
    v_mul_u32_u24 v16, {VST}, v1
    v_add_u32 v16, {LDS_V+1024}, v16
    v_mov_b32 v20, 0x3f803f80
    v_mov_b32 v21, v20
    v_mov_b32 v22, v20
    v_mov_b32 v23, v20
    v_mov_b32 v17, 1
    v_mov_b32 v19, {C_KV}
    s_lshr_b32 s74, s{sHEAD}, 1
    s_lshl_b32 s74, s74, 8
    s_add_u32 s74, s74, {WS_F2}
    v_lshl_add_u32 v18, v2, 3, s74
    v_add_u32 v31, {ACT_TB}, v3
    v_lshrrev_b32 v26, 3, v1
    v_bfe_u32 v27, v1, 4, 1
    v_lshlrev_b32 v27, 2, v27
    v_and_b32 v28, 7, v1
    v_xor_b32 v27, v27, v28
    v_lshlrev_b32 v26, 10, v26
    v_lshl_add_u32 v26, v27, 4, v26
    v_add_u32 v27, 0x2000, v26
    v_bfe_u32 v28, v1, 2, 2
    v_lshl_add_u32 v28, v7, 2, v28
    v_lshlrev_b32 v28, 7, v28
    v_bfe_u32 v29, v1, 3, 1
    v_lshl_add_u32 v28, v29, 6, v28
    v_bfe_u32 v29, v1, 4, 1
    v_lshl_add_u32 v28, v29, 5, v28
    v_and_b32 v29, 3, v1
    v_lshl_add_u32 v28, v29, 3, v28
    v_xor_b32 v29, 64, v28
    s_lshl_b32 s77, s{f}, 11
    s_add_u32 s77, s77, {QA}
    v_add_u32 v28, s77, v28
    v_add_u32 v29, s77, v29
    s_mul_i32 s12, s{f}, {28*16384}
    s_lshl_b32 s13, s{f}, 17
    s_mul_i32 s14, s{sTB2}, {2*ACT_TB}
    s_add_u32 s14, s14, {WS_ACT}
    s_lshl_b32 s74, s{f}, 13
    s_add_u32 s15, s14, s74
    s_mul_i32 s74, s{f}, {28*1024}
    s_add_u32 s14, s14, s74
    s_add_u32 s14, s14, {32*1024}
    s_lshl_b32 s10, s{f}, 10
    s_mul_i32 s11, s{f}, {VST}
    s_add_u32 s11, s11, {LDS_V}
    s_lshl_b32 s74, s{sQB}, 2
    s_add_u32 s74, s74, s{f}
    s_lshl_b32 s74, s74, 11
    s_lshl_b32 s75, s{sHEAD}, 16
    s_add_u32 s78, s74, s75
    """)
    for i in range(0, 64, 2):
        A(f"v_mov_b64 {vr(FACC+i,2)}, 0")

def gen_f(A):
    Q = VmQ(A)
    f = sW4
    A("L_f:")
    A.region("f")
    stamp(A, 4)
    A(f"ds_write_b128 v16, v[20:23]\nds_write_b128 v16, {vr(FACC,4)} offset:16")
    def wdma(step, srd, so, tag):
        sl = (step + 1) % 3
        A(f"s_add_u32 m0, s77, {sl*8192}\ns_nop 0")
        Q.issue(f"buffer_load_dwordx4 v26, s[{srd}:{srd+3}], s{so} offen lds", tag)
        A(f"s_add_u32 m0, s77, {sl*8192+1024}\ns_nop 0")
        Q.issue(f"buffer_load_dwordx4 v27, s[{srd}:{srd+3}], s{so} offen lds", tag)
        A(f"s_add_u32 s{so}, s{so}, 16384")
    wdma(0, 44, 12, "w"); wdma(1, 44, 12, "w")
    A(f"""
    v_mov_b32 v30, {C_H}
    s_cmp_eq_u32 s{f}, 0
    s_cselect_b32 s75, 4, 5
    L_f_hw:
    ds_read_b32 v24, v30
    s_waitcnt lgkmcnt(0)
    v_readfirstlane_b32 s74, v24
    s_cmp_eq_u32 s74, s75
    s_cbranch_scc1 L_f_hw_done
    s_sleep 1
    s_branch L_f_hw
    L_f_hw_done:
    s_cmp_lg_u32 s{f}, 0
    s_cbranch_scc1 L_f_go
    """)
    poll(A, "f_p2", 18, int(optval("ps", "4")))
    A("""
    s_mov_b64 exec, 1
    ds_add_u32 v30, v17
    s_mov_b64 exec, -1
    L_f_go:
    """)
    stamp(A, 5)
    def kv_dma(i):
        A(f"s_mov_b32 m0, s10\ns_add_u32 s74, s11, {i*4*VST}")
        Q.issue("buffer_load_dwordx4 v3, s[84:87], s10 offen sc1 lds", i // 2)
        A("s_mov_b32 m0, s74\ns_nop 0")
        Q.issue("buffer_load_dwordx4 v3, s[88:91], s10 offen sc1 lds", i // 2)
        A("s_add_u32 s10, s10, 4096")
    def chunk_done(c):
        Q.wait(c)
        A(f"s_mov_b64 exec, 1\nds_add_u32 v19, v17 offset:{4*c}\ns_mov_b64 exec, -1")
    A("s_mov_b32 m0, s77\ns_nop 0")
    Q.issue("buffer_load_dwordx4 v3, s[28:31], s78 offen sc1 lds", 0)
    Q.issue("buffer_load_dwordx4 v3, s[28:31], s78 offen offset:1024 sc1 lds", 0)
    for i in range(6):
        kv_dma(i)
    chunk_done(0)
    stamp(A, 6)
    for i in range(6, 10):
        kv_dma(i)
    chunk_done(1)
    for i in range(10, 16):
        kv_dma(i)
    for c in range(2, 5):
        chunk_done(c)
    A(f"""
    v_mov_b32 v20, -1
    v_mov_b32 v21, -1
    v_mov_b32 v22, -1
    v_mov_b32 v23, -1
    s_lshl_b32 s74, s{sQB}, 2
    s_add_u32 s74, s74, s{f}
    s_mul_i32 s75, s74, {2*ACT_TB}
    s_lshl_b32 s76, s{sHEAD}, 10
    s_add_u32 s75, s75, s76
    s_add_u32 s75, s75, {WS_ACT}
    s_lshl_b32 s74, s74, 5
    s_add_u32 s74, s74, s{sHEAD}
    s_lshl_b32 s74, s74, 3
    s_add_u32 s10, s74, {WS_FR}
    """)
    Q.issue("buffer_store_dwordx4 v[20:23], v3, s[28:31], s75 offen sc1", 7)
    Q.issue("buffer_store_dwordx4 v[20:23], v31, s[28:31], s75 offen sc1", 7)
    for c in range(5, 8):
        chunk_done(c)
    A("""
    v_mov_b32 v20, s26
    v_mov_b32 v21, s27
    s_mov_b64 exec, 1
    buffer_store_dwordx2 v[20:21], v4, s[28:31], s10 offen sc1
    s_mov_b64 exec, -1
    """)
    stamp(A, 7)
    A(f"""
    s_lshl_b32 s74, s{f}, 2
    s_add_u32 s74, s74, {C_Q}
    v_mov_b32 v30, s74
    s_lshl_b32 s74, s{sTB2}, 7
    s_lshl_b32 s75, s{f}, 5
    s_add_u32 s74, s74, s75
    s_add_u32 s74, s74, {WS_F3}
    v_and_b32 v18, 3, v1
    v_lshl_add_u32 v18, v18, 3, s74
    L_f_qw:
    ds_read_b32 v24, v30
    s_waitcnt lgkmcnt(0)
    v_readfirstlane_b32 s74, v24
    s_cmp_eq_u32 s74, 1
    s_cbranch_scc1 L_f_qw_done
    s_sleep 2
    s_branch L_f_qw
    L_f_qw_done:
    """)
    wdma(2, 44, 12, "w")
    poll(A, "f_p3", 18, 8)
    Q.q = []
    def hload(step, t, tag):
        b = HB + 8 * (step % 3) + 4 * t
        Q.issue(f"buffer_load_dwordx4 {vr(b,4)}, v{(3,31)[t]}, s[28:31], s14 offen sc1", tag)
        if t == 1:
            A("s_add_u32 s14, s14, 1024")
    def trreads(step, dst):
        sl = (step + 1) % 3
        for cb in range(2):
            A(f"ds_read_b64_tr_b16 {vr(dst+4*cb,2)}, v{28+cb} offset:{sl*8192}")
            A(f"ds_read_b64_tr_b16 {vr(dst+4*cb+2,2)}, v{28+cb} offset:{sl*8192+1024}")
        A("s_waitcnt lgkmcnt(0)")
    for s in range(3):
        hload(s, 0, s); hload(s, 1, s)
    Q.drain()
    stamp(A, 8)
    def fstep(s, nxt):
        h = HB + 8 * (s % 3)
        trreads(s, WF)
        if nxt == "h":
            wdma(s + 3, 44, 12, s + 3)
        elif nxt == "o":
            wdma(s + 3, 48, 13, s + 3)
        A(mfma(FACC, WF, h)); A(mfma(FACC + 32, WF + 4, h))
        if nxt == "h":
            hload(s + 3, 0, s + 3)
        A(mfma(FACC + 16, WF, h + 4)); A(mfma(FACC + 48, WF + 4, h + 4))
        if nxt == "h":
            hload(s + 3, 1, s + 3)
    A("s_mov_b32 s79, 8\nL_f_loop:")
    for s in range(3):
        A("s_waitcnt vmcnt(8)")
        fstep(s, "h")
    A("s_sub_u32 s79, s79, 1\ns_cmp_lg_u32 s79, 0\ns_cbranch_scc1 L_f_loop")
    Q.q = [24]*4 + [25]*4 + [26]*4
    for s in range(24, 28):
        Q.wait(s)
        fstep(s, "h" if s == 24 else "o")
    for k in range(8):
        s = 28 + k
        Q.wait(s)
        trreads(s, WO + 8 * k)
        if k + 3 < 8:
            wdma(s + 3, 48, 13, s + 3)
    for x in XB_LOADS:
        A(x)
    A(f"""
    s_lshl_b32 s74, s{sTB2}, 8
    s_lshl_b32 s75, s{f}, 6
    s_add_u32 s74, s74, s75
    s_add_u32 s74, s74, {WS_FR}
    v_and_b32 v18, 7, v1
    v_lshl_add_u32 v18, v18, 3, s74
    """)
    poll(A, "f_pr", 18, 8)
    A(f"""
    s_or_b32 s74, s2, s{f}
    s_cmp_lg_u32 s74, 0
    s_cbranch_scc1 L_f_noep
    s_mov_b32 s40, s22
    s_mov_b32 s41, s23
    s_mov_b32 s42, 256
    s_mov_b32 s79, 0x8000
    L_f_ep:
    buffer_load_dword v24, v4, s[40:43], 0 offen sc1
    s_sub_u32 s79, s79, 1
    s_waitcnt vmcnt(0)
    v_readfirstlane_b32 s74, v24
    s_cmp_eq_u32 s79, 0
    s_cbranch_scc1 L_f_ep_done
    s_cmp_lg_u32 s74, 256
    s_cbranch_scc1 L_f_ep
    L_f_ep_done:
    s_mov_b32 s74, {WS_CTL}
    s_mov_b64 exec, 1
    buffer_store_dwordx2 v[20:21], v4, s[28:31], s74 offen sc1
    s_mov_b64 exec, -1
    L_f_noep:
    """)
    stamp(A, 9)
    A(f"""
    s_lshl_b32 s74, s{f}, 14
    v_add_u32 v16, s74, v3
    s_add_u32 s14, s15, 4096
    s_mov_b32 s79, 0x8000
    s_mov_b32 s78, 0
    s_barrier
    """)
    stamp(A, 10)
    for k in range(8):
        so, im = (15, k * 1024) if k < 4 else (14, (k - 4) * 1024)
        A(f"""
        L_f_ld{k}:
        buffer_load_dwordx4 {vr(FB+8*k,4)}, v3, s[28:31], s{so} offen offset:{im} sc1
        buffer_load_dwordx4 {vr(FB+8*k+4,4)}, v31, s[28:31], s{so} offen offset:{im} sc1
        """)
    for k in range(1, 8):
        A(f"s_cmp_eq_u32 s78, {k}\ns_cbranch_scc1 L_f_ck{k}")
    for k in range(8):
        b, w = FB + 8 * k, WO + 8 * k
        A(f"""
        L_f_ck{k}:
        s_waitcnt vmcnt({14 - 2*k})
        v_max3_u32 v17, v{b}, v{b+1}, v{b+2}
        v_max3_u32 v18, v{b+3}, v{b+4}, v{b+5}
        v_max3_u32 v17, v17, v{b+6}, v{b+7}
        v_max_u32 v17, v17, v18
        v_cmp_eq_u32 vcc, -1, v17
        s_mov_b32 s78, {k}
        s_cbranch_vccz L_f_go{k}
        s_sub_u32 s79, s79, 1
        s_cmp_lg_u32 s79, 0
        s_cbranch_scc1 L_f_ld{k}
        s_mov_b32 s79, 1
        L_f_go{k}:
        {mfma(FACC, w, b)}
        {mfma(FACC+16, w, b+4)}
        {mfma(FACC+32, w+4, b)}
        {mfma(FACC+48, w+4, b+4)}
        """)
    stamp(A, 11)
    A("s_nop 11")
    for q in range(16):
        A(f"ds_write_b128 v16, {vr(FACC+4*q,4)} offset:{q*1024}")
    A("s_waitcnt lgkmcnt(0)")

def gen_final(A):
    R = 96
    A(f"""
    L_final:
    s_lshl_b32 s74, s{sWAVE}, 11
    v_add_u32 v16, s74, v3
    s_mov_b32 s75, 0xffff0000
    """)
    for g in range(2):
        for d in range(2):
            A(f"""
            v_lshlrev_b32 v{20+4*g+2*d}, 16, v{XB+2*g+d}
            v_and_b32 v{21+4*g+2*d}, s75, v{XB+2*g+d}
            v_lshlrev_b32 v28, 16, v{XB+4+2*g+d}
            v_and_b32 v29, s75, v{XB+4+2*g+d}
            v_add_f32 v{20+4*g+2*d}, v{20+4*g+2*d}, v28
            v_add_f32 v{21+4*g+2*d}, v{21+4*g+2*d}, v29
            """)
    A("s_barrier")
    stamp(A, 12)
    for src in range(4):
        for g in range(2):
            A(f"ds_read_b128 {vr(R+8*src+4*g,4)}, v16 offset:{src*16384 + g*1024}")
    for src in range(4):
        A(f"s_waitcnt lgkmcnt({6-2*src})")
        for i in range(8):
            A(f"v_add_f32 v{20+i}, v{20+i}, v{R+8*src+i}")
    for i in range(4):
        A(f"v_cvt_pk_bf16_f32 v{28+i}, v{20+2*i}, v{21+2*i}")
    A(f"""
    buffer_store_dwordx2 v[28:29], v5, s[60:63], 0 offen
    buffer_store_dwordx2 v[30:31], v5, s[60:63], 0 offen offset:16
    """)
    stamp(A, 13)
    if asm.STAMPS:
        A("s_waitcnt vmcnt(0)")
    stamp(A, 14); stamp(A, 15, True)
    stamp_flush(A, 0, 28, sWAVE)
    if asm.STAMPS:
        A("s_add_u32 s82, s82, 512\ns_mov_b64 exec, 0xffff\nbuffer_store_dword v252, v251, s[28:31], s82 offen")
    A("L_end:\ns_endpgm")

def gen_fallback(A):
    A("L_fallback:\ns_waitcnt lgkmcnt(0)")
    kv_srds(A)
    A(f"""
    v_mov_b32 v{C[0]}, 0xff7fffff
    v_mov_b32 v{C[1]}, 0xff7fffff
    v_mov_b32 v{VA}, 0x3f803f80
    s_mov_b32 s12, 0x0000ffff
    s_mov_b32 s13, 0x0000ffff
    """)
    for i in range(1, 4):
        A(f"v_mov_b32 v{VA+i}, v{VA}")
    for i in range(4):
        A(f"v_mov_b32 v{VB[0]+i}, v{VA}")
    for q in range(2):
        for i in range(16):
            A(f"v_mov_b32 v{O[q]+i}, 0")
    A(f"""
    s_mov_b32 s11, 0
    L_fb_loop:
    buffer_load_dwordx4 {vr(KB[0],4)}, v{vL16}, s[84:87], s11 offen sc1
    s_mov_b64 exec, s[12:13]
    buffer_load_dwordx4 {vr(VA,4)}, v{vVg}, s[88:91], s11 offen sc1
    buffer_load_dwordx4 {vr(VB[0],4)}, v{vVg}, s[88:91], s11 offen offset:512 sc1
    s_mov_b64 exec, -1
    s_waitcnt vmcnt(0)
    """)
    for q in range(2):
        A(f"{mfma(S[0], KB[0], Q2[q], '0')}\ns_nop 15\ns_nop 3")
        rowmax(A, S[0], T0)
        A(f"""
        v_max_f32 v{T0}, v{T0}, v{C[q]}
        v_sub_f32 v{T2}, v{C[q]}, v{T0}
        v_exp_f32 v{T2}, v{T2}
        v_mov_b32 v{C[q]}, v{T0}
        """)
        for i in range(16):
            A(f"v_mul_f32 v{O[q]+i}, v{O[q]+i}, v{T2}")
        for i in range(16):
            A(f"v_sub_f32 v{S[0]+i}, v{S[0]+i}, v{T0}")
        for i in range(16):
            A(ex(S[0], i))
        A("s_nop 0")
        for i in range(8):
            A(cv(S[0], i))
        A(f"s_nop 1\n{mfma(O[q], VA, P)}\n{mfma(O[q], VB[0], P+4)}")
    A(f"""
    s_nop 15
    s_nop 3
    s_add_u32 s11, s11, 1024
    s_cmp_lt_u32 s11, 0x10000
    s_cbranch_scc1 L_fb_loop
    s_branch L_a_fin
    """)
```

```python
from asm import *
import asm, math, os
OPT = os.environ.get('MOPT', '').split(',')
def optval(k, d):
    for o in OPT:
        if o.startswith(k + "="):
            return o.split("=")[1]
    return d
LOG2E = math.log2(math.e)

XST, WBASE, WST = 16384, 49152, 28672
VST = 1056
LDS_V = 65536
QA = LDS_V + 66 * VST
CTL = QA + 3 * 8192
LDS_BYTES = 163840
C_KV, C_Q, C_H, C_D = CTL, CTL + 64, CTL + 96, CTL + 100
T_XP, T_RS, T_WP = CTL + 128, CTL + 128 + 1024, CTL + 128 + 2048
T_PART = QA

sWAVE, sW4, sTBK, sG, sTYPE, sHEAD, sQB, sTB2, sNB, sC = range(64, 74)
SRD_K, SRD_V = 84, 88

def prologue(A):
    A("s_cmp_ge_u32 s2, 256\ns_cbranch_scc1 L_end")
    stamp(A, 0, True); stamp(A, 1)
    A(f"""
    s_load_dwordx16 s[4:19], s[0:1], 0
    s_load_dwordx4 s[20:23], s[0:1], 64
    s_load_dwordx2 s[24:25], s[0:1], 80
    s_getpc_b64 s[44:45]
    L_pc:
    s_mov_b32 s46, L_code_end-L_pc
    s_mov_b32 s47, 0x00020000
    v_lshlrev_b32 v5, 6, v0
    buffer_load_dword v253, v5, s[44:47], 0 offen
    v_and_b32 v1, 63, v0
    v_lshrrev_b32 v2, 6, v0
    v_lshlrev_b32 v3, 4, v1
    v_readfirstlane_b32 s{sWAVE}, v2
    v_mov_b32 v4, 0
    s_and_b32 s74, s2, 7
    s_lshr_b32 s75, s2, 3
    s_and_b32 s{sQB}, s75, 7
    s_and_b32 s77, s74, 1
    s_lshl_b32 s77, s77, 3
    s_add_u32 s{sTBK}, s77, s{sQB}
    s_lshr_b32 s77, s75, 3
    s_lshr_b32 s{sTYPE}, s77, 1
    s_and_b32 s78, s77, 1
    s_and_b32 s{sG}, s74, 6
    s_add_u32 s{sG}, s{sG}, s78
    s_lshl_b32 s74, s74, 2
    s_add_u32 s{sHEAD}, s74, s77
    s_and_b32 s78, s75, 3
    s_add_u32 s{sTB2}, s74, s78
    s_lshr_b32 s{sNB}, s75, 2
    """)
    rot = optval("rot", "tbk")
    if rot == "grp":
        A(f"s_lshl_b32 s{sC}, s77, 1")
    elif rot == "tbk":
        A(f"s_mov_b32 s{sC}, s{sQB}")
    elif rot == "full":
        A(f"s_lshl_b32 s{sC}, s77, 1\ns_add_u32 s{sC}, s{sC}, s{sQB}\ns_and_b32 s{sC}, s{sC}, 7")
    elif rot == "mix":
        A(f"s_lshl_b32 s{sC}, s77, 1\ns_and_b32 s78, s{sQB}, 1\ns_add_u32 s{sC}, s{sC}, s78")
    else:
        A(f"s_mov_b32 s{sC}, 0")
    A(f"""
    s_and_b32 s{sW4}, s{sWAVE}, 3
    s_mov_b32 s30, {WS_BYTES}
    s_mov_b32 s31, 0x00020000
    s_mov_b32 s3, {WS_CTL}
    v_and_b32 v2, 31, v1
    v_lshrrev_b32 v7, 5, v1
    s_cmp_lt_u32 s{sWAVE}, 4
    s_cbranch_scc1 L_m
    """)

def lanepart_tr(A, dst, t1):
    A(f"""
    v_lshlrev_b32 v{dst}, 3, v7
    v_bfe_u32 v{t1}, v1, 2, 2
    v_add_u32 v{dst}, v{dst}, v{t1}
    v_lshlrev_b32 v{dst}, 6, v{dst}
    v_bfe_u32 v{t1}, v1, 4, 1
    v_lshl_add_u32 v{dst}, v{t1}, 5, v{dst}
    v_and_b32 v{t1}, 3, v1
    v_lshl_add_u32 v{dst}, v{t1}, 3, v{dst}
    """)

XA0, XA1, WAa, WAb = 8, 12, 16, 17
FS = [20, 44]
ACC = 68
XPF, WPF, RS, SD, RT = 180, 188, 204, 206, 208
HP = 180
vFLG, vTAG = 240, 242
sP, sE, sT0, sT1 = 4, 5, 6, 7

def m_common(A, a_setup):
    A(f"""
    L_m:
    s_mov_b32 s54, 0x200000
    s_mov_b32 s55, 0x00020000
    v_bfe_u32 v24, v1, 1, 3
    v_xor_b32 v24, v24, v7
    v_lshlrev_b32 v{XA0}, 7, v2
    v_lshl_add_u32 v{XA0}, v24, 4, v{XA0}
    s_lshl_b32 s74, s{sW4}, 12
    v_add_u32 v{XA0}, s74, v{XA0}
    s_waitcnt lgkmcnt(0)
    s_mov_b32 s28, s24
    s_mov_b32 s29, s25
    s_mov_b32 s52, s4
    s_mov_b32 s53, s5
    buffer_load_dwordx2 v[{vTAG}:{vTAG+1}], v4, s[28:31], s3 offen sc1
    s_lshl_b32 s74, s{sQB}, 3
    s_lshl_b32 s75, s{sW4}, 1
    s_add_u32 s74, s74, s75
    s_mul_i32 s8, s74, {ACT_TB}
    s_lshl_b32 s75, s{sHEAD}, 10
    s_add_u32 s8, s8, s75
    s_add_u32 s8, s8, {WS_ACT}
    s_add_u32 s9, s8, {ACT_TB}
    s_lshr_b32 s{sP}, s{sW4}, 1
    s_and_b32 s{sE}, s{sW4}, 1
    s_lshl_b32 s74, s{sTBK}, 2
    s_add_u32 s{sT0}, s74, s{sW4}
    s_xor_b32 s{sT1}, s{sT0}, 1
    """)
    for ks in range(1, 4):
        A(f"v_xor_b32 v{XA0+ks}, {ks << 5}, v{XA0}")
    for ks in range(4):
        A(f"v_xor_b32 v{XA1+ks}, 0x1000, v{XA0+ks}")
    lanepart_tr(A, WAb, 24)
    for i in range(0, 112, 2):
        A(f"v_mov_b64 {vr(ACC+i,2)}, 0")
    for i in range(6):
        A(f"v_mov_b64 {vr(XPF+4*i+2,2)}, 0")
    a_setup(A)
    if 'notour' not in OPT:
        A(f"""
        s_lshl_b32 s74, s{sW4}, 1
        s_add_u32 s74, s74, s{sTYPE}
        s_waitcnt vmcnt(1)
        s_mov_b64 exec, 0
        s_cmp_eq_u32 s74, 0
        s_cbranch_scc1 TOUR_mq
        s_cmp_eq_u32 s74, 1
        s_cbranch_scc1 TOUR_mf
        s_cmp_lt_u32 s74, 4
        s_cbranch_scc1 TOUR_h
        s_cmp_lt_u32 s74, 6
        s_cbranch_scc1 TOUR_a
        s_branch TOUR_f
        L_tour_ret:
        s_mov_b64 exec, -1
        """)
    else:
        A("L_tour_ret:")
    stamp(A, 11)
    A(f"""
    s_mov_b32 s10, 0
    s_mov_b32 s11, 8
    s_mov_b32 s14, {XST}
    s_mov_b32 s15, {WST}
    s_waitcnt vmcnt(0)
    v_add_u32 v{vTAG}, 1, v{vTAG}
    v_add_u32 v{vTAG+1}, 1, v{vTAG+1}
    {'s_setprio 3' if optval('prio', 'm') == 'm' else 's_nop 0'}
    s_cmp_lg_u32 s{sTYPE}, 0
    s_cbranch_scc1 L_m_ffn
    """)

def m_path(A, ffn):
    nm = "ffn" if ffn else "qkv"
    ncb = 4 if ffn else 3
    def xf(s, t): return FS[s] + 4 * t
    def wf(s, c): return FS[s] + 8 + 4 * c
    blocks = [(t, c) for c in range(3) for t in range(2)] + ([(0, 3)] if ffn else [])
    def acc(i): return ACC + 16 * i
    A(f"L_m_{nm}:")
    A.region("mf" if ffn else "mq")
    if ffn:
        A(f"""
        s_mul_i32 s74, s{sE}, 12288
        s_add_u32 s74, s74, {WBASE}
        v_add_u32 v{WAa}, s74, v{WAb}
        v_add_u32 v{WAb}, {WBASE + 6*4096}, v{WAb}
        """)
    else:
        A(f"""
        s_lshl_b32 s74, s{sE}, 12
        s_add_u32 s74, s74, {WBASE}
        v_add_u32 v{WAa}, s74, v{WAb}
        s_lshl_b32 s74, s{sG}, 1
        s_add_u32 s74, s74, s{sE}
        s_lshl_b32 s74, s74, 4
        s_add_u32 s74, s74, s{sTBK}
        s_lshl_b32 s74, s74, 1
        s_add_u32 s74, s74, s{sP}
        s_lshl_b32 s74, s74, 3
        s_add_u32 s74, s74, {WS_F2}
        """)
    A(f"v_mov_b32 v{vFLG}, s74\nv_mov_b32 v{vFLG+1}, {C_H}")
    cbs = 4096 if ffn else 8192
    def reads(ks, s):
        o = [f"ds_read_b128 {vr(xf(s,0),4)}, v{XA0+ks}", f"ds_read_b128 {vr(xf(s,1),4)}, v{XA1+ks}"]
        w = []
        for c in range(ncb):
            a, off = (WAb, ks * 1024) if c == 3 else (WAa, c * cbs + ks * 1024)
            w.append([f"ds_read_b64_tr_b16 {vr(wf(s,c),2)}, v{a} offset:{off}",
                      f"ds_read_b64_tr_b16 {vr(wf(s,c)+2,2)}, v{a} offset:{off+256}"])
        return [o[0]] + w[0] + [o[1]] + [x for p in w[1:] for x in p]
    def mm(i, xr, wr):
        t, c = blocks[i]
        if (not ffn) and c == 2:
            return mfma(acc(i), xr(t), wr(c))
        return mfma(acc(i), wr(c), xr(t))
    def kstep(s, fill, first=0, per=3):
        k = 0
        for i in range(first, len(blocks)):
            A(mm(i, lambda t: xf(s, t), lambda c: wf(s, c)))
            for x in fill[k:k+per]:
                A(x)
            k += per
        for x in fill[k:]:
            A(x)
    stamp(A, 2)
    A("s_barrier")
    stamp(A, 3)
    for r in reads(0, 0):
        A(r)
    A(f".p2align 6\nL_m_{nm}_loop:")
    for ks in range(3):
        s = ks & 1
        A("s_waitcnt lgkmcnt(0)")
        fill = reads(ks + 1, 1 - s)
        if ks == 0:
            fill = fill + ["s_add_u32 s10, s10, 1", "s_cmp_eq_u32 s10, 3", f"s_cselect_b32 s12, {-2*XST}, s14", f"s_cselect_b32 s13, {-2*WST}, s15", "s_cselect_b32 s10, 0, s10"]
        if ks == 2:
            fill = fill + ["s_sub_u32 s11, s11, 1", "s_cmp_eq_u32 s11, 0"]
        kstep(s, fill)
    A("s_waitcnt lgkmcnt(0)")
    A(mm(0, lambda t: xf(1, t), lambda c: wf(1, c)))
    A(f"s_barrier\ns_cbranch_scc1 L_m_{nm}_last")
    upd = [f"v_add_u32 v{XA0}, s12, v{XA0}", f"v_add_u32 v{WAa}, s13, v{WAa}", f"v_add_u32 v{XA1}, s12, v{XA1}"]
    if ffn:
        upd.append(f"v_add_u32 v{WAb}, s13, v{WAb}")
    for x in upd:
        A(x)
    upd2 = [f"v_add_u32 v{b+k}, s12, v{b+k}" for k in range(1, 4) for b in (XA0, XA1)]
    kstep(1, reads(0, 0) + upd2, first=1)
    A(f"s_branch L_m_{nm}_loop\nL_m_{nm}_last:")
    fill = f"""
    s_lshl_b32 s74, s{sW4}, 8
    v_lshl_add_u32 v{XA0}, v2, 3, s74
    v_xor_b32 v{XA0+1}, 0x100, v{XA0}
    v_lshrrev_b32 v{XA0+2}, 1, v{XA0}
    v_lshrrev_b32 v{XA0+3}, 1, v{XA0+1}
    s_mul_i32 s74, s{sE}, {768 if ffn else 256}
    v_lshl_add_u32 v{XA1}, v2, 3, s74
    v_add_u32 v{XA0}, {T_XP}, v{XA0}
    v_add_u32 v{XA0+1}, {T_XP}, v{XA0+1}
    v_add_u32 v{XA0+2}, {T_RS}, v{XA0+2}
    v_add_u32 v{XA0+3}, {T_RS}, v{XA0+3}
    v_add_u32 v{XA1}, {T_WP}, v{XA1}
    """
    if ffn:
        fill += f"""
        v_lshlrev_b32 v{XA1+1}, 3, v2
        v_add_u32 v{XA1+1}, {T_WP + 6*256}, v{XA1+1}
        s_lshl_b32 s74, s{sW4}, 10
        s_add_u32 s74, s74, 32768
        v_add_u32 v{WAa}, s74, v3
        s_mul_i32 s74, s{sW4}, {VST}
        s_add_u32 s74, s74, {LDS_V + 32*VST}
        v_add_u32 v{WAb}, s74, v3
        """
    else:
        fill += f"""
        s_lshl_b32 s74, s{sW4}, 7
        v_lshl_add_u32 v{XA1+2}, v7, 4, s74
        v_xor_b32 v{XA1+3}, 0x80, v{XA1+2}
        v_add_u32 v{XA1+2}, {T_RS}, v{XA1+2}
        v_add_u32 v{XA1+3}, {T_RS}, v{XA1+3}
        s_lshl_b32 s74, s{sG}, 1
        s_add_u32 s74, s74, s{sE}
        s_lshl_b32 s74, s74, 17
        s_lshl_b32 s12, s{sT0}, 10
        s_add_u32 s12, s12, s74
        s_lshl_b32 s13, s{sT1}, 10
        s_add_u32 s13, s13, s74
        """
    fill = [l.strip() for l in fill.split("\n") if l.strip()]
    rd = [f"ds_read_b64 {vr(XPF,2)}, v{XA0}", f"ds_read_b64 {vr(XPF+4,2)}, v{XA0+1}"]
    for c in range(3):
        rd.append(f"ds_read_b64 {vr(WPF+4*c,2)}, v{XA1} offset:{c*(256 if ffn else 512)}")
    if ffn:
        rd.append(f"ds_read_b64 {vr(WPF+12,2)}, v{XA1+1}")
    nfr = len(rd)
    rd += [f"ds_read_b32 v{RS}, v{XA0+2}", f"ds_read_b32 v{RS+1}, v{XA0+3}"]
    if ffn:
        rd += [f"ds_read_b32 v{SD}, v{XA0+2} offset:512", f"ds_read_b32 v{SD+1}, v{XA0+3} offset:512"]
    else:
        for t in range(2):
            for gq in range(4):
                rd.append(f"ds_read_b128 {vr(RT+16*t+4*gq,4)}, v{XA1+2+t} offset:{gq*32}")
    nv = 14 if ffn else 17
    for x in fill[:5]:
        A(x)
    kstep(1, fill[5:nv] + rd + fill[nv:], first=1, per=6)
    A(f"s_waitcnt lgkmcnt({len(rd) - nfr})")
    stamp(A, 4)
    order = list(range(len(blocks)))
    if not ffn:
        order = [2, 3, 4, 5, 0, 1]
    PK = FS[0]
    for n, i in enumerate(order):
        A(mm(i, lambda t: XPF + 4*t, lambda c: WPF + 4*c))
        if n == 0:
            A("s_waitcnt lgkmcnt(0)")
    if not ffn:
        A(f"""
        v_mov_b32 v{XA1}, v{RS}
        v_mov_b32 v{XA1+1}, v{RS}
        v_mov_b32 v{XA1+2}, v{RS+1}
        v_mov_b32 v{XA1+3}, v{RS+1}
        v_mul_f32 v{RS}, {f32bits(LOG2E/4)}, v{XA1}
        v_mul_f32 v{RS+1}, {f32bits(LOG2E/4)}, v{XA1}
        v_mul_f32 v{RS+2}, {f32bits(LOG2E/4)}, v{XA1+2}
        v_mul_f32 v{RS+3}, {f32bits(LOG2E/4)}, v{XA1+2}
        v_bfe_u32 v{XA0}, v1, 4, 1
        v_lshlrev_b32 v{XA0}, 16, v{XA0}
        v_lshl_add_u32 v{XA0}, v7, 8, v{XA0}
        v_and_b32 v{XA0+1}, 15, v1
        v_lshl_add_u32 v{XA0}, v{XA0+1}, 4, v{XA0}
        """)
        for n, i in enumerate(order):
            t, c = blocks[i]
            a, pk = acc(i), PK + 8 * n
            for r in range(0, 16, 2):
                sc = (RS + 2*t, XA1 + 2*t, RT + 16*t + r)[c]
                A(f"v_pk_mul_f32 {vr(a+r,2)}, {vr(a+r,2)}, {vr(sc,2)}")
            for r in range(0, 16, 2):
                A(f"v_cvt_pk_bf16_f32 v{pk+r//2}, v{a+r}, v{a+r+1}")
            if c < 2:
                for hh in range(2):
                    A(f"s_add_u32 s74, s{12+t}, {c*(2<<20) + hh*65536}")
                    A(f"buffer_store_dwordx4 {vr(pk+4*hh,4)}, v3, s[28:31], s74 offen sc1")
            else:
                A(f"s_add_u32 s74, s{12+t}, {WS_V}")
                for m2 in range(2):
                    A(f"buffer_store_dwordx4 {vr(pk+4*m2,4)}, v{XA0}, s[28:31], s74 offen offset:{m2*512} sc1")
        stamp(A, 5)
        A("s_waitcnt vmcnt(0)")
        stamp(A, 10)
        A(f"""
        s_mov_b64 exec, 1
        buffer_store_dwordx2 v[{vTAG}:{vTAG+1}], v{vFLG}, s[28:31], 0 offen sc1
        ds_add_u32 v{vFLG+1}, v19
        s_mov_b64 exec, -1
        s_branch L_a
        """)
    else:
        c1 = -2.0 * LOG2E * math.sqrt(2.0 / math.pi)
        c3 = c1 * 0.044715
        K1, K3, SP = XA0, XA1, FS[0]
        for t in range(2):
            A(f"""
            v_mul_f32 v{K1+2*t}, {f32bits(c1)}, v{RS+t}
            v_mul_f32 v{K3+2*t}, v{RS+t}, v{RS+t}
            v_mul_f32 v{K3+2*t}, v{K3+2*t}, v{RS+t}
            v_mul_f32 v{K3+2*t}, {f32bits(c3)}, v{K3+2*t}
            v_mov_b32 v{K1+2*t+1}, v{K1+2*t}
            v_mov_b32 v{K3+2*t+1}, v{K3+2*t}
            v_mov_b32 v{SP+2*t}, v{SD+t}
            v_mov_b32 v{SP+2*t+1}, v{SD+t}
            """)
        G = FS[1]
        p2 = lambda r: vr(r, 2)
        for n, (t, c) in enumerate(blocks):
            a, pk = acc(n), HP + 8 * (n & 1)
            for r in range(0, 16, 2):
                A(f"v_pk_mul_f32 {p2(G+r)}, {p2(a+r)}, {p2(a+r)}")
            for r in range(0, 16, 2):
                A(f"v_pk_fma_f32 {p2(G+r)}, {p2(G+r)}, {p2(K3+2*t)}, {p2(K1+2*t)}")
            for r in range(0, 16, 2):
                A(f"v_pk_mul_f32 {p2(G+r)}, {p2(G+r)}, {p2(a+r)}")
            for r in range(16):
                A(f"v_exp_f32 v{G+r}, v{G+r}")
            for r in range(0, 16, 2):
                A(f"v_pk_fma_f32 {p2(G+r)}, {p2(G+r)}, {p2(SP+2*t)}, {p2(SP+2*t)}")
            for r in range(16):
                A(f"v_rcp_f32 v{G+r}, v{G+r}")
            for r in range(0, 16, 2):
                A(f"v_pk_mul_f32 {p2(a+r)}, {p2(a+r)}, {p2(G+r)}")
            for r in range(8):
                A(f"v_cvt_pk_bf16_f32 v{pk+r}, v{a+2*r}, v{a+2*r+1}")
            for hh in range(2):
                va, off = h_slot(2 * n + hh)
                A(f"ds_write_b128 v{(WAa, WAb)[va]}, {vr(pk+4*hh,4)} offset:{off}")
            if n == int(optval("sig", "2")):
                A(f"s_mov_b64 exec, 1\nds_add_u32 v{vFLG+1}, v19\ns_mov_b64 exec, -1")
        stamp(A, 5)

def h_slot(i):
    return (0, i * 4096) if i < 8 else (1, (i - 8) * 4 * VST)

hXD, hWD, hRA, hGA, hGC, hEP = 224, 226, 227, 228, 229, 230
hWR, hXR, hGR, hGX, hBI, hT = 96, 128, 136, 152, 156, 160

def xstamp(A, lane):
    if asm.STAMPS:
        A(f"s_memtime s[80:81]\ns_waitcnt lgkmcnt(0)\nv_writelane_b32 v252, s80, {lane}")

def dma_sub(A):
    A(f"""
    L_dma:
    s_lshl_b32 s74, s{sC}, 7
    s_add_u32 s75, s74, 16384
    s_mul_i32 s76, s{sC}, s97
    s_add_u32 s{sC}, s{sC}, 1
    s_and_b32 s{sC}, s{sC}, 7
    s_cmp_lg_u32 s{sTYPE}, 0
    s_cbranch_scc1 L_dma_ffn
    """)
    for ffn in (False, True):
        if ffn:
            A("L_dma_ffn:")
        imms = [c * 64 for c in range(7)] if ffn else [0, 64, 1024, 1088, 2048, 2112]
        ops = [("x", a) for a in range(4)] + [("w", c) for c in range(len(imms))]
        ops = [ops[0], ops[4], ops[5], ops[1], ops[6], ops[7], ops[2], ops[8], ops[9], ops[3]] + ops[10:]
        for k, j in ops:
            if k == "x":
                A(f"s_add_u32 m0, s92, {j*1024}\ns_nop 0\nbuffer_load_dwordx4 v{hXD + (j & 1)}, s[32:35], s{74 + (j >> 1)} offen lds")
            else:
                A(f"s_add_u32 m0, s93, {j*4096 - imms[j]}\ns_nop 0\nbuffer_load_dwordx4 v{hWD}, s[36:39], s76 offen offset:{imms[j]} lds")
        if not ffn:
            A("s_branch L_dma_adv")
    A(f"""
    L_dma_adv:
    s_add_u32 s95, s95, 1
    s_cmp_eq_u32 s95, 3
    s_cselect_b32 s95, 0, s95
    s_cselect_b32 s74, {-2*XST}, s98
    s_cselect_b32 s75, {-2*WST}, s99
    s_add_u32 s92, s92, s74
    s_add_u32 s93, s93, s75
    s_setpc_b64 s[100:101]
    """)

def h_all(A, f_setup):
    CALL = "s_call_b64 s[100:101], L_dma"
    if optval('prio', 'm') == 'h':
        A("s_setprio 3")
    A(f"""
    v_lshrrev_b32 v8, 3, v1
    s_lshl_b32 s74, s{sW4}, 5
    v_add_u32 v8, s74, v8
    v_lshlrev_b32 v8, 10, v8
    v_and_b32 v9, 7, v1
    v_lshrrev_b32 v10, 4, v1
    v_xor_b32 v9, v9, v10
    v_lshl_add_u32 v{hXD}, v9, 4, v8
    v_xor_b32 v9, 4, v9
    v_lshl_add_u32 v{hXD+1}, v9, 4, v8
    v_add_u32 v{hXD+1}, 0x2000, v{hXD+1}
    v_lshrrev_b32 v8, 2, v1
    s_lshl_b32 s74, s{sW4}, 4
    v_add_u32 v8, s74, v8
    v_and_b32 v9, 3, v1
    v_lshlrev_b32 v9, 4, v9
    s_mov_b32 s34, 0x20000
    s_mov_b32 s35, 0x00020000
    s_mov_b32 s39, 0x00020000
    s_lshl_b32 s75, s{sTBK}, 17
    s_lshl_b32 s92, s{sW4}, 12
    s_lshl_b32 s93, s{sW4}, 10
    s_add_u32 s93, s93, {WBASE}
    s_mov_b32 s95, 0
    s_mov_b32 s98, {XST}
    s_mov_b32 s99, {WST}
    s_lshl_b32 s96, s{sC}, 9
    s_lshl_b32 s94, s{sTYPE}, 3
    s_add_u32 s94, s94, s{sG}
    s_lshl_b32 s79, s94, 2
    s_add_u32 s79, s79, s{sW4}
    s_lshl_b32 s79, s79, 11
    s_movk_i32 s76, 3072
    s_movk_i32 s74, 128
    s_cmp_lg_u32 s{sTYPE}, 0
    s_cselect_b32 s76, 3584, s76
    s_cselect_b32 s74, 448, s74
    s_cselect_b32 s42, s76, 0
    s_mul_i32 s74, s74, s{sG}
    s_lshl_b32 s97, s76, 6
    s_lshl_b32 s38, s76, 9
    s_sub_u32 s38, s38, s74
    v_mul_lo_u32 v{hWD}, v8, s76
    v_add_u32 v{hWD}, v{hWD}, v9
    s_cmp_lg_u32 s{sTYPE}, 0
    s_waitcnt lgkmcnt(0)
    s_cselect_b32 s36, s12, s6
    s_cselect_b32 s37, s13, s7
    s_add_u32 s36, s36, s74
    s_addc_u32 s37, s37, 0
    s_mov_b32 s28, s24
    s_mov_b32 s29, s25
    s_add_u32 s32, s4, s75
    s_addc_u32 s33, s5, 0
    buffer_load_dwordx4 {vr(hXR,4)}, v3, s[32:35], s79 offen
    buffer_load_dwordx4 {vr(hXR+4,4)}, v3, s[32:35], s79 offen offset:1024
    buffer_load_dwordx2 v[{hEP}:{hEP+1}], v4, s[28:31], s3 offen sc1
    {CALL}
    """)
    xstamp(A, 8)
    lanepart_tr(A, hRA, 8)
    A(f"""
    s_lshl_b32 s74, s{sW4}, 12
    s_add_u32 s75, s74, {WBASE}
    v_add_u32 v{hRA}, s75, v{hRA}
    s_lshl_b32 s75, s94, 1
    s_lshr_b32 s76, s{sTBK}, 3
    s_add_u32 s75, s75, s76
    s_lshl_b32 s75, s75, 14
    s_add_u32 s75, s75, s74
    s_add_u32 s75, s75, {WS_CG}
    v_lshl_add_u32 v{hGC}, v1, 3, s75
    s_lshl_b32 s74, s{sTBK}, 2
    s_add_u32 s74, s74, s{sW4}
    s_lshl_b32 s74, s74, 9
    s_add_u32 s74, s74, {WS_XG}
    v_lshl_add_u32 v{hGA}, v2, 4, s74
    v_mov_b32 v8, {CTL}
    v_lshl_add_u32 v8, v2, 2, v8
    v_mov_b32 v9, 4
    v_cmp_eq_u32 vcc, 8, v2
    s_mov_b32 s40, s14
    s_mov_b32 s41, s15
    v_cndmask_b32 v9, 0, v9, vcc
    ds_write_b32 v8, v9
    s_mov_b32 s43, 0x00020000
    s_mov_b32 s3, 0xffff0000
    s_lshr_b32 s79, s79, 6
    s_lshl_b32 s74, s{sTBK}, 11
    s_add_u32 s79, s79, s74
    s_add_u32 s79, s79, {WS_XG}
    """)
    f_setup(A)
    A.region("h")
    S0, Q0, S1, Q1, t0, t1, t2 = hT, hT + 1, hT + 2, hT + 3, hT + 4, hT + 5, hT + 6
    A("s_waitcnt vmcnt(10)")
    xstamp(A, 9)
    for row, (s_, q_) in enumerate(((S0, Q0), (S1, Q1))):
        for r in range(4):
            x = hXR + 4 * row + r
            A(f"v_lshlrev_b32 v{t0}, 16, v{x}\nv_and_b32 v{t1}, s3, v{x}")
            if r == 0:
                A(f"v_add_f32 v{s_}, v{t0}, v{t1}\nv_mul_f32 v{q_}, v{t0}, v{t0}\nv_fmac_f32 v{q_}, v{t1}, v{t1}")
            else:
                A(f"v_add_f32 v{s_}, v{s_}, v{t0}\nv_fmac_f32 v{q_}, v{t0}, v{t0}\nv_add_f32 v{s_}, v{s_}, v{t1}\nv_fmac_f32 v{q_}, v{t1}, v{t1}")
    A(f"""
    v_add_u32 v{hEP}, 1, v{hEP}
    v_add_u32 v{hEP+1}, 1, v{hEP+1}
    v_permlane32_swap_b32 v{S0}, v{S1}
    v_permlane32_swap_b32 v{Q0}, v{Q1}
    v_bfe_u32 v{t2}, v1, 4, 1
    v_add_f32 v{S0}, v{S0}, v{S1}
    v_add_f32 v{Q0}, v{Q0}, v{Q1}
    v_cmp_eq_u32 vcc, 1, v{t2}
    v_lshrrev_b32 v{t2}, 4, v1
    v_permlane16_swap_b32 v{S0}, v{Q0}
    v_readfirstlane_b32 s26, v{hEP}
    v_readfirstlane_b32 s27, v{hEP+1}
    v_add_f32 v{t0}, v{S0}, v{Q0}
    v_cndmask_b32 v{t1}, v{hEP}, v{hEP+1}, vcc
    v_lshlrev_b32 v{t2}, 3, v{t2}
    """)
    for sh in (8, 4, 2, 1):
        A(f"v_add_f32_dpp v{t0}, v{t0}, v{t0} row_ror:{sh} row_mask:0xf bank_mask:0xf\ns_nop 1")
    A(f"""
    s_mov_b32 exec_lo, 0x00010001
    s_mov_b32 exec_hi, 0x00010001
    buffer_store_dwordx2 v[{t0}:{t1}], v{t2}, s[28:31], s79 offen sc1
    s_mov_b64 exec, -1
    v_cmp_eq_u32 vcc, 1, v7
    {CALL}
    v_cndmask_b32 v{hEP}, v{hEP}, v{hEP+1}, vcc
    """)
    nb = [0]
    def bar(n):
        A(f"s_waitcnt vmcnt({n})\ns_barrier")
        if nb[0] >= 1:
            xstamp(A, 8 - nb[0])
        nb[0] += 1
    stamp(A, 2)
    bar(11)
    stamp(A, 3)
    for half in range(2):
        for ks in range(4):
            o = half * 16384 + ks * 1024
            A(f"ds_read_b64_tr_b16 {vr(hWR+16*half+4*ks,2)}, v{hRA} offset:{o}\nds_read_b64_tr_b16 {vr(hWR+16*half+4*ks+2,2)}, v{hRA} offset:{o+256}")
        if half == 0:
            A("s_waitcnt lgkmcnt(4)")
    A(CALL)
    C0, C1 = hT, hT + 2
    def colsum(base, c):
        for r in range(16):
            if r == 0:
                A(f"v_lshlrev_b32 v{c}, 16, v{base}\nv_and_b32 v{c+1}, s3, v{base}")
            else:
                A(f"v_lshlrev_b32 v{t0}, 16, v{base+r}\nv_and_b32 v{t1}, s3, v{base+r}\nv_add_f32 v{c}, v{c}, v{t0}\nv_add_f32 v{c+1}, v{c+1}, v{t1}")
        A(f"v_add_f32 v{c}, v{c}, v{c+1}")
    A("s_waitcnt lgkmcnt(0)")
    colsum(hWR, C0)
    bar(10)
    A(CALL)
    colsum(hWR + 16, C1)
    A(f"""
    v_mov_b32 v{C0+1}, v{hEP}
    s_nop 0
    v_permlane32_swap_b32 v{C0}, v{C1}
    s_nop 0
    v_add_f32 v{C0}, v{C0}, v{C1}
    buffer_store_dwordx2 v[{C0}:{C0+1}], v{hGC}, s[28:31], s96 offen sc1
    """)
    def gather(lo=0, hi=9):
        for c in range(lo, min(hi, 8)):
            A(f"buffer_load_dwordx2 {vr(hGR+2*c,2)}, v{hGC}, s[28:31], 0 offen offset:{c*512} sc1")
        if hi == 9:
            A(f"buffer_load_dwordx4 {vr(hGX,4)}, v{hGA}, s[28:31], 0 offen sc1")
    bar(11)
    A(CALL)
    bar(10)
    A(CALL)
    gather(8, 9)
    A(f"""
    s_mul_i32 s74, s{sG}, 448
    s_lshl_b32 s75, s{sW4}, 6
    s_add_u32 s74, s74, s75
    v_lshlrev_b32 v{t0}, 1, v2
    v_lshl_add_u32 v{t0}, v7, 8, v{t0}
    buffer_load_ushort v{hBI}, v{t0}, s[40:43], s74 offen
    """)
    bar(12)
    A(CALL)
    gather(0, 4)
    bar(16)
    A(CALL)
    gather(4, 8)
    bar(18)
    bar(4)
    A("s_waitcnt vmcnt(0)")
    A(f"""
    s_mov_b32 s79, 0x4000
    L_h_chk:
    v_xor_b32 v{hGX+1}, s26, v{hGX+1}
    v_xor_b32 v{hGX+3}, s27, v{hGX+3}
    v_or_b32 v{t0}, v{hGX+1}, v{hGX+3}
    """)
    for c in range(8):
        A(f"v_xor_b32 v{hGR+2*c+1}, v{hEP}, v{hGR+2*c+1}")
    for c in range(0, 8, 2):
        A(f"v_or3_b32 v{t0}, v{t0}, v{hGR+2*c+1}, v{hGR+2*c+3}")
    A(f"""
    v_cmp_ne_u32 vcc, 0, v{t0}
    s_sub_u32 s79, s79, 1
    s_cmp_eq_u32 s79, 0
    s_cbranch_scc1 L_h_got
    s_cbranch_vccz L_h_got
    """)
    gather()
    A("s_waitcnt vmcnt(0)\ns_branch L_h_chk\nL_h_got:")
    a, b, r_, h_, X0, A0 = hWR, hWR + 1, hWR + 2, hWR + 3, hWR + 4, hWR + 6
    c = hGR
    A(f"""
    s_mov_b32 s74, {f32bits(1.0/512)}
    v_mul_f32 v{a}, s74, v{hGX}
    v_mul_f32 v{b}, s74, v{hGX+2}
    v_add_f32 v{c}, v{c}, v{c+2}
    v_fma_f32 v{b}, -v{a}, v{a}, v{b}
    v_add_f32 v{c+4}, v{c+4}, v{c+6}
    v_max_f32 v{b}, 0, v{b}
    v_add_f32 v{c+8}, v{c+8}, v{c+10}
    v_cvt_pk_bf16_f32 v{b}, v{b}, v{b}
    v_add_f32 v{c+12}, v{c+12}, v{c+14}
    v_and_b32 v{b}, s3, v{b}
    v_add_f32 v{c}, v{c}, v{c+4}
    v_add_f32 v{b}, {f32bits(1e-5)}, v{b}
    v_add_f32 v{c+8}, v{c+8}, v{c+12}
    v_cvt_pk_bf16_f32 v{b}, v{b}, v{b}
    v_add_f32 v{c}, v{c}, v{c+8}
    v_and_b32 v{b}, s3, v{b}
    v_sqrt_f32 v{b}, v{b}
    v_mul_f32 v{a}, -0.5, v{a}
    v_and_b32 v{c+1}, s3, v{c}
    v_cvt_pk_bf16_f32 v{b}, v{b}, v{b}
    v_sub_f32 v{c}, v{c}, v{c+1}
    v_and_b32 v{b}, s3, v{b}
    v_and_b32 v{c+2}, s3, v{c}
    v_rcp_f32 v{r_}, v{b}
    v_mul_f32 v{h_}, 0.5, v{b}
    v_sub_f32 v{c}, v{c}, v{c+2}
    v_cvt_pk_bf16_f32 v{X0}, v{a}, v{a}
    v_cvt_pk_bf16_f32 v{X0+1}, v{a}, v{h_}
    v_cvt_pk_bf16_f32 v{c+4}, v{c+1}, v{c+2}
    v_lshlrev_b32 v{hBI}, 16, v{hBI}
    v_cvt_pk_bf16_f32 v{c+5}, v{c}, v{hBI}
    s_lshl_b32 s74, s{sW4}, 8
    v_lshl_add_u32 v{A0}, v2, 3, s74
    v_lshrrev_b32 v{A0+1}, 1, v{A0}
    v_add_u32 v{A0}, {T_XP}, v{A0}
    v_add_u32 v{A0+1}, {T_RS}, v{A0+1}
    v_lshl_add_u32 v{A0+2}, v7, 10, v{A0}
    ds_write_b64 v{A0}, {vr(X0,2)}
    ds_write_b32 v{A0+1}, v{r_}
    ds_write_b32 v{A0+1}, v{b} offset:512
    ds_write_b64 v{A0+2}, {vr(c+4,2)} offset:{T_WP - T_XP}
    """)
    A("s_waitcnt lgkmcnt(0)")
    bar(0)
```

```python
from asm import *
from mega1 import *
import asm

vL16, vK, vVa, vVb, vVg, vCNT, vQA, vCQ, vONE = 3, 244, 245, 246, 247, 248, 249, 18, 19
XB = 8
Q2 = [20, 24]
KB = [28, 32]
VA = 36
VB = [40, 44]
P = 48
T0, T1, T2, T3 = 56, 57, 58, 59
C = [64, 80]
O = [96, 112]
S = [128, 144]

def ex(s, i): return f"v_exp_f32 v{s+i}, v{s+i}"
def cv(s, i): return f"v_cvt_pk_bf16_f32 v{P+i}, v{s+2*i}, v{s+2*i+1}"

def rowmax(A, src, dst):
    A(f"v_max3_f32 v{dst}, v{src}, v{src+1}, v{src+2}")
    for i in range(3, 15, 2):
        A(f"v_max3_f32 v{dst}, v{dst}, v{src+i}, v{src+i+1}")
    A(f"""
    v_max_f32 v{dst}, v{dst}, v{src+15}
    v_mov_b32 v{T1}, v{dst}
    s_nop 1
    v_permlane32_swap_b32 v{dst}, v{T1}
    s_nop 1
    v_max_f32 v{dst}, v{dst}, v{T1}
    """)

def out_setup(A):
    A(f"""
    s_lshr_b32 s74, s{sWAVE}, 1
    s_and_b32 s75, s74, 1
    s_lshr_b32 s74, s74, 1
    s_lshl_b32 s76, s{sTB2}, 1
    s_add_u32 s76, s76, s75
    s_lshl_b32 s76, s76, 5
    v_add_u32 v5, s76, v2
    v_lshlrev_b32 v5, 10, v5
    s_lshl_b32 s76, s{sNB}, 1
    s_add_u32 s76, s76, s74
    s_lshl_b32 s76, s76, 1
    s_and_b32 s75, s{sWAVE}, 1
    s_add_u32 s76, s76, s75
    s_lshl_b32 s76, s76, 5
    v_lshl_add_u32 v6, v7, 3, s76
    v_add_u32 v5, v5, v6
    s_mov_b32 s56, s18
    s_mov_b32 s57, s19
    s_mov_b32 s58, 1024
    s_mov_b32 s59, 0x00020000
    s_mov_b32 s60, s20
    s_mov_b32 s61, s21
    s_mov_b32 s62, 0x200000
    s_mov_b32 s63, 0x00020000
    """)

def kv_srds(A):
    A(f"""
    s_lshl_b32 s74, s{sHEAD}, 16
    s_add_u32 s75, s74, {WS_K}
    s_add_u32 s84, s24, s75
    s_addc_u32 s85, s25, 0
    s_mov_b32 s86, 0x10000
    s_mov_b32 s87, 0x00020000
    s_add_u32 s75, s74, {WS_V}
    s_add_u32 s88, s24, s75
    s_addc_u32 s89, s25, 0
    s_mov_b32 s90, 0x10000
    s_mov_b32 s91, 0x00020000
    """)

XB_LOADS = [f"buffer_load_dwordx2 v[{XB}:{XB+1}], v5, s[52:55], 0 offen",
            f"buffer_load_dwordx2 v[{XB+2}:{XB+3}], v5, s[52:55], 0 offen offset:16",
            f"buffer_load_dwordx2 v[{XB+4}:{XB+5}], v6, s[56:59], 0 offen",
            f"buffer_load_dwordx2 v[{XB+6}:{XB+7}], v6, s[56:59], 0 offen offset:16"]

def a_setup(A):
    A(f"""
    v_and_b32 v{vVg}, 15, v1
    v_lshlrev_b32 v{vVg}, 4, v{vVg}
    v_lshl_add_u32 v{vVg}, v7, 8, v{vVg}
    v_and_b32 v{T0}, 16, v1
    v_cmp_eq_u32 vcc, 0, v{T0}
    v_and_b32 v{T1}, 11, v1
    v_cmp_ne_u32 s[74:75], 0, v{T1}
    v_add_u32 v{vVa}, {LDS_V}, v{vVg}
    v_add_u32 v{vVb}, {LDS_V+512}, v{vVg}
    v_mov_b32 v{T0}, {LDS_V+1024}
    v_mov_b32 v{T1}, {LDS_V+1040}
    v_cndmask_b32 v{T0}, v{T0}, v{T1}, s[74:75]
    v_cndmask_b32 v{vVa}, v{T0}, v{vVa}, vcc
    v_cndmask_b32 v{vVb}, v{T0}, v{vVb}, vcc
    v_mov_b32 v{vK}, v{vL16}
    v_mov_b32 v{vCNT}, {C_KV}
    s_lshl_b32 s74, s{sW4}, 11
    s_add_u32 s74, s74, {QA}
    v_add_u32 v{vQA}, s74, v{vL16}
    s_lshl_b32 s74, s{sW4}, 2
    s_add_u32 s74, s74, {C_Q}
    v_mov_b32 v{vCQ}, s74
    v_mov_b32 v{vONE}, 1
    """)
    out_setup(A)

def spread(st):
    out = [None] * 14
    for i, x in enumerate(st):
        out[i * 14 // len(st)] = x
    return out

def gen_a(A, spi=8):
    A("L_a:")
    A.region("a")
    for i in range(0, 32, 2):
        A(f"v_mov_b64 {vr(O[0]+i,2)}, 0")
    for i in range(0, 4, 2):
        A(f"v_mov_b64 {vr(P+4+i,2)}, 0\nv_mov_b64 {vr(VB[1]+i,2)}, 0")
    A(f"""
    L_a_wait0:
    ds_read_b32 v{T3}, v{vCNT}
    s_waitcnt lgkmcnt(0)
    v_readfirstlane_b32 s74, v{T3}
    s_cmp_lg_u32 s74, 4
    s_cbranch_scc1 L_a_wait0
    """)
    stamp(A, 6)
    A(f"""
    ds_read_b128 {vr(KB[0],4)}, v{vK}
    ds_read_b128 {vr(Q2[0],4)}, v{vQA}
    ds_read_b128 {vr(Q2[1],4)}, v{vQA} offset:1024
    ds_read_b128 {vr(KB[1],4)}, v{vK} offset:1024
    ds_read_b128 {vr(VA,4)}, v{vVa}
    ds_read_b128 {vr(VB[0],4)}, v{vVb}
    s_waitcnt lgkmcnt(3)
    {mfma(S[0], KB[0], Q2[0], "0")}
    {mfma(S[1], KB[0], Q2[1], "0")}
    ds_write_b32 v{vCQ}, v{vONE}
    s_nop 10
    """)
    for q in range(2):
        rowmax(A, S[q], T0)
        A(f"v_sub_f32 v{C[q]}, 0, v{T0}\nv_sub_f32 v{C[q]+1}, 0, v{T0}")
        for i in range(2, 16, 2):
            A(f"v_mov_b64 {vr(C[q]+i,2)}, {vr(C[q],2)}")
        if q == 0:
            A(f"s_nop 1\n{mfma(S[0], KB[0], Q2[0], C[0])}")
    A(f"s_mov_b32 s11, {64 // spi}\ns_waitcnt lgkmcnt(0)")
    stamp(A, 7)
    def body(tag, extra):
        extra = list(extra)
        for t in range(spi):
            for h in range(2):
                cur, nxt = S[h], S[1 - h]
                kf = KB[t & 1] if h == 0 else KB[(t + 1) & 1]
                vb = VB[(t + 1) & 1] if h == 0 else VB[t & 1]
                m1 = m2 = m3 = pre3 = ""
                if h == 0:
                    m2 = "s_waitcnt lgkmcnt(0)"
                    m3 = f"ds_read_b128 {vr(KB[t & 1],4)}, v{vK} offset:{(t+2)*1024}"
                    if t == 6:
                        pre3 = f"v_readfirstlane_b32 s74, v{T3}"
                        m3 = f"s_cmp_lg_u32 s74, 4\ns_cbranch_scc1 L_a_spin{tag}\nL_a_spun{tag}:\n" + m3
                else:
                    if t == 5:
                        m1 = f"ds_read_b32 v{T3}, v{vCNT} offset:4"
                    m2 = f"ds_read_b128 {vr(VB[(t+1) & 1],4)}, v{vVb} offset:{(t+1)*VST}"
                    m3 = f"ds_read_b128 {vr(VA,4)}, v{vVa} offset:{(t+1)*VST}"
                    if t == spi - 1:
                        m1 = "s_sub_u32 s11, s11, 1"
                if extra and not m1:
                    m1 = extra.pop(0) or ""
                A(f"""
                {mfma(nxt, kf, Q2[1-h], C[1-h])}
                {m1}
                {ex(cur,0)}
                {ex(cur,1)}
                {ex(cur,2)}
                {ex(cur,3)}
                {ex(cur,4)}
                {ex(cur,5)}
                {cv(cur,0)}
                {mfma(O[1-h], vb, P+4)}
                {m2}
                {cv(cur,1)}
                {ex(cur,6)}
                {ex(cur,7)}
                {cv(cur,2)}
                {cv(cur,3)}
                {ex(cur,8)}
                {pre3}
                {ex(cur,9)}
                {ex(cur,10)}
                {mfma(O[h], VA, P)}
                {m3}
                {ex(cur,11)}
                {cv(cur,4)}
                {ex(cur,12)}
                {cv(cur,5)}
                {ex(cur,13)}
                {ex(cur,14)}
                {ex(cur,15)}
                {cv(cur,6)}
                {cv(cur,7)}
                """)
        assert not extra
        A(f"""
        v_add_u32 v{vK}, {spi*1024}, v{vK}
        v_add_u32 v{vVa}, {spi*VST}, v{vVa}
        v_add_u32 v{vVb}, {spi*VST}, v{vVb}
        v_add_u32 v{vCNT}, 4, v{vCNT}
        """)
        if asm.STAMPS:
            A("s_memtime s[80:81]\ns_waitcnt lgkmcnt(0)\ns_mov_b32 m0, s11\ns_nop 0\nv_writelane_b32 v252, s80, m0")
    A(".p2align 6\nL_a_loop:")
    body("", [])
    A(f"""
    s_cmp_lg_u32 s11, 0
    s_cbranch_scc1 L_a_loop
    {mfma(O[1], VB[(spi-1) & 1], P+4)}
    """)
    stamp(A, 8)
    for x in XB_LOADS:
        A(x)
    A(f"v_add_f32 v{T0}, abs(v{O[0]}), abs(v{O[0]+1})")
    for i in range(2, 9):
        A(f"v_add_f32 v{T0}, v{T0}, abs(v{O[0]+i})")
    for i in range(0, 9):
        A(f"v_add_f32 v{T0}, v{T0}, abs(v{O[1]+i})")
    A(f"""
    v_mov_b32 v{T1}, 0x7f000000
    v_cmp_lt_f32 vcc, v{T0}, v{T1}
    s_nop 4
    s_cmp_eq_u64 vcc, -1
    s_cbranch_scc0 L_fallback
    L_a_fin:
    v_rcp_f32 v{T0}, v{O[0]+8}
    v_rcp_f32 v{T1}, v{O[1]+8}
    """)
    for q in range(2):
        for i in range(8):
            A(f"v_mul_f32 v{O[q]+i}, v{O[q]+i}, v{(T0,T1)[q]}")
        for i in range(4):
            A(f"v_cvt_pk_bf16_f32 v{P+4*q+i}, v{O[q]+2*i}, v{O[q]+2*i+1}")
        for i in range(4):
            A(f"v_min_u32 v{P+4*q+i}, -2, v{P+4*q+i}")
        A(f"buffer_store_dwordx4 {vr(P+4*q,4)}, v{vL16}, s[28:31], s{8+q} offen sc1")
    stamp(A, 9)
    A(f"""
    s_mov_b64 exec, 1
    ds_add_u32 v{vFLG+1}, v{vONE} offset:{C_D - C_H}
    s_mov_b64 exec, -1
    s_waitcnt vmcnt(2)
    s_branch L_final
    """)
    for tag in ("",):
        A(f"""
        L_a_spin{tag}:
        ds_read_b32 v{T3}, v{vCNT} offset:4
        s_waitcnt lgkmcnt(0)
        v_readfirstlane_b32 s74, v{T3}
        s_cmp_lg_u32 s74, 4
        s_cbranch_scc1 L_a_spin{tag}
        s_branch L_a_spun{tag}
        """)

FACC, HB, WF, FB, WO = 32, 96, 120, 96, 160

def poll(A, name, vaddr, sleep=4):
    A(f"""
    s_mov_b32 s79, 0x8000
    L_{name}:
    buffer_load_dwordx2 v[24:25], v{vaddr}, s[28:31], 0 offen sc1
    s_sub_u32 s79, s79, 1
    s_waitcnt vmcnt(0)
    v_xor_b32 v24, s26, v24
    v_xor_b32 v25, s27, v25
    v_or_b32 v24, v24, v25
    v_cmp_ne_u32 vcc, 0, v24
    s_cmp_eq_u32 s79, 0
    s_cbranch_scc1 L_{name}_done
    s_cbranch_vccz L_{name}_done
    s_sleep {sleep}
    s_branch L_{name}
    L_{name}_done:
    """)

def f_setup(A):
    kv_srds(A)
    out_setup(A)
    f = sW4
    A(f"""
    s_mov_b32 s52, s4
    s_mov_b32 s53, s5
    s_mov_b32 s54, 0x200000
    s_mov_b32 s55, 0x00020000
    s_lshl_b32 s74, s{sNB}, 7
    s_add_u32 s44, s16, s74
    s_addc_u32 s45, s17, 0
    s_sub_u32 s46, {1792*1024}, s74
    s_mov_b32 s47, 0x00020000
    s_add_u32 s48, s8, s74
    s_addc_u32 s49, s9, 0
    s_sub_u32 s50, {512*1024}, s74
    s_mov_b32 s51, 0x00020000
    v_mul_u32_u24 v16, {VST}, v1
    v_add_u32 v16, {LDS_V+1024}, v16
    v_mov_b32 v20, 0x3f803f80
    v_mov_b32 v21, v20
    v_mov_b32 v22, v20
    v_mov_b32 v23, v20
    v_mov_b32 v17, 1
    v_mov_b32 v19, {C_KV}
    s_lshr_b32 s74, s{sHEAD}, 1
    s_lshl_b32 s74, s74, 8
    s_add_u32 s74, s74, {WS_F2}
    v_lshl_add_u32 v18, v2, 3, s74
    v_add_u32 v31, {ACT_TB}, v3
    v_lshrrev_b32 v26, 3, v1
    v_bfe_u32 v27, v1, 4, 1
    v_lshlrev_b32 v27, 2, v27
    v_and_b32 v28, 7, v1
    v_xor_b32 v27, v27, v28
    v_lshlrev_b32 v26, 10, v26
    v_lshl_add_u32 v26, v27, 4, v26
    v_add_u32 v27, 0x2000, v26
    v_bfe_u32 v28, v1, 2, 2
    v_lshl_add_u32 v28, v7, 2, v28
    v_lshlrev_b32 v28, 7, v28
    v_bfe_u32 v29, v1, 3, 1
    v_lshl_add_u32 v28, v29, 6, v28
    v_bfe_u32 v29, v1, 4, 1
    v_lshl_add_u32 v28, v29, 5, v28
    v_and_b32 v29, 3, v1
    v_lshl_add_u32 v28, v29, 3, v28
    v_xor_b32 v29, 64, v28
    s_lshl_b32 s77, s{f}, 11
    s_add_u32 s77, s77, {QA}
    v_add_u32 v28, s77, v28
    v_add_u32 v29, s77, v29
    s_mul_i32 s12, s{f}, {28*16384}
    s_lshl_b32 s13, s{f}, 17
    s_mul_i32 s14, s{sTB2}, {2*ACT_TB}
    s_add_u32 s14, s14, {WS_ACT}
    s_lshl_b32 s74, s{f}, 13
    s_add_u32 s15, s14, s74
    s_mul_i32 s74, s{f}, {28*1024}
    s_add_u32 s14, s14, s74
    s_add_u32 s14, s14, {32*1024}
    s_lshl_b32 s10, s{f}, 10
    s_mul_i32 s11, s{f}, {VST}
    s_add_u32 s11, s11, {LDS_V}
    s_lshl_b32 s74, s{sQB}, 2
    s_add_u32 s74, s74, s{f}
    s_lshl_b32 s74, s74, 11
    s_lshl_b32 s75, s{sHEAD}, 16
    s_add_u32 s78, s74, s75
    """)
    for i in range(0, 64, 2):
        A(f"v_mov_b64 {vr(FACC+i,2)}, 0")

def gen_f(A):
    Q = VmQ(A)
    f = sW4
    A("L_f:")
    A.region("f")
    stamp(A, 4)
    A(f"ds_write_b128 v16, v[20:23]\nds_write_b128 v16, {vr(FACC,4)} offset:16")
    def wdma_half(step, srd, so, tag, half, inc=16384):
        sl = (step + 1) % 3
        A(f"s_add_u32 m0, s77, {sl*8192 + half*1024}\ns_nop 0")
        Q.issue(f"buffer_load_dwordx4 v{26+half}, s[{srd}:{srd+3}], s{so} offen lds", tag)
        if half:
            A(f"s_add_u32 s{so}, s{so}, {inc}")
    def wdma(step, srd, so, tag, inc=16384):
        wdma_half(step, srd, so, tag, 0, inc); wdma_half(step, srd, so, tag, 1, inc)
    def trread(step, dst, cb):
        sl = (step + 1) % 3
        A(f"ds_read_b64_tr_b16 {vr(dst,2)}, v{28+cb} offset:{sl*8192}")
        A(f"ds_read_b64_tr_b16 {vr(dst+2,2)}, v{28+cb} offset:{sl*8192+1024}")
    wdma(-9, 48, 13, "o0"); wdma(-8, 48, 13, "o1")
    A(f"""
    v_mov_b32 v30, {C_H}
    s_cmp_eq_u32 s{f}, 0
    s_cselect_b32 s75, 4, 5
    L_f_hw:
    ds_read_b32 v24, v30
    s_waitcnt lgkmcnt(0)
    v_readfirstlane_b32 s74, v24
    s_cmp_eq_u32 s74, s75
    s_cbranch_scc1 L_f_hw_done
    s_sleep 1
    s_branch L_f_hw
    L_f_hw_done:
    s_cmp_lg_u32 s{f}, 0
    s_cbranch_scc1 L_f_go
    """)
    poll(A, "f_p2", 18, int(optval("ps", "4")))
    A("""
    s_mov_b64 exec, 1
    ds_add_u32 v30, v17
    s_mov_b64 exec, -1
    L_f_go:
    """)
    stamp(A, 5)
    def kv_dma(i):
        A(f"s_mov_b32 m0, s10\ns_add_u32 s74, s11, {i*4*VST}")
        Q.issue("buffer_load_dwordx4 v3, s[84:87], s10 offen sc1 lds", i // 2)
        A("s_mov_b32 m0, s74\ns_nop 0")
        Q.issue("buffer_load_dwordx4 v3, s[88:91], s10 offen sc1 lds", i // 2)
        A("s_add_u32 s10, s10, 4096")
    def chunk_done(c):
        Q.wait(c)
        A(f"s_mov_b64 exec, 1\nds_add_u32 v19, v17 offset:{4*c}\ns_mov_b64 exec, -1")
    A("s_mov_b32 m0, s77\ns_nop 0")
    Q.issue("buffer_load_dwordx4 v3, s[28:31], s78 offen sc1 lds", 0)
    Q.issue("buffer_load_dwordx4 v3, s[28:31], s78 offen offset:1024 sc1 lds", 0)
    for i in range(6):
        kv_dma(i)
    chunk_done(0)
    stamp(A, 6)
    for i in range(6, 8):
        kv_dma(i)
    A(f"""
    v_mov_b32 v20, -1
    v_mov_b32 v21, -1
    v_mov_b32 v22, -1
    v_mov_b32 v23, -1
    s_lshl_b32 s74, s{sQB}, 2
    s_add_u32 s74, s74, s{f}
    s_mul_i32 s75, s74, {2*ACT_TB}
    s_lshl_b32 s76, s{sHEAD}, 10
    s_add_u32 s75, s75, s76
    s_add_u32 s75, s75, {WS_ACT}
    s_lshl_b32 s74, s74, 5
    s_add_u32 s74, s74, s{sHEAD}
    s_lshl_b32 s74, s74, 3
    s_add_u32 s74, s74, {WS_FR}
    v_mov_b32 v16, s74
    s_lshl_b32 s74, s{f}, 2
    s_add_u32 s74, s74, {C_Q}
    v_mov_b32 v30, s74
    """)
    for c in range(1, 4):
        chunk_done(c)
    Q.issue("buffer_store_dwordx4 v[20:23], v3, s[28:31], s75 offen sc1", 7)
    Q.issue("buffer_store_dwordx4 v[20:23], v31, s[28:31], s75 offen sc1", 7)
    A(f"""
    L_f_qw:
    ds_read_b32 v24, v30
    s_waitcnt lgkmcnt(0)
    v_readfirstlane_b32 s74, v24
    s_cmp_eq_u32 s74, 1
    s_cbranch_scc1 L_f_qw_done
    s_sleep 2
    s_branch L_f_qw
    L_f_qw_done:
    v_add_u32 v24, s10, v3
    s_add_u32 s74, s11, {32*VST}
    v_add_u32 v25, s74, v3
    """)
    for i in range(14):
        va, off = h_slot(i)
        A(f"ds_read_b128 {vr(HB+4*i,4)}, v{24+va} offset:{off}")
    A("s_waitcnt lgkmcnt(0)")
    for i in range(8, 16):
        kv_dma(i)
    A(f"""
    s_cmp_eq_u32 s{sTYPE}, 0
    s_cbranch_scc1 L_f_noh
    s_lshl_b32 s74, s{sTBK}, 2
    s_add_u32 s74, s74, s{f}
    s_xor_b32 s75, s74, 1
    s_mul_i32 s76, s{sG}, {7*2048}
    s_add_u32 s76, s76, {WS_ACT + 32*1024}
    s_mul_i32 s92, s74, {ACT_TB}
    s_add_u32 s92, s92, s76
    s_mul_i32 s93, s75, {ACT_TB}
    s_add_u32 s93, s93, s76
    s_add_u32 s94, s92, {6*2048}
    s_and_b32 s75, s{f}, 1
    s_mul_i32 s76, s75, 6144
    s_add_u32 s92, s92, s76
    s_add_u32 s93, s93, s76
    s_add_u32 s95, s92, 4096
    s_add_u32 s96, s93, 4096
    s_lshr_b32 s74, s74, 1
    s_lshl_b32 s74, s74, 3
    s_add_u32 s74, s74, s{sG}
    s_lshl_b32 s74, s74, 1
    s_add_u32 s74, s74, s75
    s_lshl_b32 s74, s74, 3
    s_add_u32 s74, s74, {WS_F3}
    v_writelane_b32 v16, s74, 1
    """)
    for n, (t, c) in enumerate([(t, c) for c in range(3) for t in range(2)] + [(0, 3)]):
        so, im = (94, 0) if c == 3 else ((92 + t, c * 2048) if c < 2 else (95 + t, 0))
        for hh in range(2):
            A(f"buffer_store_dwordx4 {vr(HB+8*n+4*hh,4)}, v3, s[28:31], s{so} offen offset:{im+hh*1024} sc1")
    A(f"""
    L_f_noh:
    v_mov_b32 v20, s26
    v_mov_b32 v21, s27
    s_mov_b32 s40, s22
    s_mov_b32 s41, s23
    s_mov_b32 s42, 256
    s_waitcnt vmcnt(0)
    s_mov_b64 exec, 3
    buffer_store_dwordx2 v[20:21], v16, s[28:31], 0 offen sc1
    s_mov_b64 exec, 1
    ds_add_u32 v19, v17 offset:16
    ds_add_u32 v19, v17 offset:20
    ds_add_u32 v19, v17 offset:24
    ds_add_u32 v19, v17 offset:28
    s_cmp_lg_u32 s{f}, 0
    s_cbranch_scc1 L_f_noat
    buffer_atomic_add v17, v4, s[40:43], 0 offen sc1
    L_f_noat:
    s_mov_b64 exec, -1
    s_lshl_b32 s74, s{sTB2}, 7
    s_lshl_b32 s75, s{f}, 5
    s_add_u32 s74, s74, s75
    s_add_u32 s74, s74, {WS_F3}
    v_and_b32 v18, 3, v1
    v_lshl_add_u32 v18, v18, 3, s74
    """)
    stamp(A, 7)
    Q.q = ["st"]
    wdma(-7, 48, 13, "o2")
    for k in range(8):
        Q.wait(f"o{k}")
        trread(k - 9, WO + 8 * k, 0); trread(k - 9, WO + 8 * k + 4, 1)
        A("s_waitcnt lgkmcnt(0)")
        if k + 3 < 8:
            wdma(k - 6, 48, 13, f"o{k+3}")
        elif k >= 6:
            wdma(k - 6, 44, 12, "w")
    wdma(2, 44, 12, "w")
    poll(A, "f_p3", 18, 8)
    Q.q = []
    def hload(step, t, tag):
        b = HB + 8 * (step % 3) + 4 * t
        Q.issue(f"buffer_load_dwordx4 {vr(b,4)}, v{(3,31)[t]}, s[28:31], s14 offen sc1", tag)
        if t == 1:
            A("s_add_u32 s14, s14, 1024")
    for s in range(3):
        hload(s, 0, s); hload(s, 1, s)
    Q.drain()
    stamp(A, 8)
    def fstep(s, nxt):
        h = HB + 8 * (s % 3)
        for n, (t, cb) in enumerate(((0, 0), (0, 1), (1, 0), (1, 1))):
            trread(s, WF + 4 * (n & 1), cb)
            A("s_waitcnt lgkmcnt(0)")
            if n == 3 and nxt:
                wdma(s + 3, 44, 12, s + 3)
            A(mfma(FACC + 32 * cb + 16 * t, WF + 4 * (n & 1), h + 4 * t))
            if nxt and n in (1, 3):
                hload(s + 3, t, s + 3)
    A("s_mov_b32 s79, 8\nL_f_loop:")
    for s in range(3):
        A("s_waitcnt vmcnt(8)")
        fstep(s, True)
    A("s_sub_u32 s79, s79, 1\ns_cmp_lg_u32 s79, 0\ns_cbranch_scc1 L_f_loop")
    Q.q = [24]*4 + [25]*4 + [26]*4
    for s in range(24, 28):
        Q.wait(s)
        fstep(s, s == 24)
    for x in XB_LOADS:
        A(x)
    A(f"""
    s_lshl_b32 s74, s{sTB2}, 8
    s_lshl_b32 s75, s{f}, 6
    s_add_u32 s74, s74, s75
    s_add_u32 s74, s74, {WS_FR}
    v_and_b32 v18, 7, v1
    v_lshl_add_u32 v18, v18, 3, s74
    """)
    poll(A, "f_pr", 18, 8)
    A(f"""
    s_or_b32 s74, s2, s{f}
    s_cmp_lg_u32 s74, 0
    s_cbranch_scc1 L_f_noep
    s_mov_b32 s79, 0x8000
    L_f_ep:
    buffer_load_dword v24, v4, s[40:43], 0 offen sc1
    s_sub_u32 s79, s79, 1
    s_waitcnt vmcnt(0)
    v_readfirstlane_b32 s74, v24
    s_cmp_eq_u32 s79, 0
    s_cbranch_scc1 L_f_ep_done
    s_cmp_lg_u32 s74, 256
    s_cbranch_scc1 L_f_ep
    L_f_ep_done:
    s_mov_b32 s74, {WS_CTL}
    s_mov_b64 exec, 1
    buffer_store_dwordx2 v[20:21], v4, s[28:31], s74 offen sc1
    s_mov_b64 exec, -1
    L_f_noep:
    """)
    stamp(A, 9)
    A(f"""
    s_lshl_b32 s74, s{f}, 14
    v_add_u32 v16, s74, v3
    v_and_b32 v24, 7, v1
    v_lshlrev_b32 v24, 10, v24
    v_bfe_u32 v25, v1, 3, 1
    v_mul_u32_u24 v25, {ACT_TB}, v25
    v_add_u32 v30, v24, v25
    v_mov_b32 v19, {C_D}
    s_add_u32 s14, s15, 4096
    s_mov_b32 s79, 0x10000
    s_mov_b32 s78, 0
    """)
    stamp(A, 10)
    A(f"""
    L_f_retry:
    ds_read_b32 v24, v19
    buffer_load_dword v25, v30, s[28:31], s15 offen offset:1020 sc1
    s_sub_u32 s79, s79, 1
    s_cmp_eq_u32 s79, 0
    s_cselect_b32 s76, 0, -1
    s_cselect_b32 s79, 1, s79
    s_waitcnt lgkmcnt(0)
    v_readfirstlane_b32 s74, v24
    s_cmp_eq_u32 s74, 4
    s_cbranch_scc1 L_f_disp
    s_waitcnt vmcnt(0)
    v_cmp_eq_u32 vcc, -1, v25
    s_lshr_b32 s74, vcc_lo, 8
    s_or_b32 s74, s74, vcc_lo
    s_and_b32 s74, s74, s76
    s_bitcmp0_b32 s74, s78
    s_cbranch_scc1 L_f_disp
    s_sleep {optval("ts", "6")}
    s_branch L_f_retry
    L_f_disp:
    """)
    for k in range(7, 0, -1):
        A(f"s_cmp_eq_u32 s78, {k}\ns_cbranch_scc1 L_f_ld{k}")
    for k in range(8):
        so, im = (15, k * 1024) if k < 4 else (14, (k - 4) * 1024)
        A(f"""
        L_f_ld{k}:
        buffer_load_dwordx4 {vr(FB+8*k,4)}, v3, s[28:31], s{so} offen offset:{im} sc1
        buffer_load_dwordx4 {vr(FB+8*k+4,4)}, v31, s[28:31], s{so} offen offset:{im} sc1
        """)
    for k in range(1, 8):
        A(f"s_cmp_eq_u32 s78, {k}\ns_cbranch_scc1 L_f_ck{k}")
    for k in range(8):
        b, w = FB + 8 * k, WO + 8 * k
        A(f"""
        L_f_ck{k}:
        s_waitcnt vmcnt({14 - 2*k})
        v_max3_u32 v17, v{b}, v{b+1}, v{b+2}
        v_max3_u32 v18, v{b+3}, v{b+4}, v{b+5}
        v_max3_u32 v17, v17, v{b+6}, v{b+7}
        v_max_u32 v17, v17, v18
        v_and_b32 v17, s76, v17
        v_cmp_eq_u32 vcc, -1, v17
        s_mov_b32 s78, {k}
        s_cbranch_vccnz L_f_retry
        {mfma(FACC, w, b)}
        {mfma(FACC+16, w, b+4)}
        {mfma(FACC+32, w+4, b)}
        {mfma(FACC+48, w+4, b+4)}
        """)
    A(f"""
    L_f_dw:
    ds_read_b32 v24, v19
    s_waitcnt lgkmcnt(0)
    v_readfirstlane_b32 s74, v24
    s_cmp_eq_u32 s74, 4
    s_cbranch_scc1 L_f_dw_done
    s_sleep 1
    s_branch L_f_dw
    L_f_dw_done:
    """)
    stamp(A, 11)
    A("s_nop 11")
    for q in range(16):
        A(f"ds_write_b128 v16, {vr(FACC+4*q,4)} offset:{q*1024}")
    A("s_waitcnt lgkmcnt(0)")

def gen_final(A):
    R = 96
    A(f"""
    L_final:
    s_lshl_b32 s74, s{sWAVE}, 11
    v_add_u32 v16, s74, v3
    s_mov_b32 s75, 0xffff0000
    """)
    for g in range(2):
        for d in range(2):
            A(f"""
            v_lshlrev_b32 v{20+4*g+2*d}, 16, v{XB+2*g+d}
            v_and_b32 v{21+4*g+2*d}, s75, v{XB+2*g+d}
            v_lshlrev_b32 v28, 16, v{XB+4+2*g+d}
            v_and_b32 v29, s75, v{XB+4+2*g+d}
            v_add_f32 v{20+4*g+2*d}, v{20+4*g+2*d}, v28
            v_add_f32 v{21+4*g+2*d}, v{21+4*g+2*d}, v29
            """)
    A("s_barrier")
    stamp(A, 12)
    for src in range(4):
        for g in range(2):
            A(f"ds_read_b128 {vr(R+8*src+4*g,4)}, v16 offset:{src*16384 + g*1024}")
    for src in range(4):
        A(f"s_waitcnt lgkmcnt({6-2*src})")
        for i in range(8):
            A(f"v_add_f32 v{20+i}, v{20+i}, v{R+8*src+i}")
    for i in range(4):
        A(f"v_cvt_pk_bf16_f32 v{28+i}, v{20+2*i}, v{21+2*i}")
    A(f"""
    buffer_store_dwordx2 v[28:29], v5, s[60:63], 0 offen
    buffer_store_dwordx2 v[30:31], v5, s[60:63], 0 offen offset:16
    """)
    stamp(A, 13)
    if asm.STAMPS:
        A("s_waitcnt vmcnt(0)")
    stamp(A, 14); stamp(A, 15, True)
    stamp_flush(A, 0, 28, sWAVE)
    if asm.STAMPS:
        A("s_add_u32 s82, s82, 512\ns_mov_b64 exec, 0xffff\nbuffer_store_dword v252, v251, s[28:31], s82 offen")
    A("L_end:\ns_endpgm")

def gen_fallback(A):
    A("L_fallback:\ns_waitcnt lgkmcnt(0)")
    kv_srds(A)
    A(f"""
    v_mov_b32 v{C[0]}, 0xff7fffff
    v_mov_b32 v{C[1]}, 0xff7fffff
    v_mov_b32 v{VA}, 0x3f803f80
    s_mov_b32 s12, 0x0000ffff
    s_mov_b32 s13, 0x0000ffff
    """)
    for i in range(1, 4):
        A(f"v_mov_b32 v{VA+i}, v{VA}")
    for i in range(4):
        A(f"v_mov_b32 v{VB[0]+i}, v{VA}")
    for q in range(2):
        for i in range(16):
            A(f"v_mov_b32 v{O[q]+i}, 0")
    A(f"""
    s_mov_b32 s11, 0
    L_fb_loop:
    buffer_load_dwordx4 {vr(KB[0],4)}, v{vL16}, s[84:87], s11 offen sc1
    s_mov_b64 exec, s[12:13]
    buffer_load_dwordx4 {vr(VA,4)}, v{vVg}, s[88:91], s11 offen sc1
    buffer_load_dwordx4 {vr(VB[0],4)}, v{vVg}, s[88:91], s11 offen offset:512 sc1
    s_mov_b64 exec, -1
    s_waitcnt vmcnt(0)
    """)
    for q in range(2):
        A(f"{mfma(S[0], KB[0], Q2[q], '0')}\ns_nop 15\ns_nop 3")
        rowmax(A, S[0], T0)
        A(f"""
        v_max_f32 v{T0}, v{T0}, v{C[q]}
        v_sub_f32 v{T2}, v{C[q]}, v{T0}
        v_exp_f32 v{T2}, v{T2}
        v_mov_b32 v{C[q]}, v{T0}
        """)
        for i in range(16):
            A(f"v_mul_f32 v{O[q]+i}, v{O[q]+i}, v{T2}")
        for i in range(16):
            A(f"v_sub_f32 v{S[0]+i}, v{S[0]+i}, v{T0}")
        for i in range(16):
            A(ex(S[0], i))
        A("s_nop 0")
        for i in range(8):
            A(cv(S[0], i))
        A(f"s_nop 1\n{mfma(O[q], VA, P)}\n{mfma(O[q], VB[0], P+4)}")
    A(f"""
    s_nop 15
    s_nop 3
    s_add_u32 s11, s11, 1024
    s_cmp_lt_u32 s11, 0x10000
    s_cbranch_scc1 L_fb_loop
    s_branch L_a_fin
    """)
```

```python
class Asm:
    def __init__(self):
        self.lines = []
    def __call__(self, s):
        for l in s.strip("\n").split("\n"):
            l = l.strip()
            if not l:
                continue
            if l.endswith(":") or l.startswith("."):
                self.lines.append(l)
            else:
                self.lines.append("    " + l)
    def region(self, name):
        self.lines.append(f";@region {name}")
    def text(self):
        return "\n".join(self.lines) + "\n"

def vr(b, n):
    return f"v[{b}:{b+n-1}]" if n > 1 else f"v{b}"
def sr(b, n):
    return f"s[{b}:{b+n-1}]" if n > 1 else f"s{b}"

def mfma(d, a, b, c=None):
    cs = vr(d, 16) if c is None else (c if isinstance(c, str) else vr(c, 16))
    return f"v_mfma_f32_32x32x16_bf16 {vr(d,16)}, {vr(a,4)}, {vr(b,4)}, {cs}"

def kernel_begin(A, name):
    A(f".globl {name}\n.p2align 8\n.type {name},@function\n{name}:")

def kernel_desc(name, nvgpr, nsgpr=80):
    if STAMPS:
        nvgpr, nsgpr = 256, 102
    acc = (nvgpr + 3) // 4 * 4
    return f""".section .rodata,"a"
.p2align 6
.amdhsa_kernel {name}
  .amdhsa_next_free_vgpr {nvgpr}
  .amdhsa_next_free_sgpr {nsgpr}
  .amdhsa_accum_offset {acc}
  .amdhsa_group_segment_fixed_size 0
  .amdhsa_kernarg_size 88
  .amdhsa_user_sgpr_count 2
  .amdhsa_user_sgpr_kernarg_segment_ptr 1
  .amdhsa_system_sgpr_workgroup_id_x 1
.end_amdhsa_kernel
"""

def f32bits(x):
    import struct
    return "0x%08x" % struct.unpack("<I", struct.pack("<f", x))[0]

WS_Q = 0
WS_K = 2 << 20
WS_V = 4 << 20
WS_ACT = 8 << 20
ACT_TB = 144 * 1024
WS_WF = 20 << 20
WS_BYTES = 24 << 20

WS_STAMP = 23 << 20
STAMPS = False
def stamp(A, i, real=False):
    if not STAMPS:
        return
    A(f"{'s_memrealtime' if real else 's_memtime'} s[80:81]\ns_memrealtime s[82:83]\ns_waitcnt lgkmcnt(0)\nv_writelane_b32 v250, s80, {i}\nv_writelane_b32 v254, s82, {i}")
def stamp_flush(A, kidx, srd, wave_sgpr, n=16, vt=250):
    if not STAMPS:
        return
    A(f"""
    v_mbcnt_lo_u32_b32 v{vt+1}, -1, 0
    v_mbcnt_hi_u32_b32 v{vt+1}, -1, v{vt+1}
    v_lshlrev_b32 v{vt+1}, 2, v{vt+1}
    s_lshl_b32 s82, s2, 4
    s_add_u32 s82, s82, s{wave_sgpr}
    s_lshl_b32 s82, s82, 6
    s_add_u32 s82, s82, {WS_STAMP + kidx*262144}
    s_mov_b64 exec, 0xffff
    buffer_store_dword v{vt}, v{vt+1}, s[{srd}:{srd+3}], s82 offen
    s_add_u32 s83, s82, 262144
    buffer_store_dword v254, v{vt+1}, s[{srd}:{srd+3}], s83 offen
    s_mov_b64 exec, -1
    """)

class VmQ:
    def __init__(self, A):
        self.A, self.q = A, []
    def issue(self, text, tag):
        self.A(text)
        self.q.append(tag)
    def wait(self, *tags):
        idx = max((i for i, t in enumerate(self.q) if t in tags), default=-1)
        if idx < 0:
            return
        n = len(self.q) - 1 - idx
        assert n <= 63
        self.A(f"s_waitcnt vmcnt({n})")
        self.q = self.q[idx + 1:]
    def drain(self):
        self.A("s_waitcnt vmcnt(0)")
        self.q = []

WS_CTL = 20 << 20
WS_F2 = WS_CTL + 8192
WS_F3 = WS_CTL + 16384
WS_FR = WS_CTL + 24576
WS_XG = 21 << 20
WS_CG = WS_XG + (512 << 10)

def insert_pads(lines, spacing, assemble):
    import re
    sizes = assemble(lines)
    out, reg, acc, pads = [], None, 0, []
    def close():
        for k, idx in enumerate(pads):
            tgt = f"PAD_{reg}_{k+1}" if k + 1 < len(pads) else "L_tour_ret"
            lab = f"TOUR_{reg}" if k == 0 else f"PAD_{reg}_{k}"
            out[idx] = f"{lab}:\n    s_cbranch_execz {tgt}"
    n = len(lines)
    for i, l in enumerate(lines):
        m = re.match(r";@region (\S+)", l)
        if m:
            if reg:
                close()
            reg = None if m.group(1) == "None" else m.group(1)
            pads, acc = [], 0
            if reg:
                pads.append(len(out)); out.append("")
            continue
        out.append(l)
        acc += sizes[i]
        if reg and acc >= spacing and sizes[i]:
            near = any("mfma" in x for x in lines[i+1:i+14])
            nxt = next((x for x in lines[i+1:] if x.startswith("    ")), "")
            if near and not ("mfma" in l and nxt.strip().startswith("v_") and "mfma" not in nxt) and acc < spacing + 200:
                continue
            pads.append(len(out)); out.append("")
            acc = 0
    if reg:
        close()
    return out
WS_F2R = WS_XG + (128 << 10)
```

```python
from asm import *
from mega1 import *
import asm

vL16, vK, vVa, vVb, vVg, vCNT, vQA, vCQ, vONE = 3, 244, 245, 246, 247, 248, 249, 18, 19
XB = 8
Q2 = [20, 24]
KB = [28, 32]
VA = 36
VB = [40, 44]
P = 48
T0, T1, T2, T3 = 56, 57, 58, 59
C = [64, 80]
O = [96, 112]
S = [128, 144]

def ex(s, i): return f"v_exp_f32 v{s+i}, v{s+i}"
def cv(s, i): return f"v_cvt_pk_bf16_f32 v{P+i}, v{s+2*i}, v{s+2*i+1}"

def rowmax(A, src, dst):
    A(f"v_max3_f32 v{dst}, v{src}, v{src+1}, v{src+2}")
    for i in range(3, 15, 2):
        A(f"v_max3_f32 v{dst}, v{dst}, v{src+i}, v{src+i+1}")
    A(f"""
    v_max_f32 v{dst}, v{dst}, v{src+15}
    v_mov_b32 v{T1}, v{dst}
    s_nop 1
    v_permlane32_swap_b32 v{dst}, v{T1}
    s_nop 1
    v_max_f32 v{dst}, v{dst}, v{T1}
    """)

def out_setup(A):
    A(f"""
    s_lshr_b32 s74, s{sWAVE}, 1
    s_and_b32 s75, s74, 1
    s_lshr_b32 s74, s74, 1
    s_lshl_b32 s76, s{sTB2}, 1
    s_add_u32 s76, s76, s75
    s_lshl_b32 s76, s76, 5
    v_add_u32 v5, s76, v2
    v_lshlrev_b32 v5, 10, v5
    s_lshl_b32 s76, s{sNB}, 1
    s_add_u32 s76, s76, s74
    s_lshl_b32 s76, s76, 1
    s_and_b32 s75, s{sWAVE}, 1
    s_add_u32 s76, s76, s75
    s_lshl_b32 s76, s76, 5
    v_lshl_add_u32 v6, v7, 3, s76
    v_add_u32 v5, v5, v6
    s_mov_b32 s56, s18
    s_mov_b32 s57, s19
    s_mov_b32 s58, 1024
    s_mov_b32 s59, 0x00020000
    s_mov_b32 s60, s20
    s_mov_b32 s61, s21
    s_mov_b32 s62, 0x200000
    s_mov_b32 s63, 0x00020000
    """)

def kv_srds(A):
    A(f"""
    s_lshl_b32 s74, s{sHEAD}, 16
    s_add_u32 s75, s74, {WS_K}
    s_add_u32 s84, s24, s75
    s_addc_u32 s85, s25, 0
    s_mov_b32 s86, 0x10000
    s_mov_b32 s87, 0x00020000
    s_add_u32 s75, s74, {WS_V}
    s_add_u32 s88, s24, s75
    s_addc_u32 s89, s25, 0
    s_mov_b32 s90, 0x10000
    s_mov_b32 s91, 0x00020000
    """)

XB_LOADS = [f"buffer_load_dwordx2 v[{XB}:{XB+1}], v5, s[52:55], 0 offen",
            f"buffer_load_dwordx2 v[{XB+2}:{XB+3}], v5, s[52:55], 0 offen offset:16",
            f"buffer_load_dwordx2 v[{XB+4}:{XB+5}], v6, s[56:59], 0 offen",
            f"buffer_load_dwordx2 v[{XB+6}:{XB+7}], v6, s[56:59], 0 offen offset:16"]

def a_setup(A):
    A(f"""
    v_and_b32 v{vVg}, 15, v1
    v_lshlrev_b32 v{vVg}, 4, v{vVg}
    v_lshl_add_u32 v{vVg}, v7, 8, v{vVg}
    v_and_b32 v{T0}, 16, v1
    v_cmp_eq_u32 vcc, 0, v{T0}
    v_and_b32 v{T1}, 11, v1
    v_cmp_ne_u32 s[74:75], 0, v{T1}
    v_add_u32 v{vVa}, {LDS_V}, v{vVg}
    v_add_u32 v{vVb}, {LDS_V+512}, v{vVg}
    v_mov_b32 v{T0}, {LDS_V+1024}
    v_mov_b32 v{T1}, {LDS_V+1040}
    v_cndmask_b32 v{T0}, v{T0}, v{T1}, s[74:75]
    v_cndmask_b32 v{vVa}, v{T0}, v{vVa}, vcc
    v_cndmask_b32 v{vVb}, v{T0}, v{vVb}, vcc
    v_mov_b32 v{vK}, v{vL16}
    v_mov_b32 v{vCNT}, {C_KV}
    s_lshl_b32 s74, s{sW4}, 11
    s_add_u32 s74, s74, {QA}
    v_add_u32 v{vQA}, s74, v{vL16}
    s_lshl_b32 s74, s{sW4}, 2
    s_add_u32 s74, s74, {C_Q}
    v_mov_b32 v{vCQ}, s74
    v_mov_b32 v{vONE}, 1
    """)
    out_setup(A)

def spread(st):
    out = [None] * 14
    for i, x in enumerate(st):
        out[i * 14 // len(st)] = x
    return out

def gen_a(A, spi=8):
    A("L_a:")
    A.region("a")
    for i in range(0, 32, 2):
        A(f"v_mov_b64 {vr(O[0]+i,2)}, 0")
    for i in range(0, 4, 2):
        A(f"v_mov_b64 {vr(P+4+i,2)}, 0\nv_mov_b64 {vr(VB[1]+i,2)}, 0")
    A(f"""
    L_a_wait0:
    ds_read_b32 v{T3}, v{vCNT}
    s_waitcnt lgkmcnt(0)
    v_readfirstlane_b32 s74, v{T3}
    s_cmp_lg_u32 s74, 4
    s_cbranch_scc1 L_a_wait0
    """)
    stamp(A, 6)
    A(f"""
    ds_read_b128 {vr(KB[0],4)}, v{vK}
    ds_read_b128 {vr(Q2[0],4)}, v{vQA}
    ds_read_b128 {vr(Q2[1],4)}, v{vQA} offset:1024
    ds_read_b128 {vr(KB[1],4)}, v{vK} offset:1024
    ds_read_b128 {vr(VA,4)}, v{vVa}
    ds_read_b128 {vr(VB[0],4)}, v{vVb}
    s_waitcnt lgkmcnt(3)
    {mfma(S[0], KB[0], Q2[0], "0")}
    {mfma(S[1], KB[0], Q2[1], "0")}
    ds_write_b32 v{vCQ}, v{vONE}
    s_nop 10
    """)
    for q in range(2):
        rowmax(A, S[q], T0)
        A(f"v_sub_f32 v{C[q]}, 0, v{T0}\nv_sub_f32 v{C[q]+1}, 0, v{T0}")
        for i in range(2, 16, 2):
            A(f"v_mov_b64 {vr(C[q]+i,2)}, {vr(C[q],2)}")
        if q == 0:
            A(f"s_nop 1\n{mfma(S[0], KB[0], Q2[0], C[0])}")
    A(f"s_mov_b32 s11, {64 // spi}\ns_waitcnt lgkmcnt(0)")
    stamp(A, 7)
    def body(tag, extra):
        extra = list(extra)
        for t in range(spi):
            for h in range(2):
                cur, nxt = S[h], S[1 - h]
                kf = KB[t & 1] if h == 0 else KB[(t + 1) & 1]
                vb = VB[(t + 1) & 1] if h == 0 else VB[t & 1]
                m1 = m2 = m3 = pre3 = ""
                if h == 0:
                    m2 = "s_waitcnt lgkmcnt(0)"
                    m3 = f"ds_read_b128 {vr(KB[t & 1],4)}, v{vK} offset:{(t+2)*1024}"
                    if t == 6:
                        pre3 = f"v_readfirstlane_b32 s74, v{T3}"
                        m3 = f"s_cmp_lg_u32 s74, 4\ns_cbranch_scc1 L_a_spin{tag}\nL_a_spun{tag}:\n" + m3
                else:
                    if t == 5:
                        m1 = f"ds_read_b32 v{T3}, v{vCNT} offset:4"
                    m2 = f"ds_read_b128 {vr(VB[(t+1) & 1],4)}, v{vVb} offset:{(t+1)*VST}"
                    m3 = f"ds_read_b128 {vr(VA,4)}, v{vVa} offset:{(t+1)*VST}"
                    if t == spi - 1:
                        m1 = "s_sub_u32 s11, s11, 1"
                if extra and not m1:
                    m1 = extra.pop(0) or ""
                A(f"""
                {mfma(nxt, kf, Q2[1-h], C[1-h])}
                {m1}
                {ex(cur,0)}
                {ex(cur,1)}
                {ex(cur,2)}
                {ex(cur,3)}
                {ex(cur,4)}
                {ex(cur,5)}
                {cv(cur,0)}
                {mfma(O[1-h], vb, P+4)}
                {m2}
                {cv(cur,1)}
                {ex(cur,6)}
                {ex(cur,7)}
                {cv(cur,2)}
                {cv(cur,3)}
                {ex(cur,8)}
                {pre3}
                {ex(cur,9)}
                {ex(cur,10)}
                {mfma(O[h], VA, P)}
                {m3}
                {ex(cur,11)}
                {cv(cur,4)}
                {ex(cur,12)}
                {cv(cur,5)}
                {ex(cur,13)}
                {ex(cur,14)}
                {ex(cur,15)}
                {cv(cur,6)}
                {cv(cur,7)}
                """)
        assert not extra
        A(f"""
        v_add_u32 v{vK}, {spi*1024}, v{vK}
        v_add_u32 v{vVa}, {spi*VST}, v{vVa}
        v_add_u32 v{vVb}, {spi*VST}, v{vVb}
        v_add_u32 v{vCNT}, 4, v{vCNT}
        """)
        if asm.STAMPS:
            A("s_memtime s[80:81]\ns_waitcnt lgkmcnt(0)\ns_mov_b32 m0, s11\ns_nop 0\nv_writelane_b32 v252, s80, m0")
    A(".p2align 6\nL_a_loop:")
    body("", [])
    A(f"""
    s_cmp_lg_u32 s11, 0
    s_cbranch_scc1 L_a_loop
    {mfma(O[1], VB[(spi-1) & 1], P+4)}
    """)
    stamp(A, 8)
    for x in XB_LOADS:
        A(x)
    A(f"v_add_f32 v{T0}, abs(v{O[0]}), abs(v{O[0]+1})")
    for i in range(2, 9):
        A(f"v_add_f32 v{T0}, v{T0}, abs(v{O[0]+i})")
    for i in range(0, 9):
        A(f"v_add_f32 v{T0}, v{T0}, abs(v{O[1]+i})")
    A(f"""
    v_mov_b32 v{T1}, 0x7f000000
    v_cmp_lt_f32 vcc, v{T0}, v{T1}
    s_nop 4
    s_cmp_eq_u64 vcc, -1
    s_cbranch_scc0 L_fallback
    L_a_fin:
    v_rcp_f32 v{T0}, v{O[0]+8}
    v_rcp_f32 v{T1}, v{O[1]+8}
    """)
    for q in range(2):
        for i in range(8):
            A(f"v_mul_f32 v{O[q]+i}, v{O[q]+i}, v{(T0,T1)[q]}")
        for i in range(4):
            A(f"v_cvt_pk_bf16_f32 v{P+4*q+i}, v{O[q]+2*i}, v{O[q]+2*i+1}")
        for i in range(4):
            A(f"v_min_u32 v{P+4*q+i}, -2, v{P+4*q+i}")
        A(f"buffer_store_dwordx4 {vr(P+4*q,4)}, v{vL16}, s[28:31], s{8+q} offen sc1")
    stamp(A, 9)
    A(f"""
    s_mov_b64 exec, 1
    ds_add_u32 v{vFLG+1}, v{vONE} offset:{C_D - C_H}
    s_mov_b64 exec, -1
    s_waitcnt vmcnt(2)
    s_branch L_final
    """)
    for tag in ("",):
        A(f"""
        L_a_spin{tag}:
        ds_read_b32 v{T3}, v{vCNT} offset:4
        s_waitcnt lgkmcnt(0)
        v_readfirstlane_b32 s74, v{T3}
        s_cmp_lg_u32 s74, 4
        s_cbranch_scc1 L_a_spin{tag}
        s_branch L_a_spun{tag}
        """)

FACC, HB, WF, FB, WO = 32, 96, 120, 96, 160

def poll(A, name, vaddr, sleep=4):
    A(f"""
    s_mov_b32 s79, 0x8000
    L_{name}:
    buffer_load_dwordx2 v[24:25], v{vaddr}, s[28:31], 0 offen sc1
    s_sub_u32 s79, s79, 1
    s_waitcnt vmcnt(0)
    v_xor_b32 v24, s26, v24
    v_xor_b32 v25, s27, v25
    v_or_b32 v24, v24, v25
    v_cmp_ne_u32 vcc, 0, v24
    s_cmp_eq_u32 s79, 0
    s_cbranch_scc1 L_{name}_done
    s_cbranch_vccz L_{name}_done
    s_sleep {sleep}
    s_branch L_{name}
    L_{name}_done:
    """)

def f_setup(A):
    kv_srds(A)
    out_setup(A)
    f = sW4
    A(f"""
    s_mov_b32 s52, s4
    s_mov_b32 s53, s5
    s_mov_b32 s54, 0x200000
    s_mov_b32 s55, 0x00020000
    s_lshl_b32 s74, s{sNB}, 7
    s_add_u32 s44, s16, s74
    s_addc_u32 s45, s17, 0
    s_sub_u32 s46, {1792*1024}, s74
    s_mov_b32 s47, 0x00020000
    s_add_u32 s48, s8, s74
    s_addc_u32 s49, s9, 0
    s_sub_u32 s50, {512*1024}, s74
    s_mov_b32 s51, 0x00020000
    v_mul_u32_u24 v16, {VST}, v1
    v_add_u32 v16, {LDS_V+1024}, v16
    v_mov_b32 v20, 0x3f803f80
    v_mov_b32 v21, v20
    v_mov_b32 v22, v20
    v_mov_b32 v23, v20
    v_mov_b32 v17, 1
    v_mov_b32 v19, {C_KV}
    s_lshr_b32 s74, s{sHEAD}, 1
    s_lshl_b32 s74, s74, 8
    s_add_u32 s74, s74, {WS_F2}
    v_lshl_add_u32 v18, v2, 3, s74
    v_add_u32 v31, {ACT_TB}, v3
    v_lshrrev_b32 v26, 3, v1
    v_bfe_u32 v27, v1, 4, 1
    v_lshlrev_b32 v27, 2, v27
    v_and_b32 v28, 7, v1
    v_xor_b32 v27, v27, v28
    v_lshlrev_b32 v26, 10, v26
    v_lshl_add_u32 v26, v27, 4, v26
    v_add_u32 v27, 0x2000, v26
    v_bfe_u32 v28, v1, 2, 2
    v_lshl_add_u32 v28, v7, 2, v28
    v_lshlrev_b32 v28, 7, v28
    v_bfe_u32 v29, v1, 3, 1
    v_lshl_add_u32 v28, v29, 6, v28
    v_bfe_u32 v29, v1, 4, 1
    v_lshl_add_u32 v28, v29, 5, v28
    v_and_b32 v29, 3, v1
    v_lshl_add_u32 v28, v29, 3, v28
    v_xor_b32 v29, 64, v28
    s_lshl_b32 s77, s{f}, 11
    s_add_u32 s77, s77, {QA}
    v_add_u32 v28, s77, v28
    v_add_u32 v29, s77, v29
    s_mul_i32 s12, s{f}, {28*16384}
    s_lshl_b32 s13, s{f}, 17
    s_mul_i32 s14, s{sTB2}, {2*ACT_TB}
    s_add_u32 s14, s14, {WS_ACT}
    s_lshl_b32 s74, s{f}, 13
    s_add_u32 s15, s14, s74
    s_mul_i32 s74, s{f}, {28*1024}
    s_add_u32 s14, s14, s74
    s_add_u32 s14, s14, {32*1024}
    s_lshl_b32 s10, s{f}, 10
    s_mul_i32 s11, s{f}, {VST}
    s_add_u32 s11, s11, {LDS_V}
    s_lshl_b32 s74, s{sQB}, 2
    s_add_u32 s74, s74, s{f}
    s_lshl_b32 s74, s74, 11
    s_lshl_b32 s75, s{sHEAD}, 16
    s_add_u32 s78, s74, s75
    """)
    for i in range(0, 64, 2):
        A(f"v_mov_b64 {vr(FACC+i,2)}, 0")

def gen_f(A):
    Q = VmQ(A)
    f = sW4
    A("L_f:")
    A.region("f")
    stamp(A, 4)
    A(f"ds_write_b128 v16, v[20:23]\nds_write_b128 v16, {vr(FACC,4)} offset:16")
    def wdma_half(step, srd, so, tag, half, inc=16384):
        sl = (step + 1) % 3
        A(f"s_add_u32 m0, s77, {sl*8192 + half*1024}\ns_nop 0")
        Q.issue(f"buffer_load_dwordx4 v{26+half}, s[{srd}:{srd+3}], s{so} offen lds", tag)
        if half:
            A(f"s_add_u32 s{so}, s{so}, {inc}")
    def wdma(step, srd, so, tag, inc=16384):
        wdma_half(step, srd, so, tag, 0, inc); wdma_half(step, srd, so, tag, 1, inc)
    def trread(step, dst, cb):
        sl = (step + 1) % 3
        A(f"ds_read_b64_tr_b16 {vr(dst,2)}, v{28+cb} offset:{sl*8192}")
        A(f"ds_read_b64_tr_b16 {vr(dst+2,2)}, v{28+cb} offset:{sl*8192+1024}")
    wdma(-9, 48, 13, "o0"); wdma(-8, 48, 13, "o1")
    A(f"""
    v_mov_b32 v30, {C_H}
    s_cmp_eq_u32 s{f}, 0
    s_cselect_b32 s75, 4, 5
    L_f_hw:
    ds_read_b32 v24, v30
    s_waitcnt lgkmcnt(0)
    v_readfirstlane_b32 s74, v24
    s_cmp_eq_u32 s74, s75
    s_cbranch_scc1 L_f_hw_done
    s_sleep 1
    s_branch L_f_hw
    L_f_hw_done:
    s_cmp_lg_u32 s{f}, 0
    s_cbranch_scc1 L_f_go
    """)
    poll(A, "f_p2", 18, int(optval("ps", "4")))
    A("""
    s_mov_b64 exec, 1
    ds_add_u32 v30, v17
    s_mov_b64 exec, -1
    L_f_go:
    """)
    stamp(A, 5)
    def kv_dma(i):
        A(f"s_mov_b32 m0, s10\ns_add_u32 s74, s11, {i*4*VST}")
        Q.issue("buffer_load_dwordx4 v3, s[84:87], s10 offen sc1 lds", i // 2)
        A("s_mov_b32 m0, s74\ns_nop 0")
        Q.issue("buffer_load_dwordx4 v3, s[88:91], s10 offen sc1 lds", i // 2)
        A("s_add_u32 s10, s10, 4096")
    def chunk_done(c):
        Q.wait(c)
        A(f"s_mov_b64 exec, 1\nds_add_u32 v19, v17 offset:{4*c}\ns_mov_b64 exec, -1")
    A("s_mov_b32 m0, s77\ns_nop 0")
    Q.issue("buffer_load_dwordx4 v3, s[28:31], s78 offen sc1 lds", 0)
    Q.issue("buffer_load_dwordx4 v3, s[28:31], s78 offen offset:1024 sc1 lds", 0)
    for i in range(6):
        kv_dma(i)
    chunk_done(0)
    stamp(A, 6)
    for i in range(6, 8):
        kv_dma(i)
    A(f"""
    v_mov_b32 v20, -1
    v_mov_b32 v21, -1
    v_mov_b32 v22, -1
    v_mov_b32 v23, -1
    s_lshl_b32 s74, s{sQB}, 2
    s_add_u32 s74, s74, s{f}
    s_mul_i32 s75, s74, {2*ACT_TB}
    s_lshl_b32 s76, s{sHEAD}, 10
    s_add_u32 s75, s75, s76
    s_add_u32 s75, s75, {WS_ACT}
    s_lshl_b32 s74, s74, 5
    s_add_u32 s74, s74, s{sHEAD}
    s_lshl_b32 s74, s74, 3
    s_add_u32 s74, s74, {WS_FR}
    v_mov_b32 v16, s74
    s_lshl_b32 s74, s{f}, 2
    s_add_u32 s74, s74, {C_Q}
    v_mov_b32 v30, s74
    """)
    for c in range(1, 4):
        chunk_done(c)
    Q.issue("buffer_store_dwordx4 v[20:23], v3, s[28:31], s75 offen sc1", 7)
    Q.issue("buffer_store_dwordx4 v[20:23], v31, s[28:31], s75 offen sc1", 7)
    A(f"""
    L_f_qw:
    ds_read_b32 v24, v30
    s_waitcnt lgkmcnt(0)
    v_readfirstlane_b32 s74, v24
    s_cmp_eq_u32 s74, 1
    s_cbranch_scc1 L_f_qw_done
    s_sleep 2
    s_branch L_f_qw
    L_f_qw_done:
    v_add_u32 v24, s10, v3
    s_add_u32 s74, s11, {32*VST}
    v_add_u32 v25, s74, v3
    """)
    for i in range(14):
        va, off = h_slot(i)
        A(f"ds_read_b128 {vr(HB+4*i,4)}, v{24+va} offset:{off}")
    A("s_waitcnt lgkmcnt(0)")
    for i in range(8, 16):
        kv_dma(i)
    A(f"""
    s_cmp_eq_u32 s{sTYPE}, 0
    s_cbranch_scc1 L_f_noh
    s_lshl_b32 s74, s{sTBK}, 2
    s_add_u32 s74, s74, s{f}
    s_xor_b32 s75, s74, 1
    s_mul_i32 s76, s{sG}, {7*2048}
    s_add_u32 s76, s76, {WS_ACT + 32*1024}
    s_mul_i32 s92, s74, {ACT_TB}
    s_add_u32 s92, s92, s76
    s_mul_i32 s93, s75, {ACT_TB}
    s_add_u32 s93, s93, s76
    s_add_u32 s94, s92, {6*2048}
    s_and_b32 s75, s{f}, 1
    s_mul_i32 s76, s75, 6144
    s_add_u32 s92, s92, s76
    s_add_u32 s93, s93, s76
    s_add_u32 s95, s92, 4096
    s_add_u32 s96, s93, 4096
    s_lshr_b32 s74, s74, 1
    s_lshl_b32 s74, s74, 3
    s_add_u32 s74, s74, s{sG}
    s_lshl_b32 s74, s74, 1
    s_add_u32 s74, s74, s75
    s_lshl_b32 s74, s74, 3
    s_add_u32 s74, s74, {WS_F3}
    v_writelane_b32 v16, s74, 1
    """)
    for n, (t, c) in enumerate([(t, c) for c in range(3) for t in range(2)] + [(0, 3)]):
        so, im = (94, 0) if c == 3 else ((92 + t, c * 2048) if c < 2 else (95 + t, 0))
        for hh in range(2):
            A(f"buffer_store_dwordx4 {vr(HB+8*n+4*hh,4)}, v3, s[28:31], s{so} offen offset:{im+hh*1024} sc1")
    A(f"""
    L_f_noh:
    v_mov_b32 v20, s26
    v_mov_b32 v21, s27
    s_mov_b32 s40, s22
    s_mov_b32 s41, s23
    s_mov_b32 s42, 256
    s_waitcnt vmcnt(0)
    s_mov_b64 exec, 3
    buffer_store_dwordx2 v[20:21], v16, s[28:31], 0 offen sc1
    s_mov_b64 exec, 1
    ds_add_u32 v19, v17 offset:16
    ds_add_u32 v19, v17 offset:20
    ds_add_u32 v19, v17 offset:24
    ds_add_u32 v19, v17 offset:28
    s_cmp_lg_u32 s{f}, 0
    s_cbranch_scc1 L_f_noat
    buffer_atomic_add v17, v4, s[40:43], 0 offen sc1
    L_f_noat:
    s_mov_b64 exec, -1
    s_lshl_b32 s74, s{sTB2}, 7
    s_lshl_b32 s75, s{f}, 5
    s_add_u32 s74, s74, s75
    s_add_u32 s74, s74, {WS_F3}
    v_and_b32 v18, 3, v1
    v_lshl_add_u32 v18, v18, 3, s74
    """)
    stamp(A, 7)
    Q.q = ["st"]
    wdma(-7, 48, 13, "o2")
    for k in range(8):
        Q.wait(f"o{k}")
        trread(k - 9, WO + 8 * k, 0); trread(k - 9, WO + 8 * k + 4, 1)
        A("s_waitcnt lgkmcnt(0)")
        if k + 3 < 8:
            wdma(k - 6, 48, 13, f"o{k+3}")
        elif k >= 6:
            wdma(k - 6, 44, 12, "w")
    wdma(2, 44, 12, "w")
    poll(A, "f_p3", 18, 8)
    Q.q = []
    def hload(step, t, tag):
        b = HB + 8 * (step % 3) + 4 * t
        Q.issue(f"buffer_load_dwordx4 {vr(b,4)}, v{(3,31)[t]}, s[28:31], s14 offen sc1", tag)
        if t == 1:
            A("s_add_u32 s14, s14, 1024")
    for s in range(3):
        hload(s, 0, s); hload(s, 1, s)
    Q.drain()
    stamp(A, 8)
    def fstep(s, nxt):
        h = HB + 8 * (s % 3)
        for n, (t, cb) in enumerate(((0, 0), (0, 1), (1, 0), (1, 1))):
            trread(s, WF + 4 * (n & 1), cb)
            A("s_waitcnt lgkmcnt(0)")
            if n == 3 and nxt:
                wdma(s + 3, 44, 12, s + 3)
            A(mfma(FACC + 32 * cb + 16 * t, WF + 4 * (n & 1), h + 4 * t))
            if nxt and n in (1, 3):
                hload(s + 3, t, s + 3)
    A("s_mov_b32 s79, 8\nL_f_loop:")
    for s in range(3):
        A("s_waitcnt vmcnt(8)")
        fstep(s, True)
    A("s_sub_u32 s79, s79, 1\ns_cmp_lg_u32 s79, 0\ns_cbranch_scc1 L_f_loop")
    Q.q = [24]*4 + [25]*4 + [26]*4
    for s in range(24, 28):
        Q.wait(s)
        fstep(s, s == 24)
    for x in XB_LOADS:
        A(x)
    A(f"""
    s_lshl_b32 s74, s{sTB2}, 8
    s_lshl_b32 s75, s{f}, 6
    s_add_u32 s74, s74, s75
    s_add_u32 s74, s74, {WS_FR}
    v_and_b32 v18, 7, v1
    v_lshl_add_u32 v18, v18, 3, s74
    """)
    poll(A, "f_pr", 18, 8)
    A(f"""
    s_or_b32 s74, s2, s{f}
    s_cmp_lg_u32 s74, 0
    s_cbranch_scc1 L_f_noep
    s_mov_b32 s79, 0x8000
    L_f_ep:
    buffer_load_dword v24, v4, s[40:43], 0 offen sc1
    s_sub_u32 s79, s79, 1
    s_waitcnt vmcnt(0)
    v_readfirstlane_b32 s74, v24
    s_cmp_eq_u32 s79, 0
    s_cbranch_scc1 L_f_ep_done
    s_cmp_lg_u32 s74, 256
    s_cbranch_scc1 L_f_ep
    L_f_ep_done:
    s_mov_b32 s74, {WS_CTL}
    s_mov_b64 exec, 1
    buffer_store_dwordx2 v[20:21], v4, s[28:31], s74 offen sc1
    s_mov_b64 exec, -1
    L_f_noep:
    """)
    stamp(A, 9)
    A(f"""
    s_lshl_b32 s74, s{f}, 14
    v_add_u32 v16, s74, v3
    v_and_b32 v24, 7, v1
    v_lshlrev_b32 v24, 10, v24
    v_bfe_u32 v25, v1, 3, 1
    v_mul_u32_u24 v25, {ACT_TB}, v25
    v_add_u32 v30, v24, v25
    v_mov_b32 v19, {C_D}
    s_add_u32 s14, s15, 4096
    s_mov_b32 s79, 0x10000
    s_mov_b32 s78, 0
    """)
    stamp(A, 10)
    A(f"""
    L_f_retry:
    ds_read_b32 v24, v19
    buffer_load_dword v25, v30, s[28:31], s15 offen offset:1020 sc1
    s_sub_u32 s79, s79, 1
    s_cmp_eq_u32 s79, 0
    s_cselect_b32 s76, 0, -1
    s_cselect_b32 s79, 1, s79
    s_waitcnt lgkmcnt(0)
    v_readfirstlane_b32 s74, v24
    s_cmp_eq_u32 s74, 4
    s_cbranch_scc1 L_f_disp
    s_waitcnt vmcnt(0)
    v_cmp_eq_u32 vcc, -1, v25
    s_lshr_b32 s74, vcc_lo, 8
    s_or_b32 s74, s74, vcc_lo
    s_and_b32 s74, s74, s76
    s_bitcmp0_b32 s74, s78
    s_cbranch_scc1 L_f_disp
    s_sleep {optval("ts", "6")}
    s_branch L_f_retry
    L_f_disp:
    """)
    for k in range(7, 0, -1):
        A(f"s_cmp_eq_u32 s78, {k}\ns_cbranch_scc1 L_f_ld{k}")
    for k in range(8):
        so, im = (15, k * 1024) if k < 4 else (14, (k - 4) * 1024)
        A(f"""
        L_f_ld{k}:
        buffer_load_dwordx4 {vr(FB+8*k,4)}, v3, s[28:31], s{so} offen offset:{im} sc1
        buffer_load_dwordx4 {vr(FB+8*k+4,4)}, v31, s[28:31], s{so} offen offset:{im} sc1
        """)
    for k in range(1, 8):
        A(f"s_cmp_eq_u32 s78, {k}\ns_cbranch_scc1 L_f_ck{k}")
    for k in range(8):
        b, w = FB + 8 * k, WO + 8 * k
        A(f"""
        L_f_ck{k}:
        s_waitcnt vmcnt({14 - 2*k})
        v_max3_u32 v17, v{b}, v{b+1}, v{b+2}
        v_max3_u32 v18, v{b+3}, v{b+4}, v{b+5}
        v_max3_u32 v17, v17, v{b+6}, v{b+7}
        v_max_u32 v17, v17, v18
        v_and_b32 v17, s76, v17
        v_cmp_eq_u32 vcc, -1, v17
        s_mov_b32 s78, {k}
        s_cbranch_vccnz L_f_retry
        """)
        if asm.STAMPS:
            A(f"s_memrealtime s[82:83]\ns_waitcnt lgkmcnt(0)\nv_writelane_b32 v255, s82, {k}")
            if k == 7:
                A("v_writelane_b32 v255, s79, 8")
        A(f"""
        {mfma(FACC, w, b)}
        {mfma(FACC+16, w, b+4)}
        {mfma(FACC+32, w+4, b)}
        {mfma(FACC+48, w+4, b+4)}
        """)
    A(f"""
    L_f_dw:
    ds_read_b32 v24, v19
    s_waitcnt lgkmcnt(0)
    v_readfirstlane_b32 s74, v24
    s_cmp_eq_u32 s74, 4
    s_cbranch_scc1 L_f_dw_done
    s_sleep 1
    s_branch L_f_dw
    L_f_dw_done:
    """)
    stamp(A, 11)
    A("s_nop 11")
    for q in range(16):
        A(f"ds_write_b128 v16, {vr(FACC+4*q,4)} offset:{q*1024}")
    A("s_waitcnt lgkmcnt(0)")

def gen_final(A):
    R = 96
    A(f"""
    L_final:
    s_lshl_b32 s74, s{sWAVE}, 11
    v_add_u32 v16, s74, v3
    s_mov_b32 s75, 0xffff0000
    """)
    for g in range(2):
        for d in range(2):
            A(f"""
            v_lshlrev_b32 v{20+4*g+2*d}, 16, v{XB+2*g+d}
            v_and_b32 v{21+4*g+2*d}, s75, v{XB+2*g+d}
            v_lshlrev_b32 v28, 16, v{XB+4+2*g+d}
            v_and_b32 v29, s75, v{XB+4+2*g+d}
            v_add_f32 v{20+4*g+2*d}, v{20+4*g+2*d}, v28
            v_add_f32 v{21+4*g+2*d}, v{21+4*g+2*d}, v29
            """)
    A("s_barrier")
    stamp(A, 12)
    for src in range(4):
        for g in range(2):
            A(f"ds_read_b128 {vr(R+8*src+4*g,4)}, v16 offset:{src*16384 + g*1024}")
    for src in range(4):
        A(f"s_waitcnt lgkmcnt({6-2*src})")
        for i in range(8):
            A(f"v_add_f32 v{20+i}, v{20+i}, v{R+8*src+i}")
    for i in range(4):
        A(f"v_cvt_pk_bf16_f32 v{28+i}, v{20+2*i}, v{21+2*i}")
    A(f"""
    buffer_store_dwordx2 v[28:29], v5, s[60:63], 0 offen {optval("ost", "")}
    buffer_store_dwordx2 v[30:31], v5, s[60:63], 0 offen offset:16 {optval("ost", "")}
    """)
    stamp(A, 13)
    if asm.STAMPS:
        A("s_waitcnt vmcnt(0)")
    stamp(A, 14); stamp(A, 15, True)
    stamp_flush(A, 0, 28, sWAVE)
    if asm.STAMPS:
        A("s_add_u32 s82, s82, 512\ns_mov_b64 exec, 0xffff\nbuffer_store_dword v252, v251, s[28:31], s82 offen\ns_add_u32 s83, s83, 512\nbuffer_store_dword v255, v251, s[28:31], s83 offen")
    if asm.STAMPS and 'dbgout' in OPT:
        A(f"""
        s_mov_b64 exec, -1
        s_mov_b32 s40, s22
        s_mov_b32 s41, s23
        s_mov_b32 s42, 256
        s_mov_b32 s43, 0x00020000
        v_readlane_b32 s74, v254, 0
        v_readlane_b32 s75, v254, 15
        s_not_b32 s74, s74
        v_mov_b32 v20, s74
        v_mov_b32 v21, s75
        s_mov_b64 exec, 1
        buffer_atomic_umax v20, v4, s[40:43], 0 offen offset:4 sc1
        buffer_atomic_umax v21, v4, s[40:43], 0 offen offset:8 sc1
        s_lshl_b32 s74, s{sWAVE}, 8
        s_or_b32 s74, s74, s2
        s_cmp_lg_u32 s74, {optval('dwg', '8')}
        s_cbranch_scc1 L_end
        s_mov_b64 exec, 0xfff8
        buffer_store_dword v254, v251, s[40:43], 0 offen
        """)
    A("L_end:\ns_endpgm")

def gen_fallback(A):
    A("L_fallback:\ns_waitcnt lgkmcnt(0)")
    kv_srds(A)
    A(f"""
    v_mov_b32 v{C[0]}, 0xff7fffff
    v_mov_b32 v{C[1]}, 0xff7fffff
    v_mov_b32 v{VA}, 0x3f803f80
    s_mov_b32 s12, 0x0000ffff
    s_mov_b32 s13, 0x0000ffff
    """)
    for i in range(1, 4):
        A(f"v_mov_b32 v{VA+i}, v{VA}")
    for i in range(4):
        A(f"v_mov_b32 v{VB[0]+i}, v{VA}")
    for q in range(2):
        for i in range(16):
            A(f"v_mov_b32 v{O[q]+i}, 0")
    A(f"""
    s_mov_b32 s11, 0
    L_fb_loop:
    buffer_load_dwordx4 {vr(KB[0],4)}, v{vL16}, s[84:87], s11 offen sc1
    s_mov_b64 exec, s[12:13]
    buffer_load_dwordx4 {vr(VA,4)}, v{vVg}, s[88:91], s11 offen sc1
    buffer_load_dwordx4 {vr(VB[0],4)}, v{vVg}, s[88:91], s11 offen offset:512 sc1
    s_mov_b64 exec, -1
    s_waitcnt vmcnt(0)
    """)
    for q in range(2):
        A(f"{mfma(S[0], KB[0], Q2[q], '0')}\ns_nop 15\ns_nop 3")
        rowmax(A, S[0], T0)
        A(f"""
        v_max_f32 v{T0}, v{T0}, v{C[q]}
        v_sub_f32 v{T2}, v{C[q]}, v{T0}
        v_exp_f32 v{T2}, v{T2}
        v_mov_b32 v{C[q]}, v{T0}
        """)
        for i in range(16):
            A(f"v_mul_f32 v{O[q]+i}, v{O[q]+i}, v{T2}")
        for i in range(16):
            A(f"v_sub_f32 v{S[0]+i}, v{S[0]+i}, v{T0}")
        for i in range(16):
            A(ex(S[0], i))
        A("s_nop 0")
        for i in range(8):
            A(cv(S[0], i))
        A(f"s_nop 1\n{mfma(O[q], VA, P)}\n{mfma(O[q], VB[0], P+4)}")
    A(f"""
    s_nop 15
    s_nop 3
    s_add_u32 s11, s11, 1024
    s_cmp_lt_u32 s11, 0x10000
    s_cbranch_scc1 L_fb_loop
    s_branch L_a_fin
    """)
```

```python
class Asm:
    def __init__(self):
        self.lines = []
    def __call__(self, s):
        for l in s.strip("\n").split("\n"):
            l = l.strip()
            if not l:
                continue
            if l.endswith(":") or l.startswith("."):
                self.lines.append(l)
            else:
                self.lines.append("    " + l)
    def region(self, name):
        self.lines.append(f";@region {name}")
    def text(self):
        return "\n".join(self.lines) + "\n"

def vr(b, n):
    return f"v[{b}:{b+n-1}]" if n > 1 else f"v{b}"
def sr(b, n):
    return f"s[{b}:{b+n-1}]" if n > 1 else f"s{b}"

def mfma(d, a, b, c=None):
    cs = vr(d, 16) if c is None else (c if isinstance(c, str) else vr(c, 16))
    return f"v_mfma_f32_32x32x16_bf16 {vr(d,16)}, {vr(a,4)}, {vr(b,4)}, {cs}"

def kernel_begin(A, name):
    A(f".globl {name}\n.p2align 8\n.type {name},@function\n{name}:")

def kernel_desc(name, nvgpr, nsgpr=80):
    if STAMPS:
        nvgpr, nsgpr = 256, 102
    acc = (nvgpr + 3) // 4 * 4
    return f""".section .rodata,"a"
.p2align 6
.amdhsa_kernel {name}
  .amdhsa_next_free_vgpr {nvgpr}
  .amdhsa_next_free_sgpr {nsgpr}
  .amdhsa_accum_offset {acc}
  .amdhsa_group_segment_fixed_size 0
  .amdhsa_kernarg_size 88
  .amdhsa_user_sgpr_count 2
  .amdhsa_user_sgpr_kernarg_segment_ptr 1
  .amdhsa_system_sgpr_workgroup_id_x 1
.end_amdhsa_kernel
"""

def f32bits(x):
    import struct
    return "0x%08x" % struct.unpack("<I", struct.pack("<f", x))[0]

WS_Q = 0
WS_K = 2 << 20
WS_V = 4 << 20
WS_ACT = 8 << 20
ACT_TB = 144 * 1024
WS_WF = 20 << 20
WS_BYTES = 24 << 20

WS_STAMP = 23 << 20
STAMPS = False
def stamp(A, i, real=False):
    if not STAMPS:
        return
    A(f"{'s_memrealtime' if real else 's_memtime'} s[80:81]\ns_memrealtime s[82:83]\ns_waitcnt lgkmcnt(0)\nv_writelane_b32 v250, s80, {i}\nv_writelane_b32 v254, s82, {i}")
def stamp_flush(A, kidx, srd, wave_sgpr, n=16, vt=250):
    if not STAMPS:
        return
    A(f"""
    v_mbcnt_lo_u32_b32 v{vt+1}, -1, 0
    v_mbcnt_hi_u32_b32 v{vt+1}, -1, v{vt+1}
    v_lshlrev_b32 v{vt+1}, 2, v{vt+1}
    s_lshl_b32 s82, s2, 4
    s_add_u32 s82, s82, s{wave_sgpr}
    s_lshl_b32 s82, s82, 6
    s_add_u32 s82, s82, {WS_STAMP + kidx*262144}
    s_mov_b64 exec, 0xffff
    buffer_store_dword v{vt}, v{vt+1}, s[{srd}:{srd+3}], s82 offen
    s_add_u32 s83, s82, 262144
    buffer_store_dword v254, v{vt+1}, s[{srd}:{srd+3}], s83 offen
    s_mov_b64 exec, -1
    """)

class VmQ:
    def __init__(self, A):
        self.A, self.q = A, []
    def issue(self, text, tag):
        self.A(text)
        self.q.append(tag)
    def wait(self, *tags):
        idx = max((i for i, t in enumerate(self.q) if t in tags), default=-1)
        if idx < 0:
            return
        n = len(self.q) - 1 - idx
        assert n <= 63
        self.A(f"s_waitcnt vmcnt({n})")
        self.q = self.q[idx + 1:]
    def drain(self):
        self.A("s_waitcnt vmcnt(0)")
        self.q = []

WS_CTL = 20 << 20
WS_F2 = WS_CTL + 4096
WS_F3 = WS_CTL + 8192
WS_FR = WS_CTL + 16384
WS_XG = 21 << 20
WS_CG = WS_XG + (512 << 10)

def insert_pads(lines, spacing, assemble):
    import re
    sizes = assemble(lines)
    out, reg, acc, pads = [], None, 0, []
    def close():
        for k, idx in enumerate(pads):
            tgt = f"PAD_{reg}_{k+1}" if k + 1 < len(pads) else "L_tour_ret"
            lab = f"TOUR_{reg}" if k == 0 else f"PAD_{reg}_{k}"
            out[idx] = f"{lab}:\n    s_cbranch_execz {tgt}"
    n = len(lines)
    for i, l in enumerate(lines):
        m = re.match(r";@region (\S+)", l)
        if m:
            if reg:
                close()
            reg = None if m.group(1) == "None" else m.group(1)
            pads, acc = [], 0
            if reg:
                pads.append(len(out)); out.append("")
            continue
        out.append(l)
        acc += sizes[i]
        if reg and acc >= spacing and sizes[i]:
            near = any("v_mfma" in x for x in lines[i+1:i+14])
            nxt = next((x for x in lines[i+1:] if x.startswith("    ")), "")
            if near and not ("v_mfma" in l and nxt.strip().startswith("v_") and "v_mfma" not in nxt) and acc < spacing + 200:
                continue
            pads.append(len(out)); out.append("")
            acc = 0
    if reg:
        close()
    return out
```

```python
from asm import *
import asm, math, os
OPT = os.environ.get('MOPT', '').split(',')
def optval(k, d):
    for o in OPT:
        if o.startswith(k + "="):
            return o.split("=")[1]
    return d
LOG2E = math.log2(math.e)

XST, WBASE, WST = 16384, 49152, 28672
VST = 1056
LDS_V = 65536
QA = LDS_V + 66 * VST
CTL = QA + 3 * 8192
LDS_BYTES = 163840
C_KV, C_Q, C_H, C_D = CTL, CTL + 64, CTL + 96, CTL + 100
T_XP, T_RS, T_WP = CTL + 128, CTL + 128 + 1024, CTL + 128 + 2048
T_PART = QA

sWAVE, sW4, sTBK, sG, sTYPE, sHEAD, sQB, sTB2, sNB, sC = range(64, 74)
SRD_K, SRD_V = 84, 88

def prologue(A):
    A("s_cmp_ge_u32 s2, 256\ns_cbranch_scc1 L_end")
    stamp(A, 0, True); stamp(A, 1)
    A(f"""
    s_load_dwordx16 s[4:19], s[0:1], 0
    s_load_dwordx4 s[20:23], s[0:1], 64
    s_load_dwordx2 s[24:25], s[0:1], 80
    s_getpc_b64 s[44:45]
    L_pc:
    s_mov_b32 s46, L_code_end-L_pc
    s_mov_b32 s47, 0x00020000
    v_lshlrev_b32 v5, 6, v0
    buffer_load_dword v253, v5, s[44:47], 0 offen
    v_and_b32 v1, 63, v0
    v_lshrrev_b32 v2, 6, v0
    v_lshlrev_b32 v3, 4, v1
    v_readfirstlane_b32 s{sWAVE}, v2
    v_mov_b32 v4, 0
    s_and_b32 s74, s2, 7
    s_lshr_b32 s75, s2, 3
    s_and_b32 s{sQB}, s75, 7
    s_and_b32 s77, s74, 1
    s_lshl_b32 s77, s77, 3
    s_add_u32 s{sTBK}, s77, s{sQB}
    s_lshr_b32 s77, s75, 3
    s_lshr_b32 s{sTYPE}, s77, 1
    s_and_b32 s78, s77, 1
    s_and_b32 s{sG}, s74, 6
    s_add_u32 s{sG}, s{sG}, s78
    s_lshl_b32 s74, s74, 2
    s_add_u32 s{sHEAD}, s74, s77
    s_and_b32 s78, s75, 3
    s_add_u32 s{sTB2}, s74, s78
    s_lshr_b32 s{sNB}, s75, 2
    """)
    rot = optval("rot", "tbk")
    if rot == "grp":
        A(f"s_lshl_b32 s{sC}, s77, 1")
    elif rot == "tbk":
        A(f"s_mov_b32 s{sC}, s{sQB}")
    elif rot == "full":
        A(f"s_lshl_b32 s{sC}, s77, 1\ns_add_u32 s{sC}, s{sC}, s{sQB}\ns_and_b32 s{sC}, s{sC}, 7")
    elif rot == "mix":
        A(f"s_lshl_b32 s{sC}, s77, 1\ns_and_b32 s78, s{sQB}, 1\ns_add_u32 s{sC}, s{sC}, s78")
    else:
        A(f"s_mov_b32 s{sC}, 0")
    A(f"""
    s_and_b32 s{sW4}, s{sWAVE}, 3
    s_mov_b32 s30, {WS_BYTES}
    s_mov_b32 s31, 0x00020000
    s_mov_b32 s3, {WS_CTL}
    v_and_b32 v2, 31, v1
    v_lshrrev_b32 v7, 5, v1
    s_cmp_lt_u32 s{sWAVE}, 4
    s_cbranch_scc1 L_m
    """)

def lanepart_tr(A, dst, t1):
    A(f"""
    v_lshlrev_b32 v{dst}, 3, v7
    v_bfe_u32 v{t1}, v1, 2, 2
    v_add_u32 v{dst}, v{dst}, v{t1}
    v_lshlrev_b32 v{dst}, 6, v{dst}
    v_bfe_u32 v{t1}, v1, 4, 1
    v_lshl_add_u32 v{dst}, v{t1}, 5, v{dst}
    v_and_b32 v{t1}, 3, v1
    v_lshl_add_u32 v{dst}, v{t1}, 3, v{dst}
    """)

XA0, XA1, WAa, WAb = 8, 12, 16, 17
FS = [20, 44]
ACC = 68
XPF, WPF, RS, SD, RT = 180, 188, 204, 206, 208
HP = 180
vFLG, vTAG = 240, 242
sP, sE, sT0, sT1 = 4, 5, 6, 7

def m_common(A, a_setup):
    A(f"""
    L_m:
    s_mov_b32 s54, 0x200000
    s_mov_b32 s55, 0x00020000
    v_bfe_u32 v24, v1, 1, 3
    v_xor_b32 v24, v24, v7
    v_lshlrev_b32 v{XA0}, 7, v2
    v_lshl_add_u32 v{XA0}, v24, 4, v{XA0}
    s_lshl_b32 s74, s{sW4}, 12
    v_add_u32 v{XA0}, s74, v{XA0}
    s_waitcnt lgkmcnt(0)
    s_mov_b32 s28, s24
    s_mov_b32 s29, s25
    s_mov_b32 s52, s4
    s_mov_b32 s53, s5
    buffer_load_dwordx2 v[{vTAG}:{vTAG+1}], v4, s[28:31], s3 offen sc1
    """)
    if 'notouch' not in OPT:
        A(f"""
        v_lshlrev_b32 v24, 19, v1
        buffer_load_dword v253, v24, s[28:31], 0 offen
        global_load_dword v253, v4, s[8:9]
        global_load_dword v253, v4, s[14:15]
        global_load_dword v253, v4, s[16:17]
        global_load_dword v253, v4, s[18:19]
        global_load_dword v253, v4, s[20:21]
        global_load_dword v253, v4, s[22:23]
        """)
    A(f"""
    s_lshl_b32 s74, s{sQB}, 3
    s_lshl_b32 s75, s{sW4}, 1
    s_add_u32 s74, s74, s75
    s_mul_i32 s8, s74, {ACT_TB}
    s_lshl_b32 s75, s{sHEAD}, 10
    s_add_u32 s8, s8, s75
    s_add_u32 s8, s8, {WS_ACT}
    s_add_u32 s9, s8, {ACT_TB}
    s_lshr_b32 s{sP}, s{sW4}, 1
    s_and_b32 s{sE}, s{sW4}, 1
    s_lshl_b32 s74, s{sTBK}, 2
    s_add_u32 s{sT0}, s74, s{sW4}
    s_xor_b32 s{sT1}, s{sT0}, 1
    """)
    for ks in range(1, 4):
        A(f"v_xor_b32 v{XA0+ks}, {ks << 5}, v{XA0}")
    for ks in range(4):
        A(f"v_xor_b32 v{XA1+ks}, 0x1000, v{XA0+ks}")
    lanepart_tr(A, WAb, 24)
    for i in range(0, 112, 2):
        A(f"v_mov_b64 {vr(ACC+i,2)}, 0")
    for i in range(6):
        A(f"v_mov_b64 {vr(XPF+4*i+2,2)}, 0")
    a_setup(A)
    if 'notour' not in OPT:
        A(f"""
        s_lshl_b32 s74, s{sW4}, 1
        s_add_u32 s74, s74, s{sTYPE}
        s_waitcnt vmcnt({8 if 'notouch' not in OPT else 1})
        s_mov_b64 exec, 0
        s_cmp_eq_u32 s74, 0
        s_cbranch_scc1 TOUR_mq
        s_cmp_eq_u32 s74, 1
        s_cbranch_scc1 TOUR_mf
        s_cmp_lt_u32 s74, 4
        s_cbranch_scc1 TOUR_h
        s_cmp_lt_u32 s74, 6
        s_cbranch_scc1 TOUR_a
        s_branch TOUR_f
        L_tour_ret:
        s_mov_b64 exec, -1
        """)
    else:
        A("L_tour_ret:")
    stamp(A, 11)
    A(f"""
    s_mov_b32 s10, 0
    s_mov_b32 s11, 8
    s_mov_b32 s14, {XST}
    s_mov_b32 s15, {WST}
    s_waitcnt vmcnt({7 if 'notouch' not in OPT else 0})
    v_add_u32 v{vTAG}, 1, v{vTAG}
    v_add_u32 v{vTAG+1}, 1, v{vTAG+1}
    {'s_setprio 3' if optval('prio', 'm') == 'm' else 's_nop 0'}
    s_cmp_lg_u32 s{sTYPE}, 0
    s_cbranch_scc1 L_m_ffn
    """)

def m_path(A, ffn):
    nm = "ffn" if ffn else "qkv"
    ncb = 4 if ffn else 3
    def xf(s, t): return FS[s] + 4 * t
    def wf(s, c): return FS[s] + 8 + 4 * c
    blocks = [(t, c) for c in range(3) for t in range(2)] + ([(0, 3)] if ffn else [])
    def acc(i): return ACC + 16 * i
    A(f"L_m_{nm}:")
    A.region("mf" if ffn else "mq")
    if ffn:
        A(f"""
        s_mul_i32 s74, s{sE}, 12288
        s_add_u32 s74, s74, {WBASE}
        v_add_u32 v{WAa}, s74, v{WAb}
        v_add_u32 v{WAb}, {WBASE + 6*4096}, v{WAb}
        """)
    else:
        A(f"""
        s_lshl_b32 s74, s{sE}, 12
        s_add_u32 s74, s74, {WBASE}
        v_add_u32 v{WAa}, s74, v{WAb}
        s_lshl_b32 s74, s{sG}, 1
        s_add_u32 s74, s74, s{sE}
        s_lshl_b32 s74, s74, 4
        s_add_u32 s74, s74, s{sTBK}
        s_lshl_b32 s74, s74, 1
        s_add_u32 s74, s74, s{sP}
        s_lshl_b32 s74, s74, 3
        s_add_u32 s74, s74, {WS_F2}
        """)
    A(f"v_mov_b32 v{vFLG}, s74\nv_mov_b32 v{vFLG+1}, {C_H}")
    cbs = 4096 if ffn else 8192
    def reads(ks, s):
        o = [f"ds_read_b128 {vr(xf(s,0),4)}, v{XA0+ks}", f"ds_read_b128 {vr(xf(s,1),4)}, v{XA1+ks}"]
        w = []
        for c in range(ncb):
            a, off = (WAb, ks * 1024) if c == 3 else (WAa, c * cbs + ks * 1024)
            w.append([f"ds_read_b64_tr_b16 {vr(wf(s,c),2)}, v{a} offset:{off}",
                      f"ds_read_b64_tr_b16 {vr(wf(s,c)+2,2)}, v{a} offset:{off+256}"])
        return [o[0]] + w[0] + [o[1]] + [x for p in w[1:] for x in p]
    def mm(i, xr, wr):
        t, c = blocks[i]
        if (not ffn) and c == 2:
            return mfma(acc(i), xr(t), wr(c))
        return mfma(acc(i), wr(c), xr(t))
    def kstep(s, fill, first=0, per=3):
        k = 0
        for i in range(first, len(blocks)):
            A(mm(i, lambda t: xf(s, t), lambda c: wf(s, c)))
            for x in fill[k:k+per]:
                A(x)
            k += per
        for x in fill[k:]:
            A(x)
    stamp(A, 2)
    A("s_barrier")
    stamp(A, 3)
    for r in reads(0, 0):
        A(r)
    A(f".p2align 6\nL_m_{nm}_loop:")
    for ks in range(3):
        s = ks & 1
        A("s_waitcnt lgkmcnt(0)")
        fill = reads(ks + 1, 1 - s)
        if ks == 0:
            fill = fill + ["s_add_u32 s10, s10, 1", "s_cmp_eq_u32 s10, 3", f"s_cselect_b32 s12, {-2*XST}, s14", f"s_cselect_b32 s13, {-2*WST}, s15", "s_cselect_b32 s10, 0, s10"]
        if ks == 2:
            fill = fill + ["s_sub_u32 s11, s11, 1", "s_cmp_eq_u32 s11, 0"]
        kstep(s, fill)
    A("s_waitcnt lgkmcnt(0)")
    A(mm(0, lambda t: xf(1, t), lambda c: wf(1, c)))
    A(f"s_barrier\ns_cbranch_scc1 L_m_{nm}_last")
    upd = [f"v_add_u32 v{XA0}, s12, v{XA0}", f"v_add_u32 v{WAa}, s13, v{WAa}", f"v_add_u32 v{XA1}, s12, v{XA1}"]
    if ffn:
        upd.append(f"v_add_u32 v{WAb}, s13, v{WAb}")
    for x in upd:
        A(x)
    upd2 = [f"v_add_u32 v{b+k}, s12, v{b+k}" for k in range(1, 4) for b in (XA0, XA1)]
    kstep(1, reads(0, 0) + upd2, first=1)
    A(f"s_branch L_m_{nm}_loop\nL_m_{nm}_last:")
    fill = f"""
    s_lshl_b32 s74, s{sW4}, 8
    v_lshl_add_u32 v{XA0}, v2, 3, s74
    v_xor_b32 v{XA0+1}, 0x100, v{XA0}
    v_lshrrev_b32 v{XA0+2}, 1, v{XA0}
    v_lshrrev_b32 v{XA0+3}, 1, v{XA0+1}
    s_mul_i32 s74, s{sE}, {768 if ffn else 256}
    v_lshl_add_u32 v{XA1}, v2, 3, s74
    v_add_u32 v{XA0}, {T_XP}, v{XA0}
    v_add_u32 v{XA0+1}, {T_XP}, v{XA0+1}
    v_add_u32 v{XA0+2}, {T_RS}, v{XA0+2}
    v_add_u32 v{XA0+3}, {T_RS}, v{XA0+3}
    v_add_u32 v{XA1}, {T_WP}, v{XA1}
    """
    if ffn:
        fill += f"""
        v_lshlrev_b32 v{XA1+1}, 3, v2
        v_add_u32 v{XA1+1}, {T_WP + 6*256}, v{XA1+1}
        s_lshl_b32 s74, s{sW4}, 10
        s_add_u32 s74, s74, 32768
        v_add_u32 v{WAa}, s74, v3
        s_mul_i32 s74, s{sW4}, {VST}
        s_add_u32 s74, s74, {LDS_V + 32*VST}
        v_add_u32 v{WAb}, s74, v3
        """
    else:
        fill += f"""
        s_lshl_b32 s74, s{sW4}, 7
        v_lshl_add_u32 v{XA1+2}, v7, 4, s74
        v_xor_b32 v{XA1+3}, 0x80, v{XA1+2}
        v_add_u32 v{XA1+2}, {T_RS}, v{XA1+2}
        v_add_u32 v{XA1+3}, {T_RS}, v{XA1+3}
        s_lshl_b32 s74, s{sG}, 1
        s_add_u32 s74, s74, s{sE}
        s_lshl_b32 s74, s74, 17
        s_lshl_b32 s12, s{sT0}, 10
        s_add_u32 s12, s12, s74
        s_lshl_b32 s13, s{sT1}, 10
        s_add_u32 s13, s13, s74
        """
    fill = [l.strip() for l in fill.split("\n") if l.strip()]
    rd = [f"ds_read_b64 {vr(XPF,2)}, v{XA0}", f"ds_read_b64 {vr(XPF+4,2)}, v{XA0+1}"]
    for c in range(3):
        rd.append(f"ds_read_b64 {vr(WPF+4*c,2)}, v{XA1} offset:{c*(256 if ffn else 512)}")
    if ffn:
        rd.append(f"ds_read_b64 {vr(WPF+12,2)}, v{XA1+1}")
    nfr = len(rd)
    rd += [f"ds_read_b32 v{RS}, v{XA0+2}", f"ds_read_b32 v{RS+1}, v{XA0+3}"]
    if ffn:
        rd += [f"ds_read_b32 v{SD}, v{XA0+2} offset:512", f"ds_read_b32 v{SD+1}, v{XA0+3} offset:512"]
    else:
        for t in range(2):
            for gq in range(4):
                rd.append(f"ds_read_b128 {vr(RT+16*t+4*gq,4)}, v{XA1+2+t} offset:{gq*32}")
    nv = 14 if ffn else 17
    for x in fill[:5]:
        A(x)
    kstep(1, fill[5:nv] + rd + fill[nv:], first=1, per=6)
    A(f"s_waitcnt lgkmcnt({len(rd) - nfr})")
    stamp(A, 4)
    order = list(range(len(blocks)))
    if not ffn:
        order = [2, 3, 4, 5, 0, 1]
    PK = FS[0]
    for n, i in enumerate(order):
        A(mm(i, lambda t: XPF + 4*t, lambda c: WPF + 4*c))
        if n == 0:
            A("s_waitcnt lgkmcnt(0)")
    if not ffn:
        A(f"""
        v_mov_b32 v{XA1}, v{RS}
        v_mov_b32 v{XA1+1}, v{RS}
        v_mov_b32 v{XA1+2}, v{RS+1}
        v_mov_b32 v{XA1+3}, v{RS+1}
        v_mul_f32 v{RS}, {f32bits(LOG2E/4)}, v{XA1}
        v_mul_f32 v{RS+1}, {f32bits(LOG2E/4)}, v{XA1}
        v_mul_f32 v{RS+2}, {f32bits(LOG2E/4)}, v{XA1+2}
        v_mul_f32 v{RS+3}, {f32bits(LOG2E/4)}, v{XA1+2}
        v_bfe_u32 v{XA0}, v1, 4, 1
        v_lshlrev_b32 v{XA0}, 16, v{XA0}
        v_lshl_add_u32 v{XA0}, v7, 8, v{XA0}
        v_and_b32 v{XA0+1}, 15, v1
        v_lshl_add_u32 v{XA0}, v{XA0+1}, 4, v{XA0}
        """)
        for n, i in enumerate(order):
            t, c = blocks[i]
            a, pk = acc(i), PK + 8 * n
            for r in range(0, 16, 2):
                sc = (RS + 2*t, XA1 + 2*t, RT + 16*t + r)[c]
                A(f"v_pk_mul_f32 {vr(a+r,2)}, {vr(a+r,2)}, {vr(sc,2)}")
            for r in range(0, 16, 2):
                A(f"v_cvt_pk_bf16_f32 v{pk+r//2}, v{a+r}, v{a+r+1}")
            if c < 2:
                for hh in range(2):
                    A(f"s_add_u32 s74, s{12+t}, {c*(2<<20) + hh*65536}")
                    A(f"buffer_store_dwordx4 {vr(pk+4*hh,4)}, v3, s[28:31], s74 offen sc1")
            else:
                A(f"s_add_u32 s74, s{12+t}, {WS_V}")
                for m2 in range(2):
                    A(f"buffer_store_dwordx4 {vr(pk+4*m2,4)}, v{XA0}, s[28:31], s74 offen offset:{m2*512} sc1")
        stamp(A, 5)
        A("s_waitcnt vmcnt(0)")
        stamp(A, 10)
        A(f"""
        s_mov_b64 exec, 1
        buffer_store_dwordx2 v[{vTAG}:{vTAG+1}], v{vFLG}, s[28:31], 0 offen sc1
        ds_add_u32 v{vFLG+1}, v19
        s_mov_b64 exec, -1
        s_branch L_a
        """)
    else:
        c1 = -2.0 * LOG2E * math.sqrt(2.0 / math.pi)
        c3 = c1 * 0.044715
        K1, K3, SP = XA0, XA1, FS[0]
        for t in range(2):
            A(f"""
            v_mul_f32 v{K1+2*t}, {f32bits(c1)}, v{RS+t}
            v_mul_f32 v{K3+2*t}, v{RS+t}, v{RS+t}
            v_mul_f32 v{K3+2*t}, v{K3+2*t}, v{RS+t}
            v_mul_f32 v{K3+2*t}, {f32bits(c3)}, v{K3+2*t}
            v_mov_b32 v{K1+2*t+1}, v{K1+2*t}
            v_mov_b32 v{K3+2*t+1}, v{K3+2*t}
            v_mov_b32 v{SP+2*t}, v{SD+t}
            v_mov_b32 v{SP+2*t+1}, v{SD+t}
            """)
        G = FS[1]
        p2 = lambda r: vr(r, 2)
        for n, (t, c) in enumerate(blocks):
            a, pk = acc(n), HP + 8 * (n & 1)
            for r in range(0, 16, 2):
                A(f"v_pk_mul_f32 {p2(G+r)}, {p2(a+r)}, {p2(a+r)}")
            for r in range(0, 16, 2):
                A(f"v_pk_fma_f32 {p2(G+r)}, {p2(G+r)}, {p2(K3+2*t)}, {p2(K1+2*t)}")
            for r in range(0, 16, 2):
                A(f"v_pk_mul_f32 {p2(G+r)}, {p2(G+r)}, {p2(a+r)}")
            for r in range(16):
                A(f"v_exp_f32 v{G+r}, v{G+r}")
            for r in range(0, 16, 2):
                A(f"v_pk_fma_f32 {p2(G+r)}, {p2(G+r)}, {p2(SP+2*t)}, {p2(SP+2*t)}")
            for r in range(16):
                A(f"v_rcp_f32 v{G+r}, v{G+r}")
            for r in range(0, 16, 2):
                A(f"v_pk_mul_f32 {p2(a+r)}, {p2(a+r)}, {p2(G+r)}")
            for r in range(8):
                A(f"v_cvt_pk_bf16_f32 v{pk+r}, v{a+2*r}, v{a+2*r+1}")
            for hh in range(2):
                va, off = h_slot(2 * n + hh)
                A(f"ds_write_b128 v{(WAa, WAb)[va]}, {vr(pk+4*hh,4)} offset:{off}")
            if n == int(optval("sig", "2")):
                A(f"s_mov_b64 exec, 1\nds_add_u32 v{vFLG+1}, v19\ns_mov_b64 exec, -1")
        stamp(A, 5)

def h_slot(i):
    return (0, i * 4096) if i < 8 else (1, (i - 8) * 4 * VST)

hXD, hWD, hRA, hGA, hGC, hEP = 224, 226, 227, 228, 229, 230
hWR, hXR, hGR, hGX, hBI, hT = 96, 128, 136, 152, 156, 160

def xstamp(A, lane):
    if asm.STAMPS:
        A(f"s_memtime s[80:81]\ns_waitcnt lgkmcnt(0)\nv_writelane_b32 v252, s80, {lane}")

def dma_sub(A):
    A(f"""
    L_dma:
    s_lshl_b32 s74, s{sC}, 7
    s_add_u32 s75, s74, 16384
    s_mul_i32 s76, s{sC}, s97
    s_add_u32 s{sC}, s{sC}, 1
    s_and_b32 s{sC}, s{sC}, 7
    s_cmp_lg_u32 s{sTYPE}, 0
    s_cbranch_scc1 L_dma_ffn
    """)
    for ffn in (False, True):
        if ffn:
            A("L_dma_ffn:")
        imms = [c * 64 for c in range(7)] if ffn else [0, 64, 1024, 1088, 2048, 2112]
        ops = [("x", a) for a in range(4)] + [("w", c) for c in range(len(imms))]
        ops = [ops[0], ops[4], ops[5], ops[1], ops[6], ops[7], ops[2], ops[8], ops[9], ops[3]] + ops[10:]
        for k, j in ops:
            if k == "x":
                A(f"s_add_u32 m0, s92, {j*1024}\ns_nop 0\nbuffer_load_dwordx4 v{hXD + (j & 1)}, s[32:35], s{74 + (j >> 1)} offen lds")
            else:
                A(f"s_add_u32 m0, s93, {j*4096 - imms[j]}\ns_nop 0\nbuffer_load_dwordx4 v{hWD}, s[36:39], s76 offen offset:{imms[j]} lds")
        if not ffn:
            A("s_branch L_dma_adv")
    A(f"""
    L_dma_adv:
    s_add_u32 s95, s95, 1
    s_cmp_eq_u32 s95, 3
    s_cselect_b32 s95, 0, s95
    s_cselect_b32 s74, {-2*XST}, s98
    s_cselect_b32 s75, {-2*WST}, s99
    s_add_u32 s92, s92, s74
    s_add_u32 s93, s93, s75
    s_setpc_b64 s[100:101]
    """)

def h_all(A, f_setup):
    CALL = "s_call_b64 s[100:101], L_dma"
    if optval('prio', 'm') == 'h':
        A("s_setprio 3")
    A(f"""
    v_lshrrev_b32 v8, 3, v1
    s_lshl_b32 s74, s{sW4}, 5
    v_add_u32 v8, s74, v8
    v_lshlrev_b32 v8, 10, v8
    v_and_b32 v9, 7, v1
    v_lshrrev_b32 v10, 4, v1
    v_xor_b32 v9, v9, v10
    v_lshl_add_u32 v{hXD}, v9, 4, v8
    v_xor_b32 v9, 4, v9
    v_lshl_add_u32 v{hXD+1}, v9, 4, v8
    v_add_u32 v{hXD+1}, 0x2000, v{hXD+1}
    v_lshrrev_b32 v8, 2, v1
    s_lshl_b32 s74, s{sW4}, 4
    v_add_u32 v8, s74, v8
    v_and_b32 v9, 3, v1
    v_lshlrev_b32 v9, 4, v9
    s_mov_b32 s34, 0x20000
    s_mov_b32 s35, 0x00020000
    s_mov_b32 s39, 0x00020000
    s_lshl_b32 s75, s{sTBK}, 17
    s_lshl_b32 s92, s{sW4}, 12
    s_lshl_b32 s93, s{sW4}, 10
    s_add_u32 s93, s93, {WBASE}
    s_mov_b32 s95, 0
    s_mov_b32 s98, {XST}
    s_mov_b32 s99, {WST}
    s_lshl_b32 s96, s{sC}, 9
    s_lshl_b32 s94, s{sTYPE}, 3
    s_add_u32 s94, s94, s{sG}
    s_lshl_b32 s79, s94, 2
    s_add_u32 s79, s79, s{sW4}
    s_lshl_b32 s79, s79, 11
    s_movk_i32 s76, 3072
    s_movk_i32 s74, 128
    s_cmp_lg_u32 s{sTYPE}, 0
    s_cselect_b32 s76, 3584, s76
    s_cselect_b32 s74, 448, s74
    s_cselect_b32 s42, s76, 0
    s_mul_i32 s74, s74, s{sG}
    s_lshl_b32 s97, s76, 6
    s_lshl_b32 s38, s76, 9
    s_sub_u32 s38, s38, s74
    v_mul_lo_u32 v{hWD}, v8, s76
    v_add_u32 v{hWD}, v{hWD}, v9
    s_cmp_lg_u32 s{sTYPE}, 0
    s_waitcnt lgkmcnt(0)
    s_cselect_b32 s36, s12, s6
    s_cselect_b32 s37, s13, s7
    s_add_u32 s36, s36, s74
    s_addc_u32 s37, s37, 0
    s_mov_b32 s28, s24
    s_mov_b32 s29, s25
    s_add_u32 s32, s4, s75
    s_addc_u32 s33, s5, 0
    buffer_load_dwordx4 {vr(hXR,4)}, v3, s[32:35], s79 offen
    buffer_load_dwordx4 {vr(hXR+4,4)}, v3, s[32:35], s79 offen offset:1024
    buffer_load_dwordx2 v[{hEP}:{hEP+1}], v4, s[28:31], s3 offen sc1
    {CALL}
    """)
    xstamp(A, 8)
    lanepart_tr(A, hRA, 8)
    A(f"""
    s_lshl_b32 s74, s{sW4}, 12
    s_add_u32 s75, s74, {WBASE}
    v_add_u32 v{hRA}, s75, v{hRA}
    s_lshl_b32 s75, s94, 1
    s_lshr_b32 s76, s{sTBK}, 3
    s_add_u32 s75, s75, s76
    s_lshl_b32 s75, s75, 14
    s_add_u32 s75, s75, s74
    s_add_u32 s75, s75, {WS_CG}
    v_lshl_add_u32 v{hGC}, v1, 3, s75
    s_lshl_b32 s74, s{sTBK}, 2
    s_add_u32 s74, s74, s{sW4}
    s_lshl_b32 s74, s74, 9
    s_add_u32 s74, s74, {WS_XG}
    v_lshl_add_u32 v{hGA}, v2, 4, s74
    v_mov_b32 v8, {CTL}
    v_lshl_add_u32 v8, v2, 2, v8
    v_mov_b32 v9, 4
    v_cmp_eq_u32 vcc, 8, v2
    s_mov_b32 s40, s14
    s_mov_b32 s41, s15
    v_cndmask_b32 v9, 0, v9, vcc
    ds_write_b32 v8, v9
    s_mov_b32 s43, 0x00020000
    s_mov_b32 s3, 0xffff0000
    s_lshr_b32 s79, s79, 6
    s_lshl_b32 s74, s{sTBK}, 11
    s_add_u32 s79, s79, s74
    s_add_u32 s79, s79, {WS_XG}
    """)
    f_setup(A)
    A.region("h")
    S0, Q0, S1, Q1, t0, t1, t2 = hT, hT + 1, hT + 2, hT + 3, hT + 4, hT + 5, hT + 6
    A("s_waitcnt vmcnt(10)")
    xstamp(A, 9)
    for row, (s_, q_) in enumerate(((S0, Q0), (S1, Q1))):
        for r in range(4):
            x = hXR + 4 * row + r
            A(f"v_lshlrev_b32 v{t0}, 16, v{x}\nv_and_b32 v{t1}, s3, v{x}")
            if r == 0:
                A(f"v_add_f32 v{s_}, v{t0}, v{t1}\nv_mul_f32 v{q_}, v{t0}, v{t0}\nv_fmac_f32 v{q_}, v{t1}, v{t1}")
            else:
                A(f"v_add_f32 v{s_}, v{s_}, v{t0}\nv_fmac_f32 v{q_}, v{t0}, v{t0}\nv_add_f32 v{s_}, v{s_}, v{t1}\nv_fmac_f32 v{q_}, v{t1}, v{t1}")
    A(f"""
    v_add_u32 v{hEP}, 1, v{hEP}
    v_add_u32 v{hEP+1}, 1, v{hEP+1}
    v_permlane32_swap_b32 v{S0}, v{S1}
    v_permlane32_swap_b32 v{Q0}, v{Q1}
    v_bfe_u32 v{t2}, v1, 4, 1
    v_add_f32 v{S0}, v{S0}, v{S1}
    v_add_f32 v{Q0}, v{Q0}, v{Q1}
    v_cmp_eq_u32 vcc, 1, v{t2}
    v_lshrrev_b32 v{t2}, 4, v1
    v_permlane16_swap_b32 v{S0}, v{Q0}
    v_readfirstlane_b32 s26, v{hEP}
    v_readfirstlane_b32 s27, v{hEP+1}
    v_add_f32 v{t0}, v{S0}, v{Q0}
    v_cndmask_b32 v{t1}, v{hEP}, v{hEP+1}, vcc
    v_lshlrev_b32 v{t2}, 3, v{t2}
    """)
    for sh in (8, 4, 2, 1):
        A(f"v_add_f32_dpp v{t0}, v{t0}, v{t0} row_ror:{sh} row_mask:0xf bank_mask:0xf\ns_nop 1")
    A(f"""
    s_mov_b32 exec_lo, 0x00010001
    s_mov_b32 exec_hi, 0x00010001
    buffer_store_dwordx2 v[{t0}:{t1}], v{t2}, s[28:31], s79 offen sc1
    s_mov_b64 exec, -1
    v_cmp_eq_u32 vcc, 1, v7
    {CALL}
    v_cndmask_b32 v{hEP}, v{hEP}, v{hEP+1}, vcc
    """)
    nb = [0]
    def bar(n):
        A(f"s_waitcnt vmcnt({n})\ns_barrier")
        if nb[0] >= 1:
            xstamp(A, 8 - nb[0])
        nb[0] += 1
    stamp(A, 2)
    bar(11)
    stamp(A, 3)
    for half in range(2):
        for ks in range(4):
            o = half * 16384 + ks * 1024
            A(f"ds_read_b64_tr_b16 {vr(hWR+16*half+4*ks,2)}, v{hRA} offset:{o}\nds_read_b64_tr_b16 {vr(hWR+16*half+4*ks+2,2)}, v{hRA} offset:{o+256}")
        if half == 0:
            A("s_waitcnt lgkmcnt(4)")
    A(CALL)
    C0, C1 = hT, hT + 2
    def colsum(base, c):
        for r in range(16):
            if r == 0:
                A(f"v_lshlrev_b32 v{c}, 16, v{base}\nv_and_b32 v{c+1}, s3, v{base}")
            else:
                A(f"v_lshlrev_b32 v{t0}, 16, v{base+r}\nv_and_b32 v{t1}, s3, v{base+r}\nv_add_f32 v{c}, v{c}, v{t0}\nv_add_f32 v{c+1}, v{c+1}, v{t1}")
        A(f"v_add_f32 v{c}, v{c}, v{c+1}")
    A("s_waitcnt lgkmcnt(0)")
    colsum(hWR, C0)
    bar(10)
    A(CALL)
    colsum(hWR + 16, C1)
    A(f"""
    v_mov_b32 v{C0+1}, v{hEP}
    s_nop 0
    v_permlane32_swap_b32 v{C0}, v{C1}
    s_nop 0
    v_add_f32 v{C0}, v{C0}, v{C1}
    buffer_store_dwordx2 v[{C0}:{C0+1}], v{hGC}, s[28:31], s96 offen sc1
    """)
    def gather(lo=0, hi=9):
        for c in range(lo, min(hi, 8)):
            A(f"buffer_load_dwordx2 {vr(hGR+2*c,2)}, v{hGC}, s[28:31], 0 offen offset:{c*512} sc1")
        if hi == 9:
            A(f"buffer_load_dwordx4 {vr(hGX,4)}, v{hGA}, s[28:31], 0 offen sc1")
    bar(11)
    A(CALL)
    bar(10)
    A(CALL)
    gather(8, 9)
    A(f"""
    s_mul_i32 s74, s{sG}, 448
    s_lshl_b32 s75, s{sW4}, 6
    s_add_u32 s74, s74, s75
    v_lshlrev_b32 v{t0}, 1, v2
    v_lshl_add_u32 v{t0}, v7, 8, v{t0}
    buffer_load_ushort v{hBI}, v{t0}, s[40:43], s74 offen
    """)
    bar(12)
    A(CALL)
    gather(0, 4)
    bar(16)
    A(CALL)
    gather(4, 8)
    bar(18)
    bar(4)
    A("s_waitcnt vmcnt(0)")
    A(f"""
    s_mov_b32 s79, 0x4000
    L_h_chk:
    v_xor_b32 v{hGX+1}, s26, v{hGX+1}
    v_xor_b32 v{hGX+3}, s27, v{hGX+3}
    v_or_b32 v{t0}, v{hGX+1}, v{hGX+3}
    """)
    for c in range(8):
        A(f"v_xor_b32 v{hGR+2*c+1}, v{hEP}, v{hGR+2*c+1}")
    for c in range(0, 8, 2):
        A(f"v_or3_b32 v{t0}, v{t0}, v{hGR+2*c+1}, v{hGR+2*c+3}")
    A(f"""
    v_cmp_ne_u32 vcc, 0, v{t0}
    s_sub_u32 s79, s79, 1
    s_cmp_eq_u32 s79, 0
    s_cbranch_scc1 L_h_got
    s_cbranch_vccz L_h_got
    """)
    gather()
    A("s_waitcnt vmcnt(0)\ns_branch L_h_chk\nL_h_got:")
    a, b, r_, h_, X0, A0 = hWR, hWR + 1, hWR + 2, hWR + 3, hWR + 4, hWR + 6
    c = hGR
    A(f"""
    s_mov_b32 s74, {f32bits(1.0/512)}
    v_mul_f32 v{a}, s74, v{hGX}
    v_mul_f32 v{b}, s74, v{hGX+2}
    v_add_f32 v{c}, v{c}, v{c+2}
    v_fma_f32 v{b}, -v{a}, v{a}, v{b}
    v_add_f32 v{c+4}, v{c+4}, v{c+6}
    v_max_f32 v{b}, 0, v{b}
    v_add_f32 v{c+8}, v{c+8}, v{c+10}
    v_cvt_pk_bf16_f32 v{b}, v{b}, v{b}
    v_add_f32 v{c+12}, v{c+12}, v{c+14}
    v_and_b32 v{b}, s3, v{b}
    v_add_f32 v{c}, v{c}, v{c+4}
    v_add_f32 v{b}, {f32bits(1e-5)}, v{b}
    v_add_f32 v{c+8}, v{c+8}, v{c+12}
    v_cvt_pk_bf16_f32 v{b}, v{b}, v{b}
    v_add_f32 v{c}, v{c}, v{c+8}
    v_and_b32 v{b}, s3, v{b}
    v_sqrt_f32 v{b}, v{b}
    v_mul_f32 v{a}, -0.5, v{a}
    v_and_b32 v{c+1}, s3, v{c}
    v_cvt_pk_bf16_f32 v{b}, v{b}, v{b}
    v_sub_f32 v{c}, v{c}, v{c+1}
    v_and_b32 v{b}, s3, v{b}
    v_and_b32 v{c+2}, s3, v{c}
    v_rcp_f32 v{r_}, v{b}
    v_mul_f32 v{h_}, 0.5, v{b}
    v_sub_f32 v{c}, v{c}, v{c+2}
    v_cvt_pk_bf16_f32 v{X0}, v{a}, v{a}
    v_cvt_pk_bf16_f32 v{X0+1}, v{a}, v{h_}
    v_cvt_pk_bf16_f32 v{c+4}, v{c+1}, v{c+2}
    v_lshlrev_b32 v{hBI}, 16, v{hBI}
    v_cvt_pk_bf16_f32 v{c+5}, v{c}, v{hBI}
    s_lshl_b32 s74, s{sW4}, 8
    v_lshl_add_u32 v{A0}, v2, 3, s74
    v_lshrrev_b32 v{A0+1}, 1, v{A0}
    v_add_u32 v{A0}, {T_XP}, v{A0}
    v_add_u32 v{A0+1}, {T_RS}, v{A0+1}
    v_lshl_add_u32 v{A0+2}, v7, 10, v{A0}
    ds_write_b64 v{A0}, {vr(X0,2)}
    ds_write_b32 v{A0+1}, v{r_}
    ds_write_b32 v{A0+1}, v{b} offset:512
    ds_write_b64 v{A0+2}, {vr(c+4,2)} offset:{T_WP - T_XP}
    """)
    A("s_waitcnt lgkmcnt(0)")
    bar(0)
```

```python
from asm import *
from mega1 import *
import asm

vL16, vK, vVa, vVb, vVg, vCNT, vQA, vCQ, vONE = 3, 244, 245, 246, 247, 248, 249, 18, 19
XB = 8
Q2 = [20, 24]
KB = [28, 32]
VA = 36
VB = [40, 44]
P = 48
T0, T1, T2, T3 = 56, 57, 58, 59
C = [64, 80]
O = [96, 112]
S = [128, 144]

def ex(s, i): return f"v_exp_f32 v{s+i}, v{s+i}"
def cv(s, i): return f"v_cvt_pk_bf16_f32 v{P+i}, v{s+2*i}, v{s+2*i+1}"

def rowmax(A, src, dst):
    A(f"v_max3_f32 v{dst}, v{src}, v{src+1}, v{src+2}")
    for i in range(3, 15, 2):
        A(f"v_max3_f32 v{dst}, v{dst}, v{src+i}, v{src+i+1}")
    A(f"""
    v_max_f32 v{dst}, v{dst}, v{src+15}
    v_mov_b32 v{T1}, v{dst}
    s_nop 1
    v_permlane32_swap_b32 v{dst}, v{T1}
    s_nop 1
    v_max_f32 v{dst}, v{dst}, v{T1}
    """)

QS = 1088
SRC = 16 * QS
def out_setup(A):
    A(f"""
    s_lshl_b32 s74, s{sTB2}, 3
    s_add_u32 s74, s74, s{sWAVE}
    s_lshl_b32 s74, s74, 13
    v_lshrrev_b32 v5, 3, v1
    v_lshlrev_b32 v5, 10, v5
    v_and_b32 v6, 7, v1
    s_lshl_b32 s75, s{sNB}, 7
    v_lshl_add_u32 v6, v6, 4, s75
    v_add3_u32 v5, v5, v6, s74
    s_mov_b32 s56, s18
    s_mov_b32 s57, s19
    s_mov_b32 s58, 1024
    s_mov_b32 s59, 0x00020000
    s_mov_b32 s60, s20
    s_mov_b32 s61, s21
    s_mov_b32 s62, 0x200000
    s_mov_b32 s63, 0x00020000
    """)

def kv_srds(A):
    A(f"""
    s_lshl_b32 s74, s{sHEAD}, 16
    s_add_u32 s75, s74, {WS_K}
    s_add_u32 s84, s24, s75
    s_addc_u32 s85, s25, 0
    s_mov_b32 s86, 0x10000
    s_mov_b32 s87, 0x00020000
    s_add_u32 s75, s74, {WS_V}
    s_add_u32 s88, s24, s75
    s_addc_u32 s89, s25, 0
    s_mov_b32 s90, 0x10000
    s_mov_b32 s91, 0x00020000
    """)

XB_LOADS = [f"buffer_load_dwordx4 v[{XB}:{XB+3}], v5, s[52:55], 0 offen",
            f"buffer_load_dwordx4 v[{XB+4}:{XB+7}], v6, s[56:59], 0 offen"]

def a_setup(A):
    A(f"""
    v_and_b32 v{vVg}, 15, v1
    v_lshlrev_b32 v{vVg}, 4, v{vVg}
    v_lshl_add_u32 v{vVg}, v7, 8, v{vVg}
    v_and_b32 v{T0}, 16, v1
    v_cmp_eq_u32 vcc, 0, v{T0}
    v_and_b32 v{T1}, 11, v1
    v_cmp_ne_u32 s[74:75], 0, v{T1}
    v_add_u32 v{vVa}, {LDS_V}, v{vVg}
    v_add_u32 v{vVb}, {LDS_V+512}, v{vVg}
    v_mov_b32 v{T0}, {LDS_V+1024}
    v_mov_b32 v{T1}, {LDS_V+1040}
    v_cndmask_b32 v{T0}, v{T0}, v{T1}, s[74:75]
    v_cndmask_b32 v{vVa}, v{T0}, v{vVa}, vcc
    v_cndmask_b32 v{vVb}, v{T0}, v{vVb}, vcc
    v_mov_b32 v{vK}, v{vL16}
    v_mov_b32 v{vCNT}, {C_KV}
    s_lshl_b32 s74, s{sW4}, 11
    s_add_u32 s74, s74, {QA}
    v_add_u32 v{vQA}, s74, v{vL16}
    s_lshl_b32 s74, s{sW4}, 2
    s_add_u32 s74, s74, {C_Q}
    v_mov_b32 v{vCQ}, s74
    v_mov_b32 v{vONE}, 1
    """)
    out_setup(A)

def spread(st):
    out = [None] * 14
    for i, x in enumerate(st):
        out[i * 14 // len(st)] = x
    return out

def gen_a(A, spi=8):
    A("L_a:")
    A.region("a")
    for i in range(0, 32, 2):
        A(f"v_mov_b64 {vr(O[0]+i,2)}, 0")
    for i in range(0, 4, 2):
        A(f"v_mov_b64 {vr(P+4+i,2)}, 0\nv_mov_b64 {vr(VB[1]+i,2)}, 0")
    A(f"""
    L_a_wait0:
    ds_read_b32 v{T3}, v{vCNT}
    s_waitcnt lgkmcnt(0)
    v_readfirstlane_b32 s74, v{T3}
    s_cmp_lg_u32 s74, 4
    s_cbranch_scc1 L_a_wait0
    """)
    stamp(A, 6)
    A(f"""
    ds_read_b128 {vr(KB[0],4)}, v{vK}
    ds_read_b128 {vr(Q2[0],4)}, v{vQA}
    ds_read_b128 {vr(Q2[1],4)}, v{vQA} offset:1024
    ds_read_b128 {vr(KB[1],4)}, v{vK} offset:1024
    ds_read_b128 {vr(VA,4)}, v{vVa}
    ds_read_b128 {vr(VB[0],4)}, v{vVb}
    s_waitcnt lgkmcnt(3)
    {mfma(S[0], KB[0], Q2[0], "0")}
    {mfma(S[1], KB[0], Q2[1], "0")}
    ds_write_b32 v{vCQ}, v{vONE}
    s_nop 10
    """)
    for q in range(2):
        rowmax(A, S[q], T0)
        A(f"v_sub_f32 v{C[q]}, 0, v{T0}\nv_sub_f32 v{C[q]+1}, 0, v{T0}")
        for i in range(2, 16, 2):
            A(f"v_mov_b64 {vr(C[q]+i,2)}, {vr(C[q],2)}")
        if q == 0:
            A(f"s_nop 1\n{mfma(S[0], KB[0], Q2[0], C[0])}")
    A(f"s_mov_b32 s11, {64 // spi}\ns_waitcnt lgkmcnt(0)")
    stamp(A, 7)
    def body(tag, extra):
        extra = list(extra)
        for t in range(spi):
            for h in range(2):
                cur, nxt = S[h], S[1 - h]
                kf = KB[t & 1] if h == 0 else KB[(t + 1) & 1]
                vb = VB[(t + 1) & 1] if h == 0 else VB[t & 1]
                m1 = m2 = m3 = pre3 = ""
                if h == 0:
                    m2 = "s_waitcnt lgkmcnt(0)"
                    m3 = f"ds_read_b128 {vr(KB[t & 1],4)}, v{vK} offset:{(t+2)*1024}"
                    if t == 6:
                        pre3 = f"v_readfirstlane_b32 s74, v{T3}"
                        m3 = f"s_cmp_lg_u32 s74, 4\ns_cbranch_scc1 L_a_spin{tag}\nL_a_spun{tag}:\n" + m3
                else:
                    if t == 5:
                        m1 = f"ds_read_b32 v{T3}, v{vCNT} offset:4"
                    m2 = f"ds_read_b128 {vr(VB[(t+1) & 1],4)}, v{vVb} offset:{(t+1)*VST}"
                    m3 = f"ds_read_b128 {vr(VA,4)}, v{vVa} offset:{(t+1)*VST}"
                    if t == spi - 1:
                        m1 = "s_sub_u32 s11, s11, 1"
                if extra and not m1:
                    m1 = extra.pop(0) or ""
                A(f"""
                {mfma(nxt, kf, Q2[1-h], C[1-h])}
                {m1}
                {ex(cur,0)}
                {ex(cur,1)}
                {ex(cur,2)}
                {ex(cur,3)}
                {ex(cur,4)}
                {ex(cur,5)}
                {cv(cur,0)}
                {mfma(O[1-h], vb, P+4)}
                {m2}
                {cv(cur,1)}
                {ex(cur,6)}
                {ex(cur,7)}
                {cv(cur,2)}
                {cv(cur,3)}
                {ex(cur,8)}
                {pre3}
                {ex(cur,9)}
                {ex(cur,10)}
                {mfma(O[h], VA, P)}
                {m3}
                {ex(cur,11)}
                {cv(cur,4)}
                {ex(cur,12)}
                {cv(cur,5)}
                {ex(cur,13)}
                {ex(cur,14)}
                {ex(cur,15)}
                {cv(cur,6)}
                {cv(cur,7)}
                """)
        assert not extra
        A(f"""
        v_add_u32 v{vK}, {spi*1024}, v{vK}
        v_add_u32 v{vVa}, {spi*VST}, v{vVa}
        v_add_u32 v{vVb}, {spi*VST}, v{vVb}
        v_add_u32 v{vCNT}, 4, v{vCNT}
        """)
        if asm.STAMPS:
            A("s_memtime s[80:81]\ns_waitcnt lgkmcnt(0)\ns_mov_b32 m0, s11\ns_nop 0\nv_writelane_b32 v252, s80, m0")
    A(".p2align 6\nL_a_loop:")
    body("", [])
    A(f"""
    s_cmp_lg_u32 s11, 0
    s_cbranch_scc1 L_a_loop
    {mfma(O[1], VB[(spi-1) & 1], P+4)}
    """)
    stamp(A, 8)
    for x in XB_LOADS:
        A(x)
    A(f"s_nop 1\nv_add_f32 v{T0}, abs(v{O[0]}), abs(v{O[0]+1})")
    for i in range(2, 9):
        A(f"v_add_f32 v{T0}, v{T0}, abs(v{O[0]+i})")
    for i in range(0, 9):
        A(f"v_add_f32 v{T0}, v{T0}, abs(v{O[1]+i})")
    A(f"""
    v_mov_b32 v{T1}, 0x7f000000
    v_cmp_lt_f32 vcc, v{T0}, v{T1}
    s_nop 4
    s_cmp_eq_u64 vcc, -1
    s_cbranch_scc0 L_fallback
    L_a_fin:
    v_rcp_f32 v{T0}, v{O[0]+8}
    v_rcp_f32 v{T1}, v{O[1]+8}
    """)
    for q in range(2):
        for i in range(8):
            A(f"v_mul_f32 v{O[q]+i}, v{O[q]+i}, v{(T0,T1)[q]}")
        for i in range(4):
            A(f"v_cvt_pk_bf16_f32 v{P+4*q+i}, v{O[q]+2*i}, v{O[q]+2*i+1}")
        for i in range(4):
            A(f"v_min_u32 v{P+4*q+i}, -2, v{P+4*q+i}")
        A(f"buffer_store_dwordx4 {vr(P+4*q,4)}, v{vL16}, s[28:31], s{8+q} offen sc1")
    stamp(A, 9)
    A(f"""
    s_mov_b64 exec, 1
    ds_add_u32 v{vFLG+1}, v{vONE} offset:{C_D - C_H}
    s_mov_b64 exec, -1
    s_waitcnt vmcnt(2)
    s_branch L_final
    """)
    for tag in ("",):
        A(f"""
        L_a_spin{tag}:
        ds_read_b32 v{T3}, v{vCNT} offset:4
        s_waitcnt lgkmcnt(0)
        v_readfirstlane_b32 s74, v{T3}
        s_cmp_lg_u32 s74, 4
        s_cbranch_scc1 L_a_spin{tag}
        s_branch L_a_spun{tag}
        """)

FACC, HB, WF, FB, WO = 32, 96, 120, 96, 160

def poll(A, name, vaddr, sleep=4):
    A(f"""
    s_mov_b32 s79, 0x8000
    L_{name}:
    buffer_load_dwordx2 v[24:25], v{vaddr}, s[28:31], 0 offen sc1
    s_sub_u32 s79, s79, 1
    s_waitcnt vmcnt(0)
    v_xor_b32 v24, s26, v24
    v_xor_b32 v25, s27, v25
    v_or_b32 v24, v24, v25
    v_cmp_ne_u32 vcc, 0, v24
    s_cmp_eq_u32 s79, 0
    s_cbranch_scc1 L_{name}_done
    s_cbranch_vccz L_{name}_done
    s_sleep {sleep}
    s_branch L_{name}
    L_{name}_done:
    """)

def f_setup(A):
    kv_srds(A)
    out_setup(A)
    f = sW4
    A(f"""
    s_mov_b32 s52, s4
    s_mov_b32 s53, s5
    s_mov_b32 s54, 0x200000
    s_mov_b32 s55, 0x00020000
    s_lshl_b32 s74, s{sNB}, 7
    s_add_u32 s44, s16, s74
    s_addc_u32 s45, s17, 0
    s_sub_u32 s46, {1792*1024}, s74
    s_mov_b32 s47, 0x00020000
    s_add_u32 s48, s8, s74
    s_addc_u32 s49, s9, 0
    s_sub_u32 s50, {512*1024}, s74
    s_mov_b32 s51, 0x00020000
    v_mul_u32_u24 v16, {VST}, v1
    v_add_u32 v16, {LDS_V+1024}, v16
    v_mov_b32 v20, 0x3f803f80
    v_mov_b32 v21, v20
    v_mov_b32 v22, v20
    v_mov_b32 v23, v20
    v_mov_b32 v17, 1
    v_mov_b32 v19, {C_KV}
    s_lshr_b32 s74, s{sHEAD}, 1
    s_lshl_b32 s74, s74, 8
    s_add_u32 s74, s74, {WS_F2}
    v_lshl_add_u32 v18, v2, 3, s74
    v_add_u32 v31, {ACT_TB}, v3
    v_lshrrev_b32 v26, 3, v1
    v_bfe_u32 v27, v1, 4, 1
    v_lshlrev_b32 v27, 2, v27
    v_and_b32 v28, 7, v1
    v_xor_b32 v27, v27, v28
    v_lshlrev_b32 v26, 10, v26
    v_lshl_add_u32 v26, v27, 4, v26
    v_add_u32 v27, 0x2000, v26
    v_bfe_u32 v28, v1, 2, 2
    v_lshl_add_u32 v28, v7, 2, v28
    v_lshlrev_b32 v28, 7, v28
    v_bfe_u32 v29, v1, 3, 1
    v_lshl_add_u32 v28, v29, 6, v28
    v_bfe_u32 v29, v1, 4, 1
    v_lshl_add_u32 v28, v29, 5, v28
    v_and_b32 v29, 3, v1
    v_lshl_add_u32 v28, v29, 3, v28
    v_xor_b32 v29, 64, v28
    s_lshl_b32 s77, s{f}, 11
    s_add_u32 s77, s77, {QA}
    v_add_u32 v28, s77, v28
    v_add_u32 v29, s77, v29
    s_mul_i32 s12, s{f}, {28*16384}
    s_lshl_b32 s13, s{f}, 17
    s_mul_i32 s14, s{sTB2}, {2*ACT_TB}
    s_add_u32 s14, s14, {WS_ACT}
    s_lshl_b32 s74, s{f}, 13
    s_add_u32 s15, s14, s74
    s_mul_i32 s74, s{f}, {28*1024}
    s_add_u32 s14, s14, s74
    s_add_u32 s14, s14, {32*1024}
    s_lshl_b32 s10, s{f}, 10
    s_mul_i32 s11, s{f}, {VST}
    s_add_u32 s11, s11, {LDS_V}
    s_lshl_b32 s74, s{sQB}, 2
    s_add_u32 s74, s74, s{f}
    s_lshl_b32 s74, s74, 11
    s_lshl_b32 s75, s{sHEAD}, 16
    s_add_u32 s78, s74, s75
    """)
    for i in range(0, 64, 2):
        A(f"v_mov_b64 {vr(FACC+i,2)}, 0")

def gen_f(A):
    Q = VmQ(A)
    f = sW4
    A("L_f:")
    A.region("f")
    stamp(A, 4)
    A(f"ds_write_b128 v16, v[20:23]\nds_write_b128 v16, {vr(FACC,4)} offset:16")
    def wdma_half(step, srd, so, tag, half, inc=16384):
        sl = (step + 1) % 3
        A(f"s_add_u32 m0, s77, {sl*8192 + half*1024}\ns_nop 0")
        Q.issue(f"buffer_load_dwordx4 v{26+half}, s[{srd}:{srd+3}], s{so} offen lds", tag)
        if half:
            A(f"s_add_u32 s{so}, s{so}, {inc}")
    def wdma(step, srd, so, tag, inc=16384):
        wdma_half(step, srd, so, tag, 0, inc); wdma_half(step, srd, so, tag, 1, inc)
    def trread(step, dst, cb):
        sl = (step + 1) % 3
        A(f"ds_read_b64_tr_b16 {vr(dst,2)}, v{28+cb} offset:{sl*8192}")
        A(f"ds_read_b64_tr_b16 {vr(dst+2,2)}, v{28+cb} offset:{sl*8192+1024}")
    wdma(-9, 48, 13, "o0"); wdma(-8, 48, 13, "o1")
    A(f"""
    v_mov_b32 v30, {C_H}
    s_cmp_eq_u32 s{f}, 0
    s_cselect_b32 s75, 4, 5
    L_f_hw:
    ds_read_b32 v24, v30
    s_waitcnt lgkmcnt(0)
    v_readfirstlane_b32 s74, v24
    s_cmp_eq_u32 s74, s75
    s_cbranch_scc1 L_f_hw_done
    s_sleep 1
    s_branch L_f_hw
    L_f_hw_done:
    s_cmp_lg_u32 s{f}, 0
    s_cbranch_scc1 L_f_go
    """)
    poll(A, "f_p2", 18, int(optval("ps", "4")))
    A("""
    s_mov_b64 exec, 1
    ds_add_u32 v30, v17
    s_mov_b64 exec, -1
    L_f_go:
    """)
    stamp(A, 5)
    def kv_dma(i):
        A(f"s_mov_b32 m0, s10\ns_add_u32 s74, s11, {i*4*VST}")
        Q.issue("buffer_load_dwordx4 v3, s[84:87], s10 offen sc1 lds", i // 2)
        A("s_mov_b32 m0, s74\ns_nop 0")
        Q.issue("buffer_load_dwordx4 v3, s[88:91], s10 offen sc1 lds", i // 2)
        A("s_add_u32 s10, s10, 4096")
    def chunk_done(c):
        Q.wait(c)
        A(f"s_mov_b64 exec, 1\nds_add_u32 v19, v17 offset:{4*c}\ns_mov_b64 exec, -1")
    A("s_mov_b32 m0, s77\ns_nop 0")
    Q.issue("buffer_load_dwordx4 v3, s[28:31], s78 offen sc1 lds", 0)
    Q.issue("buffer_load_dwordx4 v3, s[28:31], s78 offen offset:1024 sc1 lds", 0)
    n0 = int(optval("n0", "3"))
    for i in range(n0):
        kv_dma(i)
    chunk_done(0)
    stamp(A, 6)
    for i in range(n0, 8):
        kv_dma(i)
    A(f"""
    v_mov_b32 v20, -1
    v_mov_b32 v21, -1
    v_mov_b32 v22, -1
    v_mov_b32 v23, -1
    s_lshl_b32 s74, s{sQB}, 2
    s_add_u32 s74, s74, s{f}
    s_mul_i32 s75, s74, {2*ACT_TB}
    s_lshl_b32 s76, s{sHEAD}, 10
    s_add_u32 s75, s75, s76
    s_add_u32 s75, s75, {WS_ACT}
    s_lshl_b32 s74, s74, 5
    s_add_u32 s74, s74, s{sHEAD}
    s_lshl_b32 s74, s74, 3
    s_add_u32 s74, s74, {WS_FR}
    v_mov_b32 v16, s74
    s_lshl_b32 s74, s{f}, 2
    s_add_u32 s74, s74, {C_Q}
    v_mov_b32 v30, s74
    """)
    for c in range(1, 4):
        chunk_done(c)
    Q.issue("buffer_store_dwordx4 v[20:23], v3, s[28:31], s75 offen sc1", 7)
    Q.issue("buffer_store_dwordx4 v[20:23], v31, s[28:31], s75 offen sc1", 7)
    A(f"""
    L_f_qw:
    ds_read_b32 v24, v30
    s_waitcnt lgkmcnt(0)
    v_readfirstlane_b32 s74, v24
    s_cmp_eq_u32 s74, 1
    s_cbranch_scc1 L_f_qw_done
    s_sleep 2
    s_branch L_f_qw
    L_f_qw_done:
    v_add_u32 v24, s10, v3
    s_add_u32 s74, s11, {32*VST}
    v_add_u32 v25, s74, v3
    """)
    for i in range(14):
        va, off = h_slot(i)
        A(f"ds_read_b128 {vr(HB+4*i,4)}, v{24+va} offset:{off}")
    A("s_waitcnt lgkmcnt(0)")
    for i in range(8, 16):
        kv_dma(i)
    A(f"""
    s_cmp_eq_u32 s{sTYPE}, 0
    s_cbranch_scc1 L_f_noh
    s_lshl_b32 s74, s{sTBK}, 2
    s_add_u32 s74, s74, s{f}
    s_xor_b32 s75, s74, 1
    s_mul_i32 s76, s{sG}, {7*2048}
    s_add_u32 s76, s76, {WS_ACT + 32*1024}
    s_mul_i32 s92, s74, {ACT_TB}
    s_add_u32 s92, s92, s76
    s_mul_i32 s93, s75, {ACT_TB}
    s_add_u32 s93, s93, s76
    s_add_u32 s94, s92, {6*2048}
    s_and_b32 s75, s{f}, 1
    s_mul_i32 s76, s75, 6144
    s_add_u32 s92, s92, s76
    s_add_u32 s93, s93, s76
    s_add_u32 s95, s92, 4096
    s_add_u32 s96, s93, 4096
    s_lshr_b32 s74, s74, 1
    s_lshl_b32 s74, s74, 3
    s_add_u32 s74, s74, s{sG}
    s_lshl_b32 s74, s74, 1
    s_add_u32 s74, s74, s75
    s_lshl_b32 s74, s74, 3
    s_add_u32 s74, s74, {WS_F3}
    v_writelane_b32 v16, s74, 1
    """)
    for n, (t, c) in enumerate([(t, c) for c in range(3) for t in range(2)] + [(0, 3)]):
        so, im = (94, 0) if c == 3 else ((92 + t, c * 2048) if c < 2 else (95 + t, 0))
        for hh in range(2):
            A(f"buffer_store_dwordx4 {vr(HB+8*n+4*hh,4)}, v3, s[28:31], s{so} offen offset:{im+hh*1024} sc1")
    A(f"""
    L_f_noh:
    v_mov_b32 v20, s26
    v_mov_b32 v21, s27
    s_mov_b32 s40, s22
    s_mov_b32 s41, s23
    s_mov_b32 s42, 256
    s_waitcnt vmcnt(0)
    s_mov_b64 exec, 3
    buffer_store_dwordx2 v[20:21], v16, s[28:31], 0 offen sc1
    s_mov_b64 exec, 1
    ds_add_u32 v19, v17 offset:16
    ds_add_u32 v19, v17 offset:20
    ds_add_u32 v19, v17 offset:24
    ds_add_u32 v19, v17 offset:28
    s_cmp_lg_u32 s{f}, 0
    s_cbranch_scc1 L_f_noat
    buffer_atomic_add v17, v4, s[40:43], 0 offen sc1
    L_f_noat:
    s_mov_b64 exec, -1
    s_lshl_b32 s74, s{sTB2}, 7
    s_lshl_b32 s75, s{f}, 5
    s_add_u32 s74, s74, s75
    s_add_u32 s74, s74, {WS_F3}
    v_and_b32 v18, 3, v1
    v_lshl_add_u32 v18, v18, 3, s74
    """)
    stamp(A, 7)
    Q.q = ["st"]
    wdma(-7, 48, 13, "o2")
    for k in range(8):
        Q.wait(f"o{k}")
        trread(k - 9, WO + 8 * k, 0); trread(k - 9, WO + 8 * k + 4, 1)
        A("s_waitcnt lgkmcnt(0)")
        if k + 3 < 8:
            wdma(k - 6, 48, 13, f"o{k+3}")
        elif k >= 6:
            wdma(k - 6, 44, 12, "w")
    wdma(2, 44, 12, "w")
    poll(A, "f_p3", 18, 8)
    Q.q = []
    def hload(step, t, tag):
        b = HB + 8 * (step % 3) + 4 * t
        Q.issue(f"buffer_load_dwordx4 {vr(b,4)}, v{(3,31)[t]}, s[28:31], s14 offen sc1", tag)
        if t == 1:
            A("s_add_u32 s14, s14, 1024")
    for s in range(3):
        hload(s, 0, s); hload(s, 1, s)
    Q.drain()
    stamp(A, 8)
    def fstep(s, nxt):
        h = HB + 8 * (s % 3)
        for n, (t, cb) in enumerate(((0, 0), (0, 1), (1, 0), (1, 1))):
            if n < 3 or not nxt:
                trread(s, WF + 4 * cb, cb)
                A("s_waitcnt lgkmcnt(0)")
            else:
                wdma(s + 3, 44, 12, s + 3)
            A(mfma(FACC + 32 * cb + 16 * t, WF + 4 * cb, h + 4 * t))
            if nxt and n in (1, 3):
                hload(s + 3, t, s + 3)
    A("s_mov_b32 s79, 8\nL_f_loop:")
    for s in range(3):
        A("s_waitcnt vmcnt(8)")
        fstep(s, True)
    A("s_sub_u32 s79, s79, 1\ns_cmp_lg_u32 s79, 0\ns_cbranch_scc1 L_f_loop")
    Q.q = [24]*4 + [25]*4 + [26]*4
    for s in range(24, 28):
        Q.wait(s)
        fstep(s, s == 24)
    for x in XB_LOADS:
        A(x)
    A(f"""
    s_lshl_b32 s74, s{sTB2}, 8
    s_lshl_b32 s75, s{f}, 6
    s_add_u32 s74, s74, s75
    s_add_u32 s74, s74, {WS_FR}
    v_and_b32 v18, 7, v1
    v_lshl_add_u32 v18, v18, 3, s74
    """)
    poll(A, "f_pr", 18, 8)
    A(f"""
    s_or_b32 s74, s2, s{f}
    s_cmp_lg_u32 s74, 0
    s_cbranch_scc1 L_f_noep
    s_mov_b32 s79, 0x8000
    L_f_ep:
    buffer_load_dword v24, v4, s[40:43], 0 offen sc1
    s_sub_u32 s79, s79, 1
    s_waitcnt vmcnt(0)
    v_readfirstlane_b32 s74, v24
    s_cmp_eq_u32 s79, 0
    s_cbranch_scc1 L_f_ep_done
    s_cmp_lg_u32 s74, 256
    s_cbranch_scc1 L_f_ep
    L_f_ep_done:
    s_mov_b32 s74, {WS_CTL}
    s_mov_b64 exec, 1
    buffer_store_dwordx2 v[20:21], v4, s[28:31], s74 offen sc1
    s_mov_b64 exec, -1
    L_f_noep:
    """)
    stamp(A, 9)
    A(f"""
    s_mul_i32 s74, s{f}, {SRC}
    v_add_u32 v16, s74, v3
    v_and_b32 v24, 7, v1
    v_lshlrev_b32 v24, 10, v24
    v_bfe_u32 v25, v1, 3, 1
    v_mul_u32_u24 v25, {ACT_TB}, v25
    v_add_u32 v30, v24, v25
    v_mov_b32 v19, {C_D}
    s_add_u32 s14, s15, 4096
    s_mov_b32 s79, 0x10000
    s_mov_b32 s78, 0
    """)
    stamp(A, 10)
    A(f"""
    s_mov_b32 s77, 0
    L_f_probe:
    buffer_load_dword v25, v30, s[28:31], s15 offen offset:1020 sc1
    s_sub_u32 s79, s79, 1
    s_cmp_eq_u32 s79, 0
    s_cselect_b32 s76, 0, -1
    s_cselect_b32 s79, 1, s79
    s_waitcnt vmcnt(0)
    v_cmp_eq_u32 vcc, -1, v25
    s_and_b32 s74, vcc_lo, s76
    s_mov_b32 s75, s78
    s_and_b32 s10, s74, 0x0f0f
    s_cselect_b32 s10, 1, 0
    s_or_b32 s75, s75, s10
    s_and_b32 s10, s74, 0xf0f0
    s_cselect_b32 s10, 2, 0
    s_or_b32 s75, s75, s10
    s_cmp_lg_u32 s75, 3
    s_cbranch_scc1 L_f_load
    s_sleep {optval("ts", "2")}
    s_branch L_f_probe
    L_f_load:
    """)
    for g in range(2):
        A(f"s_bitcmp1_b32 s75, {g}\ns_cbranch_scc1 L_f_nl{g}")
        for k in range(4*g, 4*g + 4):
            so, im = (15, k * 1024) if k < 4 else (14, (k - 4) * 1024)
            A(f"""
            buffer_load_dwordx4 {vr(FB+8*k,4)}, v3, s[28:31], s{so} offen offset:{im} sc1
            buffer_load_dwordx4 {vr(FB+8*k+4,4)}, v31, s[28:31], s{so} offen offset:{im} sc1
            """)
        A(f"L_f_nl{g}:")
    for g in range(2):
        b = FB + 32 * g
        A(f"s_bitcmp1_b32 s75, {g}\ns_cbranch_scc1 L_f_nc{g}")
        if g == 0:
            A("s_bitcmp1_b32 s75, 1\ns_cbranch_scc1 L_f_w0\ns_waitcnt vmcnt(8)\ns_branch L_f_w1\nL_f_w0:\ns_waitcnt vmcnt(0)\nL_f_w1:")
        else:
            A("s_waitcnt vmcnt(0)")
        A(f"v_max3_u32 v17, v{b}, v{b+1}, v{b+2}\nv_max3_u32 v18, v{b+3}, v{b+4}, v{b+5}")
        for r in range(6, 30, 4):
            A(f"v_max3_u32 v17, v17, v{b+r}, v{b+r+1}\nv_max3_u32 v18, v18, v{b+r+2}, v{b+r+3}")
        A(f"""
        v_max3_u32 v17, v17, v{b+30}, v{b+31}
        v_max_u32 v17, v17, v18
        v_and_b32 v17, s76, v17
        v_cmp_eq_u32 vcc, -1, v17
        s_cbranch_vccnz L_f_sk{g}
        s_bitset1_b32 s78, {g}
        L_f_nc{g}:
        s_cmp_lg_u32 s77, {g}
        s_cbranch_scc1 L_f_sk{g}
        s_bitcmp1_b32 s78, {g}
        s_cbranch_scc0 L_f_sk{g}
        s_mov_b32 s77, {g+1}
        """)
        if asm.STAMPS:
            A(f"s_memrealtime s[82:83]\ns_waitcnt lgkmcnt(0)\nv_writelane_b32 v255, s82, {g}\nv_writelane_b32 v255, s79, 8")
        for k in range(4*g, 4*g + 4):
            bb, w = FB + 8 * k, WO + 8 * k
            A(f"{mfma(FACC, w, bb)}\n{mfma(FACC+16, w, bb+4)}\n{mfma(FACC+32, w+4, bb)}\n{mfma(FACC+48, w+4, bb+4)}")
        A(f"L_f_sk{g}:")
    A("s_cmp_lg_u32 s77, 2\ns_cbranch_scc1 L_f_probe")
    A(f"""
    L_f_dw:
    ds_read_b32 v24, v19
    s_waitcnt lgkmcnt(0)
    v_readfirstlane_b32 s74, v24
    s_cmp_eq_u32 s74, 4
    s_cbranch_scc1 L_f_dw_done
    s_sleep 1
    s_branch L_f_dw
    L_f_dw_done:
    """)
    stamp(A, 11)
    A("s_nop 11")
    for q in range(16):
        A(f"ds_write_b128 v16, {vr(FACC+4*q,4)} offset:{q*QS}")
    A("s_nop 0")

def gen_final(A):
    R = 96
    A(f"""
    L_final:
    v_and_b32 v16, 3, v1
    v_bfe_u32 v17, v1, 2, 1
    v_lshl_add_u32 v16, v17, 3, v16
    v_mul_u32_u24 v16, {QS}, v16
    v_lshrrev_b32 v17, 3, v1
    v_lshl_add_u32 v16, v17, 4, v16
    s_lshr_b32 s74, s{sWAVE}, 2
    s_mul_i32 s74, s74, {4*QS}
    s_lshl_b32 s75, s{sW4}, 7
    s_add_u32 s74, s74, s75
    v_add_u32 v16, s74, v16
    s_mov_b32 s75, 0xffff0000
    """)
    for d in range(4):
        A(f"""
        v_lshlrev_b32 v{20+2*d}, 16, v{XB+d}
        v_and_b32 v{21+2*d}, s75, v{XB+d}
        v_lshlrev_b32 v28, 16, v{XB+4+d}
        v_and_b32 v29, s75, v{XB+4+d}
        v_add_f32 v{20+2*d}, v{20+2*d}, v28
        v_add_f32 v{21+2*d}, v{21+2*d}, v29
        """)
    A("s_waitcnt lgkmcnt(0)\ns_barrier")
    stamp(A, 12)
    for src in range(4):
        for g in range(2):
            A(f"ds_read_b128 {vr(R+8*src+4*g,4)}, v16 offset:{src*SRC + g*512}")
    for src in range(4):
        A(f"s_waitcnt lgkmcnt({6-2*src})")
        for i in range(0, 8, 2):
            A(f"v_pk_add_f32 {vr(20+i,2)}, {vr(20+i,2)}, {vr(R+8*src+i,2)}")
    for i in range(4):
        A(f"v_cvt_pk_bf16_f32 v{28+i}, v{20+2*i}, v{21+2*i}")
    A(f"buffer_store_dwordx4 v[28:31], v5, s[60:63], 0 offen {optval('ost', '')}")
    stamp(A, 13)
    if asm.STAMPS:
        A("s_waitcnt vmcnt(0)")
    stamp(A, 14); stamp(A, 15, True)
    stamp_flush(A, 0, 28, sWAVE)
    if asm.STAMPS:
        A("s_add_u32 s82, s82, 512\ns_mov_b64 exec, 0xffff\nbuffer_store_dword v252, v251, s[28:31], s82 offen\ns_add_u32 s83, s83, 512\nbuffer_store_dword v255, v251, s[28:31], s83 offen")
    if asm.STAMPS and 'dbgout' in OPT:
        A(f"""
        s_mov_b64 exec, -1
        s_mov_b32 s40, s22
        s_mov_b32 s41, s23
        s_mov_b32 s42, 256
        s_mov_b32 s43, 0x00020000
        v_readlane_b32 s74, v254, 0
        v_readlane_b32 s75, v254, 15
        s_not_b32 s74, s74
        v_mov_b32 v20, s74
        v_mov_b32 v21, s75
        s_mov_b64 exec, 1
        buffer_atomic_umax v20, v4, s[40:43], 0 offen offset:4 sc1
        buffer_atomic_umax v21, v4, s[40:43], 0 offen offset:8 sc1
        s_lshl_b32 s74, s{sWAVE}, 8
        s_or_b32 s74, s74, s2
        s_cmp_lg_u32 s74, {optval('dwg', '8')}
        s_cbranch_scc1 L_end
        s_mov_b64 exec, 0xfff8
        buffer_store_dword v254, v251, s[40:43], 0 offen
        """)
    A("L_end:\ns_endpgm")

def gen_fallback(A):
    A("L_fallback:\ns_waitcnt lgkmcnt(0)")
    kv_srds(A)
    A(f"""
    v_mov_b32 v{C[0]}, 0xff7fffff
    v_mov_b32 v{C[1]}, 0xff7fffff
    v_mov_b32 v{VA}, 0x3f803f80
    s_mov_b32 s12, 0x0000ffff
    s_mov_b32 s13, 0x0000ffff
    """)
    for i in range(1, 4):
        A(f"v_mov_b32 v{VA+i}, v{VA}")
    for i in range(4):
        A(f"v_mov_b32 v{VB[0]+i}, v{VA}")
    for q in range(2):
        for i in range(16):
            A(f"v_mov_b32 v{O[q]+i}, 0")
    A(f"""
    s_mov_b32 s11, 0
    L_fb_loop:
    buffer_load_dwordx4 {vr(KB[0],4)}, v{vL16}, s[84:87], s11 offen sc1
    s_mov_b64 exec, s[12:13]
    buffer_load_dwordx4 {vr(VA,4)}, v{vVg}, s[88:91], s11 offen sc1
    buffer_load_dwordx4 {vr(VB[0],4)}, v{vVg}, s[88:91], s11 offen offset:512 sc1
    s_mov_b64 exec, -1
    s_waitcnt vmcnt(0)
    """)
    for q in range(2):
        A(f"{mfma(S[0], KB[0], Q2[q], '0')}\ns_nop 15\ns_nop 3")
        rowmax(A, S[0], T0)
        A(f"""
        v_max_f32 v{T0}, v{T0}, v{C[q]}
        v_sub_f32 v{T2}, v{C[q]}, v{T0}
        v_exp_f32 v{T2}, v{T2}
        v_mov_b32 v{C[q]}, v{T0}
        """)
        for i in range(16):
            A(f"v_mul_f32 v{O[q]+i}, v{O[q]+i}, v{T2}")
        for i in range(16):
            A(f"v_sub_f32 v{S[0]+i}, v{S[0]+i}, v{T0}")
        for i in range(16):
            A(ex(S[0], i))
        A("s_nop 0")
        for i in range(8):
            A(cv(S[0], i))
        A(f"s_nop 1\n{mfma(O[q], VA, P)}\n{mfma(O[q], VB[0], P+4)}")
    A(f"""
    s_nop 15
    s_nop 3
    s_add_u32 s11, s11, 1024
    s_cmp_lt_u32 s11, 0x10000
    s_cbranch_scc1 L_fb_loop
    s_branch L_a_fin
    """)
```

```python
from asm import *
import asm, math, os
OPT = os.environ.get('MOPT', '').split(',')
def optval(k, d):
    for o in OPT:
        if o.startswith(k + "="):
            return o.split("=")[1]
    return d
LOG2E = math.log2(math.e)

XST, WBASE, WST = 16384, 49152, 28672
VST = 1056
LDS_V = 65536
QA = LDS_V + 66 * VST
CTL = QA + 3 * 8192
LDS_BYTES = 163840
C_KV, C_Q, C_H, C_D = CTL, CTL + 64, CTL + 96, CTL + 100
T_XP, T_RS, T_WP = CTL + 128, CTL + 128 + 1024, CTL + 128 + 2048
T_PART = QA

sWAVE, sW4, sTBK, sG, sTYPE, sHEAD, sQB, sTB2, sNB, sC = range(64, 74)
SRD_K, SRD_V = 84, 88

def prologue(A):
    A("s_cmp_ge_u32 s2, 256\ns_cbranch_scc1 L_end")
    stamp(A, 0, True); stamp(A, 1)
    A(f"""
    s_load_dwordx16 s[4:19], s[0:1], 0
    s_load_dwordx4 s[20:23], s[0:1], 64
    s_load_dwordx2 s[24:25], s[0:1], 80
    s_getpc_b64 s[44:45]
    L_pc:
    s_mov_b32 s46, L_code_end-L_pc
    s_mov_b32 s47, 0x00020000
    v_lshlrev_b32 v5, 6, v0
    buffer_load_dword v253, v5, s[44:47], 0 offen
    v_and_b32 v1, 63, v0
    v_lshrrev_b32 v2, 6, v0
    v_lshlrev_b32 v3, 4, v1
    v_readfirstlane_b32 s{sWAVE}, v2
    v_mov_b32 v4, 0
    s_and_b32 s74, s2, 7
    s_lshr_b32 s75, s2, 3
    s_and_b32 s{sQB}, s75, 7
    s_and_b32 s77, s74, 1
    s_lshl_b32 s77, s77, 3
    s_add_u32 s{sTBK}, s77, s{sQB}
    s_lshr_b32 s77, s75, 3
    s_lshr_b32 s{sTYPE}, s77, 1
    s_and_b32 s78, s77, 1
    s_and_b32 s{sG}, s74, 6
    s_add_u32 s{sG}, s{sG}, s78
    s_lshl_b32 s74, s74, 2
    s_add_u32 s{sHEAD}, s74, s77
    s_and_b32 s78, s75, 3
    s_add_u32 s{sTB2}, s74, s78
    s_lshr_b32 s{sNB}, s75, 2
    """)
    rot = optval("rot", "tbk")
    if rot == "grp":
        A(f"s_lshl_b32 s{sC}, s77, 1")
    elif rot == "tbk":
        A(f"s_mov_b32 s{sC}, s{sQB}")
    elif rot == "full":
        A(f"s_lshl_b32 s{sC}, s77, 1\ns_add_u32 s{sC}, s{sC}, s{sQB}\ns_and_b32 s{sC}, s{sC}, 7")
    elif rot == "mix":
        A(f"s_lshl_b32 s{sC}, s77, 1\ns_and_b32 s78, s{sQB}, 1\ns_add_u32 s{sC}, s{sC}, s78")
    else:
        A(f"s_mov_b32 s{sC}, 0")
    A(f"""
    s_and_b32 s{sW4}, s{sWAVE}, 3
    s_mov_b32 s30, {WS_BYTES}
    s_mov_b32 s31, 0x00020000
    s_mov_b32 s3, {WS_CTL}
    v_and_b32 v2, 31, v1
    v_lshrrev_b32 v7, 5, v1
    s_cmp_lt_u32 s{sWAVE}, 4
    s_cbranch_scc1 L_m
    """)

def lanepart_tr(A, dst, t1):
    A(f"""
    v_lshlrev_b32 v{dst}, 3, v7
    v_bfe_u32 v{t1}, v1, 2, 2
    v_add_u32 v{dst}, v{dst}, v{t1}
    v_lshlrev_b32 v{dst}, 6, v{dst}
    v_bfe_u32 v{t1}, v1, 4, 1
    v_lshl_add_u32 v{dst}, v{t1}, 5, v{dst}
    v_and_b32 v{t1}, 3, v1
    v_lshl_add_u32 v{dst}, v{t1}, 3, v{dst}
    """)

XA0, XA1, WAa, WAb = 8, 12, 16, 17
FS = [20, 44]
ACC = 68
XPF, WPF, RS, SD, RT = 180, 188, 204, 206, 208
HP = 180
vFLG, vTAG = 240, 242
sP, sE, sT0, sT1 = 4, 5, 6, 7

def m_common(A, a_setup):
    A(f"""
    L_m:
    s_mov_b32 s54, 0x200000
    s_mov_b32 s55, 0x00020000
    v_bfe_u32 v24, v1, 1, 3
    v_xor_b32 v24, v24, v7
    v_lshlrev_b32 v{XA0}, 7, v2
    v_lshl_add_u32 v{XA0}, v24, 4, v{XA0}
    s_lshl_b32 s74, s{sW4}, 12
    v_add_u32 v{XA0}, s74, v{XA0}
    s_waitcnt lgkmcnt(0)
    s_mov_b32 s28, s24
    s_mov_b32 s29, s25
    s_mov_b32 s52, s4
    s_mov_b32 s53, s5
    buffer_load_dwordx2 v[{vTAG}:{vTAG+1}], v4, s[28:31], s3 offen sc1
    """)
    A("s_mov_b32 s48, s8\ns_mov_b32 s49, s9")
    A(f"""
    s_lshl_b32 s74, s{sQB}, 3
    s_lshl_b32 s75, s{sW4}, 1
    s_add_u32 s74, s74, s75
    s_mul_i32 s8, s74, {ACT_TB}
    s_lshl_b32 s75, s{sHEAD}, 10
    s_add_u32 s8, s8, s75
    s_add_u32 s8, s8, {WS_ACT}
    s_add_u32 s9, s8, {ACT_TB}
    s_lshr_b32 s{sP}, s{sW4}, 1
    s_and_b32 s{sE}, s{sW4}, 1
    s_lshl_b32 s74, s{sTBK}, 2
    s_add_u32 s{sT0}, s74, s{sW4}
    s_xor_b32 s{sT1}, s{sT0}, 1
    """)
    for ks in range(1, 4):
        A(f"v_xor_b32 v{XA0+ks}, {ks << 5}, v{XA0}")
    for ks in range(4):
        A(f"v_xor_b32 v{XA1+ks}, 0x1000, v{XA0+ks}")
    lanepart_tr(A, WAb, 24)
    for i in range(0, 112, 2):
        A(f"v_mov_b64 {vr(ACC+i,2)}, 0")
    for i in range(6):
        A(f"v_mov_b64 {vr(XPF+4*i+2,2)}, 0")
    a_setup(A)
    A(f"""
    s_waitcnt vmcnt(0)
    s_cmp_lt_u32 s2, {optval('tw', '224')}
    s_cbranch_scc1 L_m_nt
    s_cmp_lg_u32 s{sW4}, 0
    s_cbranch_scc1 L_m_nt
    v_lshlrev_b32 v24, {optval('tsh', '20')}, v1
    buffer_load_dword v253, v24, s[28:31], 0 offen
    global_load_dword v253, v4, s[48:49]
    global_load_dword v253, v4, s[14:15]
    global_load_dword v253, v4, s[16:17]
    global_load_dword v253, v4, s[18:19]
    global_load_dword v253, v4, s[20:21]
    global_load_dword v253, v4, s[22:23]
    L_m_nt:
    """)
    if 'notour' not in OPT:
        A(f"""
        s_lshl_b32 s74, s{sW4}, 1
        s_add_u32 s74, s74, s{sTYPE}
        s_mov_b64 exec, 0
        s_cmp_eq_u32 s74, 0
        s_cbranch_scc1 TOUR_mq
        s_cmp_eq_u32 s74, 1
        s_cbranch_scc1 TOUR_mf
        s_cmp_lt_u32 s74, 4
        s_cbranch_scc1 TOUR_h
        s_cmp_lt_u32 s74, 6
        s_cbranch_scc1 TOUR_a
        s_branch TOUR_f
        L_tour_ret:
        s_mov_b64 exec, -1
        """)
    else:
        A("L_tour_ret:")
    stamp(A, 11)
    A(f"""
    s_mov_b32 s10, 0
    s_mov_b32 s11, 8
    s_mov_b32 s14, {XST}
    s_mov_b32 s15, {WST}
    v_add_u32 v{vTAG}, 1, v{vTAG}
    v_add_u32 v{vTAG+1}, 1, v{vTAG+1}
    {'s_setprio 3' if optval('prio', 'm') == 'm' else 's_nop 0'}
    s_cmp_lg_u32 s{sTYPE}, 0
    s_cbranch_scc1 L_m_ffn
    """)

def m_path(A, ffn):
    nm = "ffn" if ffn else "qkv"
    ncb = 4 if ffn else 3
    def xf(s, t): return FS[s] + 4 * t
    def wf(s, c): return FS[s] + 8 + 4 * c
    blocks = [(t, c) for c in range(3) for t in range(2)] + ([(0, 3)] if ffn else [])
    def acc(i): return ACC + 16 * i
    A(f"L_m_{nm}:")
    A.region("mf" if ffn else "mq")
    if ffn:
        A(f"""
        s_mul_i32 s74, s{sE}, 12288
        s_add_u32 s74, s74, {WBASE}
        v_add_u32 v{WAa}, s74, v{WAb}
        v_add_u32 v{WAb}, {WBASE + 6*4096}, v{WAb}
        """)
    else:
        A(f"""
        s_lshl_b32 s74, s{sE}, 12
        s_add_u32 s74, s74, {WBASE}
        v_add_u32 v{WAa}, s74, v{WAb}
        s_lshl_b32 s74, s{sG}, 1
        s_add_u32 s74, s74, s{sE}
        s_lshl_b32 s74, s74, 4
        s_add_u32 s74, s74, s{sTBK}
        s_lshl_b32 s74, s74, 1
        s_add_u32 s74, s74, s{sP}
        s_lshl_b32 s74, s74, 3
        s_add_u32 s74, s74, {WS_F2}
        """)
    A(f"v_mov_b32 v{vFLG}, s74\nv_mov_b32 v{vFLG+1}, {C_H}")
    cbs = 4096 if ffn else 8192
    def reads(ks, s):
        o = [f"ds_read_b128 {vr(xf(s,0),4)}, v{XA0+ks}", f"ds_read_b128 {vr(xf(s,1),4)}, v{XA1+ks}"]
        w = []
        for c in range(ncb):
            a, off = (WAb, ks * 1024) if c == 3 else (WAa, c * cbs + ks * 1024)
            w.append([f"ds_read_b64_tr_b16 {vr(wf(s,c),2)}, v{a} offset:{off}",
                      f"ds_read_b64_tr_b16 {vr(wf(s,c)+2,2)}, v{a} offset:{off+256}"])
        return [o[0]] + w[0] + [o[1]] + [x for p in w[1:] for x in p]
    def mm(i, xr, wr):
        t, c = blocks[i]
        if (not ffn) and c == 2:
            return mfma(acc(i), xr(t), wr(c))
        return mfma(acc(i), wr(c), xr(t))
    def kstep(s, fill, first=0, per=3):
        k = 0
        for i in range(first, len(blocks)):
            A(mm(i, lambda t: xf(s, t), lambda c: wf(s, c)))
            for x in fill[k:k+per]:
                A(x)
            k += per
        for x in fill[k:]:
            A(x)
    stamp(A, 2)
    A("s_barrier")
    stamp(A, 3)
    for r in reads(0, 0):
        A(r)
    A(f".p2align 6\nL_m_{nm}_loop:")
    for ks in range(3):
        s = ks & 1
        A("s_waitcnt lgkmcnt(0)")
        fill = reads(ks + 1, 1 - s)
        if ks == 0:
            fill = fill + ["s_add_u32 s10, s10, 1", "s_cmp_eq_u32 s10, 3", f"s_cselect_b32 s12, {-2*XST}, s14", f"s_cselect_b32 s13, {-2*WST}, s15", "s_cselect_b32 s10, 0, s10"]
        if ks == 2:
            fill = fill + ["s_sub_u32 s11, s11, 1", "s_cmp_eq_u32 s11, 0"]
        kstep(s, fill)
    A("s_waitcnt lgkmcnt(0)")
    A(mm(0, lambda t: xf(1, t), lambda c: wf(1, c)))
    A(f"s_barrier\ns_cbranch_scc1 L_m_{nm}_last")
    upd = [f"v_add_u32 v{XA0}, s12, v{XA0}", f"v_add_u32 v{WAa}, s13, v{WAa}", f"v_add_u32 v{XA1}, s12, v{XA1}"]
    if ffn:
        upd.append(f"v_add_u32 v{WAb}, s13, v{WAb}")
    for x in upd:
        A(x)
    upd2 = [f"v_add_u32 v{b+k}, s12, v{b+k}" for k in range(1, 4) for b in (XA0, XA1)]
    kstep(1, reads(0, 0) + upd2, first=1)
    A(f"s_branch L_m_{nm}_loop\nL_m_{nm}_last:")
    fill = f"""
    s_lshl_b32 s74, s{sW4}, 8
    v_lshl_add_u32 v{XA0}, v2, 3, s74
    v_xor_b32 v{XA0+1}, 0x100, v{XA0}
    v_lshrrev_b32 v{XA0+2}, 1, v{XA0}
    v_lshrrev_b32 v{XA0+3}, 1, v{XA0+1}
    s_mul_i32 s74, s{sE}, {768 if ffn else 256}
    v_lshl_add_u32 v{XA1}, v2, 3, s74
    v_add_u32 v{XA0}, {T_XP}, v{XA0}
    v_add_u32 v{XA0+1}, {T_XP}, v{XA0+1}
    v_add_u32 v{XA0+2}, {T_RS}, v{XA0+2}
    v_add_u32 v{XA0+3}, {T_RS}, v{XA0+3}
    v_add_u32 v{XA1}, {T_WP}, v{XA1}
    """
    if ffn:
        fill += f"""
        v_lshlrev_b32 v{XA1+1}, 3, v2
        v_add_u32 v{XA1+1}, {T_WP + 6*256}, v{XA1+1}
        s_lshl_b32 s74, s{sW4}, 10
        s_add_u32 s74, s74, 32768
        v_add_u32 v{WAa}, s74, v3
        s_mul_i32 s74, s{sW4}, {VST}
        s_add_u32 s74, s74, {LDS_V + 32*VST}
        v_add_u32 v{WAb}, s74, v3
        """
    else:
        fill += f"""
        s_lshl_b32 s74, s{sW4}, 7
        v_lshl_add_u32 v{XA1+2}, v7, 4, s74
        v_xor_b32 v{XA1+3}, 0x80, v{XA1+2}
        v_add_u32 v{XA1+2}, {T_RS}, v{XA1+2}
        v_add_u32 v{XA1+3}, {T_RS}, v{XA1+3}
        s_lshl_b32 s74, s{sG}, 1
        s_add_u32 s74, s74, s{sE}
        s_lshl_b32 s74, s74, 17
        s_lshl_b32 s12, s{sT0}, 10
        s_add_u32 s12, s12, s74
        s_lshl_b32 s13, s{sT1}, 10
        s_add_u32 s13, s13, s74
        """
    fill = [l.strip() for l in fill.split("\n") if l.strip()]
    rd = [f"ds_read_b64 {vr(XPF,2)}, v{XA0}", f"ds_read_b64 {vr(XPF+4,2)}, v{XA0+1}"]
    for c in range(3):
        rd.append(f"ds_read_b64 {vr(WPF+4*c,2)}, v{XA1} offset:{c*(256 if ffn else 512)}")
    if ffn:
        rd.append(f"ds_read_b64 {vr(WPF+12,2)}, v{XA1+1}")
    nfr = len(rd)
    rd += [f"ds_read_b32 v{RS}, v{XA0+2}", f"ds_read_b32 v{RS+1}, v{XA0+3}"]
    if ffn:
        rd += [f"ds_read_b32 v{SD}, v{XA0+2} offset:512", f"ds_read_b32 v{SD+1}, v{XA0+3} offset:512"]
    else:
        for t in range(2):
            for gq in range(4):
                rd.append(f"ds_read_b128 {vr(RT+16*t+4*gq,4)}, v{XA1+2+t} offset:{gq*32}")
    nv = 14 if ffn else 17
    for x in fill[:5]:
        A(x)
    kstep(1, fill[5:nv] + rd + fill[nv:], first=1, per=6)
    A(f"s_waitcnt lgkmcnt({len(rd) - nfr})")
    stamp(A, 4)
    order = list(range(len(blocks)))
    if not ffn:
        order = [2, 3, 4, 5, 0, 1]
    PK = FS[0]
    for n, i in enumerate(order):
        A(mm(i, lambda t: XPF + 4*t, lambda c: WPF + 4*c))
        if n == 0:
            A("s_waitcnt lgkmcnt(0)")
    if not ffn:
        A(f"""
        v_mov_b32 v{XA1}, v{RS}
        v_mov_b32 v{XA1+1}, v{RS}
        v_mov_b32 v{XA1+2}, v{RS+1}
        v_mov_b32 v{XA1+3}, v{RS+1}
        v_mul_f32 v{RS}, {f32bits(LOG2E/4)}, v{XA1}
        v_mul_f32 v{RS+1}, {f32bits(LOG2E/4)}, v{XA1}
        v_mul_f32 v{RS+2}, {f32bits(LOG2E/4)}, v{XA1+2}
        v_mul_f32 v{RS+3}, {f32bits(LOG2E/4)}, v{XA1+2}
        v_bfe_u32 v{XA0}, v1, 4, 1
        v_lshlrev_b32 v{XA0}, 16, v{XA0}
        v_lshl_add_u32 v{XA0}, v7, 8, v{XA0}
        v_and_b32 v{XA0+1}, 15, v1
        v_lshl_add_u32 v{XA0}, v{XA0+1}, 4, v{XA0}
        """)
        for n, i in enumerate(order):
            t, c = blocks[i]
            a, pk = acc(i), PK + 8 * n
            for r in range(0, 16, 2):
                sc = (RS + 2*t, XA1 + 2*t, RT + 16*t + r)[c]
                A(f"v_pk_mul_f32 {vr(a+r,2)}, {vr(a+r,2)}, {vr(sc,2)}")
            for r in range(0, 16, 2):
                A(f"v_cvt_pk_bf16_f32 v{pk+r//2}, v{a+r}, v{a+r+1}")
            if c < 2:
                for hh in range(2):
                    A(f"s_add_u32 s74, s{12+t}, {c*(2<<20) + hh*65536}")
                    A(f"buffer_store_dwordx4 {vr(pk+4*hh,4)}, v3, s[28:31], s74 offen sc1")
            else:
                A(f"s_add_u32 s74, s{12+t}, {WS_V}")
                for m2 in range(2):
                    A(f"buffer_store_dwordx4 {vr(pk+4*m2,4)}, v{XA0}, s[28:31], s74 offen offset:{m2*512} sc1")
        stamp(A, 5)
        A("s_waitcnt vmcnt(0)")
        stamp(A, 10)
        A(f"""
        s_mov_b64 exec, 1
        buffer_store_dwordx2 v[{vTAG}:{vTAG+1}], v{vFLG}, s[28:31], 0 offen sc1
        ds_add_u32 v{vFLG+1}, v19
        s_mov_b64 exec, -1
        s_branch L_a
        """)
    else:
        c1 = -2.0 * LOG2E * math.sqrt(2.0 / math.pi)
        c3 = c1 * 0.044715
        K1, K3, SP = XA0, XA1, FS[0]
        for t in range(2):
            A(f"""
            v_mul_f32 v{K1+2*t}, {f32bits(c1)}, v{RS+t}
            v_mul_f32 v{K3+2*t}, v{RS+t}, v{RS+t}
            v_mul_f32 v{K3+2*t}, v{K3+2*t}, v{RS+t}
            v_mul_f32 v{K3+2*t}, {f32bits(c3)}, v{K3+2*t}
            v_mov_b32 v{K1+2*t+1}, v{K1+2*t}
            v_mov_b32 v{K3+2*t+1}, v{K3+2*t}
            v_mov_b32 v{SP+2*t}, v{SD+t}
            v_mov_b32 v{SP+2*t+1}, v{SD+t}
            """)
        G = FS[1]
        p2 = lambda r: vr(r, 2)
        for n, (t, c) in enumerate(blocks):
            a, pk = acc(n), HP + 8 * (n & 1)
            for r in range(0, 16, 2):
                A(f"v_pk_mul_f32 {p2(G+r)}, {p2(a+r)}, {p2(a+r)}")
            for r in range(0, 16, 2):
                A(f"v_pk_fma_f32 {p2(G+r)}, {p2(G+r)}, {p2(K3+2*t)}, {p2(K1+2*t)}")
            for r in range(0, 16, 2):
                A(f"v_pk_mul_f32 {p2(G+r)}, {p2(G+r)}, {p2(a+r)}")
            for r in range(16):
                A(f"v_exp_f32 v{G+r}, v{G+r}")
            for r in range(0, 16, 2):
                A(f"v_pk_fma_f32 {p2(G+r)}, {p2(G+r)}, {p2(SP+2*t)}, {p2(SP+2*t)}")
            for r in range(16):
                A(f"v_rcp_f32 v{G+r}, v{G+r}")
            for r in range(0, 16, 2):
                A(f"v_pk_mul_f32 {p2(a+r)}, {p2(a+r)}, {p2(G+r)}")
            for r in range(8):
                A(f"v_cvt_pk_bf16_f32 v{pk+r}, v{a+2*r}, v{a+2*r+1}")
            for hh in range(2):
                va, off = h_slot(2 * n + hh)
                A(f"ds_write_b128 v{(WAa, WAb)[va]}, {vr(pk+4*hh,4)} offset:{off}")
            if n == int(optval("sig", "2")):
                A(f"s_mov_b64 exec, 1\nds_add_u32 v{vFLG+1}, v19\ns_mov_b64 exec, -1")
        stamp(A, 5)

def h_slot(i):
    return (0, i * 4096) if i < 8 else (1, (i - 8) * 4 * VST)

hXD, hWD, hRA, hGA, hGC, hEP = 224, 226, 227, 228, 229, 230
hWR, hXR, hGR, hGX, hBI, hT = 96, 128, 136, 152, 156, 160

def xstamp(A, lane):
    if asm.STAMPS:
        A(f"s_memtime s[80:81]\ns_waitcnt lgkmcnt(0)\nv_writelane_b32 v252, s80, {lane}")

def dma_sub(A):
    A(f"""
    L_dma:
    s_lshl_b32 s74, s{sC}, 7
    s_add_u32 s75, s74, 16384
    s_mul_i32 s76, s{sC}, s97
    s_add_u32 s{sC}, s{sC}, 1
    s_and_b32 s{sC}, s{sC}, 7
    s_cmp_lg_u32 s{sTYPE}, 0
    s_cbranch_scc1 L_dma_ffn
    """)
    for ffn in (False, True):
        if ffn:
            A("L_dma_ffn:")
        imms = [c * 64 for c in range(7)] if ffn else [0, 64, 1024, 1088, 2048, 2112]
        ops = [("x", a) for a in range(4)] + [("w", c) for c in range(len(imms))]
        ops = [ops[0], ops[4], ops[5], ops[1], ops[6], ops[7], ops[2], ops[8], ops[9], ops[3]] + ops[10:]
        for k, j in ops:
            if k == "x":
                A(f"s_add_u32 m0, s92, {j*1024}\ns_nop 0\nbuffer_load_dwordx4 v{hXD + (j & 1)}, s[32:35], s{74 + (j >> 1)} offen lds")
            else:
                A(f"s_add_u32 m0, s93, {j*4096 - imms[j]}\ns_nop 0\nbuffer_load_dwordx4 v{hWD}, s[36:39], s76 offen offset:{imms[j]} lds")
        if not ffn:
            A("s_branch L_dma_adv")
    A(f"""
    L_dma_adv:
    s_add_u32 s95, s95, 1
    s_cmp_eq_u32 s95, 3
    s_cselect_b32 s95, 0, s95
    s_cselect_b32 s74, {-2*XST}, s98
    s_cselect_b32 s75, {-2*WST}, s99
    s_add_u32 s92, s92, s74
    s_add_u32 s93, s93, s75
    s_setpc_b64 s[100:101]
    """)

def h_all(A, f_setup):
    CALL = "s_call_b64 s[100:101], L_dma"
    if optval('prio', 'm') == 'h':
        A("s_setprio 3")
    A(f"""
    v_lshrrev_b32 v8, 3, v1
    s_lshl_b32 s74, s{sW4}, 5
    v_add_u32 v8, s74, v8
    v_lshlrev_b32 v8, 10, v8
    v_and_b32 v9, 7, v1
    v_lshrrev_b32 v10, 4, v1
    v_xor_b32 v9, v9, v10
    v_lshl_add_u32 v{hXD}, v9, 4, v8
    v_xor_b32 v9, 4, v9
    v_lshl_add_u32 v{hXD+1}, v9, 4, v8
    v_add_u32 v{hXD+1}, 0x2000, v{hXD+1}
    v_lshrrev_b32 v8, 2, v1
    s_lshl_b32 s74, s{sW4}, 4
    v_add_u32 v8, s74, v8
    v_and_b32 v9, 3, v1
    v_lshlrev_b32 v9, 4, v9
    s_mov_b32 s34, 0x20000
    s_mov_b32 s35, 0x00020000
    s_mov_b32 s39, 0x00020000
    s_lshl_b32 s75, s{sTBK}, 17
    s_lshl_b32 s92, s{sW4}, 12
    s_lshl_b32 s93, s{sW4}, 10
    s_add_u32 s93, s93, {WBASE}
    s_mov_b32 s95, 0
    s_mov_b32 s98, {XST}
    s_mov_b32 s99, {WST}
    s_lshl_b32 s96, s{sC}, 9
    s_lshl_b32 s94, s{sTYPE}, 3
    s_add_u32 s94, s94, s{sG}
    s_lshl_b32 s79, s94, 2
    s_add_u32 s79, s79, s{sW4}
    s_lshl_b32 s79, s79, 11
    s_movk_i32 s76, 3072
    s_movk_i32 s74, 128
    s_cmp_lg_u32 s{sTYPE}, 0
    s_cselect_b32 s76, 3584, s76
    s_cselect_b32 s74, 448, s74
    s_cselect_b32 s42, s76, 0
    s_mul_i32 s74, s74, s{sG}
    s_lshl_b32 s97, s76, 6
    s_lshl_b32 s38, s76, 9
    s_sub_u32 s38, s38, s74
    v_mul_lo_u32 v{hWD}, v8, s76
    v_add_u32 v{hWD}, v{hWD}, v9
    s_cmp_lg_u32 s{sTYPE}, 0
    s_waitcnt lgkmcnt(0)
    s_cselect_b32 s36, s12, s6
    s_cselect_b32 s37, s13, s7
    s_add_u32 s36, s36, s74
    s_addc_u32 s37, s37, 0
    s_mov_b32 s28, s24
    s_mov_b32 s29, s25
    s_add_u32 s32, s4, s75
    s_addc_u32 s33, s5, 0
    buffer_load_dwordx4 {vr(hXR,4)}, v3, s[32:35], s79 offen
    buffer_load_dwordx4 {vr(hXR+4,4)}, v3, s[32:35], s79 offen offset:1024
    buffer_load_dwordx2 v[{hEP}:{hEP+1}], v4, s[28:31], s3 offen sc1
    {CALL}
    """)
    xstamp(A, 8)
    lanepart_tr(A, hRA, 8)
    A(f"""
    s_lshl_b32 s74, s{sW4}, 12
    s_add_u32 s75, s74, {WBASE}
    v_add_u32 v{hRA}, s75, v{hRA}
    s_lshl_b32 s75, s94, 1
    s_lshr_b32 s76, s{sTBK}, 3
    s_add_u32 s75, s75, s76
    s_lshl_b32 s75, s75, 14
    s_add_u32 s75, s75, s74
    s_add_u32 s75, s75, {WS_CG}
    v_lshl_add_u32 v{hGC}, v1, 3, s75
    s_lshl_b32 s74, s{sTBK}, 2
    s_add_u32 s74, s74, s{sW4}
    s_lshl_b32 s74, s74, 9
    s_add_u32 s74, s74, {WS_XG}
    v_lshl_add_u32 v{hGA}, v2, 4, s74
    v_mov_b32 v8, {CTL}
    v_lshl_add_u32 v8, v2, 2, v8
    v_mov_b32 v9, 4
    v_cmp_eq_u32 vcc, 8, v2
    s_mov_b32 s40, s14
    s_mov_b32 s41, s15
    v_cndmask_b32 v9, 0, v9, vcc
    ds_write_b32 v8, v9
    s_mov_b32 s43, 0x00020000
    s_mov_b32 s3, 0xffff0000
    s_lshr_b32 s79, s79, 6
    s_lshl_b32 s74, s{sTBK}, 11
    s_add_u32 s79, s79, s74
    s_add_u32 s79, s79, {WS_XG}
    """)
    f_setup(A)
    A.region("h")
    S0, Q0, S1, Q1, t0, t1, t2 = hT, hT + 1, hT + 2, hT + 3, hT + 4, hT + 5, hT + 6
    A("s_waitcnt vmcnt(10)")
    xstamp(A, 9)
    for row, (s_, q_) in enumerate(((S0, Q0), (S1, Q1))):
        for r in range(4):
            x = hXR + 4 * row + r
            A(f"v_lshlrev_b32 v{t0}, 16, v{x}\nv_and_b32 v{t1}, s3, v{x}")
            if r == 0:
                A(f"v_add_f32 v{s_}, v{t0}, v{t1}\nv_mul_f32 v{q_}, v{t0}, v{t0}\nv_fmac_f32 v{q_}, v{t1}, v{t1}")
            else:
                A(f"v_add_f32 v{s_}, v{s_}, v{t0}\nv_fmac_f32 v{q_}, v{t0}, v{t0}\nv_add_f32 v{s_}, v{s_}, v{t1}\nv_fmac_f32 v{q_}, v{t1}, v{t1}")
    A(f"""
    v_add_u32 v{hEP}, 1, v{hEP}
    v_add_u32 v{hEP+1}, 1, v{hEP+1}
    v_permlane32_swap_b32 v{S0}, v{S1}
    v_permlane32_swap_b32 v{Q0}, v{Q1}
    v_bfe_u32 v{t2}, v1, 4, 1
    v_add_f32 v{S0}, v{S0}, v{S1}
    v_add_f32 v{Q0}, v{Q0}, v{Q1}
    v_cmp_eq_u32 vcc, 1, v{t2}
    v_lshrrev_b32 v{t2}, 4, v1
    v_permlane16_swap_b32 v{S0}, v{Q0}
    v_readfirstlane_b32 s26, v{hEP}
    v_readfirstlane_b32 s27, v{hEP+1}
    v_add_f32 v{t0}, v{S0}, v{Q0}
    v_cndmask_b32 v{t1}, v{hEP}, v{hEP+1}, vcc
    v_lshlrev_b32 v{t2}, 3, v{t2}
    """)
    for sh in (8, 4, 2, 1):
        A(f"v_add_f32_dpp v{t0}, v{t0}, v{t0} row_ror:{sh} row_mask:0xf bank_mask:0xf\ns_nop 1")
    A(f"""
    s_mov_b32 exec_lo, 0x00010001
    s_mov_b32 exec_hi, 0x00010001
    buffer_store_dwordx2 v[{t0}:{t1}], v{t2}, s[28:31], s79 offen sc1
    s_mov_b64 exec, -1
    v_cmp_eq_u32 vcc, 1, v7
    {CALL}
    v_cndmask_b32 v{hEP}, v{hEP}, v{hEP+1}, vcc
    """)
    nb = [0]
    def bar(n):
        A(f"s_waitcnt vmcnt({n})\ns_barrier")
        if nb[0] >= 1:
            xstamp(A, 8 - nb[0])
        nb[0] += 1
    stamp(A, 2)
    bar(11)
    stamp(A, 3)
    for half in range(2):
        for ks in range(4):
            o = half * 16384 + ks * 1024
            A(f"ds_read_b64_tr_b16 {vr(hWR+16*half+4*ks,2)}, v{hRA} offset:{o}\nds_read_b64_tr_b16 {vr(hWR+16*half+4*ks+2,2)}, v{hRA} offset:{o+256}")
        if half == 0:
            A("s_waitcnt lgkmcnt(4)")
    A(CALL)
    C0, C1 = hT, hT + 2
    def colsum(base, c):
        for r in range(16):
            if r == 0:
                A(f"v_lshlrev_b32 v{c}, 16, v{base}\nv_and_b32 v{c+1}, s3, v{base}")
            else:
                A(f"v_lshlrev_b32 v{t0}, 16, v{base+r}\nv_and_b32 v{t1}, s3, v{base+r}\nv_add_f32 v{c}, v{c}, v{t0}\nv_add_f32 v{c+1}, v{c+1}, v{t1}")
        A(f"v_add_f32 v{c}, v{c}, v{c+1}")
    A("s_waitcnt lgkmcnt(0)")
    colsum(hWR, C0)
    bar(10)
    A(CALL)
    colsum(hWR + 16, C1)
    A(f"""
    v_mov_b32 v{C0+1}, v{hEP}
    s_nop 0
    v_permlane32_swap_b32 v{C0}, v{C1}
    s_nop 0
    v_add_f32 v{C0}, v{C0}, v{C1}
    buffer_store_dwordx2 v[{C0}:{C0+1}], v{hGC}, s[28:31], s96 offen sc1
    """)
    def gather(lo=0, hi=9):
        for c in range(lo, min(hi, 8)):
            A(f"buffer_load_dwordx2 {vr(hGR+2*c,2)}, v{hGC}, s[28:31], 0 offen offset:{c*512} sc1")
        if hi == 9:
            A(f"buffer_load_dwordx4 {vr(hGX,4)}, v{hGA}, s[28:31], 0 offen sc1")
    bar(11)
    A(CALL)
    bar(10)
    A(CALL)
    gather(8, 9)
    A(f"""
    s_mul_i32 s74, s{sG}, 448
    s_lshl_b32 s75, s{sW4}, 6
    s_add_u32 s74, s74, s75
    v_lshlrev_b32 v{t0}, 1, v2
    v_lshl_add_u32 v{t0}, v7, 8, v{t0}
    buffer_load_ushort v{hBI}, v{t0}, s[40:43], s74 offen
    """)
    bar(12)
    A(CALL)
    gather(0, 4)
    bar(16)
    A(CALL)
    gather(4, 8)
    bar(18)
    bar(4)
    A("s_waitcnt vmcnt(0)")
    A(f"""
    s_mov_b32 s79, 0x4000
    L_h_chk:
    v_xor_b32 v{hGX+1}, s26, v{hGX+1}
    v_xor_b32 v{hGX+3}, s27, v{hGX+3}
    v_or_b32 v{t0}, v{hGX+1}, v{hGX+3}
    """)
    for c in range(8):
        A(f"v_xor_b32 v{hGR+2*c+1}, v{hEP}, v{hGR+2*c+1}")
    for c in range(0, 8, 2):
        A(f"v_or3_b32 v{t0}, v{t0}, v{hGR+2*c+1}, v{hGR+2*c+3}")
    A(f"""
    v_cmp_ne_u32 vcc, 0, v{t0}
    s_sub_u32 s79, s79, 1
    s_cmp_eq_u32 s79, 0
    s_cbranch_scc1 L_h_got
    s_cbranch_vccz L_h_got
    """)
    gather()
    A("s_waitcnt vmcnt(0)\ns_branch L_h_chk\nL_h_got:")
    a, b, r_, h_, X0, A0 = hWR, hWR + 1, hWR + 2, hWR + 3, hWR + 4, hWR + 6
    c = hGR
    A(f"""
    s_mov_b32 s74, {f32bits(1.0/512)}
    v_mul_f32 v{a}, s74, v{hGX}
    v_mul_f32 v{b}, s74, v{hGX+2}
    v_add_f32 v{c}, v{c}, v{c+2}
    v_fma_f32 v{b}, -v{a}, v{a}, v{b}
    v_add_f32 v{c+4}, v{c+4}, v{c+6}
    v_max_f32 v{b}, 0, v{b}
    v_add_f32 v{c+8}, v{c+8}, v{c+10}
    v_cvt_pk_bf16_f32 v{b}, v{b}, v{b}
    v_add_f32 v{c+12}, v{c+12}, v{c+14}
    v_and_b32 v{b}, s3, v{b}
    v_add_f32 v{c}, v{c}, v{c+4}
    v_add_f32 v{b}, {f32bits(1e-5)}, v{b}
    v_add_f32 v{c+8}, v{c+8}, v{c+12}
    v_cvt_pk_bf16_f32 v{b}, v{b}, v{b}
    v_add_f32 v{c}, v{c}, v{c+8}
    v_and_b32 v{b}, s3, v{b}
    v_sqrt_f32 v{b}, v{b}
    v_mul_f32 v{a}, -0.5, v{a}
    v_and_b32 v{c+1}, s3, v{c}
    v_cvt_pk_bf16_f32 v{b}, v{b}, v{b}
    v_sub_f32 v{c}, v{c}, v{c+1}
    v_and_b32 v{b}, s3, v{b}
    v_and_b32 v{c+2}, s3, v{c}
    v_rcp_f32 v{r_}, v{b}
    v_mul_f32 v{h_}, 0.5, v{b}
    v_sub_f32 v{c}, v{c}, v{c+2}
    v_cvt_pk_bf16_f32 v{X0}, v{a}, v{a}
    v_cvt_pk_bf16_f32 v{X0+1}, v{a}, v{h_}
    v_cvt_pk_bf16_f32 v{c+4}, v{c+1}, v{c+2}
    v_lshlrev_b32 v{hBI}, 16, v{hBI}
    v_cvt_pk_bf16_f32 v{c+5}, v{c}, v{hBI}
    s_lshl_b32 s74, s{sW4}, 8
    v_lshl_add_u32 v{A0}, v2, 3, s74
    v_lshrrev_b32 v{A0+1}, 1, v{A0}
    v_add_u32 v{A0}, {T_XP}, v{A0}
    v_add_u32 v{A0+1}, {T_RS}, v{A0+1}
    v_lshl_add_u32 v{A0+2}, v7, 10, v{A0}
    ds_write_b64 v{A0}, {vr(X0,2)}
    ds_write_b32 v{A0+1}, v{r_}
    ds_write_b32 v{A0+1}, v{b} offset:512
    ds_write_b64 v{A0+2}, {vr(c+4,2)} offset:{T_WP - T_XP}
    """)
    A("s_waitcnt lgkmcnt(0)")
    bar(0)
```

```python
from asm import *
import asm, math, os
OPT = os.environ.get('MOPT', '').split(',')
def optval(k, d):
    for o in OPT:
        if o.startswith(k + "="):
            return o.split("=")[1]
    return d
LOG2E = math.log2(math.e)

XST, WBASE, WST = 16384, 49152, 28672
VST = 1056
LDS_V = 65536
QA = LDS_V + 66 * VST
CTL = QA + 3 * 8192
LDS_BYTES = 163840
C_KV, C_Q, C_H, C_D = CTL, CTL + 64, CTL + 96, CTL + 100
T_XP, T_RS, T_WP = CTL + 128, CTL + 128 + 1024, CTL + 128 + 2048
T_PART = QA

sWAVE, sW4, sTBK, sG, sTYPE, sHEAD, sQB, sTB2, sNB, sC = range(64, 74)
SRD_K, SRD_V = 84, 88

def prologue(A):
    A("s_cmp_ge_u32 s2, 256\ns_cbranch_scc1 L_end")
    stamp(A, 0, True); stamp(A, 1)
    A(f"""
    s_load_dwordx16 s[4:19], s[0:1], 0
    s_load_dwordx4 s[20:23], s[0:1], 64
    s_load_dwordx2 s[24:25], s[0:1], 80
    s_getpc_b64 s[44:45]
    L_pc:
    s_mov_b32 s46, L_code_end-L_pc
    s_mov_b32 s47, 0x00020000
    v_lshlrev_b32 v5, 6, v0
    buffer_load_dword v253, v5, s[44:47], 0 offen
    v_and_b32 v1, 63, v0
    v_lshrrev_b32 v2, 6, v0
    v_lshlrev_b32 v3, 4, v1
    v_readfirstlane_b32 s{sWAVE}, v2
    v_mov_b32 v4, 0
    s_and_b32 s74, s2, 7
    s_lshr_b32 s75, s2, 3
    s_and_b32 s{sQB}, s75, 7
    s_and_b32 s77, s74, 1
    s_lshl_b32 s77, s77, 3
    s_add_u32 s{sTBK}, s77, s{sQB}
    s_lshr_b32 s77, s75, 3
    s_lshr_b32 s{sTYPE}, s77, 1
    s_and_b32 s78, s77, 1
    s_and_b32 s{sG}, s74, 6
    s_add_u32 s{sG}, s{sG}, s78
    s_lshl_b32 s74, s74, 2
    s_add_u32 s{sHEAD}, s74, s77
    s_and_b32 s78, s75, 3
    s_add_u32 s{sTB2}, s74, s78
    s_lshr_b32 s{sNB}, s75, 2
    """)
    rot = optval("rot", "tbk")
    if rot == "grp":
        A(f"s_lshl_b32 s{sC}, s77, 1")
    elif rot == "tbk":
        A(f"s_mov_b32 s{sC}, s{sQB}")
    elif rot == "full":
        A(f"s_lshl_b32 s{sC}, s77, 1\ns_add_u32 s{sC}, s{sC}, s{sQB}\ns_and_b32 s{sC}, s{sC}, 7")
    elif rot == "mix":
        A(f"s_lshl_b32 s{sC}, s77, 1\ns_and_b32 s78, s{sQB}, 1\ns_add_u32 s{sC}, s{sC}, s78")
    else:
        A(f"s_mov_b32 s{sC}, 0")
    A(f"""
    s_and_b32 s{sW4}, s{sWAVE}, 3
    s_mov_b32 s30, {WS_BYTES}
    s_mov_b32 s31, 0x00020000
    s_mov_b32 s3, {WS_CTL}
    v_and_b32 v2, 31, v1
    v_lshrrev_b32 v7, 5, v1
    s_cmp_lt_u32 s{sWAVE}, 4
    s_cbranch_scc1 L_m
    """)

def lanepart_tr(A, dst, t1):
    A(f"""
    v_lshlrev_b32 v{dst}, 3, v7
    v_bfe_u32 v{t1}, v1, 2, 2
    v_add_u32 v{dst}, v{dst}, v{t1}
    v_lshlrev_b32 v{dst}, 6, v{dst}
    v_bfe_u32 v{t1}, v1, 4, 1
    v_lshl_add_u32 v{dst}, v{t1}, 5, v{dst}
    v_and_b32 v{t1}, 3, v1
    v_lshl_add_u32 v{dst}, v{t1}, 3, v{dst}
    """)

XA0, XA1, WAa, WAb = 8, 12, 16, 17
FS = [20, 44]
ACC = 68
XPF, WPF, RS, SD, RT = 180, 188, 204, 206, 208
HP = 180
vFLG, vTAG = 240, 242
sP, sE, sT0, sT1 = 4, 5, 6, 7

def m_common(A, a_setup):
    A(f"""
    L_m:
    s_mov_b32 s54, 0x200000
    s_mov_b32 s55, 0x00020000
    v_bfe_u32 v24, v1, 1, 3
    v_xor_b32 v24, v24, v7
    v_lshlrev_b32 v{XA0}, 7, v2
    v_lshl_add_u32 v{XA0}, v24, 4, v{XA0}
    s_lshl_b32 s74, s{sW4}, 12
    v_add_u32 v{XA0}, s74, v{XA0}
    s_waitcnt lgkmcnt(0)
    s_mov_b32 s28, s24
    s_mov_b32 s29, s25
    s_mov_b32 s52, s4
    s_mov_b32 s53, s5
    buffer_load_dwordx2 v[{vTAG}:{vTAG+1}], v4, s[28:31], s3 offen sc1
    """)
    A("s_mov_b32 s48, s8\ns_mov_b32 s49, s9")
    A(f"""
    s_lshl_b32 s74, s{sQB}, 3
    s_lshl_b32 s75, s{sW4}, 1
    s_add_u32 s74, s74, s75
    s_mul_i32 s8, s74, {ACT_TB}
    s_lshl_b32 s75, s{sHEAD}, 10
    s_add_u32 s8, s8, s75
    s_add_u32 s8, s8, {WS_ACT}
    s_add_u32 s9, s8, {ACT_TB}
    s_lshr_b32 s{sP}, s{sW4}, 1
    s_and_b32 s{sE}, s{sW4}, 1
    s_lshl_b32 s74, s{sTBK}, 2
    s_add_u32 s{sT0}, s74, s{sW4}
    s_xor_b32 s{sT1}, s{sT0}, 1
    """)
    for ks in range(1, 4):
        A(f"v_xor_b32 v{XA0+ks}, {ks << 5}, v{XA0}")
    for ks in range(4):
        A(f"v_xor_b32 v{XA1+ks}, 0x1000, v{XA0+ks}")
    lanepart_tr(A, WAb, 24)
    for i in range(0, 112, 2):
        A(f"v_mov_b64 {vr(ACC+i,2)}, 0")
    for i in range(6):
        A(f"v_mov_b64 {vr(XPF+4*i+2,2)}, 0")
    a_setup(A)
    A(f"""
    s_waitcnt vmcnt(0)
    s_cmp_lt_u32 s2, {optval('tw', '224')}
    s_cbranch_scc1 L_m_nt
    s_cmp_lg_u32 s{sW4}, 0
    s_cbranch_scc1 L_m_nt
    v_lshlrev_b32 v24, {optval('tsh', '20')}, v1
    buffer_load_dword v253, v24, s[28:31], 0 offen
    global_load_dword v253, v4, s[48:49]
    global_load_dword v253, v4, s[14:15]
    global_load_dword v253, v4, s[16:17]
    global_load_dword v253, v4, s[18:19]
    global_load_dword v253, v4, s[20:21]
    global_load_dword v253, v4, s[22:23]
    L_m_nt:
    """)
    if 'notour' not in OPT:
        A(f"""
        s_lshl_b32 s74, s{sW4}, 1
        s_add_u32 s74, s74, s{sTYPE}
        s_mov_b64 exec, 0
        s_cmp_eq_u32 s74, 0
        s_cbranch_scc1 TOUR_mq
        s_cmp_eq_u32 s74, 1
        s_cbranch_scc1 TOUR_mf
        s_cmp_lt_u32 s74, 4
        s_cbranch_scc1 TOUR_h
        s_cmp_lt_u32 s74, 6
        s_cbranch_scc1 TOUR_a
        s_branch TOUR_f
        L_tour_ret:
        s_mov_b64 exec, -1
        """)
    else:
        A("L_tour_ret:")
    stamp(A, 11)
    A(f"""
    s_mov_b32 s10, 0
    s_mov_b32 s11, 8
    s_mov_b32 s14, {XST}
    s_mov_b32 s15, {WST}
    v_add_u32 v{vTAG}, 1, v{vTAG}
    v_add_u32 v{vTAG+1}, 1, v{vTAG+1}
    {'s_setprio 3' if optval('prio', 'm') == 'm' else 's_nop 0'}
    s_cmp_lg_u32 s{sTYPE}, 0
    s_cbranch_scc1 L_m_ffn
    """)

def m_path(A, ffn):
    nm = "ffn" if ffn else "qkv"
    ncb = 4 if ffn else 3
    def xf(s, t): return FS[s] + 4 * t
    def wf(s, c): return FS[s] + 8 + 4 * c
    blocks = [(t, c) for c in range(3) for t in range(2)] + ([(0, 3)] if ffn else [])
    def acc(i): return ACC + 16 * i
    A(f"L_m_{nm}:")
    A.region("mf" if ffn else "mq")
    if ffn:
        A(f"""
        s_mul_i32 s74, s{sE}, 12288
        s_add_u32 s74, s74, {WBASE}
        v_add_u32 v{WAa}, s74, v{WAb}
        v_add_u32 v{WAb}, {WBASE + 6*4096}, v{WAb}
        """)
    else:
        A(f"""
        s_lshl_b32 s74, s{sE}, 12
        s_add_u32 s74, s74, {WBASE}
        v_add_u32 v{WAa}, s74, v{WAb}
        s_lshl_b32 s74, s{sG}, 1
        s_add_u32 s74, s74, s{sE}
        s_lshl_b32 s74, s74, 4
        s_add_u32 s74, s74, s{sTBK}
        s_lshl_b32 s74, s74, 1
        s_add_u32 s74, s74, s{sP}
        s_lshl_b32 s74, s74, 3
        s_add_u32 s74, s74, {WS_F2}
        """)
    A(f"v_mov_b32 v{vFLG}, s74\nv_mov_b32 v{vFLG+1}, {C_H}")
    cbs = 4096 if ffn else 8192
    def reads(ks, s):
        o = [f"ds_read_b128 {vr(xf(s,0),4)}, v{XA0+ks}", f"ds_read_b128 {vr(xf(s,1),4)}, v{XA1+ks}"]
        w = []
        for c in range(ncb):
            a, off = (WAb, ks * 1024) if c == 3 else (WAa, c * cbs + ks * 1024)
            w.append([f"ds_read_b64_tr_b16 {vr(wf(s,c),2)}, v{a} offset:{off}",
                      f"ds_read_b64_tr_b16 {vr(wf(s,c)+2,2)}, v{a} offset:{off+256}"])
        return [o[0]] + w[0] + [o[1]] + [x for p in w[1:] for x in p]
    def mm(i, xr, wr):
        t, c = blocks[i]
        if (not ffn) and c == 2:
            return mfma(acc(i), xr(t), wr(c))
        return mfma(acc(i), wr(c), xr(t))
    def kstep(s, fill, first=0, per=3):
        k = 0
        for i in range(first, len(blocks)):
            A(mm(i, lambda t: xf(s, t), lambda c: wf(s, c)))
            for x in fill[k:k+per]:
                A(x)
            k += per
        for x in fill[k:]:
            A(x)
    stamp(A, 2)
    A("s_barrier")
    stamp(A, 3)
    for r in reads(0, 0):
        A(r)
    A(f".p2align 6\nL_m_{nm}_loop:")
    for ks in range(3):
        s = ks & 1
        A("s_waitcnt lgkmcnt(0)")
        fill = reads(ks + 1, 1 - s)
        if ks == 0:
            fill = fill + ["s_add_u32 s10, s10, 1", "s_cmp_eq_u32 s10, 3", f"s_cselect_b32 s12, {-2*XST}, s14", f"s_cselect_b32 s13, {-2*WST}, s15", "s_cselect_b32 s10, 0, s10"]
        if ks == 2:
            fill = fill + ["s_sub_u32 s11, s11, 1", "s_cmp_eq_u32 s11, 0"]
        kstep(s, fill)
    A("s_waitcnt lgkmcnt(0)")
    A(mm(0, lambda t: xf(1, t), lambda c: wf(1, c)))
    A(f"s_barrier\ns_cbranch_scc1 L_m_{nm}_last")
    upd = [f"v_add_u32 v{XA0}, s12, v{XA0}", f"v_add_u32 v{WAa}, s13, v{WAa}", f"v_add_u32 v{XA1}, s12, v{XA1}"]
    if ffn:
        upd.append(f"v_add_u32 v{WAb}, s13, v{WAb}")
    for x in upd:
        A(x)
    upd2 = [f"v_add_u32 v{b+k}, s12, v{b+k}" for k in range(1, 4) for b in (XA0, XA1)]
    kstep(1, reads(0, 0) + upd2, first=1)
    A(f"s_branch L_m_{nm}_loop\nL_m_{nm}_last:")
    fill = f"""
    s_lshl_b32 s74, s{sW4}, 8
    v_lshl_add_u32 v{XA0}, v2, 3, s74
    v_xor_b32 v{XA0+1}, 0x100, v{XA0}
    v_lshrrev_b32 v{XA0+2}, 1, v{XA0}
    v_lshrrev_b32 v{XA0+3}, 1, v{XA0+1}
    s_mul_i32 s74, s{sE}, {768 if ffn else 256}
    v_lshl_add_u32 v{XA1}, v2, 3, s74
    v_add_u32 v{XA0}, {T_XP}, v{XA0}
    v_add_u32 v{XA0+1}, {T_XP}, v{XA0+1}
    v_add_u32 v{XA0+2}, {T_RS}, v{XA0+2}
    v_add_u32 v{XA0+3}, {T_RS}, v{XA0+3}
    v_add_u32 v{XA1}, {T_WP}, v{XA1}
    """
    if ffn:
        fill += f"""
        v_lshlrev_b32 v{XA1+1}, 3, v2
        v_add_u32 v{XA1+1}, {T_WP + 6*256}, v{XA1+1}
        s_lshl_b32 s74, s{sW4}, 10
        s_add_u32 s74, s74, 32768
        v_add_u32 v{WAa}, s74, v3
        s_mul_i32 s74, s{sW4}, {VST}
        s_add_u32 s74, s74, {LDS_V + 32*VST}
        v_add_u32 v{WAb}, s74, v3
        """
    else:
        fill += f"""
        s_lshl_b32 s74, s{sW4}, 7
        v_lshl_add_u32 v{XA1+2}, v7, 4, s74
        v_xor_b32 v{XA1+3}, 0x80, v{XA1+2}
        v_add_u32 v{XA1+2}, {T_RS}, v{XA1+2}
        v_add_u32 v{XA1+3}, {T_RS}, v{XA1+3}
        s_lshl_b32 s74, s{sG}, 1
        s_add_u32 s74, s74, s{sE}
        s_lshl_b32 s74, s74, 17
        s_lshl_b32 s12, s{sT0}, 10
        s_add_u32 s12, s12, s74
        s_lshl_b32 s13, s{sT1}, 10
        s_add_u32 s13, s13, s74
        """
    fill = [l.strip() for l in fill.split("\n") if l.strip()]
    rd = [f"ds_read_b64 {vr(XPF,2)}, v{XA0}", f"ds_read_b64 {vr(XPF+4,2)}, v{XA0+1}"]
    for c in range(3):
        rd.append(f"ds_read_b64 {vr(WPF+4*c,2)}, v{XA1} offset:{c*(256 if ffn else 512)}")
    if ffn:
        rd.append(f"ds_read_b64 {vr(WPF+12,2)}, v{XA1+1}")
    nfr = len(rd)
    rd += [f"ds_read_b32 v{RS}, v{XA0+2}", f"ds_read_b32 v{RS+1}, v{XA0+3}"]
    if ffn:
        rd += [f"ds_read_b32 v{SD}, v{XA0+2} offset:512", f"ds_read_b32 v{SD+1}, v{XA0+3} offset:512"]
    else:
        for t in range(2):
            for gq in range(4):
                rd.append(f"ds_read_b128 {vr(RT+16*t+4*gq,4)}, v{XA1+2+t} offset:{gq*32}")
    nv = 14 if ffn else 17
    for x in fill[:5]:
        A(x)
    kstep(1, fill[5:nv] + rd + fill[nv:], first=1, per=6)
    A(f"s_waitcnt lgkmcnt({len(rd) - nfr})")
    stamp(A, 4)
    order = list(range(len(blocks)))
    if not ffn:
        order = [2, 3, 4, 5, 0, 1]
    PK = FS[0]
    for n, i in enumerate(order):
        A(mm(i, lambda t: XPF + 4*t, lambda c: WPF + 4*c))
        if n == 0:
            A("s_waitcnt lgkmcnt(0)")
    if not ffn:
        A(f"""
        v_mov_b32 v{XA1}, v{RS}
        v_mov_b32 v{XA1+1}, v{RS}
        v_mov_b32 v{XA1+2}, v{RS+1}
        v_mov_b32 v{XA1+3}, v{RS+1}
        v_mul_f32 v{RS}, {f32bits(LOG2E/4)}, v{XA1}
        v_mul_f32 v{RS+1}, {f32bits(LOG2E/4)}, v{XA1}
        v_mul_f32 v{RS+2}, {f32bits(LOG2E/4)}, v{XA1+2}
        v_mul_f32 v{RS+3}, {f32bits(LOG2E/4)}, v{XA1+2}
        v_bfe_u32 v{XA0}, v1, 4, 1
        v_lshlrev_b32 v{XA0}, 16, v{XA0}
        v_lshl_add_u32 v{XA0}, v7, 8, v{XA0}
        v_and_b32 v{XA0+1}, 15, v1
        v_lshl_add_u32 v{XA0}, v{XA0+1}, 4, v{XA0}
        """)
        for n, i in enumerate(order):
            t, c = blocks[i]
            a, pk = acc(i), PK + 8 * n
            for r in range(0, 16, 2):
                sc = (RS + 2*t, XA1 + 2*t, RT + 16*t + r)[c]
                A(f"v_pk_mul_f32 {vr(a+r,2)}, {vr(a+r,2)}, {vr(sc,2)}")
            for r in range(0, 16, 2):
                A(f"v_cvt_pk_bf16_f32 v{pk+r//2}, v{a+r}, v{a+r+1}")
            if c < 2:
                for hh in range(2):
                    A(f"s_add_u32 s74, s{12+t}, {c*(2<<20) + hh*65536}")
                    A(f"buffer_store_dwordx4 {vr(pk+4*hh,4)}, v3, s[28:31], s74 offen sc1")
            else:
                A(f"s_add_u32 s74, s{12+t}, {WS_V}")
                for m2 in range(2):
                    A(f"buffer_store_dwordx4 {vr(pk+4*m2,4)}, v{XA0}, s[28:31], s74 offen offset:{m2*512} sc1")
        stamp(A, 5)
        A("s_waitcnt vmcnt(0)")
        stamp(A, 10)
        A(f"""
        s_mov_b64 exec, 1
        buffer_store_dwordx2 v[{vTAG}:{vTAG+1}], v{vFLG}, s[28:31], 0 offen sc1
        ds_add_u32 v{vFLG+1}, v19
        s_mov_b64 exec, -1
        s_branch L_a
        """)
    else:
        c1 = -2.0 * LOG2E * math.sqrt(2.0 / math.pi)
        c3 = c1 * 0.044715
        K1, K3, SP = XA0, XA1, FS[0]
        for t in range(2):
            A(f"""
            v_mul_f32 v{K1+2*t}, {f32bits(c1)}, v{RS+t}
            v_mul_f32 v{K3+2*t}, v{RS+t}, v{RS+t}
            v_mul_f32 v{K3+2*t}, v{K3+2*t}, v{RS+t}
            v_mul_f32 v{K3+2*t}, {f32bits(c3)}, v{K3+2*t}
            v_mov_b32 v{K1+2*t+1}, v{K1+2*t}
            v_mov_b32 v{K3+2*t+1}, v{K3+2*t}
            v_mov_b32 v{SP+2*t}, v{SD+t}
            v_mov_b32 v{SP+2*t+1}, v{SD+t}
            """)
        GB = [FS[0] + 4, FS[1]]
        p2 = lambda r: vr(r, 2)
        ops = []
        def add(kind, text, deps=()):
            ops.append((kind, text, [d for d in deps if d is not None])); return len(ops) - 1
        last_mul = {}
        for n, (t, c) in enumerate(blocks):
            a, pk, G = acc(n), HP + 8 * (n & 1), GB[n & 1]
            prev = last_mul.get(n - 2, {})
            pw = last_mul.get(("w", n - 2), [None, None])
            z, e, d_, r_, m_ = {}, {}, {}, {}, {}
            for r in range(0, 16, 2):
                z[r] = add("N", f"v_pk_mul_f32 {p2(G+r)}, {p2(a+r)}, {p2(a+r)}", [prev.get(r)])
            for r in range(0, 16, 2):
                z[r] = add("N", f"v_pk_fma_f32 {p2(G+r)}, {p2(G+r)}, {p2(K3+2*t)}, {p2(K1+2*t)}", [z[r]])
            for r in range(0, 16, 2):
                z[r] = add("N", f"v_pk_mul_f32 {p2(G+r)}, {p2(G+r)}, {p2(a+r)}", [z[r]])
            for r in range(16):
                e[r] = add("T", f"v_exp_f32 v{G+r}, v{G+r}", [z[r & ~1]])
            for r in range(0, 16, 2):
                d_[r] = add("H", f"v_pk_fma_f32 {p2(G+r)}, {p2(G+r)}, {p2(SP+2*t)}, {p2(SP+2*t)}", [e[r], e[r+1]])
            for r in range(16):
                r_[r] = add("T", f"v_rcp_f32 v{G+r}, v{G+r}", [d_[r & ~1]])
            cv_ = []
            for r in range(0, 16, 2):
                m_[r] = add("H", f"v_pk_mul_f32 {p2(a+r)}, {p2(a+r)}, {p2(G+r)}", [r_[r], r_[r+1]])
                cv_.append(add("H", f"v_cvt_pk_bf16_f32 v{pk+r//2}, v{a+r}, v{a+r+1}", [m_[r], pw[r // 8]]))
            last_mul[n] = m_
            w = []
            for hh in range(2):
                va, off = h_slot(2 * n + hh)
                w.append(add("H", f"ds_write_b128 v{(WAa, WAb)[va]}, {vr(pk+4*hh,4)} offset:{off}", cv_[4*hh:4*hh+4]))
            last_mul[("w", n)] = w
            if n == int(optval("sig", "2")):
                add("H", f"s_mov_b64 exec, 1\nds_add_u32 v{vFLG+1}, v19\ns_mov_b64 exec, -1", w)
        done, pos, out, lastT = {}, 0, [], False
        pend = list(range(len(ops)))
        def ready(i):
            return all(d in done and pos - done[d] >= 3 for d in ops[i][2])
        while pend:
            pick = None
            for kinds in ((("H", "N"), ("T",)) if lastT else (("T",), ("H", "N"))):
                for k in kinds:
                    c_ = [i for i in pend if ops[i][0] == k]
                    c_ = c_[:1] if k != "H" else c_[:24]
                    pick = next((i for i in c_ if ready(i)), None)
                    if pick is not None:
                        break
                if pick is not None:
                    break
            if pick is None:
                A("s_nop 0"); pos += 1; lastT = False
                continue
            A(ops[pick][1]); done[pick] = pos; pos += 1
            pend.remove(pick)
            nT = sum(1 for i in done if ops[i][0] == "T"); nN = len(done) - nT
            lastT = ops[pick][0] == "T" or (2 * (nN - 24) < 3 * nT - 2 and any(ops[i][0] != "T" and ready(i) for i in pend[:80]))
        stamp(A, 5)

def h_slot(i):
    return (0, i * 4096) if i < 8 else (1, (i - 8) * 4 * VST)

hXD, hWD, hRA, hGA, hGC, hEP = 224, 226, 227, 228, 229, 230
hWR, hXR, hGR, hGX, hBI, hT = 96, 128, 136, 152, 156, 160

def xstamp(A, lane):
    if asm.STAMPS:
        A(f"s_memtime s[80:81]\ns_waitcnt lgkmcnt(0)\nv_writelane_b32 v252, s80, {lane}")

def dma_sub(A):
    A(f"""
    L_dma:
    s_lshl_b32 s74, s{sC}, 7
    s_add_u32 s75, s74, 16384
    s_mul_i32 s76, s{sC}, s97
    s_add_u32 s{sC}, s{sC}, 1
    s_and_b32 s{sC}, s{sC}, 7
    s_cmp_lg_u32 s{sTYPE}, 0
    s_cbranch_scc1 L_dma_ffn
    """)
    for ffn in (False, True):
        if ffn:
            A("L_dma_ffn:")
        imms = [c * 64 for c in range(7)] if ffn else [0, 64, 1024, 1088, 2048, 2112]
        ops = [("x", a) for a in range(4)] + [("w", c) for c in range(len(imms))]
        ops = [ops[0], ops[4], ops[5], ops[1], ops[6], ops[7], ops[2], ops[8], ops[9], ops[3]] + ops[10:]
        for k, j in ops:
            if k == "x":
                A(f"s_add_u32 m0, s92, {j*1024}\ns_nop 0\nbuffer_load_dwordx4 v{hXD + (j & 1)}, s[32:35], s{74 + (j >> 1)} offen lds")
            else:
                A(f"s_add_u32 m0, s93, {j*4096 - imms[j]}\ns_nop 0\nbuffer_load_dwordx4 v{hWD}, s[36:39], s76 offen offset:{imms[j]} lds")
        if not ffn:
            A("s_branch L_dma_adv")
    A(f"""
    L_dma_adv:
    s_add_u32 s95, s95, 1
    s_cmp_eq_u32 s95, 3
    s_cselect_b32 s95, 0, s95
    s_cselect_b32 s74, {-2*XST}, s98
    s_cselect_b32 s75, {-2*WST}, s99
    s_add_u32 s92, s92, s74
    s_add_u32 s93, s93, s75
    s_setpc_b64 s[100:101]
    """)

def h_all(A, f_setup):
    CALL = "s_call_b64 s[100:101], L_dma"
    if optval('prio', 'm') == 'h':
        A("s_setprio 3")
    A(f"""
    v_lshrrev_b32 v8, 3, v1
    s_lshl_b32 s74, s{sW4}, 5
    v_add_u32 v8, s74, v8
    v_lshlrev_b32 v8, 10, v8
    v_and_b32 v9, 7, v1
    v_lshrrev_b32 v10, 4, v1
    v_xor_b32 v9, v9, v10
    v_lshl_add_u32 v{hXD}, v9, 4, v8
    v_xor_b32 v9, 4, v9
    v_lshl_add_u32 v{hXD+1}, v9, 4, v8
    v_add_u32 v{hXD+1}, 0x2000, v{hXD+1}
    v_lshrrev_b32 v8, 2, v1
    s_lshl_b32 s74, s{sW4}, 4
    v_add_u32 v8, s74, v8
    v_and_b32 v9, 3, v1
    v_lshlrev_b32 v9, 4, v9
    s_mov_b32 s34, 0x20000
    s_mov_b32 s35, 0x00020000
    s_mov_b32 s39, 0x00020000
    s_lshl_b32 s75, s{sTBK}, 17
    s_lshl_b32 s92, s{sW4}, 12
    s_lshl_b32 s93, s{sW4}, 10
    s_add_u32 s93, s93, {WBASE}
    s_mov_b32 s95, 0
    s_mov_b32 s98, {XST}
    s_mov_b32 s99, {WST}
    s_lshl_b32 s96, s{sC}, 9
    s_lshl_b32 s94, s{sTYPE}, 3
    s_add_u32 s94, s94, s{sG}
    s_lshl_b32 s79, s{sG}, 2
    s_add_u32 s79, s79, s{sW4}
    s_lshl_b32 s79, s79, 12
    s_movk_i32 s76, 3072
    s_movk_i32 s74, 128
    s_cmp_lg_u32 s{sTYPE}, 0
    s_cselect_b32 s76, 3584, s76
    s_cselect_b32 s74, 448, s74
    s_cselect_b32 s42, s76, 0
    s_mul_i32 s74, s74, s{sG}
    s_lshl_b32 s97, s76, 6
    s_lshl_b32 s38, s76, 9
    s_sub_u32 s38, s38, s74
    v_mul_lo_u32 v{hWD}, v8, s76
    v_add_u32 v{hWD}, v{hWD}, v9
    s_cmp_lg_u32 s{sTYPE}, 0
    s_waitcnt lgkmcnt(0)
    s_cselect_b32 s36, s12, s6
    s_cselect_b32 s37, s13, s7
    s_add_u32 s36, s36, s74
    s_addc_u32 s37, s37, 0
    s_mov_b32 s28, s24
    s_mov_b32 s29, s25
    s_add_u32 s32, s4, s75
    s_addc_u32 s33, s5, 0
    buffer_load_dwordx2 v[{hEP}:{hEP+1}], v4, s[28:31], s3 offen sc1
    s_cmp_lg_u32 s{sTYPE}, 0
    s_cbranch_scc1 L_h_rows
    {CALL}
    s_branch L_h_su
    L_h_rows:
    buffer_load_dwordx4 {vr(hWR,4)}, v3, s[32:35], s79 offen
    buffer_load_dwordx4 {vr(hWR+4,4)}, v3, s[32:35], s79 offen offset:1024
    buffer_load_dwordx4 {vr(hWR+8,4)}, v3, s[32:35], s79 offen offset:2048
    buffer_load_dwordx4 {vr(hWR+12,4)}, v3, s[32:35], s79 offen offset:3072
    L_h_su:
    """)
    xstamp(A, 8)
    lanepart_tr(A, hRA, 8)
    A(f"""
    s_lshl_b32 s74, s{sW4}, 12
    s_add_u32 s75, s74, {WBASE}
    v_add_u32 v{hRA}, s75, v{hRA}
    s_lshl_b32 s75, s94, 1
    s_lshr_b32 s76, s{sTBK}, 3
    s_add_u32 s75, s75, s76
    s_lshl_b32 s75, s75, 14
    s_add_u32 s75, s75, s74
    s_add_u32 s75, s75, {WS_CG}
    v_lshl_add_u32 v{hGC}, v1, 3, s75
    s_lshl_b32 s74, s{sTBK}, 2
    s_add_u32 s74, s74, s{sW4}
    s_lshl_b32 s74, s74, 9
    s_add_u32 s74, s74, {WS_XG}
    v_lshl_add_u32 v{hGA}, v2, 4, s74
    v_mov_b32 v8, {CTL}
    v_lshl_add_u32 v8, v2, 2, v8
    v_mov_b32 v9, 4
    v_cmp_eq_u32 vcc, 8, v2
    s_mov_b32 s40, s14
    s_mov_b32 s41, s15
    v_cndmask_b32 v9, 0, v9, vcc
    ds_write_b32 v8, v9
    s_mov_b32 s43, 0x00020000
    s_mov_b32 s3, 0xffff0000
    s_lshr_b32 s79, s79, 6
    s_lshl_b32 s74, s{sTBK}, 11
    s_add_u32 s79, s79, s74
    s_add_u32 s79, s79, {WS_XG}
    """)
    f_setup(A)
    A.region("h")
    S0, Q0, S1, Q1, t0, t1, t2 = hT, hT + 1, hT + 2, hT + 3, hT + 4, hT + 5, hT + 6
    A(f"""
    s_cmp_eq_u32 s{sTYPE}, 0
    s_cbranch_scc1 L_h_nst
    v_bfe_u32 v{t2}, v1, 4, 1
    v_cmp_eq_u32 vcc, 1, v{t2}
    v_lshrrev_b32 v{t2}, 4, v1
    v_lshlrev_b32 v{t2}, 3, v{t2}
    s_waitcnt vmcnt(0)
    v_cndmask_b32 v{hT+9}, v{hEP}, v{hEP+1}, vcc
    v_add_u32 v{hT+9}, 1, v{hT+9}
    v_mov_b32 v{hT+11}, v{hT+9}
    """)
    xstamp(A, 9)
    if optval("c0", "late") == "early":
        A(CALL)
    for pair in range(2):
        for row, (s_, q_) in enumerate(((S0, Q0), (S1, Q1))):
            for r in range(4):
                x = hWR + 8 * pair + 4 * row + r
                A(f"v_lshlrev_b32 v{t0}, 16, v{x}\nv_and_b32 v{t1}, s3, v{x}")
                if r == 0:
                    A(f"v_add_f32 v{s_}, v{t0}, v{t1}\nv_mul_f32 v{q_}, v{t0}, v{t0}\nv_fmac_f32 v{q_}, v{t1}, v{t1}")
                else:
                    A(f"v_add_f32 v{s_}, v{s_}, v{t0}\nv_fmac_f32 v{q_}, v{t0}, v{t0}\nv_add_f32 v{s_}, v{s_}, v{t1}\nv_fmac_f32 v{q_}, v{t1}, v{t1}")
        z = hT + 8 + 2 * pair
        A(f"""
        s_nop 0
        v_permlane32_swap_b32 v{S0}, v{S1}
        v_permlane32_swap_b32 v{Q0}, v{Q1}
        s_nop 0
        v_add_f32 v{S0}, v{S0}, v{S1}
        v_add_f32 v{Q0}, v{Q0}, v{Q1}
        s_nop 1
        v_permlane16_swap_b32 v{S0}, v{Q0}
        s_nop 0
        v_add_f32 v{z}, v{S0}, v{Q0}
        """)
    A("s_nop 0")
    for sh in (8, 4, 2, 1):
        A(f"v_add_f32_dpp v{hT+8}, v{hT+8}, v{hT+8} row_ror:{sh} row_mask:0xf bank_mask:0xf")
        A(f"v_add_f32_dpp v{hT+10}, v{hT+10}, v{hT+10} row_ror:{sh} row_mask:0xf bank_mask:0xf\ns_nop 0")
    if optval("c0", "late") == "late":
        A(CALL)
    A(f"""
    s_mov_b32 exec_lo, 0x00010001
    s_mov_b32 exec_hi, 0x00010001
    buffer_store_dwordx2 v[{hT+8}:{hT+9}], v{t2}, s[28:31], s79 offen sc1
    buffer_store_dwordx2 v[{hT+10}:{hT+11}], v{t2}, s[28:31], s79 offen offset:32 sc1
    s_mov_b64 exec, -1
    {CALL}
    s_waitcnt vmcnt(13)
    s_branch L_h_st
    L_h_nst:
    {CALL}
    s_waitcnt vmcnt(10)
    L_h_st:
    s_mov_b64 exec, -1
    v_add_u32 v{hEP}, 1, v{hEP}
    v_add_u32 v{hEP+1}, 1, v{hEP+1}
    v_cmp_eq_u32 vcc, 1, v7
    v_readfirstlane_b32 s26, v{hEP}
    v_readfirstlane_b32 s27, v{hEP+1}
    v_cndmask_b32 v{hEP}, v{hEP}, v{hEP+1}, vcc
    """)
    nb = [0]
    def bar(n):
        A(f"s_waitcnt vmcnt({n})\ns_barrier")
        if nb[0] >= 1:
            xstamp(A, 8 - nb[0])
        nb[0] += 1
    stamp(A, 2)
    bar(13)
    stamp(A, 3)
    for half in range(2):
        for ks in range(4):
            o = half * 16384 + ks * 1024
            A(f"ds_read_b64_tr_b16 {vr(hWR+16*half+4*ks,2)}, v{hRA} offset:{o}\nds_read_b64_tr_b16 {vr(hWR+16*half+4*ks+2,2)}, v{hRA} offset:{o+256}")
        if half == 0:
            A("s_waitcnt lgkmcnt(4)")
    A(CALL)
    C0, C1 = hT, hT + 2
    def colsum(base, c):
        for r in range(16):
            if r == 0:
                A(f"v_lshlrev_b32 v{c}, 16, v{base}\nv_and_b32 v{c+1}, s3, v{base}")
            else:
                A(f"v_lshlrev_b32 v{t0}, 16, v{base+r}\nv_and_b32 v{t1}, s3, v{base+r}\nv_add_f32 v{c}, v{c}, v{t0}\nv_add_f32 v{c+1}, v{c+1}, v{t1}")
        A(f"v_add_f32 v{c}, v{c}, v{c+1}")
    A("s_waitcnt lgkmcnt(0)")
    colsum(hWR, C0)
    bar(10)
    A(CALL)
    colsum(hWR + 16, C1)
    A(f"""
    v_mov_b32 v{C0+1}, v{hEP}
    s_nop 0
    v_permlane32_swap_b32 v{C0}, v{C1}
    s_nop 0
    v_add_f32 v{C0}, v{C0}, v{C1}
    buffer_store_dwordx2 v[{C0}:{C0+1}], v{hGC}, s[28:31], s96 offen sc1
    """)
    def gather(lo=0, hi=9):
        for c in range(lo, min(hi, 8)):
            A(f"buffer_load_dwordx2 {vr(hGR+2*c,2)}, v{hGC}, s[28:31], 0 offen offset:{c*512} sc1")
        if hi == 9:
            A(f"buffer_load_dwordx4 {vr(hGX,4)}, v{hGA}, s[28:31], 0 offen sc1")
    bar(11)
    A(CALL)
    bar(10)
    A(CALL)
    gather(8, 9)
    A(f"""
    s_mul_i32 s74, s{sG}, 448
    s_lshl_b32 s75, s{sW4}, 6
    s_add_u32 s74, s74, s75
    v_lshlrev_b32 v{t0}, 1, v2
    v_lshl_add_u32 v{t0}, v7, 8, v{t0}
    buffer_load_ushort v{hBI}, v{t0}, s[40:43], s74 offen
    """)
    bar(12)
    A(CALL)
    gather(0, 4)
    bar(16)
    A(CALL)
    gather(4, 8)
    bar(18)
    bar(4)
    A("s_waitcnt vmcnt(0)")
    A(f"""
    s_mov_b32 s79, 0x4000
    L_h_chk:
    v_xor_b32 v{hGX+1}, s26, v{hGX+1}
    v_xor_b32 v{hGX+3}, s27, v{hGX+3}
    v_or_b32 v{t0}, v{hGX+1}, v{hGX+3}
    """)
    for c in range(8):
        A(f"v_xor_b32 v{hGR+2*c+1}, v{hEP}, v{hGR+2*c+1}")
    for c in range(0, 8, 2):
        A(f"v_or3_b32 v{t0}, v{t0}, v{hGR+2*c+1}, v{hGR+2*c+3}")
    A(f"""
    v_cmp_ne_u32 vcc, 0, v{t0}
    s_sub_u32 s79, s79, 1
    s_cmp_eq_u32 s79, 0
    s_cbranch_scc1 L_h_got
    s_cbranch_vccz L_h_got
    """)
    gather()
    A("s_waitcnt vmcnt(0)\ns_branch L_h_chk\nL_h_got:")
    a, b, r_, h_, X0, A0 = hWR, hWR + 1, hWR + 2, hWR + 3, hWR + 4, hWR + 6
    c = hGR
    A(f"""
    s_mov_b32 s74, {f32bits(1.0/512)}
    v_mul_f32 v{a}, s74, v{hGX}
    v_mul_f32 v{b}, s74, v{hGX+2}
    v_add_f32 v{c}, v{c}, v{c+2}
    v_fma_f32 v{b}, -v{a}, v{a}, v{b}
    v_add_f32 v{c+4}, v{c+4}, v{c+6}
    v_max_f32 v{b}, 0, v{b}
    v_add_f32 v{c+8}, v{c+8}, v{c+10}
    v_cvt_pk_bf16_f32 v{b}, v{b}, v{b}
    v_add_f32 v{c+12}, v{c+12}, v{c+14}
    v_and_b32 v{b}, s3, v{b}
    v_add_f32 v{c}, v{c}, v{c+4}
    v_add_f32 v{b}, {f32bits(1e-5)}, v{b}
    v_add_f32 v{c+8}, v{c+8}, v{c+12}
    v_cvt_pk_bf16_f32 v{b}, v{b}, v{b}
    v_add_f32 v{c}, v{c}, v{c+8}
    v_and_b32 v{b}, s3, v{b}
    v_sqrt_f32 v{b}, v{b}
    v_mul_f32 v{a}, -0.5, v{a}
    v_and_b32 v{c+1}, s3, v{c}
    v_cvt_pk_bf16_f32 v{b}, v{b}, v{b}
    v_sub_f32 v{c}, v{c}, v{c+1}
    v_and_b32 v{b}, s3, v{b}
    v_and_b32 v{c+2}, s3, v{c}
    v_rcp_f32 v{r_}, v{b}
    v_mul_f32 v{h_}, 0.5, v{b}
    v_sub_f32 v{c}, v{c}, v{c+2}
    v_cvt_pk_bf16_f32 v{X0}, v{a}, v{a}
    v_cvt_pk_bf16_f32 v{X0+1}, v{a}, v{h_}
    v_cvt_pk_bf16_f32 v{c+4}, v{c+1}, v{c+2}
    v_lshlrev_b32 v{hBI}, 16, v{hBI}
    v_cvt_pk_bf16_f32 v{c+5}, v{c}, v{hBI}
    s_lshl_b32 s74, s{sW4}, 8
    v_lshl_add_u32 v{A0}, v2, 3, s74
    v_lshrrev_b32 v{A0+1}, 1, v{A0}
    v_add_u32 v{A0}, {T_XP}, v{A0}
    v_add_u32 v{A0+1}, {T_RS}, v{A0+1}
    v_lshl_add_u32 v{A0+2}, v7, 10, v{A0}
    ds_write_b64 v{A0}, {vr(X0,2)}
    ds_write_b32 v{A0+1}, v{r_}
    ds_write_b32 v{A0+1}, v{b} offset:512
    ds_write_b64 v{A0+2}, {vr(c+4,2)} offset:{T_WP - T_XP}
    """)
    A("s_waitcnt lgkmcnt(0)")
    bar(0)
```

```python
from asm import *
import asm, math, os
OPT = os.environ.get('MOPT', '').split(',')
def optval(k, d):
    for o in OPT:
        if o.startswith(k + "="):
            return o.split("=")[1]
    return d
LOG2E = math.log2(math.e)

XST, WBASE, WST = 16384, 49152, 28672
VST = 1056
LDS_V = 65536
QA = LDS_V + 66 * VST
CTL = QA + 3 * 8192
LDS_BYTES = 163840
C_KV, C_Q, C_H, C_D = CTL, CTL + 64, CTL + 96, CTL + 100
T_XP, T_RS, T_WP = CTL + 128, CTL + 128 + 1024, CTL + 128 + 2048
T_PART = QA

sWAVE, sW4, sTBK, sG, sTYPE, sHEAD, sQB, sTB2, sNB, sC = range(64, 74)
SRD_K, SRD_V = 84, 88

def prologue(A):
    A("s_cmp_ge_u32 s2, 256\ns_cbranch_scc1 L_end")
    stamp(A, 0, True); stamp(A, 1)
    A(f"""
    s_load_dwordx16 s[4:19], s[0:1], 0
    s_load_dwordx4 s[20:23], s[0:1], 64
    s_load_dwordx2 s[24:25], s[0:1], 80
    s_getpc_b64 s[44:45]
    L_pc:
    s_mov_b32 s46, L_code_end-L_pc
    s_mov_b32 s47, 0x00020000
    v_lshlrev_b32 v5, 6, v0
    buffer_load_dword v253, v5, s[44:47], 0 offen
    v_and_b32 v1, 63, v0
    v_lshrrev_b32 v2, 6, v0
    v_lshlrev_b32 v3, 4, v1
    v_readfirstlane_b32 s{sWAVE}, v2
    v_mov_b32 v4, 0
    s_and_b32 s74, s2, 7
    s_lshr_b32 s75, s2, 3
    s_and_b32 s{sQB}, s75, 7
    s_and_b32 s77, s74, 1
    s_lshl_b32 s77, s77, 3
    s_add_u32 s{sTBK}, s77, s{sQB}
    s_lshr_b32 s77, s75, 3
    s_lshr_b32 s{sTYPE}, s77, 1
    s_and_b32 s78, s77, 1
    s_and_b32 s{sG}, s74, 6
    s_add_u32 s{sG}, s{sG}, s78
    s_lshl_b32 s74, s74, 2
    s_add_u32 s{sHEAD}, s74, s77
    s_and_b32 s78, s75, 3
    s_add_u32 s{sTB2}, s74, s78
    s_lshr_b32 s{sNB}, s75, 2
    """)
    rot = optval("rot", "tbk")
    if rot == "grp":
        A(f"s_lshl_b32 s{sC}, s77, 1")
    elif rot == "tbk":
        A(f"s_mov_b32 s{sC}, s{sQB}")
    elif rot == "full":
        A(f"s_lshl_b32 s{sC}, s77, 1\ns_add_u32 s{sC}, s{sC}, s{sQB}\ns_and_b32 s{sC}, s{sC}, 7")
    elif rot == "mix":
        A(f"s_lshl_b32 s{sC}, s77, 1\ns_and_b32 s78, s{sQB}, 1\ns_add_u32 s{sC}, s{sC}, s78")
    else:
        A(f"s_mov_b32 s{sC}, 0")
    A(f"""
    s_and_b32 s{sW4}, s{sWAVE}, 3
    s_mov_b32 s30, {WS_BYTES}
    s_mov_b32 s31, 0x00020000
    s_mov_b32 s3, {WS_CTL}
    v_and_b32 v2, 31, v1
    v_lshrrev_b32 v7, 5, v1
    s_cmp_lt_u32 s{sWAVE}, 4
    s_cbranch_scc1 L_m
    """)

def lanepart_tr(A, dst, t1):
    A(f"""
    v_lshlrev_b32 v{dst}, 3, v7
    v_bfe_u32 v{t1}, v1, 2, 2
    v_add_u32 v{dst}, v{dst}, v{t1}
    v_lshlrev_b32 v{dst}, 6, v{dst}
    v_bfe_u32 v{t1}, v1, 4, 1
    v_lshl_add_u32 v{dst}, v{t1}, 5, v{dst}
    v_and_b32 v{t1}, 3, v1
    v_lshl_add_u32 v{dst}, v{t1}, 3, v{dst}
    """)

XA0, XA1, WAa, WAb = 8, 12, 16, 17
FS = [20, 44]
ACC = 68
XPF, WPF, RS, SD, RT = 180, 188, 204, 206, 208
HP = 180
vFLG, vTAG = 240, 242
sP, sE, sT0, sT1 = 4, 5, 6, 7

def m_common(A, a_setup):
    A(f"""
    L_m:
    s_mov_b32 s54, 0x200000
    s_mov_b32 s55, 0x00020000
    v_bfe_u32 v24, v1, 1, 3
    v_xor_b32 v24, v24, v7
    v_lshlrev_b32 v{XA0}, 7, v2
    v_lshl_add_u32 v{XA0}, v24, 4, v{XA0}
    s_lshl_b32 s74, s{sW4}, 12
    v_add_u32 v{XA0}, s74, v{XA0}
    s_waitcnt lgkmcnt(0)
    s_mov_b32 s28, s24
    s_mov_b32 s29, s25
    s_mov_b32 s52, s4
    s_mov_b32 s53, s5
    buffer_load_dwordx2 v[{vTAG}:{vTAG+1}], v4, s[28:31], s3 offen sc1
    """)
    A("s_mov_b32 s48, s8\ns_mov_b32 s49, s9")
    A(f"""
    s_lshl_b32 s74, s{sQB}, 3
    s_lshl_b32 s75, s{sW4}, 1
    s_add_u32 s74, s74, s75
    s_mul_i32 s8, s74, {ACT_TB}
    s_lshl_b32 s75, s{sHEAD}, 10
    s_add_u32 s8, s8, s75
    s_add_u32 s8, s8, {WS_ACT}
    s_add_u32 s9, s8, {ACT_TB}
    s_lshr_b32 s{sP}, s{sW4}, 1
    s_and_b32 s{sE}, s{sW4}, 1
    s_lshl_b32 s74, s{sTBK}, 2
    s_add_u32 s{sT0}, s74, s{sW4}
    s_xor_b32 s{sT1}, s{sT0}, 1
    """)
    for ks in range(1, 4):
        A(f"v_xor_b32 v{XA0+ks}, {ks << 5}, v{XA0}")
    for ks in range(4):
        A(f"v_xor_b32 v{XA1+ks}, 0x1000, v{XA0+ks}")
    lanepart_tr(A, WAb, 24)
    for i in range(0, 112, 2):
        A(f"v_mov_b64 {vr(ACC+i,2)}, 0")
    for i in range(6):
        A(f"v_mov_b64 {vr(XPF+4*i+2,2)}, 0")
    a_setup(A)
    A(f"""
    s_waitcnt vmcnt(0)
    s_cmp_lt_u32 s2, {optval('tw', '224')}
    s_cbranch_scc1 L_m_nt
    s_cmp_lg_u32 s{sW4}, 0
    s_cbranch_scc1 L_m_nt
    v_lshlrev_b32 v24, {optval('tsh', '20')}, v1
    buffer_load_dword v253, v24, s[28:31], 0 offen
    global_load_dword v253, v4, s[48:49]
    global_load_dword v253, v4, s[14:15]
    global_load_dword v253, v4, s[16:17]
    global_load_dword v253, v4, s[18:19]
    global_load_dword v253, v4, s[20:21]
    global_load_dword v253, v4, s[22:23]
    L_m_nt:
    """)
    if 'notour' not in OPT:
        A(f"""
        s_lshl_b32 s74, s{sW4}, 1
        s_add_u32 s74, s74, s{sTYPE}
        s_mov_b64 exec, 0
        s_cmp_eq_u32 s74, 0
        s_cbranch_scc1 TOUR_mq
        s_cmp_eq_u32 s74, 1
        s_cbranch_scc1 TOUR_mf
        s_cmp_lt_u32 s74, 4
        s_cbranch_scc1 TOUR_h
        s_cmp_lt_u32 s74, 6
        s_cbranch_scc1 TOUR_a
        s_branch TOUR_f
        L_tour_ret:
        s_mov_b64 exec, -1
        """)
    else:
        A("L_tour_ret:")
    stamp(A, 11)
    A(f"""
    s_mov_b32 s10, 0
    s_mov_b32 s11, 8
    s_mov_b32 s14, {XST}
    s_mov_b32 s15, {WST}
    v_add_u32 v{vTAG}, 1, v{vTAG}
    v_add_u32 v{vTAG+1}, 1, v{vTAG+1}
    {'s_setprio 3' if optval('prio', 'm') == 'm' else 's_nop 0'}
    s_cmp_lg_u32 s{sTYPE}, 0
    s_cbranch_scc1 L_m_ffn
    """)

def m_path(A, ffn):
    nm = "ffn" if ffn else "qkv"
    ncb = 4 if ffn else 3
    def xf(s, t): return FS[s] + 4 * t
    def wf(s, c): return FS[s] + 8 + 4 * c
    blocks = [(t, c) for c in range(3) for t in range(2)] + ([(0, 3)] if ffn else [])
    def acc(i): return ACC + 16 * i
    A(f"L_m_{nm}:")
    A.region("mf" if ffn else "mq")
    if ffn:
        A(f"""
        s_mul_i32 s74, s{sE}, 12288
        s_add_u32 s74, s74, {WBASE}
        v_add_u32 v{WAa}, s74, v{WAb}
        v_add_u32 v{WAb}, {WBASE + 6*4096}, v{WAb}
        """)
    else:
        A(f"""
        s_lshl_b32 s74, s{sE}, 12
        s_add_u32 s74, s74, {WBASE}
        v_add_u32 v{WAa}, s74, v{WAb}
        s_lshl_b32 s74, s{sG}, 1
        s_add_u32 s74, s74, s{sE}
        s_lshl_b32 s74, s74, 4
        s_add_u32 s74, s74, s{sTBK}
        s_lshl_b32 s74, s74, 1
        s_add_u32 s74, s74, s{sP}
        s_lshl_b32 s74, s74, 3
        s_add_u32 s74, s74, {WS_F2}
        """)
    A(f"v_mov_b32 v{vFLG}, s74\nv_mov_b32 v{vFLG+1}, {C_H}")
    cbs = 4096 if ffn else 8192
    def reads(ks, s):
        o = [f"ds_read_b128 {vr(xf(s,0),4)}, v{XA0+ks}", f"ds_read_b128 {vr(xf(s,1),4)}, v{XA1+ks}"]
        w = []
        for c in range(ncb):
            a, off = (WAb, ks * 1024) if c == 3 else (WAa, c * cbs + ks * 1024)
            w.append([f"ds_read_b64_tr_b16 {vr(wf(s,c),2)}, v{a} offset:{off}",
                      f"ds_read_b64_tr_b16 {vr(wf(s,c)+2,2)}, v{a} offset:{off+256}"])
        return [o[0]] + w[0] + [o[1]] + [x for p in w[1:] for x in p]
    def mm(i, xr, wr):
        t, c = blocks[i]
        if (not ffn) and c == 2:
            return mfma(acc(i), xr(t), wr(c))
        return mfma(acc(i), wr(c), xr(t))
    def kstep(s, fill, first=0, per=3):
        k = 0
        for i in range(first, len(blocks)):
            A(mm(i, lambda t: xf(s, t), lambda c: wf(s, c)))
            for x in fill[k:k+per]:
                A(x)
            k += per
        for x in fill[k:]:
            A(x)
    stamp(A, 2)
    A("s_barrier")
    stamp(A, 3)
    for r in reads(0, 0):
        A(r)
    A(f".p2align 6\nL_m_{nm}_loop:")
    for ks in range(3):
        s = ks & 1
        A("s_waitcnt lgkmcnt(0)")
        fill = reads(ks + 1, 1 - s)
        if ks == 0:
            fill = fill + ["s_add_u32 s10, s10, 1", "s_cmp_eq_u32 s10, 3", f"s_cselect_b32 s12, {-2*XST}, s14", f"s_cselect_b32 s13, {-2*WST}, s15", "s_cselect_b32 s10, 0, s10"]
        if ks == 2:
            fill = fill + ["s_sub_u32 s11, s11, 1", "s_cmp_eq_u32 s11, 0"]
        kstep(s, fill)
    A("s_waitcnt lgkmcnt(0)")
    A(mm(0, lambda t: xf(1, t), lambda c: wf(1, c)))
    A(f"s_barrier\ns_cbranch_scc1 L_m_{nm}_last")
    upd = [f"v_add_u32 v{XA0}, s12, v{XA0}", f"v_add_u32 v{WAa}, s13, v{WAa}", f"v_add_u32 v{XA1}, s12, v{XA1}"]
    if ffn:
        upd.append(f"v_add_u32 v{WAb}, s13, v{WAb}")
    for x in upd:
        A(x)
    upd2 = [f"v_add_u32 v{b+k}, s12, v{b+k}" for k in range(1, 4) for b in (XA0, XA1)]
    kstep(1, reads(0, 0) + upd2, first=1)
    A(f"s_branch L_m_{nm}_loop\nL_m_{nm}_last:")
    fill = f"""
    s_lshl_b32 s74, s{sW4}, 8
    v_lshl_add_u32 v{XA0}, v2, 3, s74
    v_xor_b32 v{XA0+1}, 0x100, v{XA0}
    v_lshrrev_b32 v{XA0+2}, 1, v{XA0}
    v_lshrrev_b32 v{XA0+3}, 1, v{XA0+1}
    s_mul_i32 s74, s{sE}, {768 if ffn else 256}
    v_lshl_add_u32 v{XA1}, v2, 3, s74
    v_add_u32 v{XA0}, {T_XP}, v{XA0}
    v_add_u32 v{XA0+1}, {T_XP}, v{XA0+1}
    v_add_u32 v{XA0+2}, {T_RS}, v{XA0+2}
    v_add_u32 v{XA0+3}, {T_RS}, v{XA0+3}
    v_add_u32 v{XA1}, {T_WP}, v{XA1}
    """
    if ffn:
        fill += f"""
        v_lshlrev_b32 v{XA1+1}, 3, v2
        v_add_u32 v{XA1+1}, {T_WP + 6*256}, v{XA1+1}
        s_lshl_b32 s74, s{sW4}, 10
        s_add_u32 s74, s74, 32768
        v_add_u32 v{WAa}, s74, v3
        s_mul_i32 s74, s{sW4}, {VST}
        s_add_u32 s74, s74, {LDS_V + 32*VST}
        v_add_u32 v{WAb}, s74, v3
        """
    else:
        fill += f"""
        s_lshl_b32 s74, s{sW4}, 7
        v_lshl_add_u32 v{XA1+2}, v7, 4, s74
        v_xor_b32 v{XA1+3}, 0x80, v{XA1+2}
        v_add_u32 v{XA1+2}, {T_RS}, v{XA1+2}
        v_add_u32 v{XA1+3}, {T_RS}, v{XA1+3}
        s_lshl_b32 s74, s{sG}, 1
        s_add_u32 s74, s74, s{sE}
        s_lshl_b32 s74, s74, 17
        s_lshl_b32 s12, s{sT0}, 10
        s_add_u32 s12, s12, s74
        s_lshl_b32 s13, s{sT1}, 10
        s_add_u32 s13, s13, s74
        """
    fill = [l.strip() for l in fill.split("\n") if l.strip()]
    rd = [f"ds_read_b64 {vr(XPF,2)}, v{XA0}", f"ds_read_b64 {vr(XPF+4,2)}, v{XA0+1}"]
    for c in range(3):
        rd.append(f"ds_read_b64 {vr(WPF+4*c,2)}, v{XA1} offset:{c*(256 if ffn else 512)}")
    if ffn:
        rd.append(f"ds_read_b64 {vr(WPF+12,2)}, v{XA1+1}")
    nfr = len(rd)
    rd += [f"ds_read_b32 v{RS}, v{XA0+2}", f"ds_read_b32 v{RS+1}, v{XA0+3}"]
    if ffn:
        rd += [f"ds_read_b32 v{SD}, v{XA0+2} offset:512", f"ds_read_b32 v{SD+1}, v{XA0+3} offset:512"]
    else:
        for t in range(2):
            for gq in range(4):
                rd.append(f"ds_read_b128 {vr(RT+16*t+4*gq,4)}, v{XA1+2+t} offset:{gq*32}")
    nv = 14 if ffn else 17
    for x in fill[:5]:
        A(x)
    kstep(1, fill[5:nv] + rd + fill[nv:], first=1, per=6)
    A(f"s_waitcnt lgkmcnt({len(rd) - nfr})")
    stamp(A, 4)
    order = list(range(len(blocks)))
    if not ffn:
        order = [2, 3, 4, 5, 0, 1]
    PK = FS[0]
    for n, i in enumerate(order):
        A(mm(i, lambda t: XPF + 4*t, lambda c: WPF + 4*c))
        if n == 0:
            A("s_waitcnt lgkmcnt(0)")
    if not ffn:
        A(f"""
        v_mov_b32 v{XA1}, v{RS}
        v_mov_b32 v{XA1+1}, v{RS}
        v_mov_b32 v{XA1+2}, v{RS+1}
        v_mov_b32 v{XA1+3}, v{RS+1}
        v_mul_f32 v{RS}, {f32bits(LOG2E/4)}, v{XA1}
        v_mul_f32 v{RS+1}, {f32bits(LOG2E/4)}, v{XA1}
        v_mul_f32 v{RS+2}, {f32bits(LOG2E/4)}, v{XA1+2}
        v_mul_f32 v{RS+3}, {f32bits(LOG2E/4)}, v{XA1+2}
        v_bfe_u32 v{XA0}, v1, 4, 1
        v_lshlrev_b32 v{XA0}, 16, v{XA0}
        v_lshl_add_u32 v{XA0}, v7, 8, v{XA0}
        v_and_b32 v{XA0+1}, 15, v1
        v_lshl_add_u32 v{XA0}, v{XA0+1}, 4, v{XA0}
        """)
        for n, i in enumerate(order):
            t, c = blocks[i]
            a, pk = acc(i), PK + 8 * n
            for r in range(0, 16, 2):
                sc = (RS + 2*t, XA1 + 2*t, RT + 16*t + r)[c]
                A(f"v_pk_mul_f32 {vr(a+r,2)}, {vr(a+r,2)}, {vr(sc,2)}")
            for r in range(0, 16, 2):
                A(f"v_cvt_pk_bf16_f32 v{pk+r//2}, v{a+r}, v{a+r+1}")
            if c < 2:
                for hh in range(2):
                    A(f"s_add_u32 s74, s{12+t}, {c*(2<<20) + hh*65536}")
                    A(f"buffer_store_dwordx4 {vr(pk+4*hh,4)}, v3, s[28:31], s74 offen sc1")
            else:
                A(f"s_add_u32 s74, s{12+t}, {WS_V}")
                for m2 in range(2):
                    A(f"buffer_store_dwordx4 {vr(pk+4*m2,4)}, v{XA0}, s[28:31], s74 offen offset:{m2*512} sc1")
        stamp(A, 5)
        A("s_waitcnt vmcnt(0)")
        stamp(A, 10)
        A(f"""
        s_mov_b64 exec, 1
        buffer_store_dwordx2 v[{vTAG}:{vTAG+1}], v{vFLG}, s[28:31], 0 offen sc1
        ds_add_u32 v{vFLG+1}, v19
        s_mov_b64 exec, -1
        s_branch L_a
        """)
    else:
        c1 = -2.0 * LOG2E * math.sqrt(2.0 / math.pi)
        c3 = c1 * 0.044715
        K1, K3, SP = XA0, XA1, FS[0]
        for t in range(2):
            A(f"""
            v_mul_f32 v{K1+2*t}, {f32bits(c1)}, v{RS+t}
            v_mul_f32 v{K3+2*t}, v{RS+t}, v{RS+t}
            v_mul_f32 v{K3+2*t}, v{K3+2*t}, v{RS+t}
            v_mul_f32 v{K3+2*t}, {f32bits(c3)}, v{K3+2*t}
            v_mov_b32 v{K1+2*t+1}, v{K1+2*t}
            v_mov_b32 v{K3+2*t+1}, v{K3+2*t}
            v_mov_b32 v{SP+2*t}, v{SD+t}
            v_mov_b32 v{SP+2*t+1}, v{SD+t}
            """)
        GB = [FS[0] + 4, FS[1]]
        p2 = lambda r: vr(r, 2)
        ops = []
        def add(kind, text, deps=()):
            ops.append((kind, text, [d for d in deps if d is not None])); return len(ops) - 1
        last_mul = {}
        for n, (t, c) in enumerate(blocks):
            a, pk, G = acc(n), HP + 8 * (n & 1), GB[n & 1]
            prev = last_mul.get(n - 2, {})
            pw = last_mul.get(("w", n - 2), [None, None])
            z, e, d_, r_, m_ = {}, {}, {}, {}, {}
            for r in range(0, 16, 2):
                z[r] = add("N", f"v_pk_mul_f32 {p2(G+r)}, {p2(a+r)}, {p2(a+r)}", [prev.get(r)])
            for r in range(0, 16, 2):
                z[r] = add("N", f"v_pk_fma_f32 {p2(G+r)}, {p2(G+r)}, {p2(K3+2*t)}, {p2(K1+2*t)}", [z[r]])
            for r in range(0, 16, 2):
                z[r] = add("N", f"v_pk_mul_f32 {p2(G+r)}, {p2(G+r)}, {p2(a+r)}", [z[r]])
            for r in range(16):
                e[r] = add("T", f"v_exp_f32 v{G+r}, v{G+r}", [z[r & ~1]])
            for r in range(0, 16, 2):
                d_[r] = add("H", f"v_pk_fma_f32 {p2(G+r)}, {p2(G+r)}, {p2(SP+2*t)}, {p2(SP+2*t)}", [e[r], e[r+1]])
            for r in range(16):
                r_[r] = add("T", f"v_rcp_f32 v{G+r}, v{G+r}", [d_[r & ~1]])
            cv_ = []
            for r in range(0, 16, 2):
                m_[r] = add("H", f"v_pk_mul_f32 {p2(a+r)}, {p2(a+r)}, {p2(G+r)}", [r_[r], r_[r+1]])
                cv_.append(add("H", f"v_cvt_pk_bf16_f32 v{pk+r//2}, v{a+r}, v{a+r+1}", [m_[r], pw[r // 8]]))
            last_mul[n] = m_
            w = []
            for hh in range(2):
                va, off = h_slot(2 * n + hh)
                w.append(add("H", f"ds_write_b128 v{(WAa, WAb)[va]}, {vr(pk+4*hh,4)} offset:{off}", cv_[4*hh:4*hh+4]))
            last_mul[("w", n)] = w
            if n == int(optval("sig", "2")):
                add("H", f"s_mov_b64 exec, 1\nds_add_u32 v{vFLG+1}, v19\ns_mov_b64 exec, -1", w)
        done, pos, out, lastT = {}, 0, [], False
        pend = list(range(len(ops)))
        def ready(i):
            return all(d in done and pos - done[d] >= 3 for d in ops[i][2])
        while pend:
            pick = None
            for kinds in ((("H", "N"), ("T",)) if lastT else (("T",), ("H", "N"))):
                for k in kinds:
                    c_ = [i for i in pend if ops[i][0] == k]
                    c_ = c_[:1] if k != "H" else c_[:24]
                    pick = next((i for i in c_ if ready(i)), None)
                    if pick is not None:
                        break
                if pick is not None:
                    break
            if pick is None:
                A("s_nop 0"); pos += 1; lastT = False
                continue
            A(ops[pick][1]); done[pick] = pos; pos += 1
            pend.remove(pick)
            nT = sum(1 for i in done if ops[i][0] == "T"); nN = len(done) - nT
            lastT = ops[pick][0] == "T" or (2 * (nN - 24) < 3 * nT - 2 and any(ops[i][0] != "T" and ready(i) for i in pend[:80]))
        stamp(A, 5)

def h_slot(i):
    return (0, i * 4096) if i < 8 else (1, (i - 8) * 4 * VST)

hXD, hWD, hRA, hGA, hGC, hEP = 224, 226, 227, 228, 229, 230
hWR, hXR, hGR, hGX, hBI, hT = 96, 128, 136, 152, 156, 160

def xstamp(A, lane):
    if asm.STAMPS:
        A(f"s_memtime s[80:81]\ns_waitcnt lgkmcnt(0)\nv_writelane_b32 v252, s80, {lane}")

def dma_sub(A):
    A(f"""
    L_dma:
    s_lshl_b32 s74, s{sC}, 7
    s_add_u32 s75, s74, 16384
    s_mul_i32 s76, s{sC}, s97
    s_add_u32 s{sC}, s{sC}, 1
    s_and_b32 s{sC}, s{sC}, 7
    s_cmp_lg_u32 s{sTYPE}, 0
    s_cbranch_scc1 L_dma_ffn
    """)
    for ffn in (False, True):
        if ffn:
            A("L_dma_ffn:")
        imms = [c * 64 for c in range(7)] if ffn else [0, 64, 1024, 1088, 2048, 2112]
        ops = [("x", a) for a in range(4)] + [("w", c) for c in range(len(imms))]
        ops = [ops[0], ops[4], ops[5], ops[1], ops[6], ops[7], ops[2], ops[8], ops[9], ops[3]] + ops[10:]
        for k, j in ops:
            if k == "x":
                A(f"s_add_u32 m0, s92, {j*1024}\ns_nop 0\nbuffer_load_dwordx4 v{hXD + (j & 1)}, s[32:35], s{74 + (j >> 1)} offen lds")
            else:
                A(f"s_add_u32 m0, s93, {j*4096 - imms[j]}\ns_nop 0\nbuffer_load_dwordx4 v{hWD}, s[36:39], s76 offen offset:{imms[j]} lds")
        if not ffn:
            A("s_branch L_dma_adv")
    A(f"""
    L_dma_adv:
    s_add_u32 s95, s95, 1
    s_cmp_eq_u32 s95, 3
    s_cselect_b32 s95, 0, s95
    s_cselect_b32 s74, {-2*XST}, s98
    s_cselect_b32 s75, {-2*WST}, s99
    s_add_u32 s92, s92, s74
    s_add_u32 s93, s93, s75
    s_setpc_b64 s[100:101]
    """)

def h_all(A, f_setup):
    CALL = "s_call_b64 s[100:101], L_dma"
    if optval('prio', 'm') == 'h':
        A("s_setprio 3")
    A(f"""
    v_lshrrev_b32 v8, 3, v1
    s_lshl_b32 s74, s{sW4}, 5
    v_add_u32 v8, s74, v8
    v_lshlrev_b32 v8, 10, v8
    v_and_b32 v9, 7, v1
    v_lshrrev_b32 v10, 4, v1
    v_xor_b32 v9, v9, v10
    v_lshl_add_u32 v{hXD}, v9, 4, v8
    v_xor_b32 v9, 4, v9
    v_lshl_add_u32 v{hXD+1}, v9, 4, v8
    v_add_u32 v{hXD+1}, 0x2000, v{hXD+1}
    v_lshrrev_b32 v8, 2, v1
    s_lshl_b32 s74, s{sW4}, 4
    v_add_u32 v8, s74, v8
    v_and_b32 v9, 3, v1
    v_lshlrev_b32 v9, 4, v9
    s_mov_b32 s34, 0x20000
    s_mov_b32 s35, 0x00020000
    s_mov_b32 s39, 0x00020000
    s_lshl_b32 s75, s{sTBK}, 17
    s_lshl_b32 s92, s{sW4}, 12
    s_lshl_b32 s93, s{sW4}, 10
    s_add_u32 s93, s93, {WBASE}
    s_mov_b32 s95, 0
    s_mov_b32 s98, {XST}
    s_mov_b32 s99, {WST}
    s_lshl_b32 s96, s{sC}, 9
    s_lshl_b32 s94, s{sTYPE}, 3
    s_add_u32 s94, s94, s{sG}
    s_lshl_b32 s79, s{sG}, 2
    s_add_u32 s79, s79, s{sW4}
    s_lshl_b32 s79, s79, 12
    s_movk_i32 s76, 3072
    s_movk_i32 s74, 128
    s_cmp_lg_u32 s{sTYPE}, 0
    s_cselect_b32 s76, 3584, s76
    s_cselect_b32 s74, 448, s74
    s_cselect_b32 s42, s76, 0
    s_mul_i32 s74, s74, s{sG}
    s_lshl_b32 s97, s76, 6
    s_lshl_b32 s38, s76, 9
    s_sub_u32 s38, s38, s74
    v_mul_lo_u32 v{hWD}, v8, s76
    v_add_u32 v{hWD}, v{hWD}, v9
    s_cmp_lg_u32 s{sTYPE}, 0
    s_waitcnt lgkmcnt(0)
    s_cselect_b32 s36, s12, s6
    s_cselect_b32 s37, s13, s7
    s_add_u32 s36, s36, s74
    s_addc_u32 s37, s37, 0
    s_mov_b32 s28, s24
    s_mov_b32 s29, s25
    s_add_u32 s32, s4, s75
    s_addc_u32 s33, s5, 0
    buffer_load_dwordx2 v[{hEP}:{hEP+1}], v4, s[28:31], s3 offen sc1
    s_cmp_lg_u32 s{sTYPE}, 0
    s_cbranch_scc1 L_h_rows
    {CALL}
    s_branch L_h_su
    L_h_rows:
    buffer_load_dwordx4 {vr(hWR,4)}, v3, s[32:35], s79 offen
    buffer_load_dwordx4 {vr(hWR+4,4)}, v3, s[32:35], s79 offen offset:1024
    buffer_load_dwordx4 {vr(hWR+8,4)}, v3, s[32:35], s79 offen offset:2048
    buffer_load_dwordx4 {vr(hWR+12,4)}, v3, s[32:35], s79 offen offset:3072
    L_h_su:
    """)
    xstamp(A, 8)
    lanepart_tr(A, hRA, 8)
    A(f"""
    s_lshl_b32 s74, s{sW4}, 12
    s_add_u32 s75, s74, {WBASE}
    v_add_u32 v{hRA}, s75, v{hRA}
    s_lshl_b32 s75, s94, 1
    s_lshr_b32 s76, s{sTBK}, 3
    s_add_u32 s75, s75, s76
    s_lshl_b32 s75, s75, 14
    s_add_u32 s75, s75, s74
    s_add_u32 s75, s75, {WS_CG}
    v_lshl_add_u32 v{hGC}, v1, 3, s75
    s_lshl_b32 s74, s{sTBK}, 2
    s_add_u32 s74, s74, s{sW4}
    s_lshl_b32 s74, s74, 9
    s_add_u32 s74, s74, {WS_XG}
    v_lshl_add_u32 v{hGA}, v2, 4, s74
    v_mov_b32 v8, {CTL}
    v_lshl_add_u32 v8, v2, 2, v8
    v_mov_b32 v9, 4
    v_cmp_eq_u32 vcc, 8, v2
    s_mov_b32 s40, s14
    s_mov_b32 s41, s15
    v_cndmask_b32 v9, 0, v9, vcc
    ds_write_b32 v8, v9
    s_mov_b32 s43, 0x00020000
    s_mov_b32 s3, 0xffff0000
    s_lshr_b32 s79, s79, 6
    s_lshl_b32 s74, s{sTBK}, 11
    s_add_u32 s79, s79, s74
    s_add_u32 s79, s79, {WS_XG}
    """)
    f_setup(A)
    A.region("h")
    S0, Q0, S1, Q1, t0, t1, t2 = hT, hT + 1, hT + 2, hT + 3, hT + 4, hT + 5, hT + 6
    A(f"""
    s_cmp_eq_u32 s{sTYPE}, 0
    s_cbranch_scc1 L_h_nst
    v_bfe_u32 v{t2}, v1, 4, 1
    v_cmp_eq_u32 vcc, 1, v{t2}
    v_lshrrev_b32 v{t2}, 4, v1
    v_lshlrev_b32 v{t2}, 3, v{t2}
    {CALL if optval("c0", "early") == "su" else "s_nop 0"}
    s_waitcnt vmcnt({11 if optval("c0", "early") == "su" else 0})
    v_cndmask_b32 v{hT+9}, v{hEP}, v{hEP+1}, vcc
    v_add_u32 v{hT+9}, 1, v{hT+9}
    v_mov_b32 v{hT+11}, v{hT+9}
    """)
    xstamp(A, 9)
    if optval("c0", "early") == "early":
        A(CALL)
    for pair in range(2):
        for row, (s_, q_) in enumerate(((S0, Q0), (S1, Q1))):
            for r in range(4):
                x = hWR + 8 * pair + 4 * row + r
                A(f"v_lshlrev_b32 v{t0}, 16, v{x}\nv_and_b32 v{t1}, s3, v{x}")
                if r == 0:
                    A(f"v_add_f32 v{s_}, v{t0}, v{t1}\nv_mul_f32 v{q_}, v{t0}, v{t0}\nv_fmac_f32 v{q_}, v{t1}, v{t1}")
                else:
                    A(f"v_add_f32 v{s_}, v{s_}, v{t0}\nv_fmac_f32 v{q_}, v{t0}, v{t0}\nv_add_f32 v{s_}, v{s_}, v{t1}\nv_fmac_f32 v{q_}, v{t1}, v{t1}")
        z = hT + 8 + 2 * pair
        A(f"""
        s_nop 0
        v_permlane32_swap_b32 v{S0}, v{S1}
        v_permlane32_swap_b32 v{Q0}, v{Q1}
        s_nop 0
        v_add_f32 v{S0}, v{S0}, v{S1}
        v_add_f32 v{Q0}, v{Q0}, v{Q1}
        s_nop 1
        v_permlane16_swap_b32 v{S0}, v{Q0}
        s_nop 0
        v_add_f32 v{z}, v{S0}, v{Q0}
        """)
    A("s_nop 0")
    for sh in (8, 4, 2, 1):
        A(f"v_add_f32_dpp v{hT+8}, v{hT+8}, v{hT+8} row_ror:{sh} row_mask:0xf bank_mask:0xf")
        A(f"v_add_f32_dpp v{hT+10}, v{hT+10}, v{hT+10} row_ror:{sh} row_mask:0xf bank_mask:0xf\ns_nop 0")
    if optval("c0", "early") == "late":
        A(CALL)
    A(f"""
    s_mov_b32 exec_lo, 0x00010001
    s_mov_b32 exec_hi, 0x00010001
    buffer_store_dwordx2 v[{hT+8}:{hT+9}], v{t2}, s[28:31], s79 offen sc1
    buffer_store_dwordx2 v[{hT+10}:{hT+11}], v{t2}, s[28:31], s79 offen offset:32 sc1
    s_mov_b64 exec, -1
    {CALL}
    s_waitcnt vmcnt(13)
    s_branch L_h_st
    L_h_nst:
    {CALL}
    s_waitcnt vmcnt(10)
    L_h_st:
    s_mov_b64 exec, -1
    v_add_u32 v{hEP}, 1, v{hEP}
    v_add_u32 v{hEP+1}, 1, v{hEP+1}
    v_cmp_eq_u32 vcc, 1, v7
    v_readfirstlane_b32 s26, v{hEP}
    v_readfirstlane_b32 s27, v{hEP+1}
    v_cndmask_b32 v{hEP}, v{hEP}, v{hEP+1}, vcc
    """)
    nb = [0]
    def bar(n):
        A(f"s_waitcnt vmcnt({n})\ns_barrier")
        if nb[0] >= 1:
            xstamp(A, 8 - nb[0])
        nb[0] += 1
    stamp(A, 2)
    bar(13)
    stamp(A, 3)
    for half in range(2):
        for ks in range(4):
            o = half * 16384 + ks * 1024
            A(f"ds_read_b64_tr_b16 {vr(hWR+16*half+4*ks,2)}, v{hRA} offset:{o}\nds_read_b64_tr_b16 {vr(hWR+16*half+4*ks+2,2)}, v{hRA} offset:{o+256}")
        if half == 0:
            A("s_waitcnt lgkmcnt(4)")
    A(CALL)
    C0, C1 = hT, hT + 2
    def colsum(base, c):
        for r in range(16):
            if r == 0:
                A(f"v_lshlrev_b32 v{c}, 16, v{base}\nv_and_b32 v{c+1}, s3, v{base}")
            else:
                A(f"v_lshlrev_b32 v{t0}, 16, v{base+r}\nv_and_b32 v{t1}, s3, v{base+r}\nv_add_f32 v{c}, v{c}, v{t0}\nv_add_f32 v{c+1}, v{c+1}, v{t1}")
        A(f"v_add_f32 v{c}, v{c}, v{c+1}")
    A("s_waitcnt lgkmcnt(0)")
    colsum(hWR, C0)
    bar(10)
    A(CALL)
    colsum(hWR + 16, C1)
    A(f"""
    v_mov_b32 v{C0+1}, v{hEP}
    s_nop 0
    v_permlane32_swap_b32 v{C0}, v{C1}
    s_nop 0
    v_add_f32 v{C0}, v{C0}, v{C1}
    buffer_store_dwordx2 v[{C0}:{C0+1}], v{hGC}, s[28:31], s96 offen sc1
    """)
    def gather(lo=0, hi=9):
        for c in range(lo, min(hi, 8)):
            A(f"buffer_load_dwordx2 {vr(hGR+2*c,2)}, v{hGC}, s[28:31], 0 offen offset:{c*512} sc1")
        if hi == 9:
            A(f"buffer_load_dwordx4 {vr(hGX,4)}, v{hGA}, s[28:31], 0 offen sc1")
    bar(11)
    A(CALL)
    bar(10)
    A(CALL)
    gather(8, 9)
    A(f"""
    s_mul_i32 s74, s{sG}, 448
    s_lshl_b32 s75, s{sW4}, 6
    s_add_u32 s74, s74, s75
    v_lshlrev_b32 v{t0}, 1, v2
    v_lshl_add_u32 v{t0}, v7, 8, v{t0}
    buffer_load_ushort v{hBI}, v{t0}, s[40:43], s74 offen
    """)
    bar(12)
    A(CALL)
    gather(0, 4)
    bar(16)
    A(CALL)
    gather(4, 8)
    bar(18)
    bar(4)
    A("s_waitcnt vmcnt(0)")
    A(f"""
    s_mov_b32 s79, 0x4000
    L_h_chk:
    v_xor_b32 v{hGX+1}, s26, v{hGX+1}
    v_xor_b32 v{hGX+3}, s27, v{hGX+3}
    v_or_b32 v{t0}, v{hGX+1}, v{hGX+3}
    """)
    for c in range(8):
        A(f"v_xor_b32 v{hGR+2*c+1}, v{hEP}, v{hGR+2*c+1}")
    for c in range(0, 8, 2):
        A(f"v_or3_b32 v{t0}, v{t0}, v{hGR+2*c+1}, v{hGR+2*c+3}")
    A(f"""
    v_cmp_ne_u32 vcc, 0, v{t0}
    s_sub_u32 s79, s79, 1
    s_cmp_eq_u32 s79, 0
    s_cbranch_scc1 L_h_got
    s_cbranch_vccz L_h_got
    """)
    gather()
    A("s_waitcnt vmcnt(0)\ns_branch L_h_chk\nL_h_got:")
    a, b, r_, h_, X0, A0 = hWR, hWR + 1, hWR + 2, hWR + 3, hWR + 4, hWR + 6
    c = hGR
    A(f"""
    s_mov_b32 s74, {f32bits(1.0/512)}
    v_mul_f32 v{a}, s74, v{hGX}
    v_mul_f32 v{b}, s74, v{hGX+2}
    v_add_f32 v{c}, v{c}, v{c+2}
    v_fma_f32 v{b}, -v{a}, v{a}, v{b}
    v_add_f32 v{c+4}, v{c+4}, v{c+6}
    v_max_f32 v{b}, 0, v{b}
    v_add_f32 v{c+8}, v{c+8}, v{c+10}
    v_cvt_pk_bf16_f32 v{b}, v{b}, v{b}
    v_add_f32 v{c+12}, v{c+12}, v{c+14}
    v_and_b32 v{b}, s3, v{b}
    v_add_f32 v{c}, v{c}, v{c+4}
    v_add_f32 v{b}, {f32bits(1e-5)}, v{b}
    v_add_f32 v{c+8}, v{c+8}, v{c+12}
    v_cvt_pk_bf16_f32 v{b}, v{b}, v{b}
    v_add_f32 v{c}, v{c}, v{c+8}
    v_and_b32 v{b}, s3, v{b}
    v_sqrt_f32 v{b}, v{b}
    v_mul_f32 v{a}, -0.5, v{a}
    v_and_b32 v{c+1}, s3, v{c}
    v_cvt_pk_bf16_f32 v{b}, v{b}, v{b}
    v_sub_f32 v{c}, v{c}, v{c+1}
    v_and_b32 v{b}, s3, v{b}
    v_and_b32 v{c+2}, s3, v{c}
    v_rcp_f32 v{r_}, v{b}
    v_mul_f32 v{h_}, 0.5, v{b}
    v_sub_f32 v{c}, v{c}, v{c+2}
    v_cvt_pk_bf16_f32 v{X0}, v{a}, v{a}
    v_cvt_pk_bf16_f32 v{X0+1}, v{a}, v{h_}
    v_cvt_pk_bf16_f32 v{c+4}, v{c+1}, v{c+2}
    v_lshlrev_b32 v{hBI}, 16, v{hBI}
    v_cvt_pk_bf16_f32 v{c+5}, v{c}, v{hBI}
    s_lshl_b32 s74, s{sW4}, 8
    v_lshl_add_u32 v{A0}, v2, 3, s74
    v_lshrrev_b32 v{A0+1}, 1, v{A0}
    v_add_u32 v{A0}, {T_XP}, v{A0}
    v_add_u32 v{A0+1}, {T_RS}, v{A0+1}
    v_lshl_add_u32 v{A0+2}, v7, 10, v{A0}
    ds_write_b64 v{A0}, {vr(X0,2)}
    ds_write_b32 v{A0+1}, v{r_}
    ds_write_b32 v{A0+1}, v{b} offset:512
    ds_write_b64 v{A0+2}, {vr(c+4,2)} offset:{T_WP - T_XP}
    """)
    A("s_waitcnt lgkmcnt(0)")
    bar(0)
```

```python
from asm import *
import asm, math, os
OPT = os.environ.get('MOPT', '').split(',')
def optval(k, d):
    for o in OPT:
        if o.startswith(k + "="):
            return o.split("=")[1]
    return d
LOG2E = math.log2(math.e)

XST, WBASE, WST = 16384, 49152, 28672
VST = 1056
LDS_V = 65536
QA = LDS_V + 66 * VST
CTL = QA + 3 * 8192
LDS_BYTES = 163840
C_KV, C_Q, C_H, C_D = CTL, CTL + 64, CTL + 96, CTL + 100
T_XP, T_RS, T_WP = CTL + 128, CTL + 128 + 1024, CTL + 128 + 2048
T_PART = QA

sWAVE, sW4, sTBK, sG, sTYPE, sHEAD, sQB, sTB2, sNB, sC = range(64, 74)
SRD_K, SRD_V = 84, 88

def prologue(A):
    A("s_cmp_ge_u32 s2, 256\ns_cbranch_scc1 L_end")
    stamp(A, 0, True); stamp(A, 1)
    A(f"""
    s_load_dwordx16 s[4:19], s[0:1], 0
    s_load_dwordx4 s[20:23], s[0:1], 64
    s_load_dwordx2 s[24:25], s[0:1], 80
    s_getpc_b64 s[44:45]
    L_pc:
    s_mov_b32 s46, L_code_end-L_pc
    s_mov_b32 s47, 0x00020000
    v_lshlrev_b32 v5, 6, v0
    buffer_load_dword v253, v5, s[44:47], 0 offen
    v_and_b32 v1, 63, v0
    v_lshrrev_b32 v2, 6, v0
    v_lshlrev_b32 v3, 4, v1
    v_readfirstlane_b32 s{sWAVE}, v2
    v_mov_b32 v4, 0
    s_and_b32 s74, s2, 7
    s_lshr_b32 s75, s2, 3
    s_and_b32 s{sQB}, s75, 7
    s_and_b32 s77, s74, 1
    s_lshl_b32 s77, s77, 3
    s_add_u32 s{sTBK}, s77, s{sQB}
    s_lshr_b32 s77, s75, 3
    s_lshr_b32 s{sTYPE}, s77, 1
    s_and_b32 s78, s77, 1
    s_and_b32 s{sG}, s74, 6
    s_add_u32 s{sG}, s{sG}, s78
    s_lshl_b32 s74, s74, 2
    s_add_u32 s{sHEAD}, s74, s77
    s_and_b32 s78, s75, 3
    s_add_u32 s{sTB2}, s74, s78
    s_lshr_b32 s{sNB}, s75, 2
    """)
    rot = optval("rot", "tbk")
    if rot == "grp":
        A(f"s_lshl_b32 s{sC}, s77, 1")
    elif rot == "tbk":
        A(f"s_mov_b32 s{sC}, s{sQB}")
    elif rot == "full":
        A(f"s_lshl_b32 s{sC}, s77, 1\ns_add_u32 s{sC}, s{sC}, s{sQB}\ns_and_b32 s{sC}, s{sC}, 7")
    elif rot == "mix":
        A(f"s_lshl_b32 s{sC}, s77, 1\ns_and_b32 s78, s{sQB}, 1\ns_add_u32 s{sC}, s{sC}, s78")
    else:
        A(f"s_mov_b32 s{sC}, 0")
    A(f"""
    s_and_b32 s{sW4}, s{sWAVE}, 3
    s_mov_b32 s30, {WS_BYTES}
    s_mov_b32 s31, 0x00020000
    s_mov_b32 s3, {WS_CTL}
    v_and_b32 v2, 31, v1
    v_lshrrev_b32 v7, 5, v1
    s_cmp_lt_u32 s{sWAVE}, 4
    s_cbranch_scc1 L_m
    """)

def lanepart_tr(A, dst, t1):
    A(f"""
    v_lshlrev_b32 v{dst}, 3, v7
    v_bfe_u32 v{t1}, v1, 2, 2
    v_add_u32 v{dst}, v{dst}, v{t1}
    v_lshlrev_b32 v{dst}, 6, v{dst}
    v_bfe_u32 v{t1}, v1, 4, 1
    v_lshl_add_u32 v{dst}, v{t1}, 5, v{dst}
    v_and_b32 v{t1}, 3, v1
    v_lshl_add_u32 v{dst}, v{t1}, 3, v{dst}
    """)

XA0, XA1, WAa, WAb = 8, 12, 16, 17
FS = [20, 44]
ACC = 68
XPF, WPF, RS, SD, RT = 180, 188, 204, 206, 208
HP = 180
vFLG, vTAG = 240, 242
sP, sE, sT0, sT1 = 4, 5, 6, 7

def m_common(A, a_setup):
    A(f"""
    L_m:
    s_mov_b32 s54, 0x200000
    s_mov_b32 s55, 0x00020000
    v_bfe_u32 v24, v1, 1, 3
    v_xor_b32 v24, v24, v7
    v_lshlrev_b32 v{XA0}, 7, v2
    v_lshl_add_u32 v{XA0}, v24, 4, v{XA0}
    s_lshl_b32 s74, s{sW4}, 12
    v_add_u32 v{XA0}, s74, v{XA0}
    s_waitcnt lgkmcnt(0)
    s_mov_b32 s28, s24
    s_mov_b32 s29, s25
    s_mov_b32 s52, s4
    s_mov_b32 s53, s5
    buffer_load_dwordx2 v[{vTAG}:{vTAG+1}], v4, s[28:31], s3 offen sc1
    """)
    A("s_mov_b32 s48, s8\ns_mov_b32 s49, s9")
    A(f"""
    s_lshl_b32 s74, s{sQB}, 3
    s_lshl_b32 s75, s{sW4}, 1
    s_add_u32 s74, s74, s75
    s_mul_i32 s8, s74, {ACT_TB}
    s_lshl_b32 s75, s{sHEAD}, 10
    s_add_u32 s8, s8, s75
    s_add_u32 s8, s8, {WS_ACT}
    s_add_u32 s9, s8, {ACT_TB}
    s_lshr_b32 s{sP}, s{sW4}, 1
    s_and_b32 s{sE}, s{sW4}, 1
    s_lshl_b32 s74, s{sTBK}, 2
    s_add_u32 s{sT0}, s74, s{sW4}
    s_xor_b32 s{sT1}, s{sT0}, 1
    """)
    for ks in range(1, 4):
        A(f"v_xor_b32 v{XA0+ks}, {ks << 5}, v{XA0}")
    for ks in range(4):
        A(f"v_xor_b32 v{XA1+ks}, 0x1000, v{XA0+ks}")
    lanepart_tr(A, WAb, 24)
    for i in range(0, 112, 2):
        A(f"v_mov_b64 {vr(ACC+i,2)}, 0")
    for i in range(6):
        A(f"v_mov_b64 {vr(XPF+4*i+2,2)}, 0")
    a_setup(A)
    A(f"""
    s_waitcnt vmcnt(0)
    s_cmp_lt_u32 s2, {optval('tw', '224')}
    s_cbranch_scc1 L_m_nt
    s_cmp_lg_u32 s{sW4}, 0
    s_cbranch_scc1 L_m_nt
    v_lshlrev_b32 v24, {optval('tsh', '20')}, v1
    buffer_load_dword v253, v24, s[28:31], 0 offen
    global_load_dword v253, v4, s[48:49]
    global_load_dword v253, v4, s[14:15]
    global_load_dword v253, v4, s[16:17]
    global_load_dword v253, v4, s[18:19]
    global_load_dword v253, v4, s[20:21]
    global_load_dword v253, v4, s[22:23]
    L_m_nt:
    """)
    if 'notour' not in OPT:
        A(f"""
        s_lshl_b32 s74, s{sW4}, 1
        s_add_u32 s74, s74, s{sTYPE}
        s_mov_b64 exec, 0
        s_cmp_eq_u32 s74, 0
        s_cbranch_scc1 TOUR_mq
        s_cmp_eq_u32 s74, 1
        s_cbranch_scc1 TOUR_mf
        s_cmp_lt_u32 s74, 4
        s_cbranch_scc1 TOUR_h
        s_cmp_lt_u32 s74, 6
        s_cbranch_scc1 TOUR_a
        s_branch TOUR_f
        L_tour_ret:
        s_mov_b64 exec, -1
        """)
    else:
        A("L_tour_ret:")
    stamp(A, 11)
    A(f"""
    s_mov_b32 s10, 0
    s_mov_b32 s11, 8
    s_mov_b32 s14, {XST}
    s_mov_b32 s15, {WST}
    v_add_u32 v{vTAG}, 1, v{vTAG}
    v_add_u32 v{vTAG+1}, 1, v{vTAG+1}
    {'s_setprio 2' if optval('prio', 'm') == 'm' else 's_nop 0'}
    s_cmp_lg_u32 s{sTYPE}, 0
    s_cbranch_scc1 L_m_ffn
    """)

def m_path(A, ffn):
    nm = "ffn" if ffn else "qkv"
    ncb = 4 if ffn else 3
    def xf(s, t): return FS[s] + 4 * t
    def wf(s, c): return FS[s] + 8 + 4 * c
    blocks = [(t, c) for c in range(3) for t in range(2)] + ([(0, 3)] if ffn else [])
    def acc(i): return ACC + 16 * i
    A(f"L_m_{nm}:")
    A.region("mf" if ffn else "mq")
    if ffn:
        A(f"""
        s_mul_i32 s74, s{sE}, 12288
        s_add_u32 s74, s74, {WBASE}
        v_add_u32 v{WAa}, s74, v{WAb}
        v_add_u32 v{WAb}, {WBASE + 6*4096}, v{WAb}
        """)
    else:
        A(f"""
        s_lshl_b32 s74, s{sE}, 12
        s_add_u32 s74, s74, {WBASE}
        v_add_u32 v{WAa}, s74, v{WAb}
        s_lshl_b32 s74, s{sG}, 1
        s_add_u32 s74, s74, s{sE}
        s_lshl_b32 s74, s74, 4
        s_add_u32 s74, s74, s{sTBK}
        s_lshl_b32 s74, s74, 1
        s_add_u32 s74, s74, s{sP}
        s_lshl_b32 s74, s74, 3
        s_add_u32 s74, s74, {WS_F2}
        """)
    A(f"v_mov_b32 v{vFLG}, s74\nv_mov_b32 v{vFLG+1}, {C_H}")
    cbs = 4096 if ffn else 8192
    def reads(ks, s):
        o = [f"ds_read_b128 {vr(xf(s,0),4)}, v{XA0+ks}", f"ds_read_b128 {vr(xf(s,1),4)}, v{XA1+ks}"]
        w = []
        for c in range(ncb):
            a, off = (WAb, ks * 1024) if c == 3 else (WAa, c * cbs + ks * 1024)
            w.append([f"ds_read_b64_tr_b16 {vr(wf(s,c),2)}, v{a} offset:{off}",
                      f"ds_read_b64_tr_b16 {vr(wf(s,c)+2,2)}, v{a} offset:{off+256}"])
        return [o[0]] + w[0] + [o[1]] + [x for p in w[1:] for x in p]
    def mm(i, xr, wr):
        t, c = blocks[i]
        if (not ffn) and c == 2:
            return mfma(acc(i), xr(t), wr(c))
        return mfma(acc(i), wr(c), xr(t))
    def kstep(s, fill, first=0, per=3):
        k = 0
        for i in range(first, len(blocks)):
            A(mm(i, lambda t: xf(s, t), lambda c: wf(s, c)))
            for x in fill[k:k+per]:
                A(x)
            k += per
        for x in fill[k:]:
            A(x)
    stamp(A, 2)
    A("s_barrier")
    stamp(A, 3)
    for r in reads(0, 0):
        A(r)
    A(f".p2align 6\nL_m_{nm}_loop:")
    for ks in range(3):
        s = ks & 1
        A("s_waitcnt lgkmcnt(0)")
        fill = reads(ks + 1, 1 - s)
        if ks == 0:
            fill = fill + ["s_add_u32 s10, s10, 1", "s_cmp_eq_u32 s10, 3", f"s_cselect_b32 s12, {-2*XST}, s14", f"s_cselect_b32 s13, {-2*WST}, s15", "s_cselect_b32 s10, 0, s10"]
        if ks == 2:
            fill = fill + ["s_sub_u32 s11, s11, 1", "s_cmp_eq_u32 s11, 0"]
        kstep(s, fill)
    A("s_waitcnt lgkmcnt(0)")
    A(mm(0, lambda t: xf(1, t), lambda c: wf(1, c)))
    A(f"s_barrier\ns_cbranch_scc1 L_m_{nm}_last")
    upd = [f"v_add_u32 v{XA0}, s12, v{XA0}", f"v_add_u32 v{WAa}, s13, v{WAa}", f"v_add_u32 v{XA1}, s12, v{XA1}"]
    if ffn:
        upd.append(f"v_add_u32 v{WAb}, s13, v{WAb}")
    for x in upd:
        A(x)
    upd2 = [f"v_add_u32 v{b+k}, s12, v{b+k}" for k in range(1, 4) for b in (XA0, XA1)]
    kstep(1, reads(0, 0) + upd2, first=1)
    A(f"s_branch L_m_{nm}_loop\nL_m_{nm}_last:")
    fill = f"""
    s_lshl_b32 s74, s{sW4}, 8
    v_lshl_add_u32 v{XA0}, v2, 3, s74
    v_xor_b32 v{XA0+1}, 0x100, v{XA0}
    v_lshrrev_b32 v{XA0+2}, 1, v{XA0}
    v_lshrrev_b32 v{XA0+3}, 1, v{XA0+1}
    s_mul_i32 s74, s{sE}, {768 if ffn else 256}
    v_lshl_add_u32 v{XA1}, v2, 3, s74
    v_add_u32 v{XA0}, {T_XP}, v{XA0}
    v_add_u32 v{XA0+1}, {T_XP}, v{XA0+1}
    v_add_u32 v{XA0+2}, {T_RS}, v{XA0+2}
    v_add_u32 v{XA0+3}, {T_RS}, v{XA0+3}
    v_add_u32 v{XA1}, {T_WP}, v{XA1}
    """
    if ffn:
        fill += f"""
        v_lshlrev_b32 v{XA1+1}, 3, v2
        v_add_u32 v{XA1+1}, {T_WP + 6*256}, v{XA1+1}
        s_lshl_b32 s74, s{sW4}, 10
        s_add_u32 s74, s74, 32768
        v_add_u32 v{WAa}, s74, v3
        s_mul_i32 s74, s{sW4}, {VST}
        s_add_u32 s74, s74, {LDS_V + 32*VST}
        v_add_u32 v{WAb}, s74, v3
        """
    else:
        fill += f"""
        s_lshl_b32 s74, s{sW4}, 7
        v_lshl_add_u32 v{XA1+2}, v7, 4, s74
        v_xor_b32 v{XA1+3}, 0x80, v{XA1+2}
        v_add_u32 v{XA1+2}, {T_RS}, v{XA1+2}
        v_add_u32 v{XA1+3}, {T_RS}, v{XA1+3}
        s_lshl_b32 s74, s{sG}, 1
        s_add_u32 s74, s74, s{sE}
        s_lshl_b32 s74, s74, 17
        s_lshl_b32 s12, s{sT0}, 10
        s_add_u32 s12, s12, s74
        s_lshl_b32 s13, s{sT1}, 10
        s_add_u32 s13, s13, s74
        """
    fill = [l.strip() for l in fill.split("\n") if l.strip()]
    rd = [f"ds_read_b64 {vr(XPF,2)}, v{XA0}", f"ds_read_b64 {vr(XPF+4,2)}, v{XA0+1}"]
    for c in range(3):
        rd.append(f"ds_read_b64 {vr(WPF+4*c,2)}, v{XA1} offset:{c*(256 if ffn else 512)}")
    if ffn:
        rd.append(f"ds_read_b64 {vr(WPF+12,2)}, v{XA1+1}")
    nfr = len(rd)
    rd += [f"ds_read_b32 v{RS}, v{XA0+2}", f"ds_read_b32 v{RS+1}, v{XA0+3}"]
    if ffn:
        rd += [f"ds_read_b32 v{SD}, v{XA0+2} offset:512", f"ds_read_b32 v{SD+1}, v{XA0+3} offset:512"]
    else:
        for t in range(2):
            for gq in range(4):
                rd.append(f"ds_read_b128 {vr(RT+16*t+4*gq,4)}, v{XA1+2+t} offset:{gq*32}")
    nv = 14 if ffn else 17
    for x in fill[:5]:
        A(x)
    kstep(1, fill[5:nv] + rd + fill[nv:], first=1, per=6)
    A(f"s_waitcnt lgkmcnt({len(rd) - nfr})")
    stamp(A, 4)
    order = list(range(len(blocks)))
    if not ffn:
        order = [2, 3, 4, 5, 0, 1]
    PK = FS[0]
    for n, i in enumerate(order):
        A(mm(i, lambda t: XPF + 4*t, lambda c: WPF + 4*c))
        if n == 0:
            A("s_waitcnt lgkmcnt(0)")
    if not ffn:
        A(f"""
        v_mov_b32 v{XA1}, v{RS}
        v_mov_b32 v{XA1+1}, v{RS}
        v_mov_b32 v{XA1+2}, v{RS+1}
        v_mov_b32 v{XA1+3}, v{RS+1}
        v_mul_f32 v{RS}, {f32bits(LOG2E/4)}, v{XA1}
        v_mul_f32 v{RS+1}, {f32bits(LOG2E/4)}, v{XA1}
        v_mul_f32 v{RS+2}, {f32bits(LOG2E/4)}, v{XA1+2}
        v_mul_f32 v{RS+3}, {f32bits(LOG2E/4)}, v{XA1+2}
        v_bfe_u32 v{XA0}, v1, 4, 1
        v_lshlrev_b32 v{XA0}, 16, v{XA0}
        v_lshl_add_u32 v{XA0}, v7, 8, v{XA0}
        v_and_b32 v{XA0+1}, 15, v1
        v_lshl_add_u32 v{XA0}, v{XA0+1}, 4, v{XA0}
        """)
        for n, i in enumerate(order):
            t, c = blocks[i]
            a, pk = acc(i), PK + 8 * n
            for r in range(0, 16, 2):
                sc = (RS + 2*t, XA1 + 2*t, RT + 16*t + r)[c]
                A(f"v_pk_mul_f32 {vr(a+r,2)}, {vr(a+r,2)}, {vr(sc,2)}")
            for r in range(0, 16, 2):
                A(f"v_cvt_pk_bf16_f32 v{pk+r//2}, v{a+r}, v{a+r+1}")
            if c < 2:
                for hh in range(2):
                    A(f"s_add_u32 s74, s{12+t}, {c*(2<<20) + hh*65536}")
                    A(f"buffer_store_dwordx4 {vr(pk+4*hh,4)}, v3, s[28:31], s74 offen sc1")
            else:
                A(f"s_add_u32 s74, s{12+t}, {WS_V}")
                for m2 in range(2):
                    A(f"buffer_store_dwordx4 {vr(pk+4*m2,4)}, v{XA0}, s[28:31], s74 offen offset:{m2*512} sc1")
        stamp(A, 5)
        A("s_waitcnt vmcnt(0)")
        stamp(A, 10)
        A(f"""
        s_mov_b64 exec, 1
        buffer_store_dwordx2 v[{vTAG}:{vTAG+1}], v{vFLG}, s[28:31], 0 offen sc1
        ds_add_u32 v{vFLG+1}, v19
        s_mov_b64 exec, -1
        s_branch L_a
        """)
    else:
        c1 = -2.0 * LOG2E * math.sqrt(2.0 / math.pi)
        c3 = c1 * 0.044715
        K1, K3, SP = XA0, XA1, FS[0]
        for t in range(2):
            A(f"""
            v_mul_f32 v{K1+2*t}, {f32bits(c1)}, v{RS+t}
            v_mul_f32 v{K3+2*t}, v{RS+t}, v{RS+t}
            v_mul_f32 v{K3+2*t}, v{K3+2*t}, v{RS+t}
            v_mul_f32 v{K3+2*t}, {f32bits(c3)}, v{K3+2*t}
            v_mov_b32 v{K1+2*t+1}, v{K1+2*t}
            v_mov_b32 v{K3+2*t+1}, v{K3+2*t}
            v_mov_b32 v{SP+2*t}, v{SD+t}
            v_mov_b32 v{SP+2*t+1}, v{SD+t}
            """)
        GB = [FS[0] + 4, FS[1]]
        p2 = lambda r: vr(r, 2)
        ops = []
        def add(kind, text, deps=()):
            ops.append((kind, text, [d for d in deps if d is not None])); return len(ops) - 1
        last_mul = {}
        for n, (t, c) in enumerate(blocks):
            a, pk, G = acc(n), HP + 8 * (n & 1), GB[n & 1]
            prev = last_mul.get(n - 2, {})
            pw = last_mul.get(("w", n - 2), [None, None])
            z, e, d_, r_, m_ = {}, {}, {}, {}, {}
            for r in range(0, 16, 2):
                z[r] = add("N", f"v_pk_mul_f32 {p2(G+r)}, {p2(a+r)}, {p2(a+r)}", [prev.get(r)])
            for r in range(0, 16, 2):
                z[r] = add("N", f"v_pk_fma_f32 {p2(G+r)}, {p2(G+r)}, {p2(K3+2*t)}, {p2(K1+2*t)}", [z[r]])
            for r in range(0, 16, 2):
                z[r] = add("N", f"v_pk_mul_f32 {p2(G+r)}, {p2(G+r)}, {p2(a+r)}", [z[r]])
            for r in range(16):
                e[r] = add("T", f"v_exp_f32 v{G+r}, v{G+r}", [z[r & ~1]])
            for r in range(0, 16, 2):
                d_[r] = add("H", f"v_pk_fma_f32 {p2(G+r)}, {p2(G+r)}, {p2(SP+2*t)}, {p2(SP+2*t)}", [e[r], e[r+1]])
            for r in range(16):
                r_[r] = add("T", f"v_rcp_f32 v{G+r}, v{G+r}", [d_[r & ~1]])
            cv_ = []
            for r in range(0, 16, 2):
                m_[r] = add("H", f"v_pk_mul_f32 {p2(a+r)}, {p2(a+r)}, {p2(G+r)}", [r_[r], r_[r+1]])
                cv_.append(add("H", f"v_cvt_pk_bf16_f32 v{pk+r//2}, v{a+r}, v{a+r+1}", [m_[r], pw[r // 8]]))
            last_mul[n] = m_
            w = []
            for hh in range(2):
                va, off = h_slot(2 * n + hh)
                w.append(add("H", f"ds_write_b128 v{(WAa, WAb)[va]}, {vr(pk+4*hh,4)} offset:{off}", cv_[4*hh:4*hh+4]))
            last_mul[("w", n)] = w
            if n == int(optval("sig", "2")):
                add("H", f"s_mov_b64 exec, 1\nds_add_u32 v{vFLG+1}, v19\ns_mov_b64 exec, -1", w)
        done, pos, out, lastT = {}, 0, [], False
        pend = list(range(len(ops)))
        def ready(i):
            return all(d in done and pos - done[d] >= 3 for d in ops[i][2])
        while pend:
            pick = None
            for kinds in ((("H", "N"), ("T",)) if lastT else (("T",), ("H", "N"))):
                for k in kinds:
                    c_ = [i for i in pend if ops[i][0] == k]
                    c_ = c_[:1] if k != "H" else c_[:24]
                    pick = next((i for i in c_ if ready(i)), None)
                    if pick is not None:
                        break
                if pick is not None:
                    break
            if pick is None:
                A("s_nop 0"); pos += 1; lastT = False
                continue
            A(ops[pick][1]); done[pick] = pos; pos += 1
            pend.remove(pick)
            nT = sum(1 for i in done if ops[i][0] == "T"); nN = len(done) - nT
            lastT = ops[pick][0] == "T" or (2 * (nN - 24) < 3 * nT - 2 and any(ops[i][0] != "T" and ready(i) for i in pend[:80]))
        stamp(A, 5)

def h_slot(i):
    return (0, i * 4096) if i < 8 else (1, (i - 8) * 4 * VST)

hXD, hWD, hRA, hGA, hGC, hEP = 224, 226, 227, 228, 229, 230
hWR, hXR, hGR, hGX, hBI, hT = 96, 128, 136, 152, 156, 160

def xstamp(A, lane):
    if asm.STAMPS:
        A(f"s_memtime s[80:81]\ns_waitcnt lgkmcnt(0)\nv_writelane_b32 v252, s80, {lane}")

def dma_code(A, tag, fill=()):
    A(f"""
    s_lshl_b32 s74, s{sC}, 7
    s_add_u32 s75, s74, 16384
    s_mul_i32 s76, s{sC}, s97
    s_cmp_lg_u32 s{sTYPE}, 0
    s_cbranch_scc1 L_dma_ffn{tag}
    """)
    fill = list(fill)
    for ffn in (False, True):
        if ffn:
            A(f"L_dma_ffn{tag}:")
        imms = [c * 64 for c in range(7)] if ffn else [0, 64, 1024, 1088, 2048, 2112]
        ops = [("x", a) for a in range(4)] + [("w", c) for c in range(len(imms))]
        ops = [ops[0], ops[4], ops[5], ops[1], ops[6], ops[7], ops[2], ops[8], ops[9], ops[3]] + ops[10:]
        per = (len(fill) + len(ops) - 1) // len(ops)
        for n, (k, j) in enumerate(ops):
            part = fill[n*per:(n+1)*per]
            gap = part[0] if part else "s_nop 0"
            if k == "x":
                A(f"s_add_u32 m0, s92, {j*1024}\n{gap}\nbuffer_load_dwordx4 v{hXD + (j & 1)}, s[32:35], s{74 + (j >> 1)} offen lds")
            else:
                A(f"s_add_u32 m0, s93, {j*4096 - imms[j]}\n{gap}\nbuffer_load_dwordx4 v{hWD}, s[36:39], s76 offen offset:{imms[j]} lds")
            for x in part[1:]:
                A(x)
        if not ffn:
            A(f"s_branch L_dma_adv{tag}")
    A(f"""
    L_dma_adv{tag}:
    s_add_u32 s{sC}, s{sC}, 1
    s_and_b32 s{sC}, s{sC}, 7
    s_add_u32 s95, s95, 1
    s_cmp_eq_u32 s95, 3
    s_cselect_b32 s95, 0, s95
    s_cselect_b32 s74, {-2*XST}, s98
    s_cselect_b32 s75, {-2*WST}, s99
    s_add_u32 s92, s92, s74
    s_add_u32 s93, s93, s75
    """)

def dma_sub(A):
    A("L_dma:")
    dma_code(A, "")
    A("s_setpc_b64 s[100:101]")

def h_all(A, f_setup):
    CALL = "s_call_b64 s[100:101], L_dma"
    if optval('prio', 'm') == 'h':
        A("s_setprio 3")
    A(f"""
    v_lshrrev_b32 v8, 3, v1
    s_lshl_b32 s74, s{sW4}, 5
    v_add_u32 v8, s74, v8
    v_lshlrev_b32 v8, 10, v8
    v_and_b32 v9, 7, v1
    v_lshrrev_b32 v10, 4, v1
    v_xor_b32 v9, v9, v10
    v_lshl_add_u32 v{hXD}, v9, 4, v8
    v_xor_b32 v9, 4, v9
    v_lshl_add_u32 v{hXD+1}, v9, 4, v8
    v_add_u32 v{hXD+1}, 0x2000, v{hXD+1}
    v_lshrrev_b32 v8, 2, v1
    s_lshl_b32 s74, s{sW4}, 4
    v_add_u32 v8, s74, v8
    v_and_b32 v9, 3, v1
    v_lshlrev_b32 v9, 4, v9
    s_mov_b32 s34, 0x20000
    s_mov_b32 s35, 0x00020000
    s_mov_b32 s39, 0x00020000
    s_lshl_b32 s75, s{sTBK}, 17
    s_lshl_b32 s92, s{sW4}, 12
    s_lshl_b32 s93, s{sW4}, 10
    s_add_u32 s93, s93, {WBASE}
    s_mov_b32 s95, 0
    s_mov_b32 s98, {XST}
    s_mov_b32 s99, {WST}
    s_lshl_b32 s96, s{sC}, 9
    s_lshl_b32 s94, s{sTYPE}, 3
    s_add_u32 s94, s94, s{sG}
    s_lshl_b32 s79, s{sG}, 2
    s_add_u32 s79, s79, s{sW4}
    s_lshl_b32 s79, s79, 12
    s_movk_i32 s76, 3072
    s_movk_i32 s74, 128
    s_cmp_lg_u32 s{sTYPE}, 0
    s_cselect_b32 s76, 3584, s76
    s_cselect_b32 s74, 448, s74
    s_cselect_b32 s42, s76, 0
    s_mul_i32 s74, s74, s{sG}
    s_lshl_b32 s97, s76, 6
    s_lshl_b32 s38, s76, 9
    s_sub_u32 s38, s38, s74
    v_mul_lo_u32 v{hWD}, v8, s76
    v_add_u32 v{hWD}, v{hWD}, v9
    s_cmp_lg_u32 s{sTYPE}, 0
    s_waitcnt lgkmcnt(0)
    s_cselect_b32 s36, s12, s6
    s_cselect_b32 s37, s13, s7
    s_add_u32 s36, s36, s74
    s_addc_u32 s37, s37, 0
    s_mov_b32 s28, s24
    s_mov_b32 s29, s25
    s_add_u32 s32, s4, s75
    s_addc_u32 s33, s5, 0
    buffer_load_dwordx2 v[{hEP}:{hEP+1}], v4, s[28:31], s3 offen sc1
    s_cmp_lg_u32 s{sTYPE}, 0
    s_cbranch_scc1 L_h_rows
    {CALL}
    s_branch L_h_su
    L_h_rows:
    buffer_load_dwordx4 {vr(hWR,4)}, v3, s[32:35], s79 offen
    buffer_load_dwordx4 {vr(hWR+4,4)}, v3, s[32:35], s79 offen offset:1024
    buffer_load_dwordx4 {vr(hWR+8,4)}, v3, s[32:35], s79 offen offset:2048
    buffer_load_dwordx4 {vr(hWR+12,4)}, v3, s[32:35], s79 offen offset:3072
    L_h_su:
    """)
    xstamp(A, 8)
    lanepart_tr(A, hRA, 8)
    A(f"""
    s_lshl_b32 s74, s{sW4}, 12
    s_add_u32 s75, s74, {WBASE}
    v_add_u32 v{hRA}, s75, v{hRA}
    s_lshl_b32 s75, s94, 1
    s_lshr_b32 s76, s{sTBK}, 3
    s_add_u32 s75, s75, s76
    s_lshl_b32 s75, s75, 14
    s_add_u32 s75, s75, s74
    s_add_u32 s75, s75, {WS_CG}
    v_lshl_add_u32 v{hGC}, v1, 3, s75
    s_lshl_b32 s74, s{sTBK}, 2
    s_add_u32 s74, s74, s{sW4}
    s_lshl_b32 s74, s74, 9
    s_add_u32 s74, s74, {WS_XG}
    v_lshl_add_u32 v{hGA}, v2, 4, s74
    v_mov_b32 v8, {CTL}
    v_lshl_add_u32 v8, v2, 2, v8
    v_mov_b32 v9, 4
    v_cmp_eq_u32 vcc, 8, v2
    s_mov_b32 s40, s14
    s_mov_b32 s41, s15
    v_cndmask_b32 v9, 0, v9, vcc
    ds_write_b32 v8, v9
    s_mov_b32 s43, 0x00020000
    s_mov_b32 s3, 0xffff0000
    s_lshr_b32 s79, s79, 6
    s_lshl_b32 s74, s{sTBK}, 11
    s_add_u32 s79, s79, s74
    s_add_u32 s79, s79, {WS_XG}
    """)
    f_setup(A)
    A.region("h")
    S0, Q0, S1, Q1, t0, t1, t2 = hT, hT + 1, hT + 2, hT + 3, hT + 4, hT + 5, hT + 6
    A(f"""
    s_cmp_eq_u32 s{sTYPE}, 0
    s_cbranch_scc1 L_h_nst
    v_bfe_u32 v{t2}, v1, 4, 1
    v_cmp_eq_u32 vcc, 1, v{t2}
    v_lshrrev_b32 v{t2}, 4, v1
    v_lshlrev_b32 v{t2}, 3, v{t2}
    {CALL if optval("c0", "early") == "su" else "s_nop 0"}
    s_waitcnt vmcnt({11 if optval("c0", "early") == "su" else 0})
    v_cndmask_b32 v{hT+9}, v{hEP}, v{hEP+1}, vcc
    v_add_u32 v{hT+9}, 1, v{hT+9}
    v_mov_b32 v{hT+11}, v{hT+9}
    """)
    xstamp(A, 9)
    if optval("c0", "early") == "early":
        A(CALL)
    for pair in range(2):
        for row, (s_, q_) in enumerate(((S0, Q0), (S1, Q1))):
            for r in range(4):
                x = hWR + 8 * pair + 4 * row + r
                A(f"v_lshlrev_b32 v{t0}, 16, v{x}\nv_and_b32 v{t1}, s3, v{x}")
                if r == 0:
                    A(f"v_add_f32 v{s_}, v{t0}, v{t1}\nv_mul_f32 v{q_}, v{t0}, v{t0}\nv_fmac_f32 v{q_}, v{t1}, v{t1}")
                else:
                    A(f"v_add_f32 v{s_}, v{s_}, v{t0}\nv_fmac_f32 v{q_}, v{t0}, v{t0}\nv_add_f32 v{s_}, v{s_}, v{t1}\nv_fmac_f32 v{q_}, v{t1}, v{t1}")
        z = hT + 8 + 2 * pair
        A(f"""
        s_nop 0
        v_permlane32_swap_b32 v{S0}, v{S1}
        v_permlane32_swap_b32 v{Q0}, v{Q1}
        s_nop 0
        v_add_f32 v{S0}, v{S0}, v{S1}
        v_add_f32 v{Q0}, v{Q0}, v{Q1}
        s_nop 1
        v_permlane16_swap_b32 v{S0}, v{Q0}
        s_nop 0
        v_add_f32 v{z}, v{S0}, v{Q0}
        """)
    A("s_nop 0")
    for sh in (8, 4, 2, 1):
        A(f"v_add_f32_dpp v{hT+8}, v{hT+8}, v{hT+8} row_ror:{sh} row_mask:0xf bank_mask:0xf")
        A(f"v_add_f32_dpp v{hT+10}, v{hT+10}, v{hT+10} row_ror:{sh} row_mask:0xf bank_mask:0xf\ns_nop 0")
    if optval("c0", "early") == "late":
        A(CALL)
    A(f"""
    s_mov_b32 exec_lo, 0x00010001
    s_mov_b32 exec_hi, 0x00010001
    buffer_store_dwordx2 v[{hT+8}:{hT+9}], v{t2}, s[28:31], s79 offen sc1
    buffer_store_dwordx2 v[{hT+10}:{hT+11}], v{t2}, s[28:31], s79 offen offset:32 sc1
    s_mov_b64 exec, -1
    {CALL}
    s_waitcnt vmcnt(13)
    s_branch L_h_st
    L_h_nst:
    {CALL}
    s_waitcnt vmcnt(10)
    L_h_st:
    s_mov_b64 exec, -1
    v_add_u32 v{hEP}, 1, v{hEP}
    v_add_u32 v{hEP+1}, 1, v{hEP+1}
    v_cmp_eq_u32 vcc, 1, v7
    v_readfirstlane_b32 s26, v{hEP}
    v_readfirstlane_b32 s27, v{hEP+1}
    v_mov_b64 v[236:237], v[{hEP}:{hEP+1}]
    v_cndmask_b32 v{hEP}, v{hEP}, v{hEP+1}, vcc
    """)
    nb = [0]
    def bar(n):
        A(f"s_waitcnt vmcnt({n})\ns_barrier")
        if nb[0] >= 1:
            xstamp(A, 8 - nb[0])
        nb[0] += 1
    stamp(A, 2)
    bar(13)
    stamp(A, 3)
    for half in range(2):
        for ks in range(4):
            o = half * 16384 + ks * 1024
            A(f"ds_read_b64_tr_b16 {vr(hWR+16*half+4*ks,2)}, v{hRA} offset:{o}\nds_read_b64_tr_b16 {vr(hWR+16*half+4*ks+2,2)}, v{hRA} offset:{o+256}")
        if half == 0:
            A("s_waitcnt lgkmcnt(4)")
    C0, C1 = hT, hT + 2
    def colsum(base, c):
        o = []
        for r in range(16):
            ta = t0 + 4 * (r & 1)
            if r == 0:
                o += [f"v_lshlrev_b32 v{c}, 16, v{base}", f"v_and_b32 v{c+1}, s3, v{base}"]
            else:
                o += [f"v_lshlrev_b32 v{ta}, 16, v{base+r}", f"v_and_b32 v{ta+1}, s3, v{base+r}", f"v_add_f32 v{c}, v{c}, v{ta}", f"v_add_f32 v{c+1}, v{c+1}, v{ta+1}"]
        return o + [f"v_add_f32 v{c}, v{c}, v{c+1}"]
    if optval("il", "0") == "1":
        dma_code(A, "a", ["s_waitcnt lgkmcnt(8)"] + colsum(hWR, C0))
        A("s_waitcnt lgkmcnt(0)")
        bar(10)
        dma_code(A, "b", colsum(hWR + 16, C1))
    else:
        A(CALL)
        A("s_waitcnt lgkmcnt(0)")
        for x in colsum(hWR, C0):
            A(x)
        bar(10)
        A(CALL)
        for x in colsum(hWR + 16, C1):
            A(x)
    A(f"""
    v_mov_b32 v{C0+1}, v{hEP}
    s_nop 0
    v_permlane32_swap_b32 v{C0}, v{C1}
    s_nop 0
    v_add_f32 v{C0}, v{C0}, v{C1}
    buffer_store_dwordx2 v[{C0}:{C0+1}], v{hGC}, s[28:31], s96 offen sc1
    """)
    def gather(lo=0, hi=9):
        for c in range(lo, min(hi, 8)):
            A(f"buffer_load_dwordx2 {vr(hGR+2*c,2)}, v{hGC}, s[28:31], 0 offen offset:{c*512} sc1")
        if hi == 9:
            A(f"buffer_load_dwordx4 {vr(hGX,4)}, v{hGA}, s[28:31], 0 offen sc1")
    bar(11)
    A(CALL)
    bar(10)
    A(CALL)
    gather(8, 9)
    A(f"""
    s_mul_i32 s74, s{sG}, 448
    s_lshl_b32 s75, s{sW4}, 6
    s_add_u32 s74, s74, s75
    v_lshlrev_b32 v{t0}, 1, v2
    v_lshl_add_u32 v{t0}, v7, 8, v{t0}
    buffer_load_ushort v{hBI}, v{t0}, s[40:43], s74 offen
    """)
    bar(12)
    A(CALL)
    gather(0, 4)
    bar(16)
    A(CALL)
    gather(4, 8)
    bar(18)
    bar(4)
    A("s_waitcnt vmcnt(0)")
    A(f"""
    s_mov_b32 s79, 0x4000
    L_h_chk:
    v_xor_b32 v{hGX+1}, s26, v{hGX+1}
    v_xor_b32 v{hGX+3}, s27, v{hGX+3}
    v_or_b32 v{t0}, v{hGX+1}, v{hGX+3}
    """)
    for c in range(8):
        A(f"v_xor_b32 v{hGR+2*c+1}, v{hEP}, v{hGR+2*c+1}")
    for c in range(0, 8, 2):
        A(f"v_or3_b32 v{t0}, v{t0}, v{hGR+2*c+1}, v{hGR+2*c+3}")
    A(f"""
    v_cmp_ne_u32 vcc, 0, v{t0}
    s_sub_u32 s79, s79, 1
    s_cmp_eq_u32 s79, 0
    s_cbranch_scc1 L_h_got
    s_cbranch_vccz L_h_got
    """)
    gather()
    A("s_waitcnt vmcnt(0)\ns_branch L_h_chk\nL_h_got:")
    a, b, r_, h_, X0, A0 = hWR, hWR + 1, hWR + 2, hWR + 3, hWR + 4, hWR + 6
    c = hGR
    A(f"""
    s_mov_b32 s74, {f32bits(1.0/512)}
    v_mul_f32 v{a}, s74, v{hGX}
    v_mul_f32 v{b}, s74, v{hGX+2}
    v_add_f32 v{c}, v{c}, v{c+2}
    v_fma_f32 v{b}, -v{a}, v{a}, v{b}
    v_add_f32 v{c+4}, v{c+4}, v{c+6}
    v_max_f32 v{b}, 0, v{b}
    v_add_f32 v{c+8}, v{c+8}, v{c+10}
    v_cvt_pk_bf16_f32 v{b}, v{b}, v{b}
    v_add_f32 v{c+12}, v{c+12}, v{c+14}
    v_and_b32 v{b}, s3, v{b}
    v_add_f32 v{c}, v{c}, v{c+4}
    v_add_f32 v{b}, {f32bits(1e-5)}, v{b}
    v_add_f32 v{c+8}, v{c+8}, v{c+12}
    v_cvt_pk_bf16_f32 v{b}, v{b}, v{b}
    v_add_f32 v{c}, v{c}, v{c+8}
    v_and_b32 v{b}, s3, v{b}
    v_sqrt_f32 v{b}, v{b}
    v_mul_f32 v{a}, -0.5, v{a}
    v_and_b32 v{c+1}, s3, v{c}
    v_cvt_pk_bf16_f32 v{b}, v{b}, v{b}
    v_sub_f32 v{c}, v{c}, v{c+1}
    v_and_b32 v{b}, s3, v{b}
    v_and_b32 v{c+2}, s3, v{c}
    v_rcp_f32 v{r_}, v{b}
    v_mul_f32 v{h_}, 0.5, v{b}
    v_sub_f32 v{c}, v{c}, v{c+2}
    v_cvt_pk_bf16_f32 v{X0}, v{a}, v{a}
    v_cvt_pk_bf16_f32 v{X0+1}, v{a}, v{h_}
    v_cvt_pk_bf16_f32 v{c+4}, v{c+1}, v{c+2}
    v_lshlrev_b32 v{hBI}, 16, v{hBI}
    v_cvt_pk_bf16_f32 v{c+5}, v{c}, v{hBI}
    s_lshl_b32 s74, s{sW4}, 8
    v_lshl_add_u32 v{A0}, v2, 3, s74
    v_lshrrev_b32 v{A0+1}, 1, v{A0}
    v_add_u32 v{A0}, {T_XP}, v{A0}
    v_add_u32 v{A0+1}, {T_RS}, v{A0+1}
    v_lshl_add_u32 v{A0+2}, v7, 10, v{A0}
    ds_write_b64 v{A0}, {vr(X0,2)}
    ds_write_b32 v{A0+1}, v{r_}
    ds_write_b32 v{A0+1}, v{b} offset:512
    ds_write_b64 v{A0+2}, {vr(c+4,2)} offset:{T_WP - T_XP}
    """)
    A("s_waitcnt lgkmcnt(0)")
    bar(0)
```

```python
from asm import *
from mega1 import *
import asm

vL16, vK, vVa, vVb, vVg, vCNT, vQA, vCQ, vONE = 3, 244, 245, 246, 247, 248, 249, 18, 19
XB = 8
Q2 = [20, 24]
KB = [28, 32]
VA = 36
VB = [40, 44]
P = 48
T0, T1, T2, T3 = 56, 57, 58, 59
C = [64, 80]
O = [96, 112]
S = [128, 144]

def ex(s, i): return f"v_exp_f32 v{s+i}, v{s+i}"
def cv(s, i): return f"v_cvt_pk_bf16_f32 v{P+i}, v{s+2*i}, v{s+2*i+1}"

def rowmax(A, src, dst):
    A(f"v_max3_f32 v{dst}, v{src}, v{src+1}, v{src+2}")
    for i in range(3, 15, 2):
        A(f"v_max3_f32 v{dst}, v{dst}, v{src+i}, v{src+i+1}")
    A(f"""
    v_max_f32 v{dst}, v{dst}, v{src+15}
    v_mov_b32 v{T1}, v{dst}
    s_nop 1
    v_permlane32_swap_b32 v{dst}, v{T1}
    s_nop 1
    v_max_f32 v{dst}, v{dst}, v{T1}
    """)

QS = 1088
SRC = 16 * QS
def out_setup(A):
    A(f"""
    s_lshl_b32 s74, s{sTB2}, 3
    s_add_u32 s74, s74, s{sWAVE}
    s_lshl_b32 s74, s74, 13
    v_lshrrev_b32 v5, 3, v1
    v_lshlrev_b32 v5, 10, v5
    v_and_b32 v6, 7, v1
    s_lshl_b32 s75, s{sNB}, 7
    v_lshl_add_u32 v6, v6, 4, s75
    v_add3_u32 v5, v5, v6, s74
    s_mov_b32 s56, s18
    s_mov_b32 s57, s19
    s_mov_b32 s58, 1024
    s_mov_b32 s59, 0x00020000
    s_mov_b32 s60, s20
    s_mov_b32 s61, s21
    s_mov_b32 s62, 0x200000
    s_mov_b32 s63, 0x00020000
    """)

def kv_srds(A):
    A(f"""
    s_lshl_b32 s74, s{sHEAD}, 16
    s_add_u32 s75, s74, {WS_K}
    s_add_u32 s84, s24, s75
    s_addc_u32 s85, s25, 0
    s_mov_b32 s86, 0x10000
    s_mov_b32 s87, 0x00020000
    s_add_u32 s75, s74, {WS_V}
    s_add_u32 s88, s24, s75
    s_addc_u32 s89, s25, 0
    s_mov_b32 s90, 0x10000
    s_mov_b32 s91, 0x00020000
    """)

XB_LOADS = [f"buffer_load_dwordx4 v[{XB}:{XB+3}], v5, s[52:55], 0 offen",
            f"buffer_load_dwordx4 v[{XB+4}:{XB+7}], v6, s[56:59], 0 offen"]

def a_setup(A):
    A(f"""
    v_and_b32 v{vVg}, 15, v1
    v_lshlrev_b32 v{vVg}, 4, v{vVg}
    v_lshl_add_u32 v{vVg}, v7, 8, v{vVg}
    v_and_b32 v{T0}, 16, v1
    v_cmp_eq_u32 vcc, 0, v{T0}
    v_and_b32 v{T1}, 11, v1
    v_cmp_ne_u32 s[74:75], 0, v{T1}
    v_add_u32 v{vVa}, {LDS_V}, v{vVg}
    v_add_u32 v{vVb}, {LDS_V+512}, v{vVg}
    v_mov_b32 v{T0}, {LDS_V+1024}
    v_mov_b32 v{T1}, {LDS_V+1040}
    v_cndmask_b32 v{T0}, v{T0}, v{T1}, s[74:75]
    v_cndmask_b32 v{vVa}, v{T0}, v{vVa}, vcc
    v_cndmask_b32 v{vVb}, v{T0}, v{vVb}, vcc
    v_mov_b32 v{vK}, v{vL16}
    v_mov_b32 v{vCNT}, {C_KV}
    s_lshl_b32 s74, s{sW4}, 11
    s_add_u32 s74, s74, {QA}
    v_add_u32 v{vQA}, s74, v{vL16}
    s_lshl_b32 s74, s{sW4}, 2
    s_add_u32 s74, s74, {C_Q}
    v_mov_b32 v{vCQ}, s74
    v_mov_b32 v{vONE}, 1
    """)
    out_setup(A)

def spread(st):
    out = [None] * 14
    for i, x in enumerate(st):
        out[i * 14 // len(st)] = x
    return out

def gen_a(A, spi=8):
    A("L_a:")
    A.region("a")
    for i in range(0, 32, 2):
        A(f"v_mov_b64 {vr(O[0]+i,2)}, 0")
    for i in range(0, 4, 2):
        A(f"v_mov_b64 {vr(P+4+i,2)}, 0\nv_mov_b64 {vr(VB[1]+i,2)}, 0")
    A(f"""
    L_a_wait0:
    ds_read_b32 v{T3}, v{vCNT}
    s_waitcnt lgkmcnt(0)
    v_readfirstlane_b32 s74, v{T3}
    s_cmp_lg_u32 s74, 4
    s_cbranch_scc1 L_a_wait0
    """)
    stamp(A, 6)
    A(f"""
    ds_read_b128 {vr(KB[0],4)}, v{vK}
    ds_read_b128 {vr(Q2[0],4)}, v{vQA}
    ds_read_b128 {vr(Q2[1],4)}, v{vQA} offset:1024
    ds_read_b128 {vr(KB[1],4)}, v{vK} offset:1024
    ds_read_b128 {vr(VA,4)}, v{vVa}
    ds_read_b128 {vr(VB[0],4)}, v{vVb}
    s_waitcnt lgkmcnt(3)
    {mfma(S[0], KB[0], Q2[0], "0")}
    {mfma(S[1], KB[0], Q2[1], "0")}
    ds_write_b32 v{vCQ}, v{vONE}
    s_nop 10
    """)
    for q in range(2):
        rowmax(A, S[q], T0)
        A(f"v_sub_f32 v{C[q]}, 0, v{T0}\nv_sub_f32 v{C[q]+1}, 0, v{T0}")
        for i in range(2, 16, 2):
            A(f"v_mov_b64 {vr(C[q]+i,2)}, {vr(C[q],2)}")
        if q == 0:
            A(f"s_nop 1\n{mfma(S[0], KB[0], Q2[0], C[0])}")
    A(f"s_mov_b32 s11, {64 // spi}\ns_waitcnt lgkmcnt(0)")
    stamp(A, 7)
    def body(tag, extra):
        extra = list(extra)
        for t in range(spi):
            for h in range(2):
                cur, nxt = S[h], S[1 - h]
                kf = KB[t & 1] if h == 0 else KB[(t + 1) & 1]
                vb = VB[(t + 1) & 1] if h == 0 else VB[t & 1]
                m1 = m2 = m3 = pre3 = ""
                if h == 0:
                    m2 = "s_waitcnt lgkmcnt(0)"
                    m3 = f"ds_read_b128 {vr(KB[t & 1],4)}, v{vK} offset:{(t+2)*1024}"
                    if t == 6:
                        pre3 = f"v_readfirstlane_b32 s74, v{T3}"
                        m3 = f"s_cmp_lg_u32 s74, 4\ns_cbranch_scc1 L_a_spin{tag}\nL_a_spun{tag}:\n" + m3
                else:
                    if t == 5:
                        m1 = f"ds_read_b32 v{T3}, v{vCNT} offset:4"
                    m2 = f"ds_read_b128 {vr(VB[(t+1) & 1],4)}, v{vVb} offset:{(t+1)*VST}"
                    m3 = f"ds_read_b128 {vr(VA,4)}, v{vVa} offset:{(t+1)*VST}"
                    if t == spi - 1:
                        m1 = "s_sub_u32 s11, s11, 1"
                if extra and not m1:
                    m1 = extra.pop(0) or ""
                A(f"""
                {mfma(nxt, kf, Q2[1-h], C[1-h])}
                {m1}
                {ex(cur,0)}
                {ex(cur,1)}
                {ex(cur,2)}
                {ex(cur,3)}
                {ex(cur,4)}
                {ex(cur,5)}
                {cv(cur,0)}
                {mfma(O[1-h], vb, P+4)}
                {m2}
                {cv(cur,1)}
                {ex(cur,6)}
                {ex(cur,7)}
                {cv(cur,2)}
                {cv(cur,3)}
                {ex(cur,8)}
                {pre3}
                {ex(cur,9)}
                {ex(cur,10)}
                {mfma(O[h], VA, P)}
                {m3}
                {ex(cur,11)}
                {cv(cur,4)}
                {ex(cur,12)}
                {cv(cur,5)}
                {ex(cur,13)}
                {ex(cur,14)}
                {ex(cur,15)}
                {cv(cur,6)}
                {cv(cur,7)}
                """)
        assert not extra
        A(f"""
        v_add_u32 v{vK}, {spi*1024}, v{vK}
        v_add_u32 v{vVa}, {spi*VST}, v{vVa}
        v_add_u32 v{vVb}, {spi*VST}, v{vVb}
        v_add_u32 v{vCNT}, 4, v{vCNT}
        """)
        if asm.STAMPS:
            A("s_memtime s[80:81]\ns_waitcnt lgkmcnt(0)\ns_mov_b32 m0, s11\ns_nop 0\nv_writelane_b32 v252, s80, m0")
    A(".p2align 6\nL_a_loop:")
    body("", [])
    A(f"""
    s_cmp_lg_u32 s11, 0
    s_cbranch_scc1 L_a_loop
    {mfma(O[1], VB[(spi-1) & 1], P+4)}
    """)
    stamp(A, 8)
    for x in XB_LOADS:
        A(x)
    A(f"s_nop 1\nv_add_f32 v{T0}, abs(v{O[0]}), abs(v{O[0]+1})")
    for i in range(2, 9):
        A(f"v_add_f32 v{T0}, v{T0}, abs(v{O[0]+i})")
    for i in range(0, 9):
        A(f"v_add_f32 v{T0}, v{T0}, abs(v{O[1]+i})")
    A(f"""
    v_mov_b32 v{T1}, 0x7f000000
    v_cmp_lt_f32 vcc, v{T0}, v{T1}
    s_nop 4
    s_cmp_eq_u64 vcc, -1
    s_cbranch_scc0 L_fallback
    L_a_fin:
    v_rcp_f32 v{T0}, v{O[0]+8}
    v_rcp_f32 v{T1}, v{O[1]+8}
    """)
    for q in range(2):
        for i in range(8):
            A(f"v_mul_f32 v{O[q]+i}, v{O[q]+i}, v{(T0,T1)[q]}")
        for i in range(4):
            A(f"v_cvt_pk_bf16_f32 v{P+4*q+i}, v{O[q]+2*i}, v{O[q]+2*i+1}")
        for i in range(4):
            A(f"v_min_u32 v{P+4*q+i}, -2, v{P+4*q+i}")
        A(f"buffer_store_dwordx4 {vr(P+4*q,4)}, v{vL16}, s[28:31], s{8+q} offen sc1")
    stamp(A, 9)
    A(f"""
    s_mov_b64 exec, 1
    ds_add_u32 v{vFLG+1}, v{vONE} offset:{C_D - C_H}
    s_mov_b64 exec, -1
    s_waitcnt vmcnt(2)
    s_branch L_final
    """)
    for tag in ("",):
        A(f"""
        L_a_spin{tag}:
        ds_read_b32 v{T3}, v{vCNT} offset:4
        s_waitcnt lgkmcnt(0)
        v_readfirstlane_b32 s74, v{T3}
        s_cmp_lg_u32 s74, 4
        s_cbranch_scc1 L_a_spin{tag}
        s_branch L_a_spun{tag}
        """)

FACC, HB, WF, FB, WO = 32, 96, 120, 96, 160
fSENT, fTAG, fFLG, fCQ, fHK, fP3, fPR, fPROBE, fCD, fRED, fCH = 232, 236, 238, 239, 240, 242, 243, 244, 245, 246, 247

def poll(A, name, vaddr, sleep=4):
    A(f"""
    s_mov_b32 s79, 0x8000
    L_{name}:
    buffer_load_dwordx2 v[24:25], v{vaddr}, s[28:31], 0 offen sc1
    s_sub_u32 s79, s79, 1
    s_waitcnt vmcnt(0)
    v_cmp_ne_u64 vcc, s[26:27], v[24:25]
    s_cmp_eq_u32 s79, 0
    s_cbranch_scc1 L_{name}_done
    s_cbranch_vccz L_{name}_done
    s_sleep {sleep}
    s_branch L_{name}
    L_{name}_done:
    """)

def f_setup(A):
    kv_srds(A)
    out_setup(A)
    f = sW4
    A(f"""
    s_mov_b32 s52, s4
    s_mov_b32 s53, s5
    s_mov_b32 s54, 0x200000
    s_mov_b32 s55, 0x00020000
    s_lshl_b32 s74, s{sNB}, 7
    s_add_u32 s44, s16, s74
    s_addc_u32 s45, s17, 0
    s_sub_u32 s46, {1792*1024}, s74
    s_mov_b32 s47, 0x00020000
    s_add_u32 s48, s8, s74
    s_addc_u32 s49, s9, 0
    s_sub_u32 s50, {512*1024}, s74
    s_mov_b32 s51, 0x00020000
    v_mul_u32_u24 v16, {VST}, v1
    v_add_u32 v16, {LDS_V+1024}, v16
    v_mov_b32 v20, 0x3f803f80
    v_mov_b32 v21, v20
    v_mov_b32 v22, v20
    v_mov_b32 v23, v20
    v_mov_b32 v17, 1
    v_mov_b32 v19, {C_KV}
    s_lshr_b32 s74, s{sHEAD}, 1
    s_lshl_b32 s74, s74, 8
    s_add_u32 s74, s74, {WS_F2}
    v_lshl_add_u32 v18, v2, 3, s74
    v_add_u32 v31, {ACT_TB}, v3
    v_lshrrev_b32 v26, 3, v1
    v_bfe_u32 v27, v1, 4, 1
    v_lshlrev_b32 v27, 2, v27
    v_and_b32 v28, 7, v1
    v_xor_b32 v27, v27, v28
    v_lshlrev_b32 v26, 10, v26
    v_lshl_add_u32 v26, v27, 4, v26
    v_add_u32 v27, 0x2000, v26
    v_bfe_u32 v28, v1, 2, 2
    v_lshl_add_u32 v28, v7, 2, v28
    v_lshlrev_b32 v28, 7, v28
    v_bfe_u32 v29, v1, 3, 1
    v_lshl_add_u32 v28, v29, 6, v28
    v_bfe_u32 v29, v1, 4, 1
    v_lshl_add_u32 v28, v29, 5, v28
    v_and_b32 v29, 3, v1
    v_lshl_add_u32 v28, v29, 3, v28
    v_xor_b32 v29, 64, v28
    s_lshl_b32 s77, s{f}, 11
    s_add_u32 s77, s77, {QA}
    v_add_u32 v28, s77, v28
    v_add_u32 v29, s77, v29
    s_mul_i32 s12, s{f}, {28*16384}
    s_lshl_b32 s13, s{f}, 17
    s_mul_i32 s14, s{sTB2}, {2*ACT_TB}
    s_add_u32 s14, s14, {WS_ACT}
    s_lshl_b32 s74, s{f}, 13
    s_add_u32 s15, s14, s74
    s_mul_i32 s74, s{f}, {28*1024}
    s_add_u32 s14, s14, s74
    s_add_u32 s14, s14, {32*1024}
    s_lshl_b32 s10, s{f}, 10
    s_mul_i32 s11, s{f}, {VST}
    s_add_u32 s11, s11, {LDS_V}
    s_lshl_b32 s74, s{sQB}, 2
    s_add_u32 s74, s74, s{f}
    s_lshl_b32 s74, s74, 11
    s_lshl_b32 s75, s{sHEAD}, 16
    s_add_u32 s78, s74, s75
    """)
    A(f"""
    v_mov_b64 {vr(fSENT,2)}, -1
    v_mov_b64 {vr(fSENT+2,2)}, -1
    s_lshl_b32 s74, s{sQB}, 2
    s_add_u32 s74, s74, s{f}
    s_mul_i32 s6, s74, {2*ACT_TB}
    s_lshl_b32 s76, s{sHEAD}, 10
    s_add_u32 s6, s6, s76
    s_add_u32 s6, s6, {WS_ACT}
    s_lshl_b32 s74, s74, 5
    s_add_u32 s74, s74, s{sHEAD}
    s_lshl_b32 s74, s74, 3
    s_add_u32 s74, s74, {WS_FR}
    v_mov_b32 v{fFLG}, s74
    s_lshl_b32 s75, s{sTBK}, 1
    s_lshr_b32 s76, s{f}, 1
    s_add_u32 s75, s75, s76
    s_lshl_b32 s75, s75, 3
    s_add_u32 s75, s75, s{sG}
    s_lshl_b32 s75, s75, 1
    s_and_b32 s76, s{f}, 1
    s_add_u32 s75, s75, s76
    s_lshl_b32 s75, s75, 3
    s_add_u32 s75, s75, {WS_F3}
    s_cmp_eq_u32 s{sTYPE}, 0
    s_cselect_b32 s74, s74, s75
    v_writelane_b32 v{fFLG}, s74, 1
    s_lshl_b32 s74, s{f}, 2
    s_add_u32 s74, s74, {C_Q}
    v_mov_b32 v{fCQ}, s74
    s_add_u32 s74, s10, 32768
    v_add_u32 v{fHK}, s74, v3
    s_add_u32 s74, s11, {32*VST}
    v_add_u32 v{fHK+1}, s74, v3
    s_lshl_b32 s74, s{sTB2}, 7
    s_lshl_b32 s75, s{f}, 5
    s_add_u32 s74, s74, s75
    s_add_u32 s74, s74, {WS_F3}
    v_and_b32 v24, 3, v1
    v_lshl_add_u32 v{fP3}, v24, 3, s74
    s_lshl_b32 s74, s{sTB2}, 8
    s_lshl_b32 s75, s{f}, 6
    s_add_u32 s74, s74, s75
    s_add_u32 s74, s74, {WS_FR}
    v_and_b32 v24, 7, v1
    v_lshl_add_u32 v{fPR}, v24, 3, s74
    v_lshlrev_b32 v24, 10, v24
    v_bfe_u32 v25, v1, 3, 1
    v_mul_u32_u24 v25, {ACT_TB}, v25
    v_add_u32 v{fPROBE}, v24, v25
    v_mov_b32 v{fCD}, {C_D}
    v_mov_b32 v{fCH}, {C_H}
    s_mul_i32 s74, s{f}, {SRC}
    v_add_u32 v{fRED}, s74, v3
    """)
    for i in range(0, 64, 2):
        A(f"v_mov_b64 {vr(FACC+i,2)}, 0")

def gen_f(A):
    Q = VmQ(A)
    f = sW4
    A("L_f:")
    A.region("f")
    stamp(A, 4)
    A(f"ds_write_b128 v16, v[20:23]\nds_write_b128 v16, {vr(FACC,4)} offset:16")
    def wdma_half(step, srd, so, tag, half, inc=16384):
        sl = (step + 1) % 3
        A(f"s_add_u32 m0, s77, {sl*8192 + half*1024}\ns_nop 0")
        Q.issue(f"buffer_load_dwordx4 v{26+half}, s[{srd}:{srd+3}], s{so} offen lds", tag)
        if half:
            A(f"s_add_u32 s{so}, s{so}, {inc}")
    def wdma(step, srd, so, tag, inc=16384):
        wdma_half(step, srd, so, tag, 0, inc); wdma_half(step, srd, so, tag, 1, inc)
    def trread(step, dst, cb):
        sl = (step + 1) % 3
        A(f"ds_read_b64_tr_b16 {vr(dst,2)}, v{28+cb} offset:{sl*8192}")
        A(f"ds_read_b64_tr_b16 {vr(dst+2,2)}, v{28+cb} offset:{sl*8192+1024}")
    wdma(-9, 48, 13, "o0"); wdma(-8, 48, 13, "o1")
    A(f"""
    s_cmp_eq_u32 s{f}, 0
    s_cselect_b32 s75, 4, 5
    L_f_hw:
    ds_read_b32 v24, v{fCH}
    s_waitcnt lgkmcnt(0)
    v_readfirstlane_b32 s74, v24
    s_cmp_eq_u32 s74, s75
    s_cbranch_scc1 L_f_hw_done
    s_sleep 1
    s_branch L_f_hw
    L_f_hw_done:
    {'s_setprio 3' if '1' in optval('fp', '') else 's_nop 0'}
    s_cmp_lg_u32 s{f}, 0
    s_cbranch_scc1 L_f_go
    """)
    poll(A, "f_p2", 18, int(optval("ps", "4")))
    A(f"""
    s_mov_b64 exec, 1
    ds_add_u32 v{fCH}, v17
    s_mov_b64 exec, -1
    L_f_go:
    """)
    stamp(A, 5)
    def kv_dma(i):
        A(f"s_mov_b32 m0, s10\ns_add_u32 s74, s11, {i*4*VST}")
        Q.issue("buffer_load_dwordx4 v3, s[84:87], s10 offen sc1 lds", i // 2)
        A("s_mov_b32 m0, s74\ns_nop 0")
        Q.issue("buffer_load_dwordx4 v3, s[88:91], s10 offen sc1 lds", i // 2)
        A("s_add_u32 s10, s10, 4096")
    def chunk_done(c):
        Q.wait(c)
        A(f"s_mov_b64 exec, 1\nds_add_u32 v19, v17 offset:{4*c}\ns_mov_b64 exec, -1")
    A("s_mov_b32 m0, s77\ns_nop 0")
    Q.issue("buffer_load_dwordx4 v3, s[28:31], s78 offen sc1 lds", 0)
    Q.issue("buffer_load_dwordx4 v3, s[28:31], s78 offen offset:1024 sc1 lds", 0)
    n0 = int(optval("n0", "6"))
    for i in range(n0):
        kv_dma(i)
    chunk_done(0)
    stamp(A, 6)
    for i in range(n0, 8):
        kv_dma(i)
    for c in range(1, 4):
        chunk_done(c)
    Q.issue(f"buffer_store_dwordx4 {vr(fSENT,4)}, v3, s[28:31], s6 offen sc1", 7)
    Q.issue(f"buffer_store_dwordx4 {vr(fSENT,4)}, v31, s[28:31], s6 offen sc1", 7)
    A(f"""
    L_f_qw:
    ds_read_b32 v24, v{fCQ}
    s_waitcnt lgkmcnt(0)
    v_readfirstlane_b32 s74, v24
    s_cmp_eq_u32 s74, 1
    s_cbranch_scc1 L_f_qw_done
    s_sleep 2
    s_branch L_f_qw
    L_f_qw_done:
    """)
    for i in range(14):
        va, off = h_slot(i)
        A(f"ds_read_b128 {vr(HB+4*i,4)}, v{fHK+va} offset:{off}")
    A("s_waitcnt lgkmcnt(0)")
    for i in range(8, 16):
        kv_dma(i)
    A(f"""
    s_cmp_eq_u32 s{sTYPE}, 0
    s_cbranch_scc1 L_f_noh
    s_lshl_b32 s74, s{sTBK}, 2
    s_add_u32 s74, s74, s{f}
    s_xor_b32 s75, s74, 1
    s_mul_i32 s76, s{sG}, {7*2048}
    s_add_u32 s76, s76, {WS_ACT + 32*1024}
    s_mul_i32 s92, s74, {ACT_TB}
    s_add_u32 s92, s92, s76
    s_mul_i32 s93, s75, {ACT_TB}
    s_add_u32 s93, s93, s76
    s_add_u32 s94, s92, {6*2048}
    s_and_b32 s75, s{f}, 1
    s_mul_i32 s76, s75, 6144
    s_add_u32 s92, s92, s76
    s_add_u32 s93, s93, s76
    s_add_u32 s95, s92, 4096
    s_add_u32 s96, s93, 4096
    """)
    for n, (t, c) in enumerate([(t, c) for c in range(3) for t in range(2)] + [(0, 3)]):
        so, im = (94, 0) if c == 3 else ((92 + t, c * 2048) if c < 2 else (95 + t, 0))
        for hh in range(2):
            A(f"buffer_store_dwordx4 {vr(HB+8*n+4*hh,4)}, v3, s[28:31], s{so} offen offset:{im+hh*1024} sc1")
    A(f"""
    L_f_noh:
    s_mov_b32 s40, s22
    s_mov_b32 s41, s23
    s_mov_b32 s42, 256
    s_waitcnt vmcnt(0)
    s_mov_b64 exec, 3
    buffer_store_dwordx2 {vr(fTAG,2)}, v{fFLG}, s[28:31], 0 offen sc1
    s_mov_b64 exec, 1
    ds_add_u32 v19, v17 offset:16
    ds_add_u32 v19, v17 offset:20
    ds_add_u32 v19, v17 offset:24
    ds_add_u32 v19, v17 offset:28
    s_cmp_lg_u32 s{f}, 0
    s_cbranch_scc1 L_f_noat
    buffer_atomic_add v17, v4, s[40:43], 0 offen sc1
    L_f_noat:
    s_mov_b64 exec, -1
    """)
    stamp(A, 7)
    Q.q = ["st"]
    wdma(-7, 48, 13, "o2")
    for k in range(8):
        Q.wait(f"o{k}")
        trread(k - 9, WO + 8 * k, 0); trread(k - 9, WO + 8 * k + 4, 1)
        A("s_waitcnt lgkmcnt(0)")
        if k + 3 < 8:
            wdma(k - 6, 48, 13, f"o{k+3}")
        elif k >= 6:
            wdma(k - 6, 44, 12, "w")
    wdma(2, 44, 12, "w")
    poll(A, "f_p3", fP3, 8)
    A("s_setprio 0")
    Q.q = []
    def hload(step, t, tag):
        b = HB + 8 * (step % 3) + 4 * t
        Q.issue(f"buffer_load_dwordx4 {vr(b,4)}, v{(3,31)[t]}, s[28:31], s14 offen sc1", tag)
        if t == 1:
            A("s_add_u32 s14, s14, 1024")
    for s in range(3):
        hload(s, 0, s); hload(s, 1, s)
    Q.drain()
    stamp(A, 8)
    def fstep(s, nxt):
        h = HB + 8 * (s % 3)
        for n, (t, cb) in enumerate(((0, 0), (0, 1), (1, 0), (1, 1))):
            if n < 3 or not nxt:
                trread(s, WF + 4 * cb, cb)
                A("s_waitcnt lgkmcnt(0)")
            else:
                wdma(s + 3, 44, 12, s + 3)
            A(mfma(FACC + 32 * cb + 16 * t, WF + 4 * cb, h + 4 * t))
            if nxt and n in (1, 3):
                hload(s + 3, t, s + 3)
    A("s_mov_b32 s79, 8\nL_f_loop:")
    for s in range(3):
        A("s_waitcnt vmcnt(8)")
        fstep(s, True)
    A("s_sub_u32 s79, s79, 1\ns_cmp_lg_u32 s79, 0\ns_cbranch_scc1 L_f_loop")
    Q.q = [24]*4 + [25]*4 + [26]*4
    for s in range(24, 28):
        Q.wait(s)
        fstep(s, s == 24)
    for x in XB_LOADS:
        A(x)
    if "2" in optval("fp", ""):
        A("s_setprio 3")
    poll(A, "f_pr", fPR, 8)
    A(f"""
    s_or_b32 s74, s2, s{f}
    s_cmp_lg_u32 s74, 0
    s_cbranch_scc1 L_f_noep
    s_mov_b32 s79, 0x8000
    L_f_ep:
    buffer_load_dword v24, v4, s[40:43], 0 offen sc1
    s_sub_u32 s79, s79, 1
    s_waitcnt vmcnt(0)
    v_readfirstlane_b32 s74, v24
    s_cmp_eq_u32 s79, 0
    s_cbranch_scc1 L_f_ep_done
    s_cmp_lg_u32 s74, 256
    s_cbranch_scc1 L_f_ep
    L_f_ep_done:
    s_mov_b32 s74, {WS_CTL}
    s_mov_b64 exec, 1
    buffer_store_dwordx2 {vr(fTAG,2)}, v4, s[28:31], s74 offen sc1
    s_mov_b64 exec, -1
    L_f_noep:
    """)
    stamp(A, 9)
    A(f"""
    s_add_u32 s14, s15, 4096
    s_mov_b32 s79, 0x10000
    s_mov_b32 s78, 0
    """)
    stamp(A, 10)
    A(f"""
    s_mov_b32 s77, 0
    s_mov_b32 s11, 0
    L_f_probe:
    s_sub_u32 s79, s79, 1
    s_cmp_eq_u32 s79, 0
    s_cselect_b32 s76, 0, -1
    s_cselect_b32 s79, 1, s79
    """)
    if optval("td", "0") == "1":
        A(f"""
        s_mov_b32 s75, s78
        s_cmp_eq_u32 s11, 4
        s_cbranch_scc1 L_f_load
        ds_read_b32 v24, v{fCD}
        """)
    A(f"""
    buffer_load_dword v25, v{fPROBE}, s[28:31], s15 offen offset:1020 sc1
    s_waitcnt vmcnt(0) lgkmcnt(0)
    v_readfirstlane_b32 s11, v24
    v_cmp_eq_u32 vcc, -1, v25
    s_and_b32 s74, vcc_lo, s76
    s_mov_b32 s75, s78
    s_and_b32 s10, s74, 0x0f0f
    s_cselect_b32 s10, 1, 0
    s_or_b32 s75, s75, s10
    s_and_b32 s10, s74, 0xf0f0
    s_cselect_b32 s10, 2, 0
    s_or_b32 s75, s75, s10
    s_cmp_lg_u32 s75, 3
    s_cbranch_scc1 L_f_load
    s_sleep {optval("ts", "2")}
    s_branch L_f_probe
    L_f_load:
    """)
    for g in range(2):
        A(f"s_bitcmp1_b32 s75, {g}\ns_cbranch_scc1 L_f_nl{g}")
        for k in range(4*g, 4*g + 4):
            so, im = (15, k * 1024) if k < 4 else (14, (k - 4) * 1024)
            A(f"""
            buffer_load_dwordx4 {vr(FB+8*k,4)}, v3, s[28:31], s{so} offen offset:{im} sc1
            buffer_load_dwordx4 {vr(FB+8*k+4,4)}, v31, s[28:31], s{so} offen offset:{im} sc1
            """)
        A(f"L_f_nl{g}:")
    for g in range(2):
        b = FB + 32 * g
        A(f"s_bitcmp1_b32 s75, {g}\ns_cbranch_scc1 L_f_nc{g}")
        if g == 0:
            A("s_bitcmp1_b32 s75, 1\ns_cbranch_scc1 L_f_w0\ns_waitcnt vmcnt(8)\ns_branch L_f_w1\nL_f_w0:\ns_waitcnt vmcnt(0)\nL_f_w1:")
        else:
            A("s_waitcnt vmcnt(0)")
        A(f"v_max3_u32 v17, v{b}, v{b+1}, v{b+2}\nv_max3_u32 v18, v{b+3}, v{b+4}, v{b+5}")
        for r in range(6, 30, 4):
            A(f"v_max3_u32 v17, v17, v{b+r}, v{b+r+1}\nv_max3_u32 v18, v18, v{b+r+2}, v{b+r+3}")
        A(f"""
        v_max3_u32 v17, v17, v{b+30}, v{b+31}
        v_max_u32 v17, v17, v18
        v_and_b32 v17, s76, v17
        v_cmp_eq_u32 vcc, -1, v17
        s_cbranch_vccnz L_f_sk{g}
        s_bitset1_b32 s78, {g}
        L_f_nc{g}:
        s_cmp_lg_u32 s77, {g}
        s_cbranch_scc1 L_f_sk{g}
        s_bitcmp1_b32 s78, {g}
        s_cbranch_scc0 L_f_sk{g}
        s_mov_b32 s77, {g+1}
        """)
        if asm.STAMPS:
            A(f"s_memrealtime s[82:83]\ns_waitcnt lgkmcnt(0)\nv_writelane_b32 v255, s82, {g}\nv_writelane_b32 v255, s79, 8")
        for k in range(4*g, 4*g + 4):
            bb, w = FB + 8 * k, WO + 8 * k
            A(f"{mfma(FACC, w, bb)}\n{mfma(FACC+16, w, bb+4)}\n{mfma(FACC+32, w+4, bb)}\n{mfma(FACC+48, w+4, bb+4)}")
        A(f"L_f_sk{g}:")
    A("s_cmp_lg_u32 s77, 2\ns_cbranch_scc1 L_f_probe")
    A(f"""
    L_f_dw:
    ds_read_b32 v24, v{fCD}
    s_waitcnt lgkmcnt(0)
    v_readfirstlane_b32 s74, v24
    s_cmp_eq_u32 s74, 4
    s_cbranch_scc1 L_f_dw_done
    s_sleep 1
    s_branch L_f_dw
    L_f_dw_done:
    """)
    stamp(A, 11)
    A("s_nop 11")
    for q in range(16):
        A(f"ds_write_b128 v{fRED}, {vr(FACC+4*q,4)} offset:{q*QS}")
    A("s_nop 0")

def gen_final(A):
    R = 96
    A(f"""
    L_final:
    v_and_b32 v16, 3, v1
    v_bfe_u32 v17, v1, 2, 1
    v_lshl_add_u32 v16, v17, 3, v16
    v_mul_u32_u24 v16, {QS}, v16
    v_lshrrev_b32 v17, 3, v1
    v_lshl_add_u32 v16, v17, 4, v16
    s_lshr_b32 s74, s{sWAVE}, 2
    s_mul_i32 s74, s74, {4*QS}
    s_lshl_b32 s75, s{sW4}, 7
    s_add_u32 s74, s74, s75
    v_add_u32 v16, s74, v16
    s_mov_b32 s75, 0xffff0000
    """)
    for d in range(4):
        A(f"""
        v_lshlrev_b32 v{20+2*d}, 16, v{XB+d}
        v_and_b32 v{21+2*d}, s75, v{XB+d}
        v_lshlrev_b32 v28, 16, v{XB+4+d}
        v_and_b32 v29, s75, v{XB+4+d}
        v_add_f32 v{20+2*d}, v{20+2*d}, v28
        v_add_f32 v{21+2*d}, v{21+2*d}, v29
        """)
    A("s_waitcnt lgkmcnt(0)\ns_barrier")
    stamp(A, 12)
    for src in range(4):
        for g in range(2):
            A(f"ds_read_b128 {vr(R+8*src+4*g,4)}, v16 offset:{src*SRC + g*512}")
    for src in range(4):
        A(f"s_waitcnt lgkmcnt({6-2*src})")
        for i in range(0, 8, 2):
            A(f"v_pk_add_f32 {vr(20+i,2)}, {vr(20+i,2)}, {vr(R+8*src+i,2)}")
    for i in range(4):
        A(f"v_cvt_pk_bf16_f32 v{28+i}, v{20+2*i}, v{21+2*i}")
    A(f"buffer_store_dwordx4 v[28:31], v5, s[60:63], 0 offen {optval('ost', '')}")
    stamp(A, 13)
    if asm.STAMPS:
        A("s_waitcnt vmcnt(0)")
    stamp(A, 14); stamp(A, 15, True)
    stamp_flush(A, 0, 28, sWAVE)
    if asm.STAMPS:
        A("s_add_u32 s82, s82, 512\ns_mov_b64 exec, 0xffff\nbuffer_store_dword v252, v251, s[28:31], s82 offen\ns_add_u32 s83, s83, 512\nbuffer_store_dword v255, v251, s[28:31], s83 offen")
    if asm.STAMPS and 'dbgout' in OPT:
        A(f"""
        s_mov_b64 exec, -1
        s_mov_b32 s40, s22
        s_mov_b32 s41, s23
        s_mov_b32 s42, 256
        s_mov_b32 s43, 0x00020000
        v_readlane_b32 s74, v254, 0
        v_readlane_b32 s75, v254, 15
        s_not_b32 s74, s74
        v_mov_b32 v20, s74
        v_mov_b32 v21, s75
        s_mov_b64 exec, 1
        buffer_atomic_umax v20, v4, s[40:43], 0 offen offset:4 sc1
        buffer_atomic_umax v21, v4, s[40:43], 0 offen offset:8 sc1
        s_lshl_b32 s74, s{sWAVE}, 8
        s_or_b32 s74, s74, s2
        s_cmp_lg_u32 s74, {optval('dwg', '8')}
        s_cbranch_scc1 L_end
        s_mov_b64 exec, 0xfff8
        buffer_store_dword v254, v251, s[40:43], 0 offen
        """)
    A("L_end:\ns_endpgm")

def gen_fallback(A):
    A("L_fallback:\ns_waitcnt lgkmcnt(0)")
    kv_srds(A)
    A(f"""
    v_mov_b32 v{C[0]}, 0xff7fffff
    v_mov_b32 v{C[1]}, 0xff7fffff
    v_mov_b32 v{VA}, 0x3f803f80
    s_mov_b32 s12, 0x0000ffff
    s_mov_b32 s13, 0x0000ffff
    """)
    for i in range(1, 4):
        A(f"v_mov_b32 v{VA+i}, v{VA}")
    for i in range(4):
        A(f"v_mov_b32 v{VB[0]+i}, v{VA}")
    for q in range(2):
        for i in range(16):
            A(f"v_mov_b32 v{O[q]+i}, 0")
    A(f"""
    s_mov_b32 s11, 0
    L_fb_loop:
    buffer_load_dwordx4 {vr(KB[0],4)}, v{vL16}, s[84:87], s11 offen sc1
    s_mov_b64 exec, s[12:13]
    buffer_load_dwordx4 {vr(VA,4)}, v{vVg}, s[88:91], s11 offen sc1
    buffer_load_dwordx4 {vr(VB[0],4)}, v{vVg}, s[88:91], s11 offen offset:512 sc1
    s_mov_b64 exec, -1
    s_waitcnt vmcnt(0)
    """)
    for q in range(2):
        A(f"{mfma(S[0], KB[0], Q2[q], '0')}\ns_nop 15\ns_nop 3")
        rowmax(A, S[0], T0)
        A(f"""
        v_max_f32 v{T0}, v{T0}, v{C[q]}
        v_sub_f32 v{T2}, v{C[q]}, v{T0}
        v_exp_f32 v{T2}, v{T2}
        v_mov_b32 v{C[q]}, v{T0}
        """)
        for i in range(16):
            A(f"v_mul_f32 v{O[q]+i}, v{O[q]+i}, v{T2}")
        for i in range(16):
            A(f"v_sub_f32 v{S[0]+i}, v{S[0]+i}, v{T0}")
        for i in range(16):
            A(ex(S[0], i))
        A("s_nop 0")
        for i in range(8):
            A(cv(S[0], i))
        A(f"s_nop 1\n{mfma(O[q], VA, P)}\n{mfma(O[q], VB[0], P+4)}")
    A(f"""
    s_nop 15
    s_nop 3
    s_add_u32 s11, s11, 1024
    s_cmp_lt_u32 s11, 0x10000
    s_cbranch_scc1 L_fb_loop
    s_branch L_a_fin
    """)
```

```python
from asm import *
import asm, math, os
OPT = os.environ.get('MOPT', '').split(',')
def optval(k, d):
    for o in OPT:
        if o.startswith(k + "="):
            return o.split("=")[1]
    return d
LOG2E = math.log2(math.e)

XST, WBASE, WST = 16384, 49152, 28672
VST = 1056
LDS_V = 65536
QA = LDS_V + 66 * VST
CTL = QA + 3 * 8192
LDS_BYTES = 163840
C_KV, C_Q, C_H, C_D = CTL, CTL + 64, CTL + 96, CTL + 100
T_XP, T_RS, T_WP = CTL + 128, CTL + 128 + 1024, CTL + 128 + 2048
T_PART = QA

sWAVE, sW4, sTBK, sG, sTYPE, sHEAD, sQB, sTB2, sNB, sC = range(64, 74)
SRD_K, SRD_V = 84, 88

def prologue(A):
    A("s_cmp_ge_u32 s2, 256\ns_cbranch_scc1 L_end")
    stamp(A, 0, True); stamp(A, 1)
    A(f"""
    s_load_dwordx16 s[4:19], s[0:1], 0
    s_load_dwordx4 s[20:23], s[0:1], 64
    s_load_dwordx2 s[24:25], s[0:1], 80
    s_getpc_b64 s[44:45]
    L_pc:
    s_mov_b32 s46, L_code_end-L_pc
    s_mov_b32 s47, 0x00020000
    v_lshlrev_b32 v5, {optval('cps', '6')}, v0
    {'s_nop 0' if 'nocp' in OPT else 'buffer_load_dword v253, v5, s[44:47], 0 offen'}
    v_and_b32 v1, 63, v0
    v_lshrrev_b32 v2, 6, v0
    v_lshlrev_b32 v3, 4, v1
    v_readfirstlane_b32 s{sWAVE}, v2
    v_mov_b32 v4, 0
    s_and_b32 s74, s2, 7
    s_lshr_b32 s75, s2, 3
    s_and_b32 s{sQB}, s75, 7
    s_and_b32 s77, s74, 1
    s_lshl_b32 s77, s77, 3
    s_add_u32 s{sTBK}, s77, s{sQB}
    s_lshr_b32 s77, s75, 3
    s_lshr_b32 s{sTYPE}, s77, 1
    s_and_b32 s78, s77, 1
    s_and_b32 s{sG}, s74, 6
    s_add_u32 s{sG}, s{sG}, s78
    s_lshl_b32 s74, s74, 2
    s_add_u32 s{sHEAD}, s74, s77
    s_and_b32 s78, s75, 3
    s_add_u32 s{sTB2}, s74, s78
    s_lshr_b32 s{sNB}, s75, 2
    """)
    rot = optval("rot", "tbk")
    if rot == "grp":
        A(f"s_lshl_b32 s{sC}, s77, 1")
    elif rot == "tbk":
        A(f"s_mov_b32 s{sC}, s{sQB}")
    elif rot == "full":
        A(f"s_lshl_b32 s{sC}, s77, 1\ns_add_u32 s{sC}, s{sC}, s{sQB}\ns_and_b32 s{sC}, s{sC}, 7")
    elif rot == "mix":
        A(f"s_lshl_b32 s{sC}, s77, 1\ns_and_b32 s78, s{sQB}, 1\ns_add_u32 s{sC}, s{sC}, s78")
    else:
        A(f"s_mov_b32 s{sC}, 0")
    A(f"""
    s_and_b32 s{sW4}, s{sWAVE}, 3
    s_mov_b32 s30, {WS_BYTES}
    s_mov_b32 s31, 0x00020000
    s_mov_b32 s3, {WS_CTL}
    v_and_b32 v2, 31, v1
    v_lshrrev_b32 v7, 5, v1
    s_cmp_lt_u32 s{sWAVE}, 4
    s_cbranch_scc1 L_m
    """)

def lanepart_tr(A, dst, t1):
    A(f"""
    v_lshlrev_b32 v{dst}, 3, v7
    v_bfe_u32 v{t1}, v1, 2, 2
    v_add_u32 v{dst}, v{dst}, v{t1}
    v_lshlrev_b32 v{dst}, 6, v{dst}
    v_bfe_u32 v{t1}, v1, 4, 1
    v_lshl_add_u32 v{dst}, v{t1}, 5, v{dst}
    v_and_b32 v{t1}, 3, v1
    v_lshl_add_u32 v{dst}, v{t1}, 3, v{dst}
    """)

XA0, XA1, WAa, WAb = 8, 12, 16, 17
FS = [20, 44]
ACC = 68
XPF, WPF, RS, SD, RT = 180, 188, 204, 206, 208
HP = 180
vFLG, vTAG = 240, 242
sP, sE, sT0, sT1 = 4, 5, 6, 7

def touches(A):
    A(f"""
    s_cmp_lt_u32 s2, {optval('tw', '224')}
    s_cbranch_scc1 L_m_nt
    s_cmp_lg_u32 s{sW4}, 0
    s_cbranch_scc1 L_m_nt
    v_lshlrev_b32 v24, {optval('tsh', '20')}, v1
    buffer_load_dword v253, v24, s[28:31], 0 offen
    global_load_dword v253, v4, s[48:49]
    global_load_dword v253, v4, s[14:15]
    global_load_dword v253, v4, s[16:17]
    global_load_dword v253, v4, s[18:19]
    global_load_dword v253, v4, s[20:21]
    global_load_dword v253, v4, s[22:23]
    L_m_nt:
    """)

def m_common(A, a_setup):
    A(f"""
    L_m:
    s_mov_b32 s54, 0x200000
    s_mov_b32 s55, 0x00020000
    v_bfe_u32 v24, v1, 1, 3
    v_xor_b32 v24, v24, v7
    v_lshlrev_b32 v{XA0}, 7, v2
    v_lshl_add_u32 v{XA0}, v24, 4, v{XA0}
    s_lshl_b32 s74, s{sW4}, 12
    v_add_u32 v{XA0}, s74, v{XA0}
    s_waitcnt lgkmcnt(0)
    s_mov_b32 s28, s24
    s_mov_b32 s29, s25
    s_mov_b32 s52, s4
    s_mov_b32 s53, s5
    buffer_load_dwordx2 v[{vTAG}:{vTAG+1}], v4, s[28:31], s3 offen sc1
    """)
    A("s_mov_b32 s48, s8\ns_mov_b32 s49, s9")
    if optval('te', '0') == '1':
        touches(A)
    A(f"""
    s_lshl_b32 s74, s{sQB}, 3
    s_lshl_b32 s75, s{sW4}, 1
    s_add_u32 s74, s74, s75
    s_mul_i32 s8, s74, {ACT_TB}
    s_lshl_b32 s75, s{sHEAD}, 10
    s_add_u32 s8, s8, s75
    s_add_u32 s8, s8, {WS_ACT}
    s_add_u32 s9, s8, {ACT_TB}
    s_lshr_b32 s{sP}, s{sW4}, 1
    s_and_b32 s{sE}, s{sW4}, 1
    s_lshl_b32 s74, s{sTBK}, 2
    s_add_u32 s{sT0}, s74, s{sW4}
    s_xor_b32 s{sT1}, s{sT0}, 1
    """)
    for ks in range(1, 4):
        A(f"v_xor_b32 v{XA0+ks}, {ks << 5}, v{XA0}")
    for ks in range(4):
        A(f"v_xor_b32 v{XA1+ks}, 0x1000, v{XA0+ks}")
    lanepart_tr(A, WAb, 24)
    for i in range(0, 112, 2):
        A(f"v_mov_b64 {vr(ACC+i,2)}, 0")
    for i in range(6):
        A(f"v_mov_b64 {vr(XPF+4*i+2,2)}, 0")
    a_setup(A)
    if optval("xpf", "0") != "0":
        A(f"""
        s_lshr_b32 s74, s2, 6
        s_lshl_b32 s74, s74, 2
        s_add_u32 s74, s74, s{sW4}
        s_lshl_b32 s74, s74, 13
        s_lshl_b32 s75, s{sTBK}, 17
        s_add_u32 s74, s74, s75
        v_lshlrev_b32 v24, 7, v1
        {"s_waitcnt vmcnt(0)" if optval("xpf", "0") == "2" else "s_nop 0"}
        buffer_load_dword v253, v24, s[52:55], s74 offen
        """)
    A(f"""
    s_waitcnt vmcnt({0 if optval("xpf", "0") == "0" else 1})
    """)
    if optval('te', '0') == '0':
        touches(A)
    A(f"""
    """)
    if int(optval('pad', '1100')):
        A(f"""
        s_lshl_b32 s74, s{sW4}, 1
        s_add_u32 s74, s74, s{sTYPE}
        s_mov_b64 exec, 0
        s_cmp_eq_u32 s74, 0
        s_cbranch_scc1 TOUR_mq
        s_cmp_eq_u32 s74, 1
        s_cbranch_scc1 TOUR_mf
        s_cmp_lt_u32 s74, 4
        s_cbranch_scc1 TOUR_h
        s_cmp_lt_u32 s74, 6
        s_cbranch_scc1 TOUR_a
        s_branch TOUR_f
        L_tour_ret:
        s_mov_b64 exec, -1
        """)
    stamp(A, 11)
    A(f"""
    s_mov_b32 s10, 0
    s_mov_b32 s11, 8
    s_mov_b32 s14, {XST}
    s_mov_b32 s15, {WST}
    v_add_u32 v{vTAG}, 1, v{vTAG}
    v_add_u32 v{vTAG+1}, 1, v{vTAG+1}
    {'s_setprio 2' if optval('prio', 'm') == 'm' else 's_nop 0'}
    s_cmp_lg_u32 s{sTYPE}, 0
    s_cbranch_scc1 L_m_ffn
    """)

def m_path(A, ffn):
    nm = "ffn" if ffn else "qkv"
    ncb = 4 if ffn else 3
    def xf(s, t): return FS[s] + 4 * t
    def wf(s, c): return FS[s] + 8 + 4 * c
    blocks = [(t, c) for c in range(3) for t in range(2)] + ([(0, 3)] if ffn else [])
    def acc(i): return ACC + 16 * i
    A(f"L_m_{nm}:")
    A.region("mf" if ffn else "mq")
    if ffn:
        A(f"""
        s_mul_i32 s74, s{sE}, 12288
        s_add_u32 s74, s74, {WBASE}
        v_add_u32 v{WAa}, s74, v{WAb}
        v_add_u32 v{WAb}, {WBASE + 6*4096}, v{WAb}
        """)
    else:
        A(f"""
        s_lshl_b32 s74, s{sE}, 12
        s_add_u32 s74, s74, {WBASE}
        v_add_u32 v{WAa}, s74, v{WAb}
        s_lshl_b32 s74, s{sG}, 1
        s_add_u32 s74, s74, s{sE}
        s_lshl_b32 s74, s74, 4
        s_add_u32 s74, s74, s{sTBK}
        s_lshl_b32 s74, s74, 1
        s_add_u32 s74, s74, s{sP}
        s_lshl_b32 s74, s74, 3
        s_add_u32 s74, s74, {WS_F2}
        """)
    A(f"v_mov_b32 v{vFLG}, s74\nv_mov_b32 v{vFLG+1}, {C_H}")
    cbs = 4096 if ffn else 8192
    def reads(ks, s):
        o = [f"ds_read_b128 {vr(xf(s,0),4)}, v{XA0+ks}", f"ds_read_b128 {vr(xf(s,1),4)}, v{XA1+ks}"]
        w = []
        for c in range(ncb):
            a, off = (WAb, ks * 1024) if c == 3 else (WAa, c * cbs + ks * 1024)
            w.append([f"ds_read_b64_tr_b16 {vr(wf(s,c),2)}, v{a} offset:{off}",
                      f"ds_read_b64_tr_b16 {vr(wf(s,c)+2,2)}, v{a} offset:{off+256}"])
        return [o[0]] + w[0] + [o[1]] + [x for p in w[1:] for x in p]
    def mm(i, xr, wr):
        t, c = blocks[i]
        if (not ffn) and c == 2:
            return mfma(acc(i), xr(t), wr(c))
        return mfma(acc(i), wr(c), xr(t))
    def kstep(s, fill, first=0, per=3):
        k = 0
        for i in range(first, len(blocks)):
            A(mm(i, lambda t: xf(s, t), lambda c: wf(s, c)))
            for x in fill[k:k+per]:
                A(x)
            k += per
        for x in fill[k:]:
            A(x)
    stamp(A, 2)
    A("s_barrier")
    stamp(A, 3)
    for r in reads(0, 0):
        A(r)
    A(f".p2align 6\nL_m_{nm}_loop:")
    for ks in range(3):
        s = ks & 1
        A("s_waitcnt lgkmcnt(0)")
        fill = reads(ks + 1, 1 - s)
        if ks == 0:
            fill = fill + ["s_add_u32 s10, s10, 1", "s_cmp_eq_u32 s10, 3", f"s_cselect_b32 s12, {-2*XST}, s14", f"s_cselect_b32 s13, {-2*WST}, s15", "s_cselect_b32 s10, 0, s10"]
        if ks == 2:
            fill = fill + ["s_sub_u32 s11, s11, 1", "s_cmp_eq_u32 s11, 0"]
        kstep(s, fill)
    A("s_waitcnt lgkmcnt(0)")
    A(mm(0, lambda t: xf(1, t), lambda c: wf(1, c)))
    A(f"s_barrier\ns_cbranch_scc1 L_m_{nm}_last")
    upd = [f"v_add_u32 v{XA0}, s12, v{XA0}", f"v_add_u32 v{WAa}, s13, v{WAa}", f"v_add_u32 v{XA1}, s12, v{XA1}"]
    if ffn:
        upd.append(f"v_add_u32 v{WAb}, s13, v{WAb}")
    for x in upd:
        A(x)
    upd2 = [f"v_add_u32 v{b+k}, s12, v{b+k}" for k in range(1, 4) for b in (XA0, XA1)]
    kstep(1, reads(0, 0) + upd2, first=1)
    A(f"s_branch L_m_{nm}_loop\nL_m_{nm}_last:")
    fill = f"""
    s_lshl_b32 s74, s{sW4}, 8
    v_lshl_add_u32 v{XA0}, v2, 3, s74
    v_xor_b32 v{XA0+1}, 0x100, v{XA0}
    v_lshrrev_b32 v{XA0+2}, 1, v{XA0}
    v_lshrrev_b32 v{XA0+3}, 1, v{XA0+1}
    s_mul_i32 s74, s{sE}, {768 if ffn else 256}
    v_lshl_add_u32 v{XA1}, v2, 3, s74
    v_add_u32 v{XA0}, {T_XP}, v{XA0}
    v_add_u32 v{XA0+1}, {T_XP}, v{XA0+1}
    v_add_u32 v{XA0+2}, {T_RS}, v{XA0+2}
    v_add_u32 v{XA0+3}, {T_RS}, v{XA0+3}
    v_add_u32 v{XA1}, {T_WP}, v{XA1}
    """
    if ffn:
        fill += f"""
        v_lshlrev_b32 v{XA1+1}, 3, v2
        v_add_u32 v{XA1+1}, {T_WP + 6*256}, v{XA1+1}
        s_lshl_b32 s74, s{sW4}, 10
        s_add_u32 s74, s74, 32768
        v_add_u32 v{WAa}, s74, v3
        s_mul_i32 s74, s{sW4}, {VST}
        s_add_u32 s74, s74, {LDS_V + 32*VST}
        v_add_u32 v{WAb}, s74, v3
        """
    else:
        fill += f"""
        s_lshl_b32 s74, s{sW4}, 7
        v_lshl_add_u32 v{XA1+2}, v7, 4, s74
        v_xor_b32 v{XA1+3}, 0x80, v{XA1+2}
        v_add_u32 v{XA1+2}, {T_RS}, v{XA1+2}
        v_add_u32 v{XA1+3}, {T_RS}, v{XA1+3}
        s_lshl_b32 s74, s{sG}, 1
        s_add_u32 s74, s74, s{sE}
        s_lshl_b32 s74, s74, 17
        s_lshl_b32 s12, s{sT0}, 10
        s_add_u32 s12, s12, s74
        s_lshl_b32 s13, s{sT1}, 10
        s_add_u32 s13, s13, s74
        """
    fill = [l.strip() for l in fill.split("\n") if l.strip()]
    rd = [f"ds_read_b64 {vr(XPF,2)}, v{XA0}", f"ds_read_b64 {vr(XPF+4,2)}, v{XA0+1}"]
    for c in range(3):
        rd.append(f"ds_read_b64 {vr(WPF+4*c,2)}, v{XA1} offset:{c*(256 if ffn else 512)}")
    if ffn:
        rd.append(f"ds_read_b64 {vr(WPF+12,2)}, v{XA1+1}")
    nfr = len(rd)
    rd += [f"ds_read_b32 v{RS}, v{XA0+2}", f"ds_read_b32 v{RS+1}, v{XA0+3}"]
    if ffn:
        rd += [f"ds_read_b32 v{SD}, v{XA0+2} offset:512", f"ds_read_b32 v{SD+1}, v{XA0+3} offset:512"]
    else:
        for t in range(2):
            for gq in range(4):
                rd.append(f"ds_read_b128 {vr(RT+16*t+4*gq,4)}, v{XA1+2+t} offset:{gq*32}")
    nv = 14 if ffn else 17
    for x in fill[:5]:
        A(x)
    kstep(1, fill[5:nv] + rd + fill[nv:], first=1, per=6)
    A(f"s_waitcnt lgkmcnt({len(rd) - nfr})")
    stamp(A, 4)
    order = list(range(len(blocks)))
    if not ffn:
        order = [2, 3, 4, 5, 0, 1]
    PK = FS[0]
    for n, i in enumerate(order):
        A(mm(i, lambda t: XPF + 4*t, lambda c: WPF + 4*c))
        if n == 0:
            A("s_waitcnt lgkmcnt(0)")
    if not ffn:
        A(f"""
        v_mov_b32 v{XA1}, v{RS}
        v_mov_b32 v{XA1+1}, v{RS}
        v_mov_b32 v{XA1+2}, v{RS+1}
        v_mov_b32 v{XA1+3}, v{RS+1}
        v_mul_f32 v{RS}, {f32bits(LOG2E/4)}, v{XA1}
        v_mul_f32 v{RS+1}, {f32bits(LOG2E/4)}, v{XA1}
        v_mul_f32 v{RS+2}, {f32bits(LOG2E/4)}, v{XA1+2}
        v_mul_f32 v{RS+3}, {f32bits(LOG2E/4)}, v{XA1+2}
        v_bfe_u32 v{XA0}, v1, 4, 1
        v_lshlrev_b32 v{XA0}, 16, v{XA0}
        v_lshl_add_u32 v{XA0}, v7, 8, v{XA0}
        v_and_b32 v{XA0+1}, 15, v1
        v_lshl_add_u32 v{XA0}, v{XA0+1}, 4, v{XA0}
        """)
        for n, i in enumerate(order):
            t, c = blocks[i]
            a, pk = acc(i), PK + 8 * n
            for r in range(0, 16, 2):
                sc = (RS + 2*t, XA1 + 2*t, RT + 16*t + r)[c]
                A(f"v_pk_mul_f32 {vr(a+r,2)}, {vr(a+r,2)}, {vr(sc,2)}")
            for r in range(0, 16, 2):
                A(f"v_cvt_pk_bf16_f32 v{pk+r//2}, v{a+r}, v{a+r+1}")
            if c < 2:
                for hh in range(2):
                    A(f"s_add_u32 s74, s{12+t}, {c*(2<<20) + hh*65536}")
                    A(f"buffer_store_dwordx4 {vr(pk+4*hh,4)}, v3, s[28:31], s74 offen sc1")
            else:
                A(f"s_add_u32 s74, s{12+t}, {WS_V}")
                for m2 in range(2):
                    A(f"buffer_store_dwordx4 {vr(pk+4*m2,4)}, v{XA0}, s[28:31], s74 offen offset:{m2*512} sc1")
        stamp(A, 5)
        A("s_waitcnt vmcnt(0)")
        stamp(A, 10)
        A(f"""
        s_mov_b64 exec, 1
        buffer_store_dwordx2 v[{vTAG}:{vTAG+1}], v{vFLG}, s[28:31], 0 offen sc1
        ds_add_u32 v{vFLG+1}, v19
        s_mov_b64 exec, -1
        s_branch L_a
        """)
    else:
        c1 = -2.0 * LOG2E * math.sqrt(2.0 / math.pi)
        c3 = c1 * 0.044715
        K1, K3, SP = XA0, XA1, FS[0]
        for t in range(2):
            A(f"""
            v_mul_f32 v{K1+2*t}, {f32bits(c1)}, v{RS+t}
            v_mul_f32 v{K3+2*t}, v{RS+t}, v{RS+t}
            v_mul_f32 v{K3+2*t}, v{K3+2*t}, v{RS+t}
            v_mul_f32 v{K3+2*t}, {f32bits(c3)}, v{K3+2*t}
            v_mov_b32 v{K1+2*t+1}, v{K1+2*t}
            v_mov_b32 v{K3+2*t+1}, v{K3+2*t}
            v_mov_b32 v{SP+2*t}, v{SD+t}
            v_mov_b32 v{SP+2*t+1}, v{SD+t}
            """)
        GB = [FS[0] + 4, FS[1]]
        p2 = lambda r: vr(r, 2)
        ops = []
        def add(kind, text, deps=()):
            ops.append((kind, text, [d for d in deps if d is not None])); return len(ops) - 1
        last_mul = {}
        for n, (t, c) in enumerate(blocks):
            a, pk, G = acc(n), HP + 8 * (n & 1), GB[n & 1]
            prev = last_mul.get(n - 2, {})
            pw = last_mul.get(("w", n - 2), [None, None])
            z, e, d_, r_, m_ = {}, {}, {}, {}, {}
            for r in range(0, 16, 2):
                z[r] = add("N", f"v_pk_mul_f32 {p2(G+r)}, {p2(a+r)}, {p2(a+r)}", [prev.get(r)])
            for r in range(0, 16, 2):
                z[r] = add("N", f"v_pk_fma_f32 {p2(G+r)}, {p2(G+r)}, {p2(K3+2*t)}, {p2(K1+2*t)}", [z[r]])
            for r in range(0, 16, 2):
                z[r] = add("N", f"v_pk_mul_f32 {p2(G+r)}, {p2(G+r)}, {p2(a+r)}", [z[r]])
            for r in range(16):
                e[r] = add("T", f"v_exp_f32 v{G+r}, v{G+r}", [z[r & ~1]])
            for r in range(0, 16, 2):
                d_[r] = add("H", f"v_pk_fma_f32 {p2(G+r)}, {p2(G+r)}, {p2(SP+2*t)}, {p2(SP+2*t)}", [e[r], e[r+1]])
            for r in range(16):
                r_[r] = add("T", f"v_rcp_f32 v{G+r}, v{G+r}", [d_[r & ~1]])
            cv_ = []
            for r in range(0, 16, 2):
                m_[r] = add("H", f"v_pk_mul_f32 {p2(a+r)}, {p2(a+r)}, {p2(G+r)}", [r_[r], r_[r+1]])
                cv_.append(add("H", f"v_cvt_pk_bf16_f32 v{pk+r//2}, v{a+r}, v{a+r+1}", [m_[r], pw[r // 8]]))
            last_mul[n] = m_
            w = []
            for hh in range(2):
                va, off = h_slot(2 * n + hh)
                w.append(add("H", f"ds_write_b128 v{(WAa, WAb)[va]}, {vr(pk+4*hh,4)} offset:{off}", cv_[4*hh:4*hh+4]))
            last_mul[("w", n)] = w
            if n == int(optval("sig", "2")):
                add("H", f"s_mov_b64 exec, 1\nds_add_u32 v{vFLG+1}, v19\ns_mov_b64 exec, -1", w)
        done, pos, out, lastT = {}, 0, [], False
        pend = list(range(len(ops)))
        def ready(i):
            return all(d in done and pos - done[d] >= 3 for d in ops[i][2])
        while pend:
            pick = None
            for kinds in ((("H", "N"), ("T",)) if lastT else (("T",), ("H", "N"))):
                for k in kinds:
                    c_ = [i for i in pend if ops[i][0] == k]
                    c_ = c_[:1] if k != "H" else c_[:24]
                    pick = next((i for i in c_ if ready(i)), None)
                    if pick is not None:
                        break
                if pick is not None:
                    break
            if pick is None:
                A("s_nop 0"); pos += 1; lastT = False
                continue
            A(ops[pick][1]); done[pick] = pos; pos += 1
            pend.remove(pick)
            nT = sum(1 for i in done if ops[i][0] == "T"); nN = len(done) - nT
            lastT = ops[pick][0] == "T" or (2 * (nN - 24) < 3 * nT - 2 and any(ops[i][0] != "T" and ready(i) for i in pend[:80]))
        stamp(A, 5)

def h_slot(i):
    return (0, i * 4096) if i < 8 else (1, (i - 8) * 4 * VST)

hXD, hWD, hRA, hGA, hGC, hEP = 224, 226, 227, 228, 229, 230
hWR, hXR, hGR, hGX, hBI, hT = 96, 128, 136, 152, 156, 160

def xstamp(A, lane):
    if asm.STAMPS:
        A(f"s_memtime s[80:81]\ns_waitcnt lgkmcnt(0)\nv_writelane_b32 v252, s80, {lane}")

def dma_code(A, tag, fill=()):
    A(f"""
    s_lshl_b32 s74, s{sC}, 7
    s_add_u32 s75, s74, 16384
    s_mul_i32 s76, s{sC}, s97
    s_cmp_lg_u32 s{sTYPE}, 0
    s_cbranch_scc1 L_dma_ffn{tag}
    """)
    fill = list(fill)
    for ffn in (False, True):
        if ffn:
            A(f"L_dma_ffn{tag}:")
        imms = [c * 64 for c in range(7)] if ffn else [0, 64, 1024, 1088, 2048, 2112]
        ops = [("x", a) for a in range(4)] + [("w", c) for c in range(len(imms))]
        ops = [ops[0], ops[4], ops[5], ops[1], ops[6], ops[7], ops[2], ops[8], ops[9], ops[3]] + ops[10:]
        per = (len(fill) + len(ops) - 1) // len(ops)
        for n, (k, j) in enumerate(ops):
            part = fill[n*per:(n+1)*per]
            gap = part[0] if part else "s_nop 0"
            if k == "x":
                A(f"s_add_u32 m0, s92, {j*1024}\n{gap}\nbuffer_load_dwordx4 v{hXD + (j & 1)}, s[32:35], s{74 + (j >> 1)} offen lds")
            else:
                A(f"s_add_u32 m0, s93, {j*4096 - imms[j]}\n{gap}\nbuffer_load_dwordx4 v{hWD}, s[36:39], s76 offen offset:{imms[j]} lds")
            for x in part[1:]:
                A(x)
        if not ffn:
            A(f"s_branch L_dma_adv{tag}")
    A(f"""
    L_dma_adv{tag}:
    s_add_u32 s{sC}, s{sC}, 1
    s_and_b32 s{sC}, s{sC}, 7
    s_add_u32 s95, s95, 1
    s_cmp_eq_u32 s95, 3
    s_cselect_b32 s95, 0, s95
    s_cselect_b32 s74, {-2*XST}, s98
    s_cselect_b32 s75, {-2*WST}, s99
    s_add_u32 s92, s92, s74
    s_add_u32 s93, s93, s75
    """)

def dma_sub(A):
    A("L_dma:")
    dma_code(A, "")
    A("s_setpc_b64 s[100:101]")

def h_all(A, f_setup):
    CALL = "s_call_b64 s[100:101], L_dma"
    if optval('prio', 'm') == 'h':
        A("s_setprio 3")
    A(f"""
    v_lshrrev_b32 v8, 3, v1
    s_lshl_b32 s74, s{sW4}, 5
    v_add_u32 v8, s74, v8
    v_lshlrev_b32 v8, 10, v8
    v_and_b32 v9, 7, v1
    v_lshrrev_b32 v10, 4, v1
    v_xor_b32 v9, v9, v10
    v_lshl_add_u32 v{hXD}, v9, 4, v8
    v_xor_b32 v9, 4, v9
    v_lshl_add_u32 v{hXD+1}, v9, 4, v8
    v_add_u32 v{hXD+1}, 0x2000, v{hXD+1}
    v_lshrrev_b32 v8, 2, v1
    s_lshl_b32 s74, s{sW4}, 4
    v_add_u32 v8, s74, v8
    v_and_b32 v9, 3, v1
    v_lshlrev_b32 v9, 4, v9
    s_mov_b32 s34, 0x20000
    s_mov_b32 s35, 0x00020000
    s_mov_b32 s39, 0x00020000
    s_lshl_b32 s75, s{sTBK}, 17
    s_lshl_b32 s92, s{sW4}, 12
    s_lshl_b32 s93, s{sW4}, 10
    s_add_u32 s93, s93, {WBASE}
    s_mov_b32 s95, 0
    s_mov_b32 s98, {XST}
    s_mov_b32 s99, {WST}
    s_lshl_b32 s96, s{sC}, 9
    s_lshl_b32 s94, s{sTYPE}, 3
    s_add_u32 s94, s94, s{sG}
    s_lshl_b32 s79, s{sG}, 2
    s_add_u32 s79, s79, s{sW4}
    s_lshl_b32 s79, s79, 12
    s_movk_i32 s76, 3072
    s_movk_i32 s74, 128
    s_cmp_lg_u32 s{sTYPE}, 0
    s_cselect_b32 s76, 3584, s76
    s_cselect_b32 s74, 448, s74
    s_cselect_b32 s42, s76, 0
    s_mul_i32 s74, s74, s{sG}
    s_lshl_b32 s97, s76, 6
    s_lshl_b32 s38, s76, 9
    s_sub_u32 s38, s38, s74
    v_mul_lo_u32 v{hWD}, v8, s76
    v_add_u32 v{hWD}, v{hWD}, v9
    s_cmp_lg_u32 s{sTYPE}, 0
    s_waitcnt lgkmcnt(0)
    s_cselect_b32 s36, s12, s6
    s_cselect_b32 s37, s13, s7
    s_add_u32 s36, s36, s74
    s_addc_u32 s37, s37, 0
    s_mov_b32 s28, s24
    s_mov_b32 s29, s25
    s_add_u32 s32, s4, s75
    s_addc_u32 s33, s5, 0
    buffer_load_dwordx2 v[{hEP}:{hEP+1}], v4, s[28:31], s3 offen sc1
    s_cmp_lg_u32 s{sTYPE}, 0
    s_cbranch_scc1 L_h_rows
    {CALL}
    s_branch L_h_su
    L_h_rows:
    buffer_load_dwordx4 {vr(hWR,4)}, v3, s[32:35], s79 offen
    buffer_load_dwordx4 {vr(hWR+4,4)}, v3, s[32:35], s79 offen offset:1024
    buffer_load_dwordx4 {vr(hWR+8,4)}, v3, s[32:35], s79 offen offset:2048
    buffer_load_dwordx4 {vr(hWR+12,4)}, v3, s[32:35], s79 offen offset:3072
    L_h_su:
    """)
    xstamp(A, 8)
    lanepart_tr(A, hRA, 8)
    A(f"""
    s_lshl_b32 s74, s{sW4}, 12
    s_add_u32 s75, s74, {WBASE}
    v_add_u32 v{hRA}, s75, v{hRA}
    s_lshl_b32 s75, s94, 1
    s_lshr_b32 s76, s{sTBK}, 3
    s_add_u32 s75, s75, s76
    s_lshl_b32 s75, s75, 14
    s_add_u32 s75, s75, s74
    s_add_u32 s75, s75, {WS_CG}
    v_lshl_add_u32 v{hGC}, v1, 3, s75
    s_lshl_b32 s74, s{sTBK}, 2
    s_add_u32 s74, s74, s{sW4}
    s_lshl_b32 s74, s74, 9
    s_add_u32 s74, s74, {WS_XG}
    v_lshl_add_u32 v{hGA}, v2, 4, s74
    v_mov_b32 v8, {CTL}
    v_lshl_add_u32 v8, v2, 2, v8
    v_mov_b32 v9, 4
    v_cmp_eq_u32 vcc, 8, v2
    s_mov_b32 s40, s14
    s_mov_b32 s41, s15
    v_cndmask_b32 v9, 0, v9, vcc
    ds_write_b32 v8, v9
    s_mov_b32 s43, 0x00020000
    s_mov_b32 s3, 0xffff0000
    s_lshr_b32 s79, s79, 6
    s_lshl_b32 s74, s{sTBK}, 11
    s_add_u32 s79, s79, s74
    s_add_u32 s79, s79, {WS_XG}
    """)
    f_setup(A)
    A.region("h")
    S0, Q0, S1, Q1, t0, t1, t2 = hT, hT + 1, hT + 2, hT + 3, hT + 4, hT + 5, hT + 6
    A(f"""
    s_cmp_eq_u32 s{sTYPE}, 0
    s_cbranch_scc1 L_h_nst
    v_bfe_u32 v{t2}, v1, 4, 1
    v_cmp_eq_u32 vcc, 1, v{t2}
    v_lshrrev_b32 v{t2}, 4, v1
    v_lshlrev_b32 v{t2}, 3, v{t2}
    {CALL if optval("c0", "early") == "su" else "s_nop 0"}
    s_waitcnt vmcnt({11 if optval("c0", "early") == "su" else 0})
    v_cndmask_b32 v{hT+9}, v{hEP}, v{hEP+1}, vcc
    v_add_u32 v{hT+9}, 1, v{hT+9}
    v_mov_b32 v{hT+11}, v{hT+9}
    """)
    xstamp(A, 9)
    if optval("c0", "early") == "early":
        A(CALL)
    for pair in range(2):
        for row, (s_, q_) in enumerate(((S0, Q0), (S1, Q1))):
            for r in range(4):
                x = hWR + 8 * pair + 4 * row + r
                A(f"v_lshlrev_b32 v{t0}, 16, v{x}\nv_and_b32 v{t1}, s3, v{x}")
                if r == 0:
                    A(f"v_add_f32 v{s_}, v{t0}, v{t1}\nv_mul_f32 v{q_}, v{t0}, v{t0}\nv_fmac_f32 v{q_}, v{t1}, v{t1}")
                else:
                    A(f"v_add_f32 v{s_}, v{s_}, v{t0}\nv_fmac_f32 v{q_}, v{t0}, v{t0}\nv_add_f32 v{s_}, v{s_}, v{t1}\nv_fmac_f32 v{q_}, v{t1}, v{t1}")
        z = hT + 8 + 2 * pair
        A(f"""
        s_nop 0
        v_permlane32_swap_b32 v{S0}, v{S1}
        v_permlane32_swap_b32 v{Q0}, v{Q1}
        s_nop 0
        v_add_f32 v{S0}, v{S0}, v{S1}
        v_add_f32 v{Q0}, v{Q0}, v{Q1}
        s_nop 1
        v_permlane16_swap_b32 v{S0}, v{Q0}
        s_nop 0
        v_add_f32 v{z}, v{S0}, v{Q0}
        """)
    A("s_nop 0")
    for sh in (8, 4, 2, 1):
        A(f"v_add_f32_dpp v{hT+8}, v{hT+8}, v{hT+8} row_ror:{sh} row_mask:0xf bank_mask:0xf")
        A(f"v_add_f32_dpp v{hT+10}, v{hT+10}, v{hT+10} row_ror:{sh} row_mask:0xf bank_mask:0xf\ns_nop 0")
    if optval("c0", "early") == "late":
        A(CALL)
    A(f"""
    s_mov_b32 exec_lo, 0x00010001
    s_mov_b32 exec_hi, 0x00010001
    buffer_store_dwordx2 v[{hT+8}:{hT+9}], v{t2}, s[28:31], s79 offen sc1
    buffer_store_dwordx2 v[{hT+10}:{hT+11}], v{t2}, s[28:31], s79 offen offset:32 sc1
    s_mov_b64 exec, -1
    {CALL}
    s_waitcnt vmcnt(13)
    s_branch L_h_st
    L_h_nst:
    {CALL}
    s_waitcnt vmcnt(10)
    L_h_st:
    s_mov_b64 exec, -1
    v_add_u32 v{hEP}, 1, v{hEP}
    v_add_u32 v{hEP+1}, 1, v{hEP+1}
    v_cmp_eq_u32 vcc, 1, v7
    v_readfirstlane_b32 s26, v{hEP}
    v_readfirstlane_b32 s27, v{hEP+1}
    v_mov_b64 v[236:237], v[{hEP}:{hEP+1}]
    v_cndmask_b32 v{hEP}, v{hEP}, v{hEP+1}, vcc
    """)
    nb = [0]
    def bar(n):
        A(f"s_waitcnt vmcnt({n})\ns_barrier")
        if nb[0] >= 1:
            xstamp(A, 8 - nb[0])
        nb[0] += 1
    stamp(A, 2)
    bar(13)
    stamp(A, 3)
    if optval("c2", "0") == "1":
        A(CALL)
    for half in range(2):
        for ks in range(4):
            o = half * 16384 + ks * 1024
            A(f"ds_read_b64_tr_b16 {vr(hWR+16*half+4*ks,2)}, v{hRA} offset:{o}\nds_read_b64_tr_b16 {vr(hWR+16*half+4*ks+2,2)}, v{hRA} offset:{o+256}")
        if half == 0:
            A("s_waitcnt lgkmcnt(4)")
    C0, C1 = hT, hT + 2
    def colsum(base, c):
        o = []
        for r in range(16):
            ta = t0 + 4 * (r & 1)
            if r == 0:
                o += [f"v_lshlrev_b32 v{c}, 16, v{base}", f"v_and_b32 v{c+1}, s3, v{base}"]
            else:
                o += [f"v_lshlrev_b32 v{ta}, 16, v{base+r}", f"v_and_b32 v{ta+1}, s3, v{base+r}", f"v_add_f32 v{c}, v{c}, v{ta}", f"v_add_f32 v{c+1}, v{c+1}, v{ta+1}"]
        return o + [f"v_add_f32 v{c}, v{c}, v{c+1}"]
    if optval("il", "0") == "1":
        dma_code(A, "a", ["s_waitcnt lgkmcnt(8)"] + colsum(hWR, C0))
        A("s_waitcnt lgkmcnt(0)")
        bar(10)
        dma_code(A, "b", colsum(hWR + 16, C1))
    else:
        if optval("c2", "0") != "1":
            A(CALL)
        A("s_waitcnt lgkmcnt(0)")
        for x in colsum(hWR, C0):
            A(x)
        bar(10)
        A(CALL)
        for x in colsum(hWR + 16, C1):
            A(x)
    A(f"""
    v_mov_b32 v{C0+1}, v{hEP}
    s_nop 0
    v_permlane32_swap_b32 v{C0}, v{C1}
    s_nop 0
    v_add_f32 v{C0}, v{C0}, v{C1}
    buffer_store_dwordx2 v[{C0}:{C0+1}], v{hGC}, s[28:31], s96 offen sc1
    """)
    def gather(lo=0, hi=9):
        for c in range(lo, min(hi, 8)):
            A(f"buffer_load_dwordx2 {vr(hGR+2*c,2)}, v{hGC}, s[28:31], 0 offen offset:{c*512} sc1")
        if hi == 9:
            A(f"buffer_load_dwordx4 {vr(hGX,4)}, v{hGA}, s[28:31], 0 offen sc1")
    bar(11)
    A(CALL)
    bar(10)
    A(CALL)
    gather(8, 9)
    A(f"""
    s_mul_i32 s74, s{sG}, 448
    s_lshl_b32 s75, s{sW4}, 6
    s_add_u32 s74, s74, s75
    v_lshlrev_b32 v{t0}, 1, v2
    v_lshl_add_u32 v{t0}, v7, 8, v{t0}
    buffer_load_ushort v{hBI}, v{t0}, s[40:43], s74 offen
    """)
    bar(12)
    A(CALL)
    gather(0, 4)
    bar(16)
    A(CALL)
    gather(4, 8)
    bar(18)
    bar(4)
    A("s_waitcnt vmcnt(0)")
    A(f"""
    s_mov_b32 s79, 0x4000
    L_h_chk:
    v_xor_b32 v{hGX+1}, s26, v{hGX+1}
    v_xor_b32 v{hGX+3}, s27, v{hGX+3}
    v_or_b32 v{t0}, v{hGX+1}, v{hGX+3}
    """)
    for c in range(8):
        A(f"v_xor_b32 v{hGR+2*c+1}, v{hEP}, v{hGR+2*c+1}")
    for c in range(0, 8, 2):
        A(f"v_or3_b32 v{t0}, v{t0}, v{hGR+2*c+1}, v{hGR+2*c+3}")
    A(f"""
    v_cmp_ne_u32 vcc, 0, v{t0}
    s_sub_u32 s79, s79, 1
    s_cmp_eq_u32 s79, 0
    s_cbranch_scc1 L_h_got
    s_cbranch_vccz L_h_got
    """)
    gather()
    A("s_waitcnt vmcnt(0)\ns_branch L_h_chk\nL_h_got:")
    a, b, r_, h_, X0, A0 = hWR, hWR + 1, hWR + 2, hWR + 3, hWR + 4, hWR + 6
    c = hGR
    A(f"""
    s_mov_b32 s74, {f32bits(1.0/512)}
    v_mul_f32 v{a}, s74, v{hGX}
    v_mul_f32 v{b}, s74, v{hGX+2}
    v_add_f32 v{c}, v{c}, v{c+2}
    v_fma_f32 v{b}, -v{a}, v{a}, v{b}
    v_add_f32 v{c+4}, v{c+4}, v{c+6}
    v_max_f32 v{b}, 0, v{b}
    v_add_f32 v{c+8}, v{c+8}, v{c+10}
    v_cvt_pk_bf16_f32 v{b}, v{b}, v{b}
    v_add_f32 v{c+12}, v{c+12}, v{c+14}
    v_and_b32 v{b}, s3, v{b}
    v_add_f32 v{c}, v{c}, v{c+4}
    v_add_f32 v{b}, {f32bits(1e-5)}, v{b}
    v_add_f32 v{c+8}, v{c+8}, v{c+12}
    v_cvt_pk_bf16_f32 v{b}, v{b}, v{b}
    v_add_f32 v{c}, v{c}, v{c+8}
    v_and_b32 v{b}, s3, v{b}
    v_sqrt_f32 v{b}, v{b}
    v_mul_f32 v{a}, -0.5, v{a}
    v_and_b32 v{c+1}, s3, v{c}
    v_cvt_pk_bf16_f32 v{b}, v{b}, v{b}
    v_sub_f32 v{c}, v{c}, v{c+1}
    v_and_b32 v{b}, s3, v{b}
    v_and_b32 v{c+2}, s3, v{c}
    v_rcp_f32 v{r_}, v{b}
    v_mul_f32 v{h_}, 0.5, v{b}
    v_sub_f32 v{c}, v{c}, v{c+2}
    v_cvt_pk_bf16_f32 v{X0}, v{a}, v{a}
    v_cvt_pk_bf16_f32 v{X0+1}, v{a}, v{h_}
    v_cvt_pk_bf16_f32 v{c+4}, v{c+1}, v{c+2}
    v_lshlrev_b32 v{hBI}, 16, v{hBI}
    v_cvt_pk_bf16_f32 v{c+5}, v{c}, v{hBI}
    s_lshl_b32 s74, s{sW4}, 8
    v_lshl_add_u32 v{A0}, v2, 3, s74
    v_lshrrev_b32 v{A0+1}, 1, v{A0}
    v_add_u32 v{A0}, {T_XP}, v{A0}
    v_add_u32 v{A0+1}, {T_RS}, v{A0+1}
    v_lshl_add_u32 v{A0+2}, v7, 10, v{A0}
    ds_write_b64 v{A0}, {vr(X0,2)}
    ds_write_b32 v{A0+1}, v{r_}
    ds_write_b32 v{A0+1}, v{b} offset:512
    ds_write_b64 v{A0+2}, {vr(c+4,2)} offset:{T_WP - T_XP}
    """)
    A("s_waitcnt lgkmcnt(0)")
    bar(0)
```

```python
from asm import *
import asm, math, os
OPT = os.environ.get('MOPT', '').split(',')
def optval(k, d):
    for o in OPT:
        if o.startswith(k + "="):
            return o.split("=")[1]
    return d
LOG2E = math.log2(math.e)

XST, WBASE, WST = 16384, 49152, 28672
VST = 1056
LDS_V = 65536
QA = LDS_V + 66 * VST
CTL = QA + 3 * 8192
LDS_BYTES = 163840
C_KV, C_Q, C_H, C_D = CTL, CTL + 64, CTL + 96, CTL + 100
T_XP, T_RS, T_WP = CTL + 128, CTL + 128 + 1024, CTL + 128 + 2048
T_PART = QA

sWAVE, sW4, sTBK, sG, sTYPE, sHEAD, sQB, sTB2, sNB, sC = range(64, 74)
SRD_K, SRD_V = 84, 88

def prologue(A):
    A("s_cmp_ge_u32 s2, 256\ns_cbranch_scc1 L_end")
    stamp(A, 0, True); stamp(A, 1)
    A(f"""
    s_load_dwordx16 s[4:19], s[0:1], 0
    s_load_dwordx4 s[20:23], s[0:1], 64
    s_load_dwordx2 s[24:25], s[0:1], 80
    s_getpc_b64 s[44:45]
    L_pc:
    s_mov_b32 s46, L_code_end-L_pc
    s_mov_b32 s47, 0x00020000
    v_lshlrev_b32 v5, {optval('cps', '6')}, v0
    {'s_nop 0' if 'nocp' in OPT else 'buffer_load_dword v253, v5, s[44:47], 0 offen'}
    v_and_b32 v1, 63, v0
    v_lshrrev_b32 v2, 6, v0
    v_lshlrev_b32 v3, 4, v1
    v_readfirstlane_b32 s{sWAVE}, v2
    v_mov_b32 v4, 0
    s_and_b32 s74, s2, 7
    s_lshr_b32 s75, s2, 3
    s_and_b32 s{sQB}, s75, 7
    s_and_b32 s77, s74, 1
    s_lshl_b32 s77, s77, 3
    s_add_u32 s{sTBK}, s77, s{sQB}
    s_lshr_b32 s77, s75, 3
    s_lshr_b32 s{sTYPE}, s77, 1
    s_and_b32 s78, s77, 1
    s_and_b32 s{sG}, s74, 6
    s_add_u32 s{sG}, s{sG}, s78
    s_lshl_b32 s74, s74, 2
    s_add_u32 s{sHEAD}, s74, s77
    s_and_b32 s78, s75, 3
    s_add_u32 s{sTB2}, s74, s78
    s_lshr_b32 s{sNB}, s75, 2
    """)
    rot = optval("rot", "tbk")
    if rot == "grp":
        A(f"s_lshl_b32 s{sC}, s77, 1")
    elif rot == "tbk":
        A(f"s_mov_b32 s{sC}, s{sQB}")
    elif rot == "full":
        A(f"s_lshl_b32 s{sC}, s77, 1\ns_add_u32 s{sC}, s{sC}, s{sQB}\ns_and_b32 s{sC}, s{sC}, 7")
    elif rot == "mix":
        A(f"s_lshl_b32 s{sC}, s77, 1\ns_and_b32 s78, s{sQB}, 1\ns_add_u32 s{sC}, s{sC}, s78")
    else:
        A(f"s_mov_b32 s{sC}, 0")
    A(f"""
    s_and_b32 s{sW4}, s{sWAVE}, 3
    s_mov_b32 s30, {WS_BYTES}
    s_mov_b32 s31, 0x00020000
    s_mov_b32 s3, {WS_CTL}
    v_and_b32 v2, 31, v1
    v_lshrrev_b32 v7, 5, v1
    s_cmp_lt_u32 s{sWAVE}, 4
    s_cbranch_scc1 L_m
    """)

def lanepart_tr(A, dst, t1):
    A(f"""
    v_lshlrev_b32 v{dst}, 3, v7
    v_bfe_u32 v{t1}, v1, 2, 2
    v_add_u32 v{dst}, v{dst}, v{t1}
    v_lshlrev_b32 v{dst}, 6, v{dst}
    v_bfe_u32 v{t1}, v1, 4, 1
    v_lshl_add_u32 v{dst}, v{t1}, 5, v{dst}
    v_and_b32 v{t1}, 3, v1
    v_lshl_add_u32 v{dst}, v{t1}, 3, v{dst}
    """)

XA0, XA1, WAa, WAb = 8, 12, 16, 17
FS = [20, 44]
ACC = 68
XPF, WPF, RS, SD, RT = 180, 188, 204, 206, 208
HP = 180
vFLG, vTAG = 240, 242
sP, sE, sT0, sT1 = 4, 5, 6, 7

def touches(A):
    A(f"""
    s_cmp_lt_u32 s2, {optval('tw', '224')}
    s_cbranch_scc1 L_m_nt
    s_cmp_lg_u32 s{sW4}, 0
    s_cbranch_scc1 L_m_nt
    v_lshlrev_b32 v24, {optval('tsh', '20')}, v1
    buffer_load_dword v253, v24, s[28:31], 0 offen
    global_load_dword v253, v4, s[48:49]
    global_load_dword v253, v4, s[14:15]
    global_load_dword v253, v4, s[16:17]
    global_load_dword v253, v4, s[18:19]
    global_load_dword v253, v4, s[20:21]
    global_load_dword v253, v4, s[22:23]
    L_m_nt:
    """)

def m_common(A, a_setup):
    A(f"""
    L_m:
    s_mov_b32 s54, 0x200000
    s_mov_b32 s55, 0x00020000
    v_bfe_u32 v24, v1, 1, 3
    v_xor_b32 v24, v24, v7
    v_lshlrev_b32 v{XA0}, 7, v2
    v_lshl_add_u32 v{XA0}, v24, 4, v{XA0}
    s_lshl_b32 s74, s{sW4}, 12
    v_add_u32 v{XA0}, s74, v{XA0}
    s_waitcnt lgkmcnt(0)
    s_mov_b32 s28, s24
    s_mov_b32 s29, s25
    s_mov_b32 s52, s4
    s_mov_b32 s53, s5
    buffer_load_dwordx2 v[{vTAG}:{vTAG+1}], v4, s[28:31], s3 offen sc1
    """)
    A("s_mov_b32 s48, s8\ns_mov_b32 s49, s9")
    if optval('te', '0') == '1':
        touches(A)
    A(f"""
    s_lshl_b32 s74, s{sQB}, 3
    s_lshl_b32 s75, s{sW4}, 1
    s_add_u32 s74, s74, s75
    s_mul_i32 s8, s74, {ACT_TB}
    s_lshl_b32 s75, s{sHEAD}, 10
    s_add_u32 s8, s8, s75
    s_add_u32 s8, s8, {WS_ACT}
    s_add_u32 s9, s8, {ACT_TB}
    s_lshr_b32 s{sP}, s{sW4}, 1
    s_and_b32 s{sE}, s{sW4}, 1
    s_lshl_b32 s74, s{sTBK}, 2
    s_add_u32 s{sT0}, s74, s{sW4}
    s_xor_b32 s{sT1}, s{sT0}, 1
    """)
    for ks in range(1, 4):
        A(f"v_xor_b32 v{XA0+ks}, {ks << 5}, v{XA0}")
    for ks in range(4):
        A(f"v_xor_b32 v{XA1+ks}, 0x1000, v{XA0+ks}")
    lanepart_tr(A, WAb, 24)
    for i in range(0, 112, 2):
        A(f"v_mov_b64 {vr(ACC+i,2)}, 0")
    for i in range(6):
        A(f"v_mov_b64 {vr(XPF+4*i+2,2)}, 0")
    a_setup(A)
    if optval("xpf", "0") != "0":
        A(f"""
        s_lshr_b32 s74, s2, 6
        s_lshl_b32 s74, s74, 2
        s_add_u32 s74, s74, s{sW4}
        s_lshl_b32 s74, s74, 13
        s_lshl_b32 s75, s{sTBK}, 17
        s_add_u32 s74, s74, s75
        v_lshlrev_b32 v24, 7, v1
        {"s_waitcnt vmcnt(0)" if optval("xpf", "0") == "2" else "s_nop 0"}
        buffer_load_dword v253, v24, s[52:55], s74 offen
        """)
    A(f"""
    s_waitcnt vmcnt({0 if optval("xpf", "0") == "0" else 1})
    """)
    if optval('te', '0') == '0':
        touches(A)
    A(f"""
    """)
    if int(optval('pad', '1100')):
        A(f"""
        s_lshl_b32 s74, s{sW4}, 1
        s_add_u32 s74, s74, s{sTYPE}
        s_mov_b64 exec, 0
        s_cmp_eq_u32 s74, 0
        s_cbranch_scc1 TOUR_mq
        s_cmp_eq_u32 s74, 1
        s_cbranch_scc1 TOUR_mf
        s_cmp_lt_u32 s74, 4
        s_cbranch_scc1 TOUR_h
        s_cmp_lt_u32 s74, 6
        s_cbranch_scc1 TOUR_a
        s_branch TOUR_f
        L_tour_ret:
        s_mov_b64 exec, -1
        """)
    stamp(A, 11)
    A(f"""
    s_mov_b32 s10, 0
    s_mov_b32 s11, 8
    s_mov_b32 s14, {XST}
    s_mov_b32 s15, {WST}
    v_add_u32 v{vTAG}, 1, v{vTAG}
    v_add_u32 v{vTAG+1}, 1, v{vTAG+1}
    {'s_setprio 2' if optval('prio', 'm') == 'm' else 's_nop 0'}
    s_cmp_lg_u32 s{sTYPE}, 0
    s_cbranch_scc1 L_m_ffn
    """)

def m_path(A, ffn):
    nm = "ffn" if ffn else "qkv"
    ncb = 4 if ffn else 3
    def xf(s, t): return FS[s] + 4 * t
    def wf(s, c): return FS[s] + 8 + 4 * c
    blocks = [(t, c) for c in range(3) for t in range(2)] + ([(0, 3)] if ffn else [])
    def acc(i): return ACC + 16 * i
    A(f"L_m_{nm}:")
    A.region("mf" if ffn else "mq")
    if ffn:
        A(f"""
        s_mul_i32 s74, s{sE}, 12288
        s_add_u32 s74, s74, {WBASE}
        v_add_u32 v{WAa}, s74, v{WAb}
        v_add_u32 v{WAb}, {WBASE + 6*4096}, v{WAb}
        """)
    else:
        A(f"""
        s_lshl_b32 s74, s{sE}, 12
        s_add_u32 s74, s74, {WBASE}
        v_add_u32 v{WAa}, s74, v{WAb}
        s_lshl_b32 s74, s{sG}, 1
        s_add_u32 s74, s74, s{sE}
        s_lshl_b32 s74, s74, 4
        s_add_u32 s74, s74, s{sTBK}
        s_lshl_b32 s74, s74, 1
        s_add_u32 s74, s74, s{sP}
        s_lshl_b32 s74, s74, 3
        s_add_u32 s74, s74, {WS_F2}
        """)
    A(f"v_mov_b32 v{vFLG}, s74\nv_mov_b32 v{vFLG+1}, {C_H}")
    cbs = 4096 if ffn else 8192
    def reads(ks, s):
        o = [f"ds_read_b128 {vr(xf(s,0),4)}, v{XA0+ks}", f"ds_read_b128 {vr(xf(s,1),4)}, v{XA1+ks}"]
        w = []
        for c in range(ncb):
            a, off = (WAb, ks * 1024) if c == 3 else (WAa, c * cbs + ks * 1024)
            w.append([f"ds_read_b64_tr_b16 {vr(wf(s,c),2)}, v{a} offset:{off}",
                      f"ds_read_b64_tr_b16 {vr(wf(s,c)+2,2)}, v{a} offset:{off+256}"])
        return [o[0]] + w[0] + [o[1]] + [x for p in w[1:] for x in p]
    def mm(i, xr, wr):
        t, c = blocks[i]
        if (not ffn) and c == 2:
            return mfma(acc(i), xr(t), wr(c))
        return mfma(acc(i), wr(c), xr(t))
    def kstep(s, fill, first=0, per=3):
        k = 0
        for i in range(first, len(blocks)):
            A(mm(i, lambda t: xf(s, t), lambda c: wf(s, c)))
            for x in fill[k:k+per]:
                A(x)
            k += per
        for x in fill[k:]:
            A(x)
    stamp(A, 2)
    A("s_barrier")
    stamp(A, 3)
    for r in reads(0, 0):
        A(r)
    A(f".p2align 6\nL_m_{nm}_loop:")
    for ks in range(3):
        s = ks & 1
        A("s_waitcnt lgkmcnt(0)")
        fill = reads(ks + 1, 1 - s)
        if ks == 0:
            fill = fill + ["s_add_u32 s10, s10, 1", "s_cmp_eq_u32 s10, 3", f"s_cselect_b32 s12, {-2*XST}, s14", f"s_cselect_b32 s13, {-2*WST}, s15", "s_cselect_b32 s10, 0, s10"]
        if ks == 2:
            fill = fill + ["s_sub_u32 s11, s11, 1", "s_cmp_eq_u32 s11, 0"]
        kstep(s, fill)
    A("s_waitcnt lgkmcnt(0)")
    A(mm(0, lambda t: xf(1, t), lambda c: wf(1, c)))
    A(f"s_barrier\ns_cbranch_scc1 L_m_{nm}_last")
    upd = [f"v_add_u32 v{XA0}, s12, v{XA0}", f"v_add_u32 v{WAa}, s13, v{WAa}", f"v_add_u32 v{XA1}, s12, v{XA1}"]
    if ffn:
        upd.append(f"v_add_u32 v{WAb}, s13, v{WAb}")
    for x in upd:
        A(x)
    upd2 = [f"v_add_u32 v{b+k}, s12, v{b+k}" for k in range(1, 4) for b in (XA0, XA1)]
    kstep(1, reads(0, 0) + upd2, first=1)
    A(f"s_branch L_m_{nm}_loop\nL_m_{nm}_last:")
    fill = f"""
    s_lshl_b32 s74, s{sW4}, 8
    v_lshl_add_u32 v{XA0}, v2, 3, s74
    v_xor_b32 v{XA0+1}, 0x100, v{XA0}
    v_lshrrev_b32 v{XA0+2}, 1, v{XA0}
    v_lshrrev_b32 v{XA0+3}, 1, v{XA0+1}
    s_mul_i32 s74, s{sE}, {768 if ffn else 256}
    v_lshl_add_u32 v{XA1}, v2, 3, s74
    v_add_u32 v{XA0}, {T_XP}, v{XA0}
    v_add_u32 v{XA0+1}, {T_XP}, v{XA0+1}
    v_add_u32 v{XA0+2}, {T_RS}, v{XA0+2}
    v_add_u32 v{XA0+3}, {T_RS}, v{XA0+3}
    v_add_u32 v{XA1}, {T_WP}, v{XA1}
    """
    if ffn:
        fill += f"""
        v_lshlrev_b32 v{XA1+1}, 3, v2
        v_add_u32 v{XA1+1}, {T_WP + 6*256}, v{XA1+1}
        s_lshl_b32 s74, s{sW4}, 10
        s_add_u32 s74, s74, 32768
        v_add_u32 v{WAa}, s74, v3
        s_mul_i32 s74, s{sW4}, {VST}
        s_add_u32 s74, s74, {LDS_V + 32*VST}
        v_add_u32 v{WAb}, s74, v3
        """
    else:
        fill += f"""
        s_lshl_b32 s74, s{sW4}, 7
        v_lshl_add_u32 v{XA1+2}, v7, 4, s74
        v_xor_b32 v{XA1+3}, 0x80, v{XA1+2}
        v_add_u32 v{XA1+2}, {T_RS}, v{XA1+2}
        v_add_u32 v{XA1+3}, {T_RS}, v{XA1+3}
        s_lshl_b32 s74, s{sG}, 1
        s_add_u32 s74, s74, s{sE}
        s_lshl_b32 s74, s74, 17
        s_lshl_b32 s12, s{sT0}, 10
        s_add_u32 s12, s12, s74
        s_lshl_b32 s13, s{sT1}, 10
        s_add_u32 s13, s13, s74
        """
    fill = [l.strip() for l in fill.split("\n") if l.strip()]
    rd = [f"ds_read_b64 {vr(XPF,2)}, v{XA0}", f"ds_read_b64 {vr(XPF+4,2)}, v{XA0+1}"]
    for c in range(3):
        rd.append(f"ds_read_b64 {vr(WPF+4*c,2)}, v{XA1} offset:{c*(256 if ffn else 512)}")
    if ffn:
        rd.append(f"ds_read_b64 {vr(WPF+12,2)}, v{XA1+1}")
    nfr = len(rd)
    rd += [f"ds_read_b32 v{RS}, v{XA0+2}", f"ds_read_b32 v{RS+1}, v{XA0+3}"]
    if ffn:
        rd += [f"ds_read_b32 v{SD}, v{XA0+2} offset:512", f"ds_read_b32 v{SD+1}, v{XA0+3} offset:512"]
    else:
        for t in range(2):
            for gq in range(4):
                rd.append(f"ds_read_b128 {vr(RT+16*t+4*gq,4)}, v{XA1+2+t} offset:{gq*32}")
    nv = 14 if ffn else 17
    for x in fill[:5]:
        A(x)
    kstep(1, fill[5:nv] + rd + fill[nv:], first=1, per=6)
    A(f"s_waitcnt lgkmcnt({len(rd) - nfr})")
    stamp(A, 4)
    order = list(range(len(blocks)))
    if not ffn:
        order = [2, 3, 4, 5, 0, 1]
    PK = FS[0]
    for n, i in enumerate(order):
        A(mm(i, lambda t: XPF + 4*t, lambda c: WPF + 4*c))
        if n == 0:
            A("s_waitcnt lgkmcnt(0)")
    if not ffn:
        A(f"""
        v_mov_b32 v{XA1}, v{RS}
        v_mov_b32 v{XA1+1}, v{RS}
        v_mov_b32 v{XA1+2}, v{RS+1}
        v_mov_b32 v{XA1+3}, v{RS+1}
        v_mul_f32 v{RS}, {f32bits(LOG2E/4)}, v{XA1}
        v_mul_f32 v{RS+1}, {f32bits(LOG2E/4)}, v{XA1}
        v_mul_f32 v{RS+2}, {f32bits(LOG2E/4)}, v{XA1+2}
        v_mul_f32 v{RS+3}, {f32bits(LOG2E/4)}, v{XA1+2}
        v_bfe_u32 v{XA0}, v1, 4, 1
        v_lshlrev_b32 v{XA0}, 16, v{XA0}
        v_lshl_add_u32 v{XA0}, v7, 8, v{XA0}
        v_and_b32 v{XA0+1}, 15, v1
        v_lshl_add_u32 v{XA0}, v{XA0+1}, 4, v{XA0}
        """)
        for n, i in enumerate(order):
            t, c = blocks[i]
            a, pk = acc(i), PK + 8 * n
            for r in range(0, 16, 2):
                sc = (RS + 2*t, XA1 + 2*t, RT + 16*t + r)[c]
                A(f"v_pk_mul_f32 {vr(a+r,2)}, {vr(a+r,2)}, {vr(sc,2)}")
            for r in range(0, 16, 2):
                A(f"v_cvt_pk_bf16_f32 v{pk+r//2}, v{a+r}, v{a+r+1}")
            if c < 2:
                for hh in range(2):
                    A(f"s_add_u32 s74, s{12+t}, {c*(2<<20) + hh*65536}")
                    A(f"buffer_store_dwordx4 {vr(pk+4*hh,4)}, v3, s[28:31], s74 offen sc1")
            else:
                A(f"s_add_u32 s74, s{12+t}, {WS_V}")
                for m2 in range(2):
                    A(f"buffer_store_dwordx4 {vr(pk+4*m2,4)}, v{XA0}, s[28:31], s74 offen offset:{m2*512} sc1")
        stamp(A, 5)
        A("s_waitcnt vmcnt(0)")
        stamp(A, 10)
        A(f"""
        s_mov_b64 exec, 1
        buffer_store_dwordx2 v[{vTAG}:{vTAG+1}], v{vFLG}, s[28:31], 0 offen sc1
        ds_add_u32 v{vFLG+1}, v19
        s_mov_b64 exec, -1
        s_branch L_a
        """)
    else:
        c1 = -2.0 * LOG2E * math.sqrt(2.0 / math.pi)
        c3 = c1 * 0.044715
        K1, K3, SP = XA0, XA1, FS[0]
        for t in range(2):
            A(f"""
            v_mul_f32 v{K1+2*t}, {f32bits(c1)}, v{RS+t}
            v_mul_f32 v{K3+2*t}, v{RS+t}, v{RS+t}
            v_mul_f32 v{K3+2*t}, v{K3+2*t}, v{RS+t}
            v_mul_f32 v{K3+2*t}, {f32bits(c3)}, v{K3+2*t}
            v_mov_b32 v{K1+2*t+1}, v{K1+2*t}
            v_mov_b32 v{K3+2*t+1}, v{K3+2*t}
            v_mov_b32 v{SP+2*t}, v{SD+t}
            v_mov_b32 v{SP+2*t+1}, v{SD+t}
            """)
        GB = [FS[0] + 4, FS[1]]
        p2 = lambda r: vr(r, 2)
        ops = []
        def add(kind, text, deps=()):
            ops.append((kind, text, [d for d in deps if d is not None])); return len(ops) - 1
        last_mul = {}
        for n, (t, c) in enumerate(blocks):
            a, pk, G = acc(n), HP + 8 * (n & 1), GB[n & 1]
            prev = last_mul.get(n - 2, {})
            pw = last_mul.get(("w", n - 2), [None, None])
            z, e, d_, r_, m_ = {}, {}, {}, {}, {}
            for r in range(0, 16, 2):
                z[r] = add("N", f"v_pk_mul_f32 {p2(G+r)}, {p2(a+r)}, {p2(a+r)}", [prev.get(r)])
            for r in range(0, 16, 2):
                z[r] = add("N", f"v_pk_fma_f32 {p2(G+r)}, {p2(G+r)}, {p2(K3+2*t)}, {p2(K1+2*t)}", [z[r]])
            for r in range(0, 16, 2):
                z[r] = add("N", f"v_pk_mul_f32 {p2(G+r)}, {p2(G+r)}, {p2(a+r)}", [z[r]])
            for r in range(16):
                e[r] = add("T", f"v_exp_f32 v{G+r}, v{G+r}", [z[r & ~1]])
            for r in range(0, 16, 2):
                d_[r] = add("H", f"v_pk_fma_f32 {p2(G+r)}, {p2(G+r)}, {p2(SP+2*t)}, {p2(SP+2*t)}", [e[r], e[r+1]])
            for r in range(16):
                r_[r] = add("T", f"v_rcp_f32 v{G+r}, v{G+r}", [d_[r & ~1]])
            cv_ = []
            for r in range(0, 16, 2):
                m_[r] = add("H", f"v_pk_mul_f32 {p2(a+r)}, {p2(a+r)}, {p2(G+r)}", [r_[r], r_[r+1]])
                cv_.append(add("H", f"v_cvt_pk_bf16_f32 v{pk+r//2}, v{a+r}, v{a+r+1}", [m_[r], pw[r // 8]]))
            last_mul[n] = m_
            w = []
            for hh in range(2):
                va, off = h_slot(2 * n + hh)
                w.append(add("H", f"ds_write_b128 v{(WAa, WAb)[va]}, {vr(pk+4*hh,4)} offset:{off}", cv_[4*hh:4*hh+4]))
            last_mul[("w", n)] = w
            if n == int(optval("sig", "2")):
                add("H", f"s_mov_b64 exec, 1\nds_add_u32 v{vFLG+1}, v19\ns_mov_b64 exec, -1", w)
        done, pos, out, lastT = {}, 0, [], False
        pend = list(range(len(ops)))
        def ready(i):
            return all(d in done and pos - done[d] >= 3 for d in ops[i][2])
        while pend:
            pick = None
            for kinds in ((("H", "N"), ("T",)) if lastT else (("T",), ("H", "N"))):
                for k in kinds:
                    c_ = [i for i in pend if ops[i][0] == k]
                    c_ = c_[:1] if k != "H" else c_[:24]
                    pick = next((i for i in c_ if ready(i)), None)
                    if pick is not None:
                        break
                if pick is not None:
                    break
            if pick is None:
                A("s_nop 0"); pos += 1; lastT = False
                continue
            A(ops[pick][1]); done[pick] = pos; pos += 1
            pend.remove(pick)
            nT = sum(1 for i in done if ops[i][0] == "T"); nN = len(done) - nT
            lastT = ops[pick][0] == "T" or (2 * (nN - 24) < 3 * nT - 2 and any(ops[i][0] != "T" and ready(i) for i in pend[:80]))
        stamp(A, 5)

def h_slot(i):
    return (0, i * 4096) if i < 8 else (1, (i - 8) * 4 * VST)

hXD, hWD, hRA, hGA, hGC, hEP = 224, 226, 227, 228, 229, 230
hWR, hXR, hGR, hGX, hBI, hT = 96, 128, 136, 152, 156, 160

def xstamp(A, lane):
    if asm.STAMPS:
        A(f"s_memtime s[80:81]\ns_waitcnt lgkmcnt(0)\nv_writelane_b32 v252, s80, {lane}")

def dma_code(A, tag, fill=()):
    A(f"""
    s_lshl_b32 s74, s{sC}, 7
    s_add_u32 s75, s74, 16384
    s_mul_i32 s76, s{sC}, s97
    s_cmp_lg_u32 s{sTYPE}, 0
    s_cbranch_scc1 L_dma_ffn{tag}
    """)
    fill = list(fill)
    for ffn in (False, True):
        if ffn:
            A(f"L_dma_ffn{tag}:")
        imms = [c * 64 for c in range(7)] if ffn else [0, 64, 1024, 1088, 2048, 2112]
        ops = [("x", a) for a in range(4)] + [("w", c) for c in range(len(imms))]
        ops = [ops[0], ops[4], ops[5], ops[1], ops[6], ops[7], ops[2], ops[8], ops[9], ops[3]] + ops[10:]
        per = (len(fill) + len(ops) - 1) // len(ops)
        for n, (k, j) in enumerate(ops):
            part = fill[n*per:(n+1)*per]
            gap = part[0] if part else "s_nop 0"
            if k == "x":
                A(f"s_add_u32 m0, s92, {j*1024}\n{gap}\nbuffer_load_dwordx4 v{hXD + (j & 1)}, s[32:35], s{74 + (j >> 1)} offen lds")
            else:
                A(f"s_add_u32 m0, s93, {j*4096 - imms[j]}\n{gap}\nbuffer_load_dwordx4 v{hWD}, s[36:39], s76 offen offset:{imms[j]} lds")
            for x in part[1:]:
                A(x)
        if not ffn:
            A(f"s_branch L_dma_adv{tag}")
    A(f"""
    L_dma_adv{tag}:
    s_add_u32 s{sC}, s{sC}, 1
    s_and_b32 s{sC}, s{sC}, 7
    s_add_u32 s95, s95, 1
    s_cmp_eq_u32 s95, 3
    s_cselect_b32 s95, 0, s95
    s_cselect_b32 s74, {-2*XST}, s98
    s_cselect_b32 s75, {-2*WST}, s99
    s_add_u32 s92, s92, s74
    s_add_u32 s93, s93, s75
    """)

def dma_sub(A):
    A("L_dma:")
    dma_code(A, "")
    A("s_setpc_b64 s[100:101]")

def h_all(A, f_setup):
    CALL = "s_call_b64 s[100:101], L_dma"
    if optval('prio', 'm') == 'h':
        A("s_setprio 3")
    A(f"""
    v_lshrrev_b32 v8, 3, v1
    s_lshl_b32 s74, s{sW4}, 5
    v_add_u32 v8, s74, v8
    v_lshlrev_b32 v8, 10, v8
    v_and_b32 v9, 7, v1
    v_lshrrev_b32 v10, 4, v1
    v_xor_b32 v9, v9, v10
    v_lshl_add_u32 v{hXD}, v9, 4, v8
    v_xor_b32 v9, 4, v9
    v_lshl_add_u32 v{hXD+1}, v9, 4, v8
    v_add_u32 v{hXD+1}, 0x2000, v{hXD+1}
    v_lshrrev_b32 v8, 2, v1
    s_lshl_b32 s74, s{sW4}, 4
    v_add_u32 v8, s74, v8
    v_and_b32 v9, 3, v1
    v_lshlrev_b32 v9, 4, v9
    s_mov_b32 s34, 0x20000
    s_mov_b32 s35, 0x00020000
    s_mov_b32 s39, 0x00020000
    s_lshl_b32 s75, s{sTBK}, 17
    s_lshl_b32 s92, s{sW4}, 12
    s_lshl_b32 s93, s{sW4}, 10
    s_add_u32 s93, s93, {WBASE}
    s_mov_b32 s95, 0
    s_mov_b32 s98, {XST}
    s_mov_b32 s99, {WST}
    s_lshl_b32 s96, s{sC}, 9
    s_lshl_b32 s94, s{sTYPE}, 3
    s_add_u32 s94, s94, s{sG}
    s_lshl_b32 s79, s{sG}, 2
    s_add_u32 s79, s79, s{sW4}
    s_lshl_b32 s79, s79, 12
    s_movk_i32 s76, 3072
    s_movk_i32 s74, 128
    s_cmp_lg_u32 s{sTYPE}, 0
    s_cselect_b32 s76, 3584, s76
    s_cselect_b32 s74, 448, s74
    s_cselect_b32 s42, s76, 0
    s_mul_i32 s74, s74, s{sG}
    s_lshl_b32 s97, s76, 6
    s_lshl_b32 s38, s76, 9
    s_sub_u32 s38, s38, s74
    v_mul_lo_u32 v{hWD}, v8, s76
    v_add_u32 v{hWD}, v{hWD}, v9
    s_cmp_lg_u32 s{sTYPE}, 0
    s_waitcnt lgkmcnt(0)
    s_cselect_b32 s36, s12, s6
    s_cselect_b32 s37, s13, s7
    s_add_u32 s36, s36, s74
    s_addc_u32 s37, s37, 0
    s_mov_b32 s28, s24
    s_mov_b32 s29, s25
    s_add_u32 s32, s4, s75
    s_addc_u32 s33, s5, 0
    buffer_load_dwordx2 v[{hEP}:{hEP+1}], v4, s[28:31], s3 offen sc1
    s_cmp_lg_u32 s{sTYPE}, 0
    s_cbranch_scc1 L_h_rows
    {CALL}
    s_branch L_h_su
    L_h_rows:
    buffer_load_dwordx4 {vr(hWR,4)}, v3, s[32:35], s79 offen
    buffer_load_dwordx4 {vr(hWR+4,4)}, v3, s[32:35], s79 offen offset:1024
    buffer_load_dwordx4 {vr(hWR+8,4)}, v3, s[32:35], s79 offen offset:2048
    buffer_load_dwordx4 {vr(hWR+12,4)}, v3, s[32:35], s79 offen offset:3072
    L_h_su:
    """)
    xstamp(A, 8)
    lanepart_tr(A, hRA, 8)
    A(f"""
    s_lshl_b32 s74, s{sW4}, 12
    s_add_u32 s75, s74, {WBASE}
    v_add_u32 v{hRA}, s75, v{hRA}
    s_lshl_b32 s75, s94, 1
    s_lshr_b32 s76, s{sTBK}, 3
    s_add_u32 s75, s75, s76
    s_lshl_b32 s75, s75, 14
    s_add_u32 s75, s75, s74
    s_add_u32 s75, s75, {WS_CG}
    v_lshl_add_u32 v{hGC}, v1, 3, s75
    s_lshl_b32 s74, s{sTBK}, 2
    s_add_u32 s74, s74, s{sW4}
    s_lshl_b32 s74, s74, 9
    s_add_u32 s74, s74, {WS_XG}
    v_lshl_add_u32 v{hGA}, v2, 4, s74
    v_mov_b32 v8, {CTL}
    v_lshl_add_u32 v8, v2, 2, v8
    v_mov_b32 v9, 4
    v_cmp_eq_u32 vcc, 8, v2
    s_mov_b32 s40, s14
    s_mov_b32 s41, s15
    v_cndmask_b32 v9, 0, v9, vcc
    ds_write_b32 v8, v9
    s_mov_b32 s43, 0x00020000
    s_mov_b32 s3, 0xffff0000
    s_lshr_b32 s79, s79, 6
    s_lshl_b32 s74, s{sTBK}, 11
    s_add_u32 s79, s79, s74
    s_add_u32 s79, s79, {WS_XG}
    """)
    f_setup(A)
    A.region("h")
    S0, Q0, S1, Q1, t0, t1, t2 = hT, hT + 1, hT + 2, hT + 3, hT + 4, hT + 5, hT + 6
    A(f"""
    s_cmp_eq_u32 s{sTYPE}, 0
    s_cbranch_scc1 L_h_nst
    v_bfe_u32 v{t2}, v1, 4, 1
    v_cmp_eq_u32 vcc, 1, v{t2}
    v_lshrrev_b32 v{t2}, 4, v1
    v_lshlrev_b32 v{t2}, 3, v{t2}
    {CALL if optval("c0", "early") == "su" else "s_nop 0"}
    s_waitcnt vmcnt({11 if optval("c0", "early") == "su" else 0})
    v_cndmask_b32 v{hT+9}, v{hEP}, v{hEP+1}, vcc
    v_add_u32 v{hT+9}, 1, v{hT+9}
    v_mov_b32 v{hT+11}, v{hT+9}
    """)
    xstamp(A, 9)
    if optval("c0", "early") == "early":
        A(CALL)
    for pair in range(2):
        for row, (s_, q_) in enumerate(((S0, Q0), (S1, Q1))):
            for r in range(4):
                x = hWR + 8 * pair + 4 * row + r
                A(f"v_lshlrev_b32 v{t0}, 16, v{x}\nv_and_b32 v{t1}, s3, v{x}")
                if r == 0:
                    A(f"v_add_f32 v{s_}, v{t0}, v{t1}\nv_mul_f32 v{q_}, v{t0}, v{t0}\nv_fmac_f32 v{q_}, v{t1}, v{t1}")
                else:
                    A(f"v_add_f32 v{s_}, v{s_}, v{t0}\nv_fmac_f32 v{q_}, v{t0}, v{t0}\nv_add_f32 v{s_}, v{s_}, v{t1}\nv_fmac_f32 v{q_}, v{t1}, v{t1}")
        z = hT + 8 + 2 * pair
        A(f"""
        s_nop 0
        v_permlane32_swap_b32 v{S0}, v{S1}
        v_permlane32_swap_b32 v{Q0}, v{Q1}
        s_nop 0
        v_add_f32 v{S0}, v{S0}, v{S1}
        v_add_f32 v{Q0}, v{Q0}, v{Q1}
        s_nop 1
        v_permlane16_swap_b32 v{S0}, v{Q0}
        s_nop 0
        v_add_f32 v{z}, v{S0}, v{Q0}
        """)
    A("s_nop 0")
    for sh in (8, 4, 2, 1):
        A(f"v_add_f32_dpp v{hT+8}, v{hT+8}, v{hT+8} row_ror:{sh} row_mask:0xf bank_mask:0xf")
        A(f"v_add_f32_dpp v{hT+10}, v{hT+10}, v{hT+10} row_ror:{sh} row_mask:0xf bank_mask:0xf\ns_nop 0")
    if optval("c0", "early") == "late":
        A(CALL)
    A(f"""
    s_mov_b32 exec_lo, 0x00010001
    s_mov_b32 exec_hi, 0x00010001
    buffer_store_dwordx2 v[{hT+8}:{hT+9}], v{t2}, s[28:31], s79 offen sc1
    buffer_store_dwordx2 v[{hT+10}:{hT+11}], v{t2}, s[28:31], s79 offen offset:32 sc1
    s_mov_b64 exec, -1
    {CALL}
    s_waitcnt vmcnt(13)
    s_branch L_h_st
    L_h_nst:
    {CALL}
    s_waitcnt vmcnt(10)
    L_h_st:
    s_mov_b64 exec, -1
    v_add_u32 v{hEP}, 1, v{hEP}
    v_add_u32 v{hEP+1}, 1, v{hEP+1}
    v_cmp_eq_u32 vcc, 1, v7
    v_readfirstlane_b32 s26, v{hEP}
    v_readfirstlane_b32 s27, v{hEP+1}
    v_mov_b64 v[236:237], v[{hEP}:{hEP+1}]
    v_cndmask_b32 v{hEP}, v{hEP}, v{hEP+1}, vcc
    """)
    nb = [0]
    def bar(n):
        A(f"s_waitcnt vmcnt({n})\ns_barrier")
        if nb[0] >= 1:
            xstamp(A, 8 - nb[0])
        nb[0] += 1
    stamp(A, 2)
    bar(13)
    stamp(A, 3)
    if optval("c2", "0") == "1":
        A(CALL)
    for half in range(2):
        for ks in range(4):
            o = half * 16384 + ks * 1024
            A(f"ds_read_b64_tr_b16 {vr(hWR+16*half+4*ks,2)}, v{hRA} offset:{o}\nds_read_b64_tr_b16 {vr(hWR+16*half+4*ks+2,2)}, v{hRA} offset:{o+256}")
        if half == 0:
            A("s_waitcnt lgkmcnt(4)")
    C0, C1 = hT, hT + 2
    def colsum(base, c):
        o = []
        for r in range(16):
            ta = t0 + 4 * (r & 1)
            if r == 0:
                o += [f"v_lshlrev_b32 v{c}, 16, v{base}", f"v_and_b32 v{c+1}, s3, v{base}"]
            else:
                o += [f"v_lshlrev_b32 v{ta}, 16, v{base+r}", f"v_and_b32 v{ta+1}, s3, v{base+r}", f"v_add_f32 v{c}, v{c}, v{ta}", f"v_add_f32 v{c+1}, v{c+1}, v{ta+1}"]
        return o + [f"v_add_f32 v{c}, v{c}, v{c+1}"]
    if optval("il", "0") == "1":
        dma_code(A, "a", ["s_waitcnt lgkmcnt(8)"] + colsum(hWR, C0))
        A("s_waitcnt lgkmcnt(0)")
        bar(10)
        dma_code(A, "b", colsum(hWR + 16, C1))
    else:
        if optval("c2", "0") != "1":
            A(CALL)
        A("s_waitcnt lgkmcnt(0)")
        for x in colsum(hWR, C0):
            A(x)
        bar(10)
        A(CALL)
        for x in colsum(hWR + 16, C1):
            A(x)
    A(f"""
    v_mov_b32 v{C0+1}, v{hEP}
    s_nop 0
    v_permlane32_swap_b32 v{C0}, v{C1}
    s_nop 0
    v_add_f32 v{C0}, v{C0}, v{C1}
    buffer_store_dwordx2 v[{C0}:{C0+1}], v{hGC}, s[28:31], s96 offen sc1
    """)
    def gather(lo=0, hi=9):
        for c in range(lo, min(hi, 8)):
            A(f"buffer_load_dwordx2 {vr(hGR+2*c,2)}, v{hGC}, s[28:31], 0 offen offset:{c*512} sc1")
        if hi == 9:
            A(f"buffer_load_dwordx4 {vr(hGX,4)}, v{hGA}, s[28:31], 0 offen sc1")
    BIAS = f"""
    s_mul_i32 s74, s{sG}, 448
    s_lshl_b32 s75, s{sW4}, 6
    s_add_u32 s74, s74, s75
    v_lshlrev_b32 v{t0}, 1, v2
    v_lshl_add_u32 v{t0}, v7, 8, v{t0}
    buffer_load_ushort v{hBI}, v{t0}, s[40:43], s74 offen
    """
    ga = optval("ga", "c")
    bar(11)
    A(CALL)
    bar(10)
    A(CALL)
    if ga == "a":
        gather(8, 9); A(BIAS)
        bar(12)
        A(CALL); gather(0, 4)
        bar(16)
        A(CALL); gather(4, 8)
        bar(18)
        bar(4)
    else:
        A(BIAS)
        bar(11)
        A(CALL)
        bar(10)
        A(CALL)
        n5 = {"b": 0, "c": 4, "d": 8}[ga]
        gather(0, n5)
        bar(10 + n5)
        gather(n5, 9)
        bar(9)
    A("s_waitcnt vmcnt(0)")
    A(f"""
    s_mov_b32 s79, 0x4000
    L_h_chk:
    v_xor_b32 v{hGX+1}, s26, v{hGX+1}
    v_xor_b32 v{hGX+3}, s27, v{hGX+3}
    v_or_b32 v{t0}, v{hGX+1}, v{hGX+3}
    """)
    for c in range(8):
        A(f"v_xor_b32 v{hGR+2*c+1}, v{hEP}, v{hGR+2*c+1}")
    for c in range(0, 8, 2):
        A(f"v_or3_b32 v{t0}, v{t0}, v{hGR+2*c+1}, v{hGR+2*c+3}")
    A(f"""
    v_cmp_ne_u32 vcc, 0, v{t0}
    s_sub_u32 s79, s79, 1
    s_cmp_eq_u32 s79, 0
    s_cbranch_scc1 L_h_got
    s_cbranch_vccz L_h_got
    """)
    gather()
    A("s_waitcnt vmcnt(0)\ns_branch L_h_chk\nL_h_got:")
    a, b, r_, h_, X0, A0 = hWR, hWR + 1, hWR + 2, hWR + 3, hWR + 4, hWR + 6
    c = hGR
    A(f"""
    s_mov_b32 s74, {f32bits(1.0/512)}
    v_mul_f32 v{a}, s74, v{hGX}
    v_mul_f32 v{b}, s74, v{hGX+2}
    v_add_f32 v{c}, v{c}, v{c+2}
    v_fma_f32 v{b}, -v{a}, v{a}, v{b}
    v_add_f32 v{c+4}, v{c+4}, v{c+6}
    v_max_f32 v{b}, 0, v{b}
    v_add_f32 v{c+8}, v{c+8}, v{c+10}
    v_cvt_pk_bf16_f32 v{b}, v{b}, v{b}
    v_add_f32 v{c+12}, v{c+12}, v{c+14}
    v_and_b32 v{b}, s3, v{b}
    v_add_f32 v{c}, v{c}, v{c+4}
    v_add_f32 v{b}, {f32bits(1e-5)}, v{b}
    v_add_f32 v{c+8}, v{c+8}, v{c+12}
    v_cvt_pk_bf16_f32 v{b}, v{b}, v{b}
    v_add_f32 v{c}, v{c}, v{c+8}
    v_and_b32 v{b}, s3, v{b}
    v_sqrt_f32 v{b}, v{b}
    v_mul_f32 v{a}, -0.5, v{a}
    v_and_b32 v{c+1}, s3, v{c}
    v_cvt_pk_bf16_f32 v{b}, v{b}, v{b}
    v_sub_f32 v{c}, v{c}, v{c+1}
    v_and_b32 v{b}, s3, v{b}
    v_and_b32 v{c+2}, s3, v{c}
    v_rcp_f32 v{r_}, v{b}
    v_mul_f32 v{h_}, 0.5, v{b}
    v_sub_f32 v{c}, v{c}, v{c+2}
    v_cvt_pk_bf16_f32 v{X0}, v{a}, v{a}
    v_cvt_pk_bf16_f32 v{X0+1}, v{a}, v{h_}
    v_cvt_pk_bf16_f32 v{c+4}, v{c+1}, v{c+2}
    v_lshlrev_b32 v{hBI}, 16, v{hBI}
    v_cvt_pk_bf16_f32 v{c+5}, v{c}, v{hBI}
    s_lshl_b32 s74, s{sW4}, 8
    v_lshl_add_u32 v{A0}, v2, 3, s74
    v_lshrrev_b32 v{A0+1}, 1, v{A0}
    v_add_u32 v{A0}, {T_XP}, v{A0}
    v_add_u32 v{A0+1}, {T_RS}, v{A0+1}
    v_lshl_add_u32 v{A0+2}, v7, 10, v{A0}
    ds_write_b64 v{A0}, {vr(X0,2)}
    ds_write_b32 v{A0+1}, v{r_}
    ds_write_b32 v{A0+1}, v{b} offset:512
    ds_write_b64 v{A0+2}, {vr(c+4,2)} offset:{T_WP - T_XP}
    """)
    A("s_waitcnt lgkmcnt(0)")
    bar(0)
```

```python
from asm import *
from mega1 import *
import asm

vL16, vK, vVa, vVb, vVg, vCNT, vQA, vCQ, vONE = 3, 244, 245, 246, 247, 248, 249, 18, 19
XB = 8
Q2 = [20, 24]
KB = [28, 32]
VA = 36
VB = [40, 44]
P = 48
T0, T1, T2, T3 = 56, 57, 58, 59
C = [64, 80]
O = [96, 112]
S = [128, 144]

def ex(s, i): return f"v_exp_f32 v{s+i}, v{s+i}"
def cv(s, i): return f"v_cvt_pk_bf16_f32 v{P+i}, v{s+2*i}, v{s+2*i+1}"

def rowmax(A, src, dst):
    A(f"v_max3_f32 v{dst}, v{src}, v{src+1}, v{src+2}")
    for i in range(3, 15, 2):
        A(f"v_max3_f32 v{dst}, v{dst}, v{src+i}, v{src+i+1}")
    A(f"""
    v_max_f32 v{dst}, v{dst}, v{src+15}
    v_mov_b32 v{T1}, v{dst}
    s_nop 1
    v_permlane32_swap_b32 v{dst}, v{T1}
    s_nop 1
    v_max_f32 v{dst}, v{dst}, v{T1}
    """)

QS = 1088
SRC = 16 * QS
def out_setup(A):
    A(f"""
    s_lshl_b32 s74, s{sTB2}, 3
    s_add_u32 s74, s74, s{sWAVE}
    s_lshl_b32 s74, s74, 13
    v_lshrrev_b32 v5, 3, v1
    v_lshlrev_b32 v5, 10, v5
    v_and_b32 v6, 7, v1
    s_lshl_b32 s75, s{sNB}, 7
    v_lshl_add_u32 v6, v6, 4, s75
    v_add3_u32 v5, v5, v6, s74
    s_mov_b32 s56, s18
    s_mov_b32 s57, s19
    s_mov_b32 s58, 1024
    s_mov_b32 s59, 0x00020000
    s_mov_b32 s60, s20
    s_mov_b32 s61, s21
    s_mov_b32 s62, 0x200000
    s_mov_b32 s63, 0x00020000
    """)

def kv_srds(A):
    A(f"""
    s_lshl_b32 s74, s{sHEAD}, 16
    s_add_u32 s75, s74, {WS_K}
    s_add_u32 s84, s24, s75
    s_addc_u32 s85, s25, 0
    s_mov_b32 s86, 0x10000
    s_mov_b32 s87, 0x00020000
    s_add_u32 s75, s74, {WS_V}
    s_add_u32 s88, s24, s75
    s_addc_u32 s89, s25, 0
    s_mov_b32 s90, 0x10000
    s_mov_b32 s91, 0x00020000
    """)

XB_LOADS = [f"buffer_load_dwordx4 v[{XB}:{XB+3}], v5, s[52:55], 0 offen",
            f"buffer_load_dwordx4 v[{XB+4}:{XB+7}], v6, s[56:59], 0 offen"]

def a_setup(A):
    A(f"""
    v_and_b32 v{vVg}, 15, v1
    v_lshlrev_b32 v{vVg}, 4, v{vVg}
    v_lshl_add_u32 v{vVg}, v7, 8, v{vVg}
    v_and_b32 v{T0}, 16, v1
    v_cmp_eq_u32 vcc, 0, v{T0}
    v_and_b32 v{T1}, 11, v1
    v_cmp_ne_u32 s[74:75], 0, v{T1}
    v_add_u32 v{vVa}, {LDS_V}, v{vVg}
    v_add_u32 v{vVb}, {LDS_V+512}, v{vVg}
    v_mov_b32 v{T0}, {LDS_V+1024}
    v_mov_b32 v{T1}, {LDS_V+1040}
    v_cndmask_b32 v{T0}, v{T0}, v{T1}, s[74:75]
    v_cndmask_b32 v{vVa}, v{T0}, v{vVa}, vcc
    v_cndmask_b32 v{vVb}, v{T0}, v{vVb}, vcc
    v_mov_b32 v{vK}, v{vL16}
    v_mov_b32 v{vCNT}, {C_KV}
    s_lshl_b32 s74, s{sW4}, 11
    s_add_u32 s74, s74, {QA}
    v_add_u32 v{vQA}, s74, v{vL16}
    s_lshl_b32 s74, s{sW4}, 2
    s_add_u32 s74, s74, {C_Q}
    v_mov_b32 v{vCQ}, s74
    v_mov_b32 v{vONE}, 1
    """)
    out_setup(A)

def spread(st):
    out = [None] * 14
    for i, x in enumerate(st):
        out[i * 14 // len(st)] = x
    return out

def gen_a(A, spi=8):
    A("L_a:")
    A.region("a")
    for i in range(0, 32, 2):
        A(f"v_mov_b64 {vr(O[0]+i,2)}, 0")
    for i in range(0, 4, 2):
        A(f"v_mov_b64 {vr(P+4+i,2)}, 0\nv_mov_b64 {vr(VB[1]+i,2)}, 0")
    A(f"""
    L_a_wait0:
    ds_read_b32 v{T3}, v{vCNT}
    s_waitcnt lgkmcnt(0)
    v_readfirstlane_b32 s74, v{T3}
    s_cmp_lg_u32 s74, 4
    s_cbranch_scc1 L_a_wait0
    """)
    stamp(A, 6)
    A(f"""
    ds_read_b128 {vr(KB[0],4)}, v{vK}
    ds_read_b128 {vr(Q2[0],4)}, v{vQA}
    ds_read_b128 {vr(Q2[1],4)}, v{vQA} offset:1024
    ds_read_b128 {vr(KB[1],4)}, v{vK} offset:1024
    ds_read_b128 {vr(VA,4)}, v{vVa}
    ds_read_b128 {vr(VB[0],4)}, v{vVb}
    s_waitcnt lgkmcnt(3)
    {mfma(S[0], KB[0], Q2[0], "0")}
    {mfma(S[1], KB[0], Q2[1], "0")}
    ds_write_b32 v{vCQ}, v{vONE}
    s_nop 10
    """)
    for q in range(2):
        rowmax(A, S[q], T0)
        A(f"v_sub_f32 v{C[q]}, 0, v{T0}\nv_sub_f32 v{C[q]+1}, 0, v{T0}")
        for i in range(2, 16, 2):
            A(f"v_mov_b64 {vr(C[q]+i,2)}, {vr(C[q],2)}")
        if q == 0:
            A(f"s_nop 1\n{mfma(S[0], KB[0], Q2[0], C[0])}")
    A(f"s_mov_b32 s11, {64 // spi}\ns_waitcnt lgkmcnt(0)")
    stamp(A, 7)
    def body(tag, extra):
        extra = list(extra)
        for t in range(spi):
            for h in range(2):
                cur, nxt = S[h], S[1 - h]
                kf = KB[t & 1] if h == 0 else KB[(t + 1) & 1]
                vb = VB[(t + 1) & 1] if h == 0 else VB[t & 1]
                m1 = m2 = m3 = pre3 = ""
                if h == 0:
                    m2 = "s_waitcnt lgkmcnt(0)"
                    m3 = f"ds_read_b128 {vr(KB[t & 1],4)}, v{vK} offset:{(t+2)*1024}"
                    if t == 6:
                        pre3 = f"v_readfirstlane_b32 s74, v{T3}"
                        m3 = f"s_cmp_lg_u32 s74, 4\ns_cbranch_scc1 L_a_spin{tag}\nL_a_spun{tag}:\n" + m3
                else:
                    if t == 5:
                        m1 = f"ds_read_b32 v{T3}, v{vCNT} offset:4"
                    m2 = f"ds_read_b128 {vr(VB[(t+1) & 1],4)}, v{vVb} offset:{(t+1)*VST}"
                    m3 = f"ds_read_b128 {vr(VA,4)}, v{vVa} offset:{(t+1)*VST}"
                    if t == spi - 1:
                        m1 = "s_sub_u32 s11, s11, 1"
                if extra and not m1:
                    m1 = extra.pop(0) or ""
                A(f"""
                {mfma(nxt, kf, Q2[1-h], C[1-h])}
                {m1}
                {ex(cur,0)}
                {ex(cur,1)}
                {ex(cur,2)}
                {ex(cur,3)}
                {ex(cur,4)}
                {ex(cur,5)}
                {cv(cur,0)}
                {mfma(O[1-h], vb, P+4)}
                {m2}
                {cv(cur,1)}
                {ex(cur,6)}
                {ex(cur,7)}
                {cv(cur,2)}
                {cv(cur,3)}
                {ex(cur,8)}
                {pre3}
                {ex(cur,9)}
                {ex(cur,10)}
                {mfma(O[h], VA, P)}
                {m3}
                {ex(cur,11)}
                {cv(cur,4)}
                {ex(cur,12)}
                {cv(cur,5)}
                {ex(cur,13)}
                {ex(cur,14)}
                {ex(cur,15)}
                {cv(cur,6)}
                {cv(cur,7)}
                """)
        assert not extra
        A(f"""
        v_add_u32 v{vK}, {spi*1024}, v{vK}
        v_add_u32 v{vVa}, {spi*VST}, v{vVa}
        v_add_u32 v{vVb}, {spi*VST}, v{vVb}
        v_add_u32 v{vCNT}, 4, v{vCNT}
        """)
        if asm.STAMPS:
            A("s_memtime s[80:81]\ns_waitcnt lgkmcnt(0)\ns_mov_b32 m0, s11\ns_nop 0\nv_writelane_b32 v252, s80, m0")
    A(".p2align 6\nL_a_loop:")
    body("", [])
    A(f"""
    s_cmp_lg_u32 s11, 0
    s_cbranch_scc1 L_a_loop
    {mfma(O[1], VB[(spi-1) & 1], P+4)}
    """)
    stamp(A, 8)
    for x in XB_LOADS:
        A(x)
    A(f"s_nop 1\nv_add_f32 v{T0}, abs(v{O[0]}), abs(v{O[0]+1})")
    for i in range(2, 9):
        A(f"v_add_f32 v{T0}, v{T0}, abs(v{O[0]+i})")
    for i in range(0, 9):
        A(f"v_add_f32 v{T0}, v{T0}, abs(v{O[1]+i})")
    A(f"""
    v_mov_b32 v{T1}, 0x7f000000
    v_cmp_lt_f32 vcc, v{T0}, v{T1}
    s_nop 4
    s_cmp_eq_u64 vcc, -1
    s_cbranch_scc0 L_fallback
    L_a_fin:
    v_rcp_f32 v{T0}, v{O[0]+8}
    v_rcp_f32 v{T1}, v{O[1]+8}
    """)
    for q in range(2):
        for i in range(8):
            A(f"v_mul_f32 v{O[q]+i}, v{O[q]+i}, v{(T0,T1)[q]}")
        for i in range(4):
            A(f"v_cvt_pk_bf16_f32 v{P+4*q+i}, v{O[q]+2*i}, v{O[q]+2*i+1}")
        for i in range(4):
            A(f"v_min_u32 v{P+4*q+i}, -2, v{P+4*q+i}")
        A(f"buffer_store_dwordx4 {vr(P+4*q,4)}, v{vL16}, s[28:31], s{8+q} offen sc1")
    stamp(A, 9)
    A(f"""
    s_mov_b64 exec, 1
    ds_add_u32 v{vFLG+1}, v{vONE} offset:{C_D - C_H}
    s_mov_b64 exec, -1
    s_waitcnt vmcnt(2)
    s_branch L_final
    """)
    for tag in ("",):
        A(f"""
        L_a_spin{tag}:
        ds_read_b32 v{T3}, v{vCNT} offset:4
        s_waitcnt lgkmcnt(0)
        v_readfirstlane_b32 s74, v{T3}
        s_cmp_lg_u32 s74, 4
        s_cbranch_scc1 L_a_spin{tag}
        s_branch L_a_spun{tag}
        """)

FACC, HB, WF, FB, WO = 32, 96, 120, 96, 160
fSENT, fTAG, fFLG, fCQ, fHK, fP3, fPR, fPROBE, fCD, fRED, fCH = 232, 236, 238, 239, 240, 242, 243, 244, 245, 246, 247

def poll(A, name, vaddr, sleep=4):
    A(f"""
    s_mov_b32 s79, 0x8000
    L_{name}:
    buffer_load_dwordx2 v[24:25], v{vaddr}, s[28:31], 0 offen sc1
    s_sub_u32 s79, s79, 1
    s_waitcnt vmcnt(0)
    v_cmp_ne_u64 vcc, s[26:27], v[24:25]
    s_cmp_eq_u32 s79, 0
    s_cbranch_scc1 L_{name}_done
    s_cbranch_vccz L_{name}_done
    s_sleep {sleep}
    s_branch L_{name}
    L_{name}_done:
    """)

def f_setup(A):
    kv_srds(A)
    out_setup(A)
    f = sW4
    A(f"""
    s_mov_b32 s52, s4
    s_mov_b32 s53, s5
    s_mov_b32 s54, 0x200000
    s_mov_b32 s55, 0x00020000
    s_lshl_b32 s74, s{sNB}, 7
    s_add_u32 s44, s16, s74
    s_addc_u32 s45, s17, 0
    s_sub_u32 s46, {1792*1024}, s74
    s_mov_b32 s47, 0x00020000
    s_add_u32 s48, s8, s74
    s_addc_u32 s49, s9, 0
    s_sub_u32 s50, {512*1024}, s74
    s_mov_b32 s51, 0x00020000
    v_mul_u32_u24 v16, {VST}, v1
    v_add_u32 v16, {LDS_V+1024}, v16
    v_mov_b32 v20, 0x3f803f80
    v_mov_b32 v21, v20
    v_mov_b32 v22, v20
    v_mov_b32 v23, v20
    v_mov_b32 v17, 1
    v_mov_b32 v19, {C_KV}
    s_lshr_b32 s74, s{sHEAD}, 1
    s_lshl_b32 s74, s74, 8
    s_add_u32 s74, s74, {WS_F2}
    v_lshl_add_u32 v18, v2, 3, s74
    v_add_u32 v31, {ACT_TB}, v3
    v_lshrrev_b32 v26, 3, v1
    v_bfe_u32 v27, v1, 4, 1
    v_lshlrev_b32 v27, 2, v27
    v_and_b32 v28, 7, v1
    v_xor_b32 v27, v27, v28
    v_lshlrev_b32 v26, 10, v26
    v_lshl_add_u32 v26, v27, 4, v26
    v_add_u32 v27, 0x2000, v26
    v_bfe_u32 v28, v1, 2, 2
    v_lshl_add_u32 v28, v7, 2, v28
    v_lshlrev_b32 v28, 7, v28
    v_bfe_u32 v29, v1, 3, 1
    v_lshl_add_u32 v28, v29, 6, v28
    v_bfe_u32 v29, v1, 4, 1
    v_lshl_add_u32 v28, v29, 5, v28
    v_and_b32 v29, 3, v1
    v_lshl_add_u32 v28, v29, 3, v28
    v_xor_b32 v29, 64, v28
    s_lshl_b32 s77, s{f}, 11
    s_add_u32 s77, s77, {QA}
    v_add_u32 v28, s77, v28
    v_add_u32 v29, s77, v29
    s_mul_i32 s12, s{f}, {28*16384}
    s_lshl_b32 s13, s{f}, 17
    s_mul_i32 s14, s{sTB2}, {2*ACT_TB}
    s_add_u32 s14, s14, {WS_ACT}
    s_lshl_b32 s74, s{f}, 13
    s_add_u32 s15, s14, s74
    s_mul_i32 s74, s{f}, {28*1024}
    s_add_u32 s14, s14, s74
    s_add_u32 s14, s14, {32*1024}
    s_lshl_b32 s10, s{f}, 10
    s_mul_i32 s11, s{f}, {VST}
    s_add_u32 s11, s11, {LDS_V}
    s_lshl_b32 s74, s{sQB}, 2
    s_add_u32 s74, s74, s{f}
    s_lshl_b32 s74, s74, 11
    s_lshl_b32 s75, s{sHEAD}, 16
    s_add_u32 s78, s74, s75
    """)
    A(f"""
    v_mov_b64 {vr(fSENT,2)}, -1
    v_mov_b64 {vr(fSENT+2,2)}, -1
    s_lshl_b32 s74, s{sQB}, 2
    s_add_u32 s74, s74, s{f}
    s_mul_i32 s6, s74, {2*ACT_TB}
    s_lshl_b32 s76, s{sHEAD}, 10
    s_add_u32 s6, s6, s76
    s_add_u32 s6, s6, {WS_ACT}
    s_lshl_b32 s74, s74, 5
    s_add_u32 s74, s74, s{sHEAD}
    s_lshl_b32 s74, s74, 3
    s_add_u32 s74, s74, {WS_FR}
    v_mov_b32 v{fFLG}, s74
    s_lshl_b32 s75, s{sTBK}, 1
    s_lshr_b32 s76, s{f}, 1
    s_add_u32 s75, s75, s76
    s_lshl_b32 s75, s75, 3
    s_add_u32 s75, s75, s{sG}
    s_lshl_b32 s75, s75, 1
    s_and_b32 s76, s{f}, 1
    s_add_u32 s75, s75, s76
    s_lshl_b32 s75, s75, 3
    s_add_u32 s75, s75, {WS_F3}
    s_cmp_eq_u32 s{sTYPE}, 0
    s_cselect_b32 s74, s74, s75
    v_writelane_b32 v{fFLG}, s74, 1
    s_lshl_b32 s74, s{f}, 2
    s_add_u32 s74, s74, {C_Q}
    v_mov_b32 v{fCQ}, s74
    s_add_u32 s74, s10, 32768
    v_add_u32 v{fHK}, s74, v3
    s_add_u32 s74, s11, {32*VST}
    v_add_u32 v{fHK+1}, s74, v3
    s_lshl_b32 s74, s{sTB2}, 7
    s_lshl_b32 s75, s{f}, 5
    s_add_u32 s74, s74, s75
    s_add_u32 s74, s74, {WS_F3}
    v_and_b32 v24, 3, v1
    v_lshl_add_u32 v{fP3}, v24, 3, s74
    s_lshl_b32 s74, s{sTB2}, 8
    s_lshl_b32 s75, s{f}, 6
    s_add_u32 s74, s74, s75
    s_add_u32 s74, s74, {WS_FR}
    v_and_b32 v24, 7, v1
    v_lshl_add_u32 v{fPR}, v24, 3, s74
    v_lshlrev_b32 v24, 10, v24
    v_bfe_u32 v25, v1, 3, 1
    v_mul_u32_u24 v25, {ACT_TB}, v25
    v_add_u32 v{fPROBE}, v24, v25
    v_mov_b32 v{fCD}, {C_D}
    v_mov_b32 v{fCH}, {C_H}
    s_mul_i32 s74, s{f}, {SRC}
    v_add_u32 v{fRED}, s74, v3
    """)
    for i in range(0, 64, 2):
        A(f"v_mov_b64 {vr(FACC+i,2)}, 0")

def gen_f(A):
    Q = VmQ(A)
    f = sW4
    A("L_f:")
    A.region("f")
    stamp(A, 4)
    A(f"ds_write_b128 v16, v[20:23]\nds_write_b128 v16, {vr(FACC,4)} offset:16")
    def wdma_half(step, srd, so, tag, half, inc=16384):
        sl = (step + 1) % 3
        A(f"s_add_u32 m0, s77, {sl*8192 + half*1024}\ns_nop 0")
        Q.issue(f"buffer_load_dwordx4 v{26+half}, s[{srd}:{srd+3}], s{so} offen lds", tag)
        if half:
            A(f"s_add_u32 s{so}, s{so}, {inc}")
    def wdma(step, srd, so, tag, inc=16384):
        wdma_half(step, srd, so, tag, 0, inc); wdma_half(step, srd, so, tag, 1, inc)
    def trread(step, dst, cb):
        sl = (step + 1) % 3
        A(f"ds_read_b64_tr_b16 {vr(dst,2)}, v{28+cb} offset:{sl*8192}")
        A(f"ds_read_b64_tr_b16 {vr(dst+2,2)}, v{28+cb} offset:{sl*8192+1024}")
    wdma(-9, 48, 13, "o0"); wdma(-8, 48, 13, "o1")
    A(f"""
    s_cmp_eq_u32 s{f}, 0
    s_cselect_b32 s75, 4, 5
    L_f_hw:
    ds_read_b32 v24, v{fCH}
    s_waitcnt lgkmcnt(0)
    v_readfirstlane_b32 s74, v24
    s_cmp_eq_u32 s74, s75
    s_cbranch_scc1 L_f_hw_done
    s_sleep 1
    s_branch L_f_hw
    L_f_hw_done:
    {'s_setprio 3' if '1' in optval('fp', '') else 's_nop 0'}
    s_cmp_lg_u32 s{f}, 0
    s_cbranch_scc1 L_f_go
    """)
    poll(A, "f_p2", 18, int(optval("ps", "4")))
    A(f"""
    s_mov_b64 exec, 1
    ds_add_u32 v{fCH}, v17
    s_mov_b64 exec, -1
    L_f_go:
    """)
    stamp(A, 5)
    def kv_dma(i):
        A(f"s_mov_b32 m0, s10\ns_add_u32 s74, s11, {i*4*VST}")
        Q.issue("buffer_load_dwordx4 v3, s[84:87], s10 offen sc1 lds", i // 2)
        A("s_mov_b32 m0, s74\ns_nop 0")
        Q.issue("buffer_load_dwordx4 v3, s[88:91], s10 offen sc1 lds", i // 2)
        A("s_add_u32 s10, s10, 4096")
    def chunk_done(c):
        Q.wait(c)
        A(f"s_mov_b64 exec, 1\nds_add_u32 v19, v17 offset:{4*c}\ns_mov_b64 exec, -1")
    A("s_mov_b32 m0, s77\ns_nop 0")
    Q.issue("buffer_load_dwordx4 v3, s[28:31], s78 offen sc1 lds", 0)
    Q.issue("buffer_load_dwordx4 v3, s[28:31], s78 offen offset:1024 sc1 lds", 0)
    n0 = int(optval("n0", "6"))
    for i in range(n0):
        kv_dma(i)
    chunk_done(0)
    stamp(A, 6)
    for i in range(n0, 8):
        kv_dma(i)
    for c in range(1, 4):
        chunk_done(c)
    Q.issue(f"buffer_store_dwordx4 {vr(fSENT,4)}, v3, s[28:31], s6 offen sc1", 7)
    Q.issue(f"buffer_store_dwordx4 {vr(fSENT,4)}, v31, s[28:31], s6 offen sc1", 7)
    A(f"""
    L_f_qw:
    ds_read_b32 v24, v{fCQ}
    s_waitcnt lgkmcnt(0)
    v_readfirstlane_b32 s74, v24
    s_cmp_eq_u32 s74, 1
    s_cbranch_scc1 L_f_qw_done
    s_sleep 2
    s_branch L_f_qw
    L_f_qw_done:
    """)
    for i in range(14):
        va, off = h_slot(i)
        A(f"ds_read_b128 {vr(HB+4*i,4)}, v{fHK+va} offset:{off}")
    A("s_waitcnt lgkmcnt(0)")
    for i in range(8, 16):
        kv_dma(i)
    A(f"""
    s_cmp_eq_u32 s{sTYPE}, 0
    s_cbranch_scc1 L_f_noh
    s_lshl_b32 s74, s{sTBK}, 2
    s_add_u32 s74, s74, s{f}
    s_xor_b32 s75, s74, 1
    s_mul_i32 s76, s{sG}, {7*2048}
    s_add_u32 s76, s76, {WS_ACT + 32*1024}
    s_mul_i32 s92, s74, {ACT_TB}
    s_add_u32 s92, s92, s76
    s_mul_i32 s93, s75, {ACT_TB}
    s_add_u32 s93, s93, s76
    s_add_u32 s94, s92, {6*2048}
    s_and_b32 s75, s{f}, 1
    s_mul_i32 s76, s75, 6144
    s_add_u32 s92, s92, s76
    s_add_u32 s93, s93, s76
    s_add_u32 s95, s92, 4096
    s_add_u32 s96, s93, 4096
    """)
    for n, (t, c) in enumerate([(t, c) for c in range(3) for t in range(2)] + [(0, 3)]):
        so, im = (94, 0) if c == 3 else ((92 + t, c * 2048) if c < 2 else (95 + t, 0))
        for hh in range(2):
            A(f"buffer_store_dwordx4 {vr(HB+8*n+4*hh,4)}, v3, s[28:31], s{so} offen offset:{im+hh*1024} sc1")
    A(f"""
    L_f_noh:
    s_mov_b32 s40, s22
    s_mov_b32 s41, s23
    s_mov_b32 s42, 256
    s_waitcnt vmcnt(0)
    s_mov_b64 exec, 3
    buffer_store_dwordx2 {vr(fTAG,2)}, v{fFLG}, s[28:31], 0 offen sc1
    s_mov_b64 exec, 1
    ds_add_u32 v19, v17 offset:16
    ds_add_u32 v19, v17 offset:20
    ds_add_u32 v19, v17 offset:24
    ds_add_u32 v19, v17 offset:28
    s_cmp_lg_u32 s{f}, 0
    s_cbranch_scc1 L_f_noat
    buffer_atomic_add v17, v4, s[40:43], 0 offen sc1
    L_f_noat:
    s_mov_b64 exec, -1
    """)
    stamp(A, 7)
    Q.q = ["st"]
    wdma(-7, 48, 13, "o2")
    for k in range(8):
        Q.wait(f"o{k}")
        trread(k - 9, WO + 8 * k, 0); trread(k - 9, WO + 8 * k + 4, 1)
        A("s_waitcnt lgkmcnt(0)")
        if k + 3 < 8:
            wdma(k - 6, 48, 13, f"o{k+3}")
        elif k >= 6:
            wdma(k - 6, 44, 12, "w")
    wdma(2, 44, 12, "w")
    poll(A, "f_p3", fP3, 8)
    A("s_setprio 0")
    Q.q = []
    def hload(step, t, tag):
        b = HB + 8 * (step % 3) + 4 * t
        Q.issue(f"buffer_load_dwordx4 {vr(b,4)}, v{(3,31)[t]}, s[28:31], s14 offen sc1", tag)
        if t == 1:
            A("s_add_u32 s14, s14, 1024")
    for s in range(3):
        hload(s, 0, s); hload(s, 1, s)
    Q.drain()
    stamp(A, 8)
    def fstep(s, nxt):
        h = HB + 8 * (s % 3)
        for n, (t, cb) in enumerate(((0, 0), (0, 1), (1, 0), (1, 1))):
            if n < 3 or not nxt:
                trread(s, WF + 4 * cb, cb)
                A("s_waitcnt lgkmcnt(0)")
            else:
                wdma(s + 3, 44, 12, s + 3)
            A(mfma(FACC + 32 * cb + 16 * t, WF + 4 * cb, h + 4 * t))
            if nxt and n in (1, 3):
                hload(s + 3, t, s + 3)
    A("s_mov_b32 s79, 8\nL_f_loop:")
    for s in range(3):
        A("s_waitcnt vmcnt(8)")
        fstep(s, True)
    A("s_sub_u32 s79, s79, 1\ns_cmp_lg_u32 s79, 0\ns_cbranch_scc1 L_f_loop")
    Q.q = [24]*4 + [25]*4 + [26]*4
    for s in range(24, 28):
        Q.wait(s)
        fstep(s, s == 24)
    for x in XB_LOADS:
        A(x)
    if "2" in optval("fp", ""):
        A("s_setprio 3")
    poll(A, "f_pr", fPR, 8)
    A(f"""
    s_or_b32 s74, s2, s{f}
    s_cmp_lg_u32 s74, 0
    s_cbranch_scc1 L_f_noep
    s_mov_b32 s79, 0x8000
    L_f_ep:
    buffer_load_dword v24, v4, s[40:43], 0 offen sc1
    s_sub_u32 s79, s79, 1
    s_waitcnt vmcnt(0)
    v_readfirstlane_b32 s74, v24
    s_cmp_eq_u32 s79, 0
    s_cbranch_scc1 L_f_ep_done
    s_cmp_lg_u32 s74, 256
    s_cbranch_scc1 L_f_ep
    L_f_ep_done:
    s_mov_b32 s74, {WS_CTL}
    s_mov_b64 exec, 1
    buffer_store_dwordx2 {vr(fTAG,2)}, v4, s[28:31], s74 offen sc1
    s_mov_b64 exec, -1
    L_f_noep:
    """)
    stamp(A, 9)
    A(f"""
    s_add_u32 s14, s15, 4096
    s_mov_b32 s79, 0x10000
    s_mov_b32 s78, 0
    """)
    stamp(A, 10)
    A(f"""
    s_mov_b32 s77, 0
    s_mov_b32 s11, 0
    L_f_probe:
    s_sub_u32 s79, s79, 1
    s_cmp_eq_u32 s79, 0
    s_cselect_b32 s76, 0, -1
    s_cselect_b32 s79, 1, s79
    """)
    if optval("td", "0") == "1":
        A(f"""
        s_mov_b32 s75, s78
        s_cmp_eq_u32 s11, 4
        s_cbranch_scc1 L_f_load
        ds_read_b32 v24, v{fCD}
        """)
    A(f"""
    buffer_load_dword v25, v{fPROBE}, s[28:31], s15 offen offset:1020 sc1
    s_waitcnt vmcnt(0) lgkmcnt(0)
    v_readfirstlane_b32 s11, v24
    v_cmp_eq_u32 vcc, -1, v25
    s_and_b32 s74, vcc_lo, s76
    s_mov_b32 s75, s78
    s_and_b32 s10, s74, 0x0f0f
    s_cselect_b32 s10, 1, 0
    s_or_b32 s75, s75, s10
    s_and_b32 s10, s74, 0xf0f0
    s_cselect_b32 s10, 2, 0
    s_or_b32 s75, s75, s10
    s_cmp_lg_u32 s75, 3
    s_cbranch_scc1 L_f_load
    s_sleep {optval("ts", "2")}
    s_branch L_f_probe
    L_f_load:
    """)
    for g in range(2):
        A(f"s_bitcmp1_b32 s75, {g}\ns_cbranch_scc1 L_f_nl{g}")
        for k in range(4*g, 4*g + 4):
            so, im = (15, k * 1024) if k < 4 else (14, (k - 4) * 1024)
            A(f"""
            buffer_load_dwordx4 {vr(FB+8*k,4)}, v3, s[28:31], s{so} offen offset:{im} sc1
            buffer_load_dwordx4 {vr(FB+8*k+4,4)}, v31, s[28:31], s{so} offen offset:{im} sc1
            """)
        A(f"L_f_nl{g}:")
    for g in range(2):
        b = FB + 32 * g
        A(f"s_bitcmp1_b32 s75, {g}\ns_cbranch_scc1 L_f_nc{g}")
        if g == 0:
            A("s_bitcmp1_b32 s75, 1\ns_cbranch_scc1 L_f_w0\ns_waitcnt vmcnt(8)\ns_branch L_f_w1\nL_f_w0:\ns_waitcnt vmcnt(0)\nL_f_w1:")
        else:
            A("s_waitcnt vmcnt(0)")
        A(f"v_max3_u32 v17, v{b}, v{b+1}, v{b+2}\nv_max3_u32 v18, v{b+3}, v{b+4}, v{b+5}")
        for r in range(6, 30, 4):
            A(f"v_max3_u32 v17, v17, v{b+r}, v{b+r+1}\nv_max3_u32 v18, v18, v{b+r+2}, v{b+r+3}")
        A(f"""
        v_max3_u32 v17, v17, v{b+30}, v{b+31}
        v_max_u32 v17, v17, v18
        v_and_b32 v17, s76, v17
        v_cmp_eq_u32 vcc, -1, v17
        s_cbranch_vccnz L_f_sk{g}
        s_bitset1_b32 s78, {g}
        L_f_nc{g}:
        s_cmp_lg_u32 s77, {g}
        s_cbranch_scc1 L_f_sk{g}
        s_bitcmp1_b32 s78, {g}
        s_cbranch_scc0 L_f_sk{g}
        s_mov_b32 s77, {g+1}
        """)
        if asm.STAMPS:
            A(f"s_memrealtime s[82:83]\ns_waitcnt lgkmcnt(0)\nv_writelane_b32 v255, s82, {g}\nv_writelane_b32 v255, s79, 8")
        for k in range(4*g, 4*g + 4):
            bb, w = FB + 8 * k, WO + 8 * k
            A(f"{mfma(FACC, w, bb)}\n{mfma(FACC+16, w, bb+4)}\n{mfma(FACC+32, w+4, bb)}\n{mfma(FACC+48, w+4, bb+4)}")
        A(f"L_f_sk{g}:")
    A("s_cmp_lg_u32 s77, 2\ns_cbranch_scc1 L_f_probe")
    A(f"""
    L_f_dw:
    ds_read_b32 v24, v{fCD}
    s_waitcnt lgkmcnt(0)
    v_readfirstlane_b32 s74, v24
    s_cmp_eq_u32 s74, 4
    s_cbranch_scc1 L_f_dw_done
    s_sleep 1
    s_branch L_f_dw
    L_f_dw_done:
    """)
    stamp(A, 11)
    A("s_nop 11")
    for q in range(16):
        A(f"ds_write_b128 v{fRED}, {vr(FACC+4*q,4)} offset:{q*QS}")
    A("s_nop 0")

def gen_final(A):
    R = 96
    A(f"""
    L_final:
    v_and_b32 v16, 3, v1
    v_bfe_u32 v17, v1, 2, 1
    v_lshl_add_u32 v16, v17, 3, v16
    v_mul_u32_u24 v16, {QS}, v16
    v_lshrrev_b32 v17, 3, v1
    v_lshl_add_u32 v16, v17, 4, v16
    s_lshr_b32 s74, s{sWAVE}, 2
    s_mul_i32 s74, s74, {4*QS}
    s_lshl_b32 s75, s{sW4}, 7
    s_add_u32 s74, s74, s75
    v_add_u32 v16, s74, v16
    s_mov_b32 s75, 0xffff0000
    """)
    for d in range(4):
        A(f"""
        v_lshlrev_b32 v{20+2*d}, 16, v{XB+d}
        v_and_b32 v{21+2*d}, s75, v{XB+d}
        v_lshlrev_b32 v28, 16, v{XB+4+d}
        v_and_b32 v29, s75, v{XB+4+d}
        v_add_f32 v{20+2*d}, v{20+2*d}, v28
        v_add_f32 v{21+2*d}, v{21+2*d}, v29
        """)
    A("s_waitcnt lgkmcnt(0)\ns_barrier")
    stamp(A, 12)
    for src in range(4):
        for g in range(2):
            A(f"ds_read_b128 {vr(R+8*src+4*g,4)}, v16 offset:{src*SRC + g*512}")
    for src in range(4):
        A(f"s_waitcnt lgkmcnt({6-2*src})")
        for i in range(0, 8, 2):
            A(f"v_pk_add_f32 {vr(20+i,2)}, {vr(20+i,2)}, {vr(R+8*src+i,2)}")
    for i in range(4):
        A(f"v_cvt_pk_bf16_f32 v{28+i}, v{20+2*i}, v{21+2*i}")
    A(f"buffer_store_dwordx4 v[28:31], v5, s[60:63], 0 offen {optval('ost', '')}")
    stamp(A, 13)
    if asm.STAMPS:
        A("s_waitcnt vmcnt(0)")
    stamp(A, 14); stamp(A, 15, True)
    stamp_flush(A, 0, 28, sWAVE)
    if asm.STAMPS:
        A("s_add_u32 s82, s82, 512\ns_mov_b64 exec, 0xffff\nbuffer_store_dword v252, v251, s[28:31], s82 offen\ns_add_u32 s83, s83, 512\nbuffer_store_dword v255, v251, s[28:31], s83 offen")
    if asm.STAMPS and optval("amp", ""):
        a_, b_, w_ = optval("amp", "").split(":")
        A(f"""
        s_lshl_b32 s74, s{sWAVE}, 8
        s_or_b32 s74, s74, s2
        s_cmp_lg_u32 s74, {w_}
        s_cbranch_scc1 L_end
        v_readlane_b32 s74, v254, {a_}
        v_readlane_b32 s75, v254, {b_}
        v_readlane_b32 s76, v254, 15
        s_sub_u32 s74, s75, s74
        s_min_u32 s74, s74, 4000
        s_lshl_b32 s74, s74, 3
        L_amp:
        s_memrealtime s[82:83]
        s_waitcnt lgkmcnt(0)
        s_sub_u32 s75, s82, s76
        s_cmp_lt_u32 s75, s74
        s_cbranch_scc1 L_amp
        """)
    if asm.STAMPS and 'dbgout' in OPT:
        A(f"""
        s_mov_b64 exec, -1
        s_mov_b32 s40, s22
        s_mov_b32 s41, s23
        s_mov_b32 s42, 256
        s_mov_b32 s43, 0x00020000
        v_readlane_b32 s74, v254, 0
        v_readlane_b32 s75, v254, 15
        s_not_b32 s74, s74
        v_mov_b32 v20, s74
        v_mov_b32 v21, s75
        s_mov_b64 exec, 1
        buffer_atomic_umax v20, v4, s[40:43], 0 offen offset:4 sc1
        buffer_atomic_umax v21, v4, s[40:43], 0 offen offset:8 sc1
        s_lshl_b32 s74, s{sWAVE}, 8
        s_or_b32 s74, s74, s2
        s_cmp_lg_u32 s74, {optval('dwg', '8')}
        s_cbranch_scc1 L_end
        s_mov_b64 exec, 0xfff8
        buffer_store_dword v254, v251, s[40:43], 0 offen
        """)
    A("L_end:\ns_endpgm")

def gen_fallback(A):
    A("L_fallback:\ns_waitcnt lgkmcnt(0)")
    kv_srds(A)
    A(f"""
    v_mov_b32 v{C[0]}, 0xff7fffff
    v_mov_b32 v{C[1]}, 0xff7fffff
    v_mov_b32 v{VA}, 0x3f803f80
    s_mov_b32 s12, 0x0000ffff
    s_mov_b32 s13, 0x0000ffff
    """)
    for i in range(1, 4):
        A(f"v_mov_b32 v{VA+i}, v{VA}")
    for i in range(4):
        A(f"v_mov_b32 v{VB[0]+i}, v{VA}")
    for q in range(2):
        for i in range(16):
            A(f"v_mov_b32 v{O[q]+i}, 0")
    A(f"""
    s_mov_b32 s11, 0
    L_fb_loop:
    buffer_load_dwordx4 {vr(KB[0],4)}, v{vL16}, s[84:87], s11 offen sc1
    s_mov_b64 exec, s[12:13]
    buffer_load_dwordx4 {vr(VA,4)}, v{vVg}, s[88:91], s11 offen sc1
    buffer_load_dwordx4 {vr(VB[0],4)}, v{vVg}, s[88:91], s11 offen offset:512 sc1
    s_mov_b64 exec, -1
    s_waitcnt vmcnt(0)
    """)
    for q in range(2):
        A(f"{mfma(S[0], KB[0], Q2[q], '0')}\ns_nop 15\ns_nop 3")
        rowmax(A, S[0], T0)
        A(f"""
        v_max_f32 v{T0}, v{T0}, v{C[q]}
        v_sub_f32 v{T2}, v{C[q]}, v{T0}
        v_exp_f32 v{T2}, v{T2}
        v_mov_b32 v{C[q]}, v{T0}
        """)
        for i in range(16):
            A(f"v_mul_f32 v{O[q]+i}, v{O[q]+i}, v{T2}")
        for i in range(16):
            A(f"v_sub_f32 v{S[0]+i}, v{S[0]+i}, v{T0}")
        for i in range(16):
            A(ex(S[0], i))
        A("s_nop 0")
        for i in range(8):
            A(cv(S[0], i))
        A(f"s_nop 1\n{mfma(O[q], VA, P)}\n{mfma(O[q], VB[0], P+4)}")
    A(f"""
    s_nop 15
    s_nop 3
    s_add_u32 s11, s11, 1024
    s_cmp_lt_u32 s11, 0x10000
    s_cbranch_scc1 L_fb_loop
    s_branch L_a_fin
    """)
```

```python
from asm import *
import asm, math, os
OPT = os.environ.get('MOPT', '').split(',')
def optval(k, d):
    for o in OPT:
        if o.startswith(k + "="):
            return o.split("=")[1]
    return d
LOG2E = math.log2(math.e)

XST, WBASE, WST = 16384, 49152, 28672
VST = 1056
LDS_V = 65536
QA = LDS_V + 66 * VST
CTL = QA + 3 * 8192
LDS_BYTES = 163840
C_KV, C_Q, C_H, C_D = CTL, CTL + 64, CTL + 96, CTL + 100
T_XP, T_RS, T_WP = CTL + 128, CTL + 128 + 1024, CTL + 128 + 2048
T_PART = QA

sWAVE, sW4, sTBK, sG, sTYPE, sHEAD, sQB, sTB2, sNB, sC = range(64, 74)
SRD_K, SRD_V = 84, 88

def prologue(A):
    A("s_cmp_ge_u32 s2, 256\ns_cbranch_scc1 L_end")
    stamp(A, 0, True); stamp(A, 1)
    A(f"""
    s_load_dwordx16 s[4:19], s[0:1], 0
    s_load_dwordx4 s[20:23], s[0:1], 64
    s_load_dwordx2 s[24:25], s[0:1], 80
    s_getpc_b64 s[44:45]
    L_pc:
    s_mov_b32 s46, L_code_end-L_pc
    s_mov_b32 s47, 0x00020000
    v_lshlrev_b32 v5, {optval('cps', '6')}, v0
    {'s_nop 0' if 'nocp' in OPT else 'buffer_load_dword v253, v5, s[44:47], 0 offen'}
    v_and_b32 v1, 63, v0
    v_lshrrev_b32 v2, 6, v0
    v_lshlrev_b32 v3, 4, v1
    v_readfirstlane_b32 s{sWAVE}, v2
    v_mov_b32 v4, 0
    s_and_b32 s74, s2, 7
    s_lshr_b32 s75, s2, 3
    s_and_b32 s{sQB}, s75, 7
    s_and_b32 s77, s74, 1
    s_lshl_b32 s77, s77, 3
    s_add_u32 s{sTBK}, s77, s{sQB}
    s_lshr_b32 s77, s75, 3
    s_lshr_b32 s{sTYPE}, s77, 1
    s_and_b32 s78, s77, 1
    s_and_b32 s{sG}, s74, 6
    s_add_u32 s{sG}, s{sG}, s78
    s_lshl_b32 s74, s74, 2
    s_add_u32 s{sHEAD}, s74, s77
    s_and_b32 s78, s75, 3
    s_add_u32 s{sTB2}, s74, s78
    s_lshr_b32 s{sNB}, s75, 2
    """)
    rot = optval("rot", "tbk")
    if rot == "grp":
        A(f"s_lshl_b32 s{sC}, s77, 1")
    elif rot == "tbk":
        A(f"s_mov_b32 s{sC}, s{sQB}")
    elif rot == "full":
        A(f"s_lshl_b32 s{sC}, s77, 1\ns_add_u32 s{sC}, s{sC}, s{sQB}\ns_and_b32 s{sC}, s{sC}, 7")
    elif rot == "mix":
        A(f"s_lshl_b32 s{sC}, s77, 1\ns_and_b32 s78, s{sQB}, 1\ns_add_u32 s{sC}, s{sC}, s78")
    else:
        A(f"s_mov_b32 s{sC}, 0")
    A(f"""
    s_and_b32 s{sW4}, s{sWAVE}, 3
    s_mov_b32 s30, {WS_BYTES}
    s_mov_b32 s31, 0x00020000
    s_mov_b32 s3, {WS_CTL}
    v_and_b32 v2, 31, v1
    v_lshrrev_b32 v7, 5, v1
    s_cmp_lt_u32 s{sWAVE}, 4
    s_cbranch_scc1 L_m
    """)

def lanepart_tr(A, dst, t1):
    A(f"""
    v_lshlrev_b32 v{dst}, 3, v7
    v_bfe_u32 v{t1}, v1, 2, 2
    v_add_u32 v{dst}, v{dst}, v{t1}
    v_lshlrev_b32 v{dst}, 6, v{dst}
    v_bfe_u32 v{t1}, v1, 4, 1
    v_lshl_add_u32 v{dst}, v{t1}, 5, v{dst}
    v_and_b32 v{t1}, 3, v1
    v_lshl_add_u32 v{dst}, v{t1}, 3, v{dst}
    """)

XA0, XA1, WAa, WAb = 8, 12, 16, 17
FS = [20, 44]
ACC = 68
XPF, WPF, RS, SD, RT = 180, 188, 204, 206, 208
HP = 180
vFLG, vTAG = 240, 242
sP, sE, sT0, sT1 = 4, 5, 6, 7

def touches(A):
    A(f"""
    s_cmp_lt_u32 s2, {optval('tw', '224')}
    s_cbranch_scc1 L_m_nt
    s_cmp_lg_u32 s{sW4}, 0
    s_cbranch_scc1 L_m_nt
    v_lshlrev_b32 v24, {optval('tsh', '20')}, v1
    buffer_load_dword v253, v24, s[28:31], 0 offen
    global_load_dword v253, v4, s[48:49]
    global_load_dword v253, v4, s[14:15]
    global_load_dword v253, v4, s[16:17]
    global_load_dword v253, v4, s[18:19]
    global_load_dword v253, v4, s[20:21]
    global_load_dword v253, v4, s[22:23]
    L_m_nt:
    """)

def m_common(A, a_setup):
    A(f"""
    L_m:
    s_mov_b32 s54, 0x200000
    s_mov_b32 s55, 0x00020000
    v_bfe_u32 v24, v1, 1, 3
    v_xor_b32 v24, v24, v7
    v_lshlrev_b32 v{XA0}, 7, v2
    v_lshl_add_u32 v{XA0}, v24, 4, v{XA0}
    s_lshl_b32 s74, s{sW4}, 12
    v_add_u32 v{XA0}, s74, v{XA0}
    s_waitcnt lgkmcnt(0)
    s_mov_b32 s28, s24
    s_mov_b32 s29, s25
    s_mov_b32 s52, s4
    s_mov_b32 s53, s5
    buffer_load_dwordx2 v[{vTAG}:{vTAG+1}], v4, s[28:31], s3 offen sc1
    """)
    A("s_mov_b32 s48, s8\ns_mov_b32 s49, s9")
    if optval('te', '0') == '1':
        touches(A)
    A(f"""
    s_lshl_b32 s74, s{sQB}, 3
    s_lshl_b32 s75, s{sW4}, 1
    s_add_u32 s74, s74, s75
    s_mul_i32 s8, s74, {ACT_TB}
    s_lshl_b32 s75, s{sHEAD}, 10
    s_add_u32 s8, s8, s75
    s_add_u32 s8, s8, {WS_ACT}
    s_add_u32 s9, s8, {ACT_TB}
    s_lshr_b32 s{sP}, s{sW4}, 1
    s_and_b32 s{sE}, s{sW4}, 1
    s_lshl_b32 s74, s{sTBK}, 2
    s_add_u32 s{sT0}, s74, s{sW4}
    s_xor_b32 s{sT1}, s{sT0}, 1
    """)
    for ks in range(1, 4):
        A(f"v_xor_b32 v{XA0+ks}, {ks << 5}, v{XA0}")
    for ks in range(4):
        A(f"v_xor_b32 v{XA1+ks}, 0x1000, v{XA0+ks}")
    lanepart_tr(A, WAb, 24)
    for i in range(0, 112, 2):
        A(f"v_mov_b64 {vr(ACC+i,2)}, 0")
    for i in range(6):
        A(f"v_mov_b64 {vr(XPF+4*i+2,2)}, 0")
    a_setup(A)
    if optval("xpf", "0") != "0":
        A(f"""
        s_lshr_b32 s74, s2, 6
        s_lshl_b32 s74, s74, 2
        s_add_u32 s74, s74, s{sW4}
        s_lshl_b32 s74, s74, 13
        s_lshl_b32 s75, s{sTBK}, 17
        s_add_u32 s74, s74, s75
        v_lshlrev_b32 v24, 7, v1
        {"s_waitcnt vmcnt(0)" if optval("xpf", "0") == "2" else "s_nop 0"}
        buffer_load_dword v253, v24, s[52:55], s74 offen
        """)
    A(f"""
    s_waitcnt vmcnt({0 if optval("xpf", "0") == "0" else 1})
    """)
    if optval('te', '0') == '0':
        touches(A)
    A(f"""
    """)
    if int(optval('pad', '1100')):
        A(f"""
        s_lshl_b32 s74, s{sW4}, 1
        s_add_u32 s74, s74, s{sTYPE}
        s_mov_b64 exec, 0
        s_cmp_eq_u32 s74, 0
        s_cbranch_scc1 TOUR_mq
        s_cmp_eq_u32 s74, 1
        s_cbranch_scc1 TOUR_mf
        s_cmp_lt_u32 s74, 4
        s_cbranch_scc1 TOUR_h
        s_cmp_lt_u32 s74, 6
        s_cbranch_scc1 TOUR_a
        s_branch TOUR_f
        L_tour_ret:
        s_mov_b64 exec, -1
        """)
    stamp(A, 11)
    A(f"""
    s_mov_b32 s10, 0
    s_mov_b32 s11, 8
    s_mov_b32 s14, {XST}
    s_mov_b32 s15, {WST}
    v_add_u32 v{vTAG}, 1, v{vTAG}
    v_add_u32 v{vTAG+1}, 1, v{vTAG+1}
    {'s_setprio 2' if optval('prio', 'm') == 'm' else 's_nop 0'}
    s_cmp_lg_u32 s{sTYPE}, 0
    s_cbranch_scc1 L_m_ffn
    """)

def m_path(A, ffn):
    nm = "ffn" if ffn else "qkv"
    ncb = 4 if ffn else 3
    def xf(s, t): return FS[s] + 4 * t
    def wf(s, c): return FS[s] + 8 + 4 * c
    blocks = [(t, c) for c in range(3) for t in range(2)] + ([(0, 3)] if ffn else [])
    def acc(i): return ACC + 16 * i
    A(f"L_m_{nm}:")
    A.region("mf" if ffn else "mq")
    if ffn:
        A(f"""
        s_mul_i32 s74, s{sE}, 12288
        s_add_u32 s74, s74, {WBASE}
        v_add_u32 v{WAa}, s74, v{WAb}
        v_add_u32 v{WAb}, {WBASE + 6*4096}, v{WAb}
        """)
    else:
        A(f"""
        s_lshl_b32 s74, s{sE}, 12
        s_add_u32 s74, s74, {WBASE}
        v_add_u32 v{WAa}, s74, v{WAb}
        """)
        if optval("rf", "0") == "1":
            A(f"""
            s_lshl_b32 s74, s{sG}, 1
            s_add_u32 s74, s74, s{sE}
            s_lshl_b32 s74, s74, 8
            s_add_u32 s74, s74, s{sTBK}
            s_lshl_b32 s74, s74, 1
            s_add_u32 s74, s74, s{sP}
            s_lshl_b32 s74, s74, 3
            s_add_u32 s74, s74, {WS_F2R}
            """)
        else:
            A(f"""
            s_lshl_b32 s74, s{sG}, 1
            s_add_u32 s74, s74, s{sE}
            s_lshl_b32 s74, s74, 4
            s_add_u32 s74, s74, s{sTBK}
            s_lshl_b32 s74, s74, 1
            s_add_u32 s74, s74, s{sP}
            s_lshl_b32 s74, s74, 3
            s_add_u32 s74, s74, {WS_F2}
            """)
    A(f"v_lshl_add_u32 v{vFLG}, v3, 4, s74\nv_mov_b32 v{vFLG+1}, {C_H}")
    cbs = 4096 if ffn else 8192
    def reads(ks, s):
        o = [f"ds_read_b128 {vr(xf(s,0),4)}, v{XA0+ks}", f"ds_read_b128 {vr(xf(s,1),4)}, v{XA1+ks}"]
        w = []
        for c in range(ncb):
            a, off = (WAb, ks * 1024) if c == 3 else (WAa, c * cbs + ks * 1024)
            w.append([f"ds_read_b64_tr_b16 {vr(wf(s,c),2)}, v{a} offset:{off}",
                      f"ds_read_b64_tr_b16 {vr(wf(s,c)+2,2)}, v{a} offset:{off+256}"])
        return [o[0]] + w[0] + [o[1]] + [x for p in w[1:] for x in p]
    def mm(i, xr, wr):
        t, c = blocks[i]
        if (not ffn) and c == 2:
            return mfma(acc(i), xr(t), wr(c))
        return mfma(acc(i), wr(c), xr(t))
    def kstep(s, fill, first=0, per=3):
        k = 0
        for i in range(first, len(blocks)):
            A(mm(i, lambda t: xf(s, t), lambda c: wf(s, c)))
            for x in fill[k:k+per]:
                A(x)
            k += per
        for x in fill[k:]:
            A(x)
    stamp(A, 2)
    A("s_barrier")
    stamp(A, 3)
    for r in reads(0, 0):
        A(r)
    A(f".p2align 6\nL_m_{nm}_loop:")
    for ks in range(3):
        s = ks & 1
        A("s_waitcnt lgkmcnt(0)")
        fill = reads(ks + 1, 1 - s)
        if ks == 0:
            fill = fill + ["s_add_u32 s10, s10, 1", "s_cmp_eq_u32 s10, 3", f"s_cselect_b32 s12, {-2*XST}, s14", f"s_cselect_b32 s13, {-2*WST}, s15", "s_cselect_b32 s10, 0, s10"]
        if ks == 2:
            fill = fill + ["s_sub_u32 s11, s11, 1", "s_cmp_eq_u32 s11, 0"]
        kstep(s, fill)
    A("s_waitcnt lgkmcnt(0)")
    A(mm(0, lambda t: xf(1, t), lambda c: wf(1, c)))
    A(f"s_barrier\ns_cbranch_scc1 L_m_{nm}_last")
    upd = [f"v_add_u32 v{XA0}, s12, v{XA0}", f"v_add_u32 v{WAa}, s13, v{WAa}", f"v_add_u32 v{XA1}, s12, v{XA1}"]
    if ffn:
        upd.append(f"v_add_u32 v{WAb}, s13, v{WAb}")
    for x in upd:
        A(x)
    upd2 = [f"v_add_u32 v{b+k}, s12, v{b+k}" for k in range(1, 4) for b in (XA0, XA1)]
    kstep(1, reads(0, 0) + upd2, first=1)
    A(f"s_branch L_m_{nm}_loop\nL_m_{nm}_last:")
    fill = f"""
    s_lshl_b32 s74, s{sW4}, 8
    v_lshl_add_u32 v{XA0}, v2, 3, s74
    v_xor_b32 v{XA0+1}, 0x100, v{XA0}
    v_lshrrev_b32 v{XA0+2}, 1, v{XA0}
    v_lshrrev_b32 v{XA0+3}, 1, v{XA0+1}
    s_mul_i32 s74, s{sE}, {768 if ffn else 256}
    v_lshl_add_u32 v{XA1}, v2, 3, s74
    v_add_u32 v{XA0}, {T_XP}, v{XA0}
    v_add_u32 v{XA0+1}, {T_XP}, v{XA0+1}
    v_add_u32 v{XA0+2}, {T_RS}, v{XA0+2}
    v_add_u32 v{XA0+3}, {T_RS}, v{XA0+3}
    v_add_u32 v{XA1}, {T_WP}, v{XA1}
    """
    if ffn:
        fill += f"""
        v_lshlrev_b32 v{XA1+1}, 3, v2
        v_add_u32 v{XA1+1}, {T_WP + 6*256}, v{XA1+1}
        s_lshl_b32 s74, s{sW4}, 10
        s_add_u32 s74, s74, 32768
        v_add_u32 v{WAa}, s74, v3
        s_mul_i32 s74, s{sW4}, {VST}
        s_add_u32 s74, s74, {LDS_V + 32*VST}
        v_add_u32 v{WAb}, s74, v3
        """
    else:
        fill += f"""
        s_lshl_b32 s74, s{sW4}, 7
        v_lshl_add_u32 v{XA1+2}, v7, 4, s74
        v_xor_b32 v{XA1+3}, 0x80, v{XA1+2}
        v_add_u32 v{XA1+2}, {T_RS}, v{XA1+2}
        v_add_u32 v{XA1+3}, {T_RS}, v{XA1+3}
        s_lshl_b32 s74, s{sG}, 1
        s_add_u32 s74, s74, s{sE}
        s_lshl_b32 s74, s74, 17
        s_lshl_b32 s12, s{sT0}, 10
        s_add_u32 s12, s12, s74
        s_lshl_b32 s13, s{sT1}, 10
        s_add_u32 s13, s13, s74
        """
    fill = [l.strip() for l in fill.split("\n") if l.strip()]
    rd = [f"ds_read_b64 {vr(XPF,2)}, v{XA0}", f"ds_read_b64 {vr(XPF+4,2)}, v{XA0+1}"]
    for c in range(3):
        rd.append(f"ds_read_b64 {vr(WPF+4*c,2)}, v{XA1} offset:{c*(256 if ffn else 512)}")
    if ffn:
        rd.append(f"ds_read_b64 {vr(WPF+12,2)}, v{XA1+1}")
    nfr = len(rd)
    rd += [f"ds_read_b32 v{RS}, v{XA0+2}", f"ds_read_b32 v{RS+1}, v{XA0+3}"]
    if ffn:
        rd += [f"ds_read_b32 v{SD}, v{XA0+2} offset:512", f"ds_read_b32 v{SD+1}, v{XA0+3} offset:512"]
    else:
        for t in range(2):
            for gq in range(4):
                rd.append(f"ds_read_b128 {vr(RT+16*t+4*gq,4)}, v{XA1+2+t} offset:{gq*32}")
    nv = 14 if ffn else 17
    for x in fill[:5]:
        A(x)
    kstep(1, fill[5:nv] + rd + fill[nv:], first=1, per=6)
    A(f"s_waitcnt lgkmcnt({len(rd) - nfr})")
    stamp(A, 4)
    order = list(range(len(blocks)))
    if not ffn:
        order = [2, 3, 4, 5, 0, 1]
    PK = FS[0]
    for n, i in enumerate(order):
        A(mm(i, lambda t: XPF + 4*t, lambda c: WPF + 4*c))
        if n == 0:
            A("s_waitcnt lgkmcnt(0)")
    if not ffn:
        A(f"""
        v_mov_b32 v{XA1}, v{RS}
        v_mov_b32 v{XA1+1}, v{RS}
        v_mov_b32 v{XA1+2}, v{RS+1}
        v_mov_b32 v{XA1+3}, v{RS+1}
        v_mul_f32 v{RS}, {f32bits(LOG2E/4)}, v{XA1}
        v_mul_f32 v{RS+1}, {f32bits(LOG2E/4)}, v{XA1}
        v_mul_f32 v{RS+2}, {f32bits(LOG2E/4)}, v{XA1+2}
        v_mul_f32 v{RS+3}, {f32bits(LOG2E/4)}, v{XA1+2}
        v_bfe_u32 v{XA0}, v1, 4, 1
        v_lshlrev_b32 v{XA0}, 16, v{XA0}
        v_lshl_add_u32 v{XA0}, v7, 8, v{XA0}
        v_and_b32 v{XA0+1}, 15, v1
        v_lshl_add_u32 v{XA0}, v{XA0+1}, 4, v{XA0}
        """)
        for n, i in enumerate(order):
            t, c = blocks[i]
            a, pk = acc(i), PK + 8 * n
            for r in range(0, 16, 2):
                sc = (RS + 2*t, XA1 + 2*t, RT + 16*t + r)[c]
                A(f"v_pk_mul_f32 {vr(a+r,2)}, {vr(a+r,2)}, {vr(sc,2)}")
            for r in range(0, 16, 2):
                A(f"v_cvt_pk_bf16_f32 v{pk+r//2}, v{a+r}, v{a+r+1}")
            if c < 2:
                for hh in range(2):
                    A(f"s_add_u32 s74, s{12+t}, {c*(2<<20) + hh*65536}")
                    A(f"buffer_store_dwordx4 {vr(pk+4*hh,4)}, v3, s[28:31], s74 offen sc1")
            else:
                A(f"s_add_u32 s74, s{12+t}, {WS_V}")
                for m2 in range(2):
                    A(f"buffer_store_dwordx4 {vr(pk+4*m2,4)}, v{XA0}, s[28:31], s74 offen offset:{m2*512} sc1")
        stamp(A, 5)
        A("s_waitcnt vmcnt(0)")
        stamp(A, 10)
        A(f"""
        s_mov_b64 exec, {"0xffff" if optval("rf", "0") == "1" else "1"}
        buffer_store_dwordx2 v[{vTAG}:{vTAG+1}], v{vFLG}, s[28:31], 0 offen sc1
        s_mov_b64 exec, 1
        ds_add_u32 v{vFLG+1}, v19
        s_mov_b64 exec, -1
        s_branch L_a
        """)
    else:
        c1 = -2.0 * LOG2E * math.sqrt(2.0 / math.pi)
        c3 = c1 * 0.044715
        K1, K3, SP = XA0, XA1, FS[0]
        for t in range(2):
            A(f"""
            v_mul_f32 v{K1+2*t}, {f32bits(c1)}, v{RS+t}
            v_mul_f32 v{K3+2*t}, v{RS+t}, v{RS+t}
            v_mul_f32 v{K3+2*t}, v{K3+2*t}, v{RS+t}
            v_mul_f32 v{K3+2*t}, {f32bits(c3)}, v{K3+2*t}
            v_mov_b32 v{K1+2*t+1}, v{K1+2*t}
            v_mov_b32 v{K3+2*t+1}, v{K3+2*t}
            v_mov_b32 v{SP+2*t}, v{SD+t}
            v_mov_b32 v{SP+2*t+1}, v{SD+t}
            """)
        GB = [FS[0] + 4, FS[1]]
        p2 = lambda r: vr(r, 2)
        ops = []
        def add(kind, text, deps=()):
            ops.append((kind, text, [d for d in deps if d is not None])); return len(ops) - 1
        last_mul = {}
        for n, (t, c) in enumerate(blocks):
            a, pk, G = acc(n), HP + 8 * (n & 1), GB[n & 1]
            prev = last_mul.get(n - 2, {})
            pw = last_mul.get(("w", n - 2), [None, None])
            z, e, d_, r_, m_ = {}, {}, {}, {}, {}
            for r in range(0, 16, 2):
                z[r] = add("N", f"v_pk_mul_f32 {p2(G+r)}, {p2(a+r)}, {p2(a+r)}", [prev.get(r)])
            for r in range(0, 16, 2):
                z[r] = add("N", f"v_pk_fma_f32 {p2(G+r)}, {p2(G+r)}, {p2(K3+2*t)}, {p2(K1+2*t)}", [z[r]])
            for r in range(0, 16, 2):
                z[r] = add("N", f"v_pk_mul_f32 {p2(G+r)}, {p2(G+r)}, {p2(a+r)}", [z[r]])
            for r in range(16):
                e[r] = add("T", f"v_exp_f32 v{G+r}, v{G+r}", [z[r & ~1]])
            for r in range(0, 16, 2):
                d_[r] = add("H", f"v_pk_fma_f32 {p2(G+r)}, {p2(G+r)}, {p2(SP+2*t)}, {p2(SP+2*t)}", [e[r], e[r+1]])
            for r in range(16):
                r_[r] = add("T", f"v_rcp_f32 v{G+r}, v{G+r}", [d_[r & ~1]])
            cv_ = []
            for r in range(0, 16, 2):
                m_[r] = add("H", f"v_pk_mul_f32 {p2(a+r)}, {p2(a+r)}, {p2(G+r)}", [r_[r], r_[r+1]])
                cv_.append(add("H", f"v_cvt_pk_bf16_f32 v{pk+r//2}, v{a+r}, v{a+r+1}", [m_[r], pw[r // 8]]))
            last_mul[n] = m_
            w = []
            for hh in range(2):
                va, off = h_slot(2 * n + hh)
                w.append(add("H", f"ds_write_b128 v{(WAa, WAb)[va]}, {vr(pk+4*hh,4)} offset:{off}", cv_[4*hh:4*hh+4]))
            last_mul[("w", n)] = w
            if n == int(optval("sig", "2")):
                add("H", f"s_mov_b64 exec, 1\nds_add_u32 v{vFLG+1}, v19\ns_mov_b64 exec, -1", w)
        done, pos, out, lastT = {}, 0, [], False
        pend = list(range(len(ops)))
        def ready(i):
            return all(d in done and pos - done[d] >= 3 for d in ops[i][2])
        while pend:
            pick = None
            for kinds in ((("H", "N"), ("T",)) if lastT else (("T",), ("H", "N"))):
                for k in kinds:
                    c_ = [i for i in pend if ops[i][0] == k]
                    c_ = c_[:1] if k != "H" else c_[:24]
                    pick = next((i for i in c_ if ready(i)), None)
                    if pick is not None:
                        break
                if pick is not None:
                    break
            if pick is None:
                A("s_nop 0"); pos += 1; lastT = False
                continue
            A(ops[pick][1]); done[pick] = pos; pos += 1
            pend.remove(pick)
            nT = sum(1 for i in done if ops[i][0] == "T"); nN = len(done) - nT
            lastT = ops[pick][0] == "T" or (2 * (nN - 24) < 3 * nT - 2 and any(ops[i][0] != "T" and ready(i) for i in pend[:80]))
        stamp(A, 5)

def h_slot(i):
    return (0, i * 4096) if i < 8 else (1, (i - 8) * 4 * VST)

hXD, hWD, hRA, hGA, hGC, hEP = 224, 226, 227, 228, 229, 230
hWR, hXR, hGR, hGX, hBI, hT = 96, 128, 136, 152, 156, 160

def xstamp(A, lane):
    if asm.STAMPS:
        A(f"s_memtime s[80:81]\ns_waitcnt lgkmcnt(0)\nv_writelane_b32 v252, s80, {lane}")

def dma_code(A, tag, fill=()):
    A(f"""
    s_lshl_b32 s74, s{sC}, 7
    s_add_u32 s75, s74, 16384
    s_mul_i32 s76, s{sC}, s97
    s_cmp_lg_u32 s{sTYPE}, 0
    s_cbranch_scc1 L_dma_ffn{tag}
    """)
    fill = list(fill)
    for ffn in (False, True):
        if ffn:
            A(f"L_dma_ffn{tag}:")
        imms = [c * 64 for c in range(7)] if ffn else [0, 64, 1024, 1088, 2048, 2112]
        ops = [("x", a) for a in range(4)] + [("w", c) for c in range(len(imms))]
        ops = [ops[0], ops[4], ops[5], ops[1], ops[6], ops[7], ops[2], ops[8], ops[9], ops[3]] + ops[10:]
        per = (len(fill) + len(ops) - 1) // len(ops)
        for n, (k, j) in enumerate(ops):
            part = fill[n*per:(n+1)*per]
            gap = part[0] if part else "s_nop 0"
            if k == "x":
                A(f"s_add_u32 m0, s92, {j*1024}\n{gap}\nbuffer_load_dwordx4 v{hXD + (j & 1)}, s[32:35], s{74 + (j >> 1)} offen lds")
            else:
                A(f"s_add_u32 m0, s93, {j*4096 - imms[j]}\n{gap}\nbuffer_load_dwordx4 v{hWD}, s[36:39], s76 offen offset:{imms[j]} lds")
            for x in part[1:]:
                A(x)
        if not ffn:
            A(f"s_branch L_dma_adv{tag}")
    A(f"""
    L_dma_adv{tag}:
    s_add_u32 s{sC}, s{sC}, 1
    s_and_b32 s{sC}, s{sC}, 7
    s_add_u32 s95, s95, 1
    s_cmp_eq_u32 s95, 3
    s_cselect_b32 s95, 0, s95
    s_cselect_b32 s74, {-2*XST}, s98
    s_cselect_b32 s75, {-2*WST}, s99
    s_add_u32 s92, s92, s74
    s_add_u32 s93, s93, s75
    """)

def dma_sub(A):
    A("L_dma:")
    dma_code(A, "")
    A("s_setpc_b64 s[100:101]")

def h_all(A, f_setup):
    CALL = "s_call_b64 s[100:101], L_dma"
    if optval('prio', 'm') == 'h':
        A("s_setprio 3")
    A(f"""
    v_lshrrev_b32 v8, 3, v1
    s_lshl_b32 s74, s{sW4}, 5
    v_add_u32 v8, s74, v8
    v_lshlrev_b32 v8, 10, v8
    v_and_b32 v9, 7, v1
    v_lshrrev_b32 v10, 4, v1
    v_xor_b32 v9, v9, v10
    v_lshl_add_u32 v{hXD}, v9, 4, v8
    v_xor_b32 v9, 4, v9
    v_lshl_add_u32 v{hXD+1}, v9, 4, v8
    v_add_u32 v{hXD+1}, 0x2000, v{hXD+1}
    v_lshrrev_b32 v8, 2, v1
    s_lshl_b32 s74, s{sW4}, 4
    v_add_u32 v8, s74, v8
    v_and_b32 v9, 3, v1
    v_lshlrev_b32 v9, 4, v9
    s_mov_b32 s34, 0x20000
    s_mov_b32 s35, 0x00020000
    s_mov_b32 s39, 0x00020000
    s_lshl_b32 s75, s{sTBK}, 17
    s_lshl_b32 s92, s{sW4}, 12
    s_lshl_b32 s93, s{sW4}, 10
    s_add_u32 s93, s93, {WBASE}
    s_mov_b32 s95, 0
    s_mov_b32 s98, {XST}
    s_mov_b32 s99, {WST}
    s_lshl_b32 s96, s{sC}, 9
    s_lshl_b32 s94, s{sTYPE}, 3
    s_add_u32 s94, s94, s{sG}
    s_lshl_b32 s79, s{sG}, 2
    s_add_u32 s79, s79, s{sW4}
    s_lshl_b32 s79, s79, 12
    s_movk_i32 s76, 3072
    s_movk_i32 s74, 128
    s_cmp_lg_u32 s{sTYPE}, 0
    s_cselect_b32 s76, 3584, s76
    s_cselect_b32 s74, 448, s74
    s_cselect_b32 s42, s76, 0
    s_mul_i32 s74, s74, s{sG}
    s_lshl_b32 s97, s76, 6
    s_lshl_b32 s38, s76, 9
    s_sub_u32 s38, s38, s74
    v_mul_lo_u32 v{hWD}, v8, s76
    v_add_u32 v{hWD}, v{hWD}, v9
    s_cmp_lg_u32 s{sTYPE}, 0
    s_waitcnt lgkmcnt(0)
    s_cselect_b32 s36, s12, s6
    s_cselect_b32 s37, s13, s7
    s_add_u32 s36, s36, s74
    s_addc_u32 s37, s37, 0
    s_mov_b32 s28, s24
    s_mov_b32 s29, s25
    s_add_u32 s32, s4, s75
    s_addc_u32 s33, s5, 0
    buffer_load_dwordx2 v[{hEP}:{hEP+1}], v4, s[28:31], s3 offen sc1
    s_cmp_lg_u32 s{sTYPE}, 0
    s_cbranch_scc1 L_h_rows
    {CALL}
    s_branch L_h_su
    L_h_rows:
    buffer_load_dwordx4 {vr(hWR,4)}, v3, s[32:35], s79 offen
    buffer_load_dwordx4 {vr(hWR+4,4)}, v3, s[32:35], s79 offen offset:1024
    buffer_load_dwordx4 {vr(hWR+8,4)}, v3, s[32:35], s79 offen offset:2048
    buffer_load_dwordx4 {vr(hWR+12,4)}, v3, s[32:35], s79 offen offset:3072
    L_h_su:
    """)
    xstamp(A, 8)
    lanepart_tr(A, hRA, 8)
    A(f"""
    s_lshl_b32 s74, s{sW4}, 12
    s_add_u32 s75, s74, {WBASE}
    v_add_u32 v{hRA}, s75, v{hRA}
    s_lshl_b32 s75, s94, 1
    s_lshr_b32 s76, s{sTBK}, 3
    s_add_u32 s75, s75, s76
    s_lshl_b32 s75, s75, 14
    s_add_u32 s75, s75, s74
    s_add_u32 s75, s75, {WS_CG}
    v_lshl_add_u32 v{hGC}, v1, 3, s75
    s_lshl_b32 s74, s{sTBK}, 2
    s_add_u32 s74, s74, s{sW4}
    s_lshl_b32 s74, s74, 9
    s_add_u32 s74, s74, {WS_XG}
    v_lshl_add_u32 v{hGA}, v2, 4, s74
    v_mov_b32 v8, {CTL}
    v_lshl_add_u32 v8, v2, 2, v8
    v_mov_b32 v9, 4
    v_cmp_eq_u32 vcc, 8, v2
    s_mov_b32 s40, s14
    s_mov_b32 s41, s15
    v_cndmask_b32 v9, 0, v9, vcc
    ds_write_b32 v8, v9
    s_mov_b32 s43, 0x00020000
    s_mov_b32 s3, 0xffff0000
    s_lshr_b32 s79, s79, 6
    s_lshl_b32 s74, s{sTBK}, 11
    s_add_u32 s79, s79, s74
    s_add_u32 s79, s79, {WS_XG}
    """)
    f_setup(A)
    A.region("h")
    S0, Q0, S1, Q1, t0, t1, t2 = hT, hT + 1, hT + 2, hT + 3, hT + 4, hT + 5, hT + 6
    A(f"""
    s_cmp_eq_u32 s{sTYPE}, 0
    s_cbranch_scc1 L_h_nst
    v_bfe_u32 v{t2}, v1, 4, 1
    v_cmp_eq_u32 vcc, 1, v{t2}
    v_lshrrev_b32 v{t2}, 4, v1
    v_lshlrev_b32 v{t2}, 3, v{t2}
    {CALL if optval("c0", "early") == "su" else "s_nop 0"}
    s_waitcnt vmcnt({11 if optval("c0", "early") == "su" else 0})
    v_cndmask_b32 v{hT+9}, v{hEP}, v{hEP+1}, vcc
    v_add_u32 v{hT+9}, 1, v{hT+9}
    v_mov_b32 v{hT+11}, v{hT+9}
    """)
    xstamp(A, 9)
    if optval("c0", "early") == "early":
        A(CALL)
    for pair in range(2):
        for row, (s_, q_) in enumerate(((S0, Q0), (S1, Q1))):
            for r in range(4):
                x = hWR + 8 * pair + 4 * row + r
                A(f"v_lshlrev_b32 v{t0}, 16, v{x}\nv_and_b32 v{t1}, s3, v{x}")
                if r == 0:
                    A(f"v_add_f32 v{s_}, v{t0}, v{t1}\nv_mul_f32 v{q_}, v{t0}, v{t0}\nv_fmac_f32 v{q_}, v{t1}, v{t1}")
                else:
                    A(f"v_add_f32 v{s_}, v{s_}, v{t0}\nv_fmac_f32 v{q_}, v{t0}, v{t0}\nv_add_f32 v{s_}, v{s_}, v{t1}\nv_fmac_f32 v{q_}, v{t1}, v{t1}")
        z = hT + 8 + 2 * pair
        A(f"""
        s_nop 0
        v_permlane32_swap_b32 v{S0}, v{S1}
        v_permlane32_swap_b32 v{Q0}, v{Q1}
        s_nop 0
        v_add_f32 v{S0}, v{S0}, v{S1}
        v_add_f32 v{Q0}, v{Q0}, v{Q1}
        s_nop 1
        v_permlane16_swap_b32 v{S0}, v{Q0}
        s_nop 0
        v_add_f32 v{z}, v{S0}, v{Q0}
        """)
    A("s_nop 0")
    for sh in (8, 4, 2, 1):
        A(f"v_add_f32_dpp v{hT+8}, v{hT+8}, v{hT+8} row_ror:{sh} row_mask:0xf bank_mask:0xf")
        A(f"v_add_f32_dpp v{hT+10}, v{hT+10}, v{hT+10} row_ror:{sh} row_mask:0xf bank_mask:0xf\ns_nop 0")
    if optval("c0", "early") == "late":
        A(CALL)
    A(f"""
    s_mov_b32 exec_lo, 0x00010001
    s_mov_b32 exec_hi, 0x00010001
    buffer_store_dwordx2 v[{hT+8}:{hT+9}], v{t2}, s[28:31], s79 offen sc1
    buffer_store_dwordx2 v[{hT+10}:{hT+11}], v{t2}, s[28:31], s79 offen offset:32 sc1
    s_mov_b64 exec, -1
    {CALL}
    s_waitcnt vmcnt(13)
    s_branch L_h_st
    L_h_nst:
    {CALL}
    s_waitcnt vmcnt(10)
    L_h_st:
    s_mov_b64 exec, -1
    v_add_u32 v{hEP}, 1, v{hEP}
    v_add_u32 v{hEP+1}, 1, v{hEP+1}
    v_cmp_eq_u32 vcc, 1, v7
    v_readfirstlane_b32 s26, v{hEP}
    v_readfirstlane_b32 s27, v{hEP+1}
    v_mov_b64 v[236:237], v[{hEP}:{hEP+1}]
    v_cndmask_b32 v{hEP}, v{hEP}, v{hEP+1}, vcc
    """)
    nb = [0]
    def bar(n):
        A(f"s_waitcnt vmcnt({n})\ns_barrier")
        if nb[0] >= 1:
            xstamp(A, 8 - nb[0])
        nb[0] += 1
    stamp(A, 2)
    bar(13)
    stamp(A, 3)
    if optval("c2", "0") == "1":
        A(CALL)
    for half in range(2):
        for ks in range(4):
            o = half * 16384 + ks * 1024
            A(f"ds_read_b64_tr_b16 {vr(hWR+16*half+4*ks,2)}, v{hRA} offset:{o}\nds_read_b64_tr_b16 {vr(hWR+16*half+4*ks+2,2)}, v{hRA} offset:{o+256}")
        if half == 0:
            A("s_waitcnt lgkmcnt(4)")
    C0, C1 = hT, hT + 2
    def colsum(base, c):
        o = []
        for r in range(16):
            ta = t0 + 4 * (r & 1)
            if r == 0:
                o += [f"v_lshlrev_b32 v{c}, 16, v{base}", f"v_and_b32 v{c+1}, s3, v{base}"]
            else:
                o += [f"v_lshlrev_b32 v{ta}, 16, v{base+r}", f"v_and_b32 v{ta+1}, s3, v{base+r}", f"v_add_f32 v{c}, v{c}, v{ta}", f"v_add_f32 v{c+1}, v{c+1}, v{ta+1}"]
        return o + [f"v_add_f32 v{c}, v{c}, v{c+1}"]
    if optval("il", "0") == "1":
        dma_code(A, "a", ["s_waitcnt lgkmcnt(8)"] + colsum(hWR, C0))
        A("s_waitcnt lgkmcnt(0)")
        bar(10)
        dma_code(A, "b", colsum(hWR + 16, C1))
    else:
        if optval("c2", "0") != "1":
            A(CALL)
        A("s_waitcnt lgkmcnt(0)")
        for x in colsum(hWR, C0):
            A(x)
        bar(10)
        A(CALL)
        for x in colsum(hWR + 16, C1):
            A(x)
    A(f"""
    v_mov_b32 v{C0+1}, v{hEP}
    s_nop 0
    v_permlane32_swap_b32 v{C0}, v{C1}
    s_nop 0
    v_add_f32 v{C0}, v{C0}, v{C1}
    buffer_store_dwordx2 v[{C0}:{C0+1}], v{hGC}, s[28:31], s96 offen sc1
    """)
    def gather(lo=0, hi=9):
        for c in range(lo, min(hi, 8)):
            A(f"buffer_load_dwordx2 {vr(hGR+2*c,2)}, v{hGC}, s[28:31], 0 offen offset:{c*512} sc1")
        if hi == 9:
            A(f"buffer_load_dwordx4 {vr(hGX,4)}, v{hGA}, s[28:31], 0 offen sc1")
    BIAS = f"""
    s_mul_i32 s74, s{sG}, 448
    s_lshl_b32 s75, s{sW4}, 6
    s_add_u32 s74, s74, s75
    v_lshlrev_b32 v{t0}, 1, v2
    v_lshl_add_u32 v{t0}, v7, 8, v{t0}
    buffer_load_ushort v{hBI}, v{t0}, s[40:43], s74 offen
    """
    ga = optval("ga", "c")
    bar(11)
    A(CALL)
    bar(10)
    A(CALL)
    if ga == "a":
        gather(8, 9); A(BIAS)
        bar(12)
        A(CALL); gather(0, 4)
        bar(16)
        A(CALL); gather(4, 8)
        bar(18)
        bar(4)
    else:
        A(BIAS)
        bar(11)
        A(CALL)
        bar(10)
        A(CALL)
        n5 = {"b": 0, "c": 4, "d": 8}[ga]
        gather(0, n5)
        bar(10 + n5)
        gather(n5, 9)
        bar(9)
    A("s_waitcnt vmcnt(0)")
    A(f"""
    s_mov_b32 s79, 0x4000
    L_h_chk:
    v_xor_b32 v{hGX+1}, s26, v{hGX+1}
    v_xor_b32 v{hGX+3}, s27, v{hGX+3}
    v_or_b32 v{t0}, v{hGX+1}, v{hGX+3}
    """)
    for c in range(8):
        A(f"v_xor_b32 v{hGR+2*c+1}, v{hEP}, v{hGR+2*c+1}")
    for c in range(0, 8, 2):
        A(f"v_or3_b32 v{t0}, v{t0}, v{hGR+2*c+1}, v{hGR+2*c+3}")
    A(f"""
    v_cmp_ne_u32 vcc, 0, v{t0}
    s_sub_u32 s79, s79, 1
    s_cmp_eq_u32 s79, 0
    s_cbranch_scc1 L_h_got
    s_cbranch_vccz L_h_got
    """)
    gather()
    A("s_waitcnt vmcnt(0)\ns_branch L_h_chk\nL_h_got:")
    a, b, r_, h_, X0, A0 = hWR, hWR + 1, hWR + 2, hWR + 3, hWR + 4, hWR + 6
    c = hGR
    A(f"""
    s_mov_b32 s74, {f32bits(1.0/512)}
    v_mul_f32 v{a}, s74, v{hGX}
    v_mul_f32 v{b}, s74, v{hGX+2}
    v_add_f32 v{c}, v{c}, v{c+2}
    v_fma_f32 v{b}, -v{a}, v{a}, v{b}
    v_add_f32 v{c+4}, v{c+4}, v{c+6}
    v_max_f32 v{b}, 0, v{b}
    v_add_f32 v{c+8}, v{c+8}, v{c+10}
    v_cvt_pk_bf16_f32 v{b}, v{b}, v{b}
    v_add_f32 v{c+12}, v{c+12}, v{c+14}
    v_and_b32 v{b}, s3, v{b}
    v_add_f32 v{c}, v{c}, v{c+4}
    v_add_f32 v{b}, {f32bits(1e-5)}, v{b}
    v_add_f32 v{c+8}, v{c+8}, v{c+12}
    v_cvt_pk_bf16_f32 v{b}, v{b}, v{b}
    v_add_f32 v{c}, v{c}, v{c+8}
    v_and_b32 v{b}, s3, v{b}
    v_sqrt_f32 v{b}, v{b}
    v_mul_f32 v{a}, -0.5, v{a}
    v_and_b32 v{c+1}, s3, v{c}
    v_cvt_pk_bf16_f32 v{b}, v{b}, v{b}
    v_sub_f32 v{c}, v{c}, v{c+1}
    v_and_b32 v{b}, s3, v{b}
    v_and_b32 v{c+2}, s3, v{c}
    v_rcp_f32 v{r_}, v{b}
    v_mul_f32 v{h_}, 0.5, v{b}
    v_sub_f32 v{c}, v{c}, v{c+2}
    v_cvt_pk_bf16_f32 v{X0}, v{a}, v{a}
    v_cvt_pk_bf16_f32 v{X0+1}, v{a}, v{h_}
    v_cvt_pk_bf16_f32 v{c+4}, v{c+1}, v{c+2}
    v_lshlrev_b32 v{hBI}, 16, v{hBI}
    v_cvt_pk_bf16_f32 v{c+5}, v{c}, v{hBI}
    s_lshl_b32 s74, s{sW4}, 8
    v_lshl_add_u32 v{A0}, v2, 3, s74
    v_lshrrev_b32 v{A0+1}, 1, v{A0}
    v_add_u32 v{A0}, {T_XP}, v{A0}
    v_add_u32 v{A0+1}, {T_RS}, v{A0+1}
    v_lshl_add_u32 v{A0+2}, v7, 10, v{A0}
    ds_write_b64 v{A0}, {vr(X0,2)}
    ds_write_b32 v{A0+1}, v{r_}
    ds_write_b32 v{A0+1}, v{b} offset:512
    ds_write_b64 v{A0+2}, {vr(c+4,2)} offset:{T_WP - T_XP}
    """)
    A("s_waitcnt lgkmcnt(0)")
    bar(0)
```

```python
from asm import *
from mega1 import *
import asm

vL16, vK, vVa, vVb, vVg, vCNT, vQA, vCQ, vONE = 3, 244, 245, 246, 247, 248, 249, 18, 19
XB = 8
Q2 = [20, 24]
KB = [28, 32]
VA = 36
VB = [40, 44]
P = 48
T0, T1, T2, T3 = 56, 57, 58, 59
C = [64, 80]
O = [96, 112]
S = [128, 144]

def ex(s, i): return f"v_exp_f32 v{s+i}, v{s+i}"
def cv(s, i): return f"v_cvt_pk_bf16_f32 v{P+i}, v{s+2*i}, v{s+2*i+1}"

def rowmax(A, src, dst):
    A(f"v_max3_f32 v{dst}, v{src}, v{src+1}, v{src+2}")
    for i in range(3, 15, 2):
        A(f"v_max3_f32 v{dst}, v{dst}, v{src+i}, v{src+i+1}")
    A(f"""
    v_max_f32 v{dst}, v{dst}, v{src+15}
    v_mov_b32 v{T1}, v{dst}
    s_nop 1
    v_permlane32_swap_b32 v{dst}, v{T1}
    s_nop 1
    v_max_f32 v{dst}, v{dst}, v{T1}
    """)

QS = 1088
SRC = 16 * QS
def out_setup(A):
    A(f"""
    s_lshl_b32 s74, s{sTB2}, 3
    s_add_u32 s74, s74, s{sWAVE}
    s_lshl_b32 s74, s74, 13
    v_lshrrev_b32 v5, 3, v1
    v_lshlrev_b32 v5, 10, v5
    v_and_b32 v6, 7, v1
    s_lshl_b32 s75, s{sNB}, 7
    v_lshl_add_u32 v6, v6, 4, s75
    v_add3_u32 v5, v5, v6, s74
    s_mov_b32 s56, s18
    s_mov_b32 s57, s19
    s_mov_b32 s58, 1024
    s_mov_b32 s59, 0x00020000
    s_mov_b32 s60, s20
    s_mov_b32 s61, s21
    s_mov_b32 s62, 0x200000
    s_mov_b32 s63, 0x00020000
    """)

def kv_srds(A):
    A(f"""
    s_lshl_b32 s74, s{sHEAD}, 16
    s_add_u32 s75, s74, {WS_K}
    s_add_u32 s84, s24, s75
    s_addc_u32 s85, s25, 0
    s_mov_b32 s86, 0x10000
    s_mov_b32 s87, 0x00020000
    s_add_u32 s75, s74, {WS_V}
    s_add_u32 s88, s24, s75
    s_addc_u32 s89, s25, 0
    s_mov_b32 s90, 0x10000
    s_mov_b32 s91, 0x00020000
    """)

XB_LOADS = [f"buffer_load_dwordx4 v[{XB}:{XB+3}], v5, s[52:55], 0 offen",
            f"buffer_load_dwordx4 v[{XB+4}:{XB+7}], v6, s[56:59], 0 offen"]

def a_setup(A):
    A(f"""
    v_and_b32 v{vVg}, 15, v1
    v_lshlrev_b32 v{vVg}, 4, v{vVg}
    v_lshl_add_u32 v{vVg}, v7, 8, v{vVg}
    v_and_b32 v{T0}, 16, v1
    v_cmp_eq_u32 vcc, 0, v{T0}
    v_and_b32 v{T1}, 11, v1
    v_cmp_ne_u32 s[74:75], 0, v{T1}
    v_add_u32 v{vVa}, {LDS_V}, v{vVg}
    v_add_u32 v{vVb}, {LDS_V+512}, v{vVg}
    v_mov_b32 v{T0}, {LDS_V+1024}
    v_mov_b32 v{T1}, {LDS_V+1040}
    v_cndmask_b32 v{T0}, v{T0}, v{T1}, s[74:75]
    v_cndmask_b32 v{vVa}, v{T0}, v{vVa}, vcc
    v_cndmask_b32 v{vVb}, v{T0}, v{vVb}, vcc
    v_mov_b32 v{vK}, v{vL16}
    v_mov_b32 v{vCNT}, {C_KV}
    s_lshl_b32 s74, s{sW4}, 11
    s_add_u32 s74, s74, {QA}
    v_add_u32 v{vQA}, s74, v{vL16}
    s_lshl_b32 s74, s{sW4}, 2
    s_add_u32 s74, s74, {C_Q}
    v_mov_b32 v{vCQ}, s74
    v_mov_b32 v{vONE}, 1
    """)
    out_setup(A)

def spread(st):
    out = [None] * 14
    for i, x in enumerate(st):
        out[i * 14 // len(st)] = x
    return out

def gen_a(A, spi=8):
    A("L_a:")
    A.region("a")
    for i in range(0, 32, 2):
        A(f"v_mov_b64 {vr(O[0]+i,2)}, 0")
    for i in range(0, 4, 2):
        A(f"v_mov_b64 {vr(P+4+i,2)}, 0\nv_mov_b64 {vr(VB[1]+i,2)}, 0")
    A(f"""
    L_a_wait0:
    ds_read_b32 v{T3}, v{vCNT}
    s_waitcnt lgkmcnt(0)
    v_readfirstlane_b32 s74, v{T3}
    s_cmp_lg_u32 s74, 4
    s_cbranch_scc1 L_a_wait0
    """)
    stamp(A, 6)
    A(f"""
    ds_read_b128 {vr(KB[0],4)}, v{vK}
    ds_read_b128 {vr(Q2[0],4)}, v{vQA}
    ds_read_b128 {vr(Q2[1],4)}, v{vQA} offset:1024
    ds_read_b128 {vr(KB[1],4)}, v{vK} offset:1024
    ds_read_b128 {vr(VA,4)}, v{vVa}
    ds_read_b128 {vr(VB[0],4)}, v{vVb}
    s_waitcnt lgkmcnt(3)
    {mfma(S[0], KB[0], Q2[0], "0")}
    {mfma(S[1], KB[0], Q2[1], "0")}
    ds_write_b32 v{vCQ}, v{vONE}
    s_nop 10
    """)
    for q in range(2):
        rowmax(A, S[q], T0)
        A(f"v_sub_f32 v{C[q]}, 0, v{T0}\nv_sub_f32 v{C[q]+1}, 0, v{T0}")
        for i in range(2, 16, 2):
            A(f"v_mov_b64 {vr(C[q]+i,2)}, {vr(C[q],2)}")
        if q == 0:
            A(f"s_nop 1\n{mfma(S[0], KB[0], Q2[0], C[0])}")
    A(f"s_mov_b32 s11, {64 // spi}\ns_waitcnt lgkmcnt(0)")
    stamp(A, 7)
    def body(tag, extra):
        extra = list(extra)
        for t in range(spi):
            for h in range(2):
                cur, nxt = S[h], S[1 - h]
                kf = KB[t & 1] if h == 0 else KB[(t + 1) & 1]
                vb = VB[(t + 1) & 1] if h == 0 else VB[t & 1]
                m1 = m2 = m3 = pre3 = ""
                if h == 0:
                    m2 = "s_waitcnt lgkmcnt(0)"
                    m3 = f"ds_read_b128 {vr(KB[t & 1],4)}, v{vK} offset:{(t+2)*1024}"
                    if t == 6:
                        pre3 = f"v_readfirstlane_b32 s74, v{T3}"
                        m3 = f"s_cmp_lg_u32 s74, 4\ns_cbranch_scc1 L_a_spin{tag}\nL_a_spun{tag}:\n" + m3
                else:
                    if t == 5:
                        m1 = f"ds_read_b32 v{T3}, v{vCNT} offset:4"
                    m2 = f"ds_read_b128 {vr(VB[(t+1) & 1],4)}, v{vVb} offset:{(t+1)*VST}"
                    m3 = f"ds_read_b128 {vr(VA,4)}, v{vVa} offset:{(t+1)*VST}"
                    if t == spi - 1:
                        m1 = "s_sub_u32 s11, s11, 1"
                if extra and not m1:
                    m1 = extra.pop(0) or ""
                A(f"""
                {mfma(nxt, kf, Q2[1-h], C[1-h])}
                {m1}
                {ex(cur,0)}
                {ex(cur,1)}
                {ex(cur,2)}
                {ex(cur,3)}
                {ex(cur,4)}
                {ex(cur,5)}
                {cv(cur,0)}
                {mfma(O[1-h], vb, P+4)}
                {m2}
                {cv(cur,1)}
                {ex(cur,6)}
                {ex(cur,7)}
                {cv(cur,2)}
                {cv(cur,3)}
                {ex(cur,8)}
                {pre3}
                {ex(cur,9)}
                {ex(cur,10)}
                {mfma(O[h], VA, P)}
                {m3}
                {ex(cur,11)}
                {cv(cur,4)}
                {ex(cur,12)}
                {cv(cur,5)}
                {ex(cur,13)}
                {ex(cur,14)}
                {ex(cur,15)}
                {cv(cur,6)}
                {cv(cur,7)}
                """)
        assert not extra
        A(f"""
        v_add_u32 v{vK}, {spi*1024}, v{vK}
        v_add_u32 v{vVa}, {spi*VST}, v{vVa}
        v_add_u32 v{vVb}, {spi*VST}, v{vVb}
        v_add_u32 v{vCNT}, 4, v{vCNT}
        """)
        if asm.STAMPS:
            A("s_memtime s[80:81]\ns_waitcnt lgkmcnt(0)\ns_mov_b32 m0, s11\ns_nop 0\nv_writelane_b32 v252, s80, m0")
    A(".p2align 6\nL_a_loop:")
    body("", [])
    A(f"""
    s_cmp_lg_u32 s11, 0
    s_cbranch_scc1 L_a_loop
    {mfma(O[1], VB[(spi-1) & 1], P+4)}
    """)
    stamp(A, 8)
    for x in XB_LOADS:
        A(x)
    A(f"s_nop 1\nv_add_f32 v{T0}, abs(v{O[0]}), abs(v{O[0]+1})")
    for i in range(2, 9):
        A(f"v_add_f32 v{T0}, v{T0}, abs(v{O[0]+i})")
    for i in range(0, 9):
        A(f"v_add_f32 v{T0}, v{T0}, abs(v{O[1]+i})")
    A(f"""
    v_mov_b32 v{T1}, 0x7f000000
    v_cmp_lt_f32 vcc, v{T0}, v{T1}
    s_nop 4
    s_cmp_eq_u64 vcc, -1
    s_cbranch_scc0 L_fallback
    L_a_fin:
    v_rcp_f32 v{T0}, v{O[0]+8}
    v_rcp_f32 v{T1}, v{O[1]+8}
    """)
    for q in range(2):
        for i in range(8):
            A(f"v_mul_f32 v{O[q]+i}, v{O[q]+i}, v{(T0,T1)[q]}")
        for i in range(4):
            A(f"v_cvt_pk_bf16_f32 v{P+4*q+i}, v{O[q]+2*i}, v{O[q]+2*i+1}")
        for i in range(4):
            A(f"v_min_u32 v{P+4*q+i}, -2, v{P+4*q+i}")
        A(f"buffer_store_dwordx4 {vr(P+4*q,4)}, v{vL16}, s[28:31], s{8+q} offen sc1")
    stamp(A, 9)
    A(f"""
    s_mov_b64 exec, 1
    ds_add_u32 v{vFLG+1}, v{vONE} offset:{C_D - C_H}
    s_mov_b64 exec, -1
    s_waitcnt vmcnt(2)
    s_branch L_final
    """)
    for tag in ("",):
        A(f"""
        L_a_spin{tag}:
        ds_read_b32 v{T3}, v{vCNT} offset:4
        s_waitcnt lgkmcnt(0)
        v_readfirstlane_b32 s74, v{T3}
        s_cmp_lg_u32 s74, 4
        s_cbranch_scc1 L_a_spin{tag}
        s_branch L_a_spun{tag}
        """)

FACC, HB, WF, FB, WO = 32, 96, 120, 96, 160
fSENT, fTAG, fFLG, fCQ, fHK, fP3, fPR, fPROBE, fCD, fRED, fCH = 232, 236, 238, 239, 240, 242, 243, 244, 245, 246, 247

def poll(A, name, vaddr, sleep=4):
    A(f"""
    s_mov_b32 s79, 0x8000
    L_{name}:
    buffer_load_dwordx2 v[24:25], v{vaddr}, s[28:31], 0 offen sc1
    s_sub_u32 s79, s79, 1
    s_waitcnt vmcnt(0)
    v_cmp_ne_u64 vcc, s[26:27], v[24:25]
    s_cmp_eq_u32 s79, 0
    s_cbranch_scc1 L_{name}_done
    s_cbranch_vccz L_{name}_done
    s_sleep {sleep}
    s_branch L_{name}
    L_{name}_done:
    """)

def f_setup(A):
    kv_srds(A)
    out_setup(A)
    f = sW4
    A(f"""
    s_mov_b32 s52, s4
    s_mov_b32 s53, s5
    s_mov_b32 s54, 0x200000
    s_mov_b32 s55, 0x00020000
    s_lshl_b32 s74, s{sNB}, 7
    s_add_u32 s44, s16, s74
    s_addc_u32 s45, s17, 0
    s_sub_u32 s46, {1792*1024}, s74
    s_mov_b32 s47, 0x00020000
    s_add_u32 s48, s8, s74
    s_addc_u32 s49, s9, 0
    s_sub_u32 s50, {512*1024}, s74
    s_mov_b32 s51, 0x00020000
    v_mul_u32_u24 v16, {VST}, v1
    v_add_u32 v16, {LDS_V+1024}, v16
    v_mov_b32 v20, 0x3f803f80
    v_mov_b32 v21, v20
    v_mov_b32 v22, v20
    v_mov_b32 v23, v20
    v_mov_b32 v17, 1
    v_mov_b32 v19, {C_KV}
    """)
    if optval("rf", "1") == "1":
        A(f"s_lshl_b32 s74, s{sHEAD}, 3\ns_add_u32 s74, s74, s{sQB}\ns_lshl_b32 s74, s74, 8\ns_add_u32 s74, s74, {WS_F2R}")
    else:
        A(f"s_lshr_b32 s74, s{sHEAD}, 1\ns_lshl_b32 s74, s74, 8\ns_add_u32 s74, s74, {WS_F2}")
    A(f"""
    v_lshl_add_u32 v18, v2, 3, s74
    v_add_u32 v31, {ACT_TB}, v3
    v_lshrrev_b32 v26, 3, v1
    v_bfe_u32 v27, v1, 4, 1
    v_lshlrev_b32 v27, 2, v27
    v_and_b32 v28, 7, v1
    v_xor_b32 v27, v27, v28
    v_lshlrev_b32 v26, 10, v26
    v_lshl_add_u32 v26, v27, 4, v26
    v_add_u32 v27, 0x2000, v26
    v_bfe_u32 v28, v1, 2, 2
    v_lshl_add_u32 v28, v7, 2, v28
    v_lshlrev_b32 v28, 7, v28
    v_bfe_u32 v29, v1, 3, 1
    v_lshl_add_u32 v28, v29, 6, v28
    v_bfe_u32 v29, v1, 4, 1
    v_lshl_add_u32 v28, v29, 5, v28
    v_and_b32 v29, 3, v1
    v_lshl_add_u32 v28, v29, 3, v28
    v_xor_b32 v29, 64, v28
    s_lshl_b32 s77, s{f}, 11
    s_add_u32 s77, s77, {QA}
    v_add_u32 v28, s77, v28
    v_add_u32 v29, s77, v29
    s_mul_i32 s12, s{f}, {28*16384}
    s_lshl_b32 s13, s{f}, 17
    s_mul_i32 s14, s{sTB2}, {2*ACT_TB}
    s_add_u32 s14, s14, {WS_ACT}
    s_lshl_b32 s74, s{f}, 13
    s_add_u32 s15, s14, s74
    s_mul_i32 s74, s{f}, {28*1024}
    s_add_u32 s14, s14, s74
    s_add_u32 s14, s14, {32*1024}
    s_lshl_b32 s10, s{f}, 10
    s_mul_i32 s11, s{f}, {VST}
    s_add_u32 s11, s11, {LDS_V}
    s_lshl_b32 s74, s{sQB}, 2
    s_add_u32 s74, s74, s{f}
    s_lshl_b32 s74, s74, 11
    s_lshl_b32 s75, s{sHEAD}, 16
    s_add_u32 s78, s74, s75
    """)
    A(f"""
    v_mov_b64 {vr(fSENT,2)}, -1
    v_mov_b64 {vr(fSENT+2,2)}, -1
    s_lshl_b32 s74, s{sQB}, 2
    s_add_u32 s74, s74, s{f}
    s_mul_i32 s6, s74, {2*ACT_TB}
    s_lshl_b32 s76, s{sHEAD}, 10
    s_add_u32 s6, s6, s76
    s_add_u32 s6, s6, {WS_ACT}
    s_lshl_b32 s74, s74, 5
    s_add_u32 s74, s74, s{sHEAD}
    s_lshl_b32 s74, s74, 3
    s_add_u32 s74, s74, {WS_FR}
    v_mov_b32 v{fFLG}, s74
    s_lshl_b32 s75, s{sTBK}, 1
    s_lshr_b32 s76, s{f}, 1
    s_add_u32 s75, s75, s76
    s_lshl_b32 s75, s75, 3
    s_add_u32 s75, s75, s{sG}
    s_lshl_b32 s75, s75, 1
    s_and_b32 s76, s{f}, 1
    s_add_u32 s75, s75, s76
    s_lshl_b32 s75, s75, 3
    s_add_u32 s75, s75, {WS_F3}
    s_cmp_eq_u32 s{sTYPE}, 0
    s_cselect_b32 s74, s74, s75
    v_writelane_b32 v{fFLG}, s74, 1
    s_lshl_b32 s74, s{f}, 2
    s_add_u32 s74, s74, {C_Q}
    v_mov_b32 v{fCQ}, s74
    s_add_u32 s74, s10, 32768
    v_add_u32 v{fHK}, s74, v3
    s_add_u32 s74, s11, {32*VST}
    v_add_u32 v{fHK+1}, s74, v3
    s_lshl_b32 s74, s{sTB2}, 7
    s_lshl_b32 s75, s{f}, 5
    s_add_u32 s74, s74, s75
    s_add_u32 s74, s74, {WS_F3}
    v_and_b32 v24, 3, v1
    v_lshl_add_u32 v{fP3}, v24, 3, s74
    s_lshl_b32 s74, s{sTB2}, 8
    s_lshl_b32 s75, s{f}, 6
    s_add_u32 s74, s74, s75
    s_add_u32 s74, s74, {WS_FR}
    v_and_b32 v24, 7, v1
    v_lshl_add_u32 v{fPR}, v24, 3, s74
    v_lshlrev_b32 v24, 10, v24
    v_bfe_u32 v25, v1, 3, 1
    v_mul_u32_u24 v25, {ACT_TB}, v25
    v_add_u32 v{fPROBE}, v24, v25
    v_mov_b32 v{fCD}, {C_D}
    v_mov_b32 v{fCH}, {C_H}
    s_mul_i32 s74, s{f}, {SRC}
    v_add_u32 v{fRED}, s74, v3
    """)
    for i in range(0, 64, 2):
        A(f"v_mov_b64 {vr(FACC+i,2)}, 0")

def gen_f(A):
    Q = VmQ(A)
    f = sW4
    A("L_f:")
    A.region("f")
    stamp(A, 4)
    A(f"ds_write_b128 v16, v[20:23]\nds_write_b128 v16, {vr(FACC,4)} offset:16")
    def wdma_half(step, srd, so, tag, half, inc=16384):
        sl = (step + 1) % 3
        A(f"s_add_u32 m0, s77, {sl*8192 + half*1024}\ns_nop 0")
        Q.issue(f"buffer_load_dwordx4 v{26+half}, s[{srd}:{srd+3}], s{so} offen lds", tag)
        if half:
            A(f"s_add_u32 s{so}, s{so}, {inc}")
    def wdma(step, srd, so, tag, inc=16384):
        wdma_half(step, srd, so, tag, 0, inc); wdma_half(step, srd, so, tag, 1, inc)
    def trread(step, dst, cb):
        sl = (step + 1) % 3
        A(f"ds_read_b64_tr_b16 {vr(dst,2)}, v{28+cb} offset:{sl*8192}")
        A(f"ds_read_b64_tr_b16 {vr(dst+2,2)}, v{28+cb} offset:{sl*8192+1024}")
    wdma(-9, 48, 13, "o0"); wdma(-8, 48, 13, "o1")
    A(f"""
    s_cmp_eq_u32 s{f}, 0
    s_cselect_b32 s75, 4, 5
    L_f_hw:
    ds_read_b32 v24, v{fCH}
    s_waitcnt lgkmcnt(0)
    v_readfirstlane_b32 s74, v24
    s_cmp_eq_u32 s74, s75
    s_cbranch_scc1 L_f_hw_done
    s_sleep 1
    s_branch L_f_hw
    L_f_hw_done:
    {'s_setprio 3' if '1' in optval('fp', '') else 's_nop 0'}
    s_cmp_lg_u32 s{f}, 0
    s_cbranch_scc1 L_f_go
    """)
    if optval("pp", "0") == "0":
        poll(A, "f_p2", 18, int(optval("ps", "4")))
    else:
        R = [HB, HB + 2, HB + 4]
        ld = lambda r: f"buffer_load_dwordx2 {vr(r,2)}, v18, s[28:31], 0 offen sc1"
        A(f"s_mov_b32 s79, 0x8000\n{ld(R[0])}\ns_sleep 4\n{ld(R[1])}\ns_sleep 4\n{ld(R[2])}\nL_f_pp:")
        for r in R:
            A(f"s_waitcnt vmcnt(2)\nv_cmp_ne_u64 vcc, s[26:27], {vr(r,2)}\ns_cbranch_vccz L_f_pp_done\n{ld(r)}")
        A("s_sub_u32 s79, s79, 1\ns_cmp_lg_u32 s79, 0\ns_cbranch_scc1 L_f_pp\nL_f_pp_done:")
    A(f"""
    s_mov_b64 exec, 1
    ds_add_u32 v{fCH}, v17
    s_mov_b64 exec, -1
    L_f_go:
    """)
    stamp(A, 5)
    def kv_dma(i):
        A(f"s_mov_b32 m0, s10\ns_add_u32 s74, s11, {i*4*VST}")
        Q.issue("buffer_load_dwordx4 v3, s[84:87], s10 offen sc1 lds", i // 2)
        A("s_mov_b32 m0, s74\ns_nop 0")
        Q.issue("buffer_load_dwordx4 v3, s[88:91], s10 offen sc1 lds", i // 2)
        A("s_add_u32 s10, s10, 4096")
    def chunk_done(c):
        Q.wait(c)
        A(f"s_mov_b64 exec, 1\nds_add_u32 v19, v17 offset:{4*c}\ns_mov_b64 exec, -1")
    A("s_mov_b32 m0, s77\ns_nop 0")
    Q.issue("buffer_load_dwordx4 v3, s[28:31], s78 offen sc1 lds", 0)
    Q.issue("buffer_load_dwordx4 v3, s[28:31], s78 offen offset:1024 sc1 lds", 0)
    n0 = int(optval("n0", "6"))
    for i in range(n0):
        kv_dma(i)
    chunk_done(0)
    stamp(A, 6)
    for i in range(n0, 8):
        kv_dma(i)
    for c in range(1, 4):
        chunk_done(c)
    Q.issue(f"buffer_store_dwordx4 {vr(fSENT,4)}, v3, s[28:31], s6 offen sc1", 7)
    Q.issue(f"buffer_store_dwordx4 {vr(fSENT,4)}, v31, s[28:31], s6 offen sc1", 7)
    A(f"""
    L_f_qw:
    ds_read_b32 v24, v{fCQ}
    s_waitcnt lgkmcnt(0)
    v_readfirstlane_b32 s74, v24
    s_cmp_eq_u32 s74, 1
    s_cbranch_scc1 L_f_qw_done
    s_sleep 2
    s_branch L_f_qw
    L_f_qw_done:
    """)
    for i in range(14):
        va, off = h_slot(i)
        A(f"ds_read_b128 {vr(HB+4*i,4)}, v{fHK+va} offset:{off}")
    A("s_waitcnt lgkmcnt(0)")
    for i in range(8, 16):
        kv_dma(i)
    A(f"""
    s_cmp_eq_u32 s{sTYPE}, 0
    s_cbranch_scc1 L_f_noh
    s_lshl_b32 s74, s{sTBK}, 2
    s_add_u32 s74, s74, s{f}
    s_xor_b32 s75, s74, 1
    s_mul_i32 s76, s{sG}, {7*2048}
    s_add_u32 s76, s76, {WS_ACT + 32*1024}
    s_mul_i32 s92, s74, {ACT_TB}
    s_add_u32 s92, s92, s76
    s_mul_i32 s93, s75, {ACT_TB}
    s_add_u32 s93, s93, s76
    s_add_u32 s94, s92, {6*2048}
    s_and_b32 s75, s{f}, 1
    s_mul_i32 s76, s75, 6144
    s_add_u32 s92, s92, s76
    s_add_u32 s93, s93, s76
    s_add_u32 s95, s92, 4096
    s_add_u32 s96, s93, 4096
    """)
    for n, (t, c) in enumerate([(t, c) for c in range(3) for t in range(2)] + [(0, 3)]):
        so, im = (94, 0) if c == 3 else ((92 + t, c * 2048) if c < 2 else (95 + t, 0))
        for hh in range(2):
            A(f"buffer_store_dwordx4 {vr(HB+8*n+4*hh,4)}, v3, s[28:31], s{so} offen offset:{im+hh*1024} sc1")
    A(f"""
    L_f_noh:
    s_mov_b32 s40, s22
    s_mov_b32 s41, s23
    s_mov_b32 s42, 256
    s_waitcnt vmcnt(0)
    s_mov_b64 exec, 3
    buffer_store_dwordx2 {vr(fTAG,2)}, v{fFLG}, s[28:31], 0 offen sc1
    s_mov_b64 exec, 1
    ds_add_u32 v19, v17 offset:16
    ds_add_u32 v19, v17 offset:20
    ds_add_u32 v19, v17 offset:24
    ds_add_u32 v19, v17 offset:28
    s_cmp_lg_u32 s{f}, 0
    s_cbranch_scc1 L_f_noat
    buffer_atomic_add v17, v4, s[40:43], 0 offen sc1
    L_f_noat:
    s_mov_b64 exec, -1
    """)
    stamp(A, 7)
    Q.q = ["st"]
    wdma(-7, 48, 13, "o2")
    for k in range(8):
        Q.wait(f"o{k}")
        trread(k - 9, WO + 8 * k, 0); trread(k - 9, WO + 8 * k + 4, 1)
        A("s_waitcnt lgkmcnt(0)")
        if k + 3 < 8:
            wdma(k - 6, 48, 13, f"o{k+3}")
        elif k >= 6:
            wdma(k - 6, 44, 12, "w")
    wdma(2, 44, 12, "w")
    poll(A, "f_p3", fP3, 8)
    A("s_setprio 0")
    Q.q = []
    def hload(step, t, tag):
        b = HB + 8 * (step % 3) + 4 * t
        Q.issue(f"buffer_load_dwordx4 {vr(b,4)}, v{(3,31)[t]}, s[28:31], s14 offen sc1", tag)
        if t == 1:
            A("s_add_u32 s14, s14, 1024")
    for s in range(3):
        hload(s, 0, s); hload(s, 1, s)
    Q.drain()
    stamp(A, 8)
    def fstep(s, nxt):
        h = HB + 8 * (s % 3)
        for n, (t, cb) in enumerate(((0, 0), (0, 1), (1, 0), (1, 1))):
            if n < 3 or not nxt:
                trread(s, WF + 4 * cb, cb)
                A("s_waitcnt lgkmcnt(0)")
            else:
                wdma(s + 3, 44, 12, s + 3)
            A(mfma(FACC + 32 * cb + 16 * t, WF + 4 * cb, h + 4 * t))
            if nxt and n in (1, 3):
                hload(s + 3, t, s + 3)
    A("s_mov_b32 s79, 8\nL_f_loop:")
    for s in range(3):
        A("s_waitcnt vmcnt(8)")
        fstep(s, True)
    A("s_sub_u32 s79, s79, 1\ns_cmp_lg_u32 s79, 0\ns_cbranch_scc1 L_f_loop")
    Q.q = [24]*4 + [25]*4 + [26]*4
    for s in range(24, 28):
        Q.wait(s)
        fstep(s, s == 24)
    for x in XB_LOADS:
        A(x)
    if "2" in optval("fp", ""):
        A("s_setprio 3")
    poll(A, "f_pr", fPR, 8)
    A(f"""
    s_or_b32 s74, s2, s{f}
    s_cmp_lg_u32 s74, 0
    s_cbranch_scc1 L_f_noep
    s_mov_b32 s79, 0x8000
    L_f_ep:
    buffer_load_dword v24, v4, s[40:43], 0 offen sc1
    s_sub_u32 s79, s79, 1
    s_waitcnt vmcnt(0)
    v_readfirstlane_b32 s74, v24
    s_cmp_eq_u32 s79, 0
    s_cbranch_scc1 L_f_ep_done
    s_cmp_lg_u32 s74, 256
    s_cbranch_scc1 L_f_ep
    L_f_ep_done:
    s_mov_b32 s74, {WS_CTL}
    s_mov_b64 exec, 1
    buffer_store_dwordx2 {vr(fTAG,2)}, v4, s[28:31], s74 offen sc1
    s_mov_b64 exec, -1
    L_f_noep:
    """)
    stamp(A, 9)
    A(f"""
    s_add_u32 s14, s15, 4096
    s_mov_b32 s79, 0x10000
    s_mov_b32 s78, 0
    """)
    stamp(A, 10)
    A(f"""
    s_mov_b32 s77, 0
    s_mov_b32 s11, 0
    L_f_probe:
    s_sub_u32 s79, s79, 1
    s_cmp_eq_u32 s79, 0
    s_cselect_b32 s76, 0, -1
    s_cselect_b32 s79, 1, s79
    """)
    if optval("td", "0") == "1":
        A(f"""
        s_mov_b32 s75, s78
        s_cmp_eq_u32 s11, 4
        s_cbranch_scc1 L_f_load
        ds_read_b32 v24, v{fCD}
        """)
    A(f"""
    buffer_load_dword v25, v{fPROBE}, s[28:31], s15 offen offset:1020 sc1
    s_waitcnt vmcnt(0) lgkmcnt(0)
    v_readfirstlane_b32 s11, v24
    v_cmp_eq_u32 vcc, -1, v25
    s_and_b32 s74, vcc_lo, s76
    s_mov_b32 s75, s78
    s_and_b32 s10, s74, 0x0f0f
    s_cselect_b32 s10, 1, 0
    s_or_b32 s75, s75, s10
    s_and_b32 s10, s74, 0xf0f0
    s_cselect_b32 s10, 2, 0
    s_or_b32 s75, s75, s10
    s_cmp_lg_u32 s75, 3
    s_cbranch_scc1 L_f_load
    s_sleep {optval("ts", "2")}
    s_branch L_f_probe
    L_f_load:
    """)
    for g in range(2):
        A(f"s_bitcmp1_b32 s75, {g}\ns_cbranch_scc1 L_f_nl{g}")
        for k in range(4*g, 4*g + 4):
            so, im = (15, k * 1024) if k < 4 else (14, (k - 4) * 1024)
            A(f"""
            buffer_load_dwordx4 {vr(FB+8*k,4)}, v3, s[28:31], s{so} offen offset:{im} sc1
            buffer_load_dwordx4 {vr(FB+8*k+4,4)}, v31, s[28:31], s{so} offen offset:{im} sc1
            """)
        A(f"L_f_nl{g}:")
    for g in range(2):
        b = FB + 32 * g
        A(f"s_bitcmp1_b32 s75, {g}\ns_cbranch_scc1 L_f_nc{g}")
        if g == 0:
            A("s_bitcmp1_b32 s75, 1\ns_cbranch_scc1 L_f_w0\ns_waitcnt vmcnt(8)\ns_branch L_f_w1\nL_f_w0:\ns_waitcnt vmcnt(0)\nL_f_w1:")
        else:
            A("s_waitcnt vmcnt(0)")
        A(f"v_max3_u32 v17, v{b}, v{b+1}, v{b+2}\nv_max3_u32 v18, v{b+3}, v{b+4}, v{b+5}")
        for r in range(6, 30, 4):
            A(f"v_max3_u32 v17, v17, v{b+r}, v{b+r+1}\nv_max3_u32 v18, v18, v{b+r+2}, v{b+r+3}")
        A(f"""
        v_max3_u32 v17, v17, v{b+30}, v{b+31}
        v_max_u32 v17, v17, v18
        v_and_b32 v17, s76, v17
        v_cmp_eq_u32 vcc, -1, v17
        s_cbranch_vccnz L_f_sk{g}
        s_bitset1_b32 s78, {g}
        L_f_nc{g}:
        s_cmp_lg_u32 s77, {g}
        s_cbranch_scc1 L_f_sk{g}
        s_bitcmp1_b32 s78, {g}
        s_cbranch_scc0 L_f_sk{g}
        s_mov_b32 s77, {g+1}
        """)
        if asm.STAMPS:
            A(f"s_memrealtime s[82:83]\ns_waitcnt lgkmcnt(0)\nv_writelane_b32 v255, s82, {g}\nv_writelane_b32 v255, s79, 8")
        for k in range(4*g, 4*g + 4):
            bb, w = FB + 8 * k, WO + 8 * k
            A(f"{mfma(FACC, w, bb)}\n{mfma(FACC+16, w, bb+4)}\n{mfma(FACC+32, w+4, bb)}\n{mfma(FACC+48, w+4, bb+4)}")
        A(f"L_f_sk{g}:")
    A("s_cmp_lg_u32 s77, 2\ns_cbranch_scc1 L_f_probe")
    A(f"""
    L_f_dw:
    ds_read_b32 v24, v{fCD}
    s_waitcnt lgkmcnt(0)
    v_readfirstlane_b32 s74, v24
    s_cmp_eq_u32 s74, 4
    s_cbranch_scc1 L_f_dw_done
    s_sleep 1
    s_branch L_f_dw
    L_f_dw_done:
    """)
    stamp(A, 11)
    A("s_nop 11")
    for q in range(16):
        A(f"ds_write_b128 v{fRED}, {vr(FACC+4*q,4)} offset:{q*QS}")
    A("s_nop 0")

def gen_final(A):
    R = 96
    A(f"""
    L_final:
    v_and_b32 v16, 3, v1
    v_bfe_u32 v17, v1, 2, 1
    v_lshl_add_u32 v16, v17, 3, v16
    v_mul_u32_u24 v16, {QS}, v16
    v_lshrrev_b32 v17, 3, v1
    v_lshl_add_u32 v16, v17, 4, v16
    s_lshr_b32 s74, s{sWAVE}, 2
    s_mul_i32 s74, s74, {4*QS}
    s_lshl_b32 s75, s{sW4}, 7
    s_add_u32 s74, s74, s75
    v_add_u32 v16, s74, v16
    s_mov_b32 s75, 0xffff0000
    """)
    for d in range(4):
        A(f"""
        v_lshlrev_b32 v{20+2*d}, 16, v{XB+d}
        v_and_b32 v{21+2*d}, s75, v{XB+d}
        v_lshlrev_b32 v28, 16, v{XB+4+d}
        v_and_b32 v29, s75, v{XB+4+d}
        v_add_f32 v{20+2*d}, v{20+2*d}, v28
        v_add_f32 v{21+2*d}, v{21+2*d}, v29
        """)
    A("s_waitcnt lgkmcnt(0)\ns_barrier")
    stamp(A, 12)
    for src in range(4):
        for g in range(2):
            A(f"ds_read_b128 {vr(R+8*src+4*g,4)}, v16 offset:{src*SRC + g*512}")
    for src in range(4):
        A(f"s_waitcnt lgkmcnt({6-2*src})")
        for i in range(0, 8, 2):
            A(f"v_pk_add_f32 {vr(20+i,2)}, {vr(20+i,2)}, {vr(R+8*src+i,2)}")
    for i in range(4):
        A(f"v_cvt_pk_bf16_f32 v{28+i}, v{20+2*i}, v{21+2*i}")
    A(f"buffer_store_dwordx4 v[28:31], v5, s[60:63], 0 offen {optval('ost', '')}")
    stamp(A, 13)
    if asm.STAMPS:
        A("s_waitcnt vmcnt(0)")
    stamp(A, 14); stamp(A, 15, True)
    stamp_flush(A, 0, 28, sWAVE)
    if asm.STAMPS:
        A("s_add_u32 s82, s82, 512\ns_mov_b64 exec, 0xffff\nbuffer_store_dword v252, v251, s[28:31], s82 offen\ns_add_u32 s83, s83, 512\nbuffer_store_dword v255, v251, s[28:31], s83 offen")
    if asm.STAMPS and optval("amp", ""):
        a_, b_, w_ = optval("amp", "").split(":")
        A(f"""
        s_lshl_b32 s74, s{sWAVE}, 8
        s_or_b32 s74, s74, s2
        s_cmp_lg_u32 s74, {w_}
        s_cbranch_scc1 L_end
        v_readlane_b32 s74, v254, {a_}
        v_readlane_b32 s75, v254, {b_}
        v_readlane_b32 s76, v254, 15
        s_sub_u32 s74, s75, s74
        s_min_u32 s74, s74, 4000
        s_lshl_b32 s74, s74, 3
        L_amp:
        s_memrealtime s[82:83]
        s_waitcnt lgkmcnt(0)
        s_sub_u32 s75, s82, s76
        s_cmp_lt_u32 s75, s74
        s_cbranch_scc1 L_amp
        """)
    if asm.STAMPS and 'dbgout' in OPT:
        A(f"""
        s_mov_b64 exec, -1
        s_mov_b32 s40, s22
        s_mov_b32 s41, s23
        s_mov_b32 s42, 256
        s_mov_b32 s43, 0x00020000
        v_readlane_b32 s74, v254, 0
        v_readlane_b32 s75, v254, 15
        s_not_b32 s74, s74
        v_mov_b32 v20, s74
        v_mov_b32 v21, s75
        s_mov_b64 exec, 1
        buffer_atomic_umax v20, v4, s[40:43], 0 offen offset:4 sc1
        buffer_atomic_umax v21, v4, s[40:43], 0 offen offset:8 sc1
        s_lshl_b32 s74, s{sWAVE}, 8
        s_or_b32 s74, s74, s2
        s_cmp_lg_u32 s74, {optval('dwg', '8')}
        s_cbranch_scc1 L_end
        s_mov_b64 exec, 0xfff8
        buffer_store_dword v254, v251, s[40:43], 0 offen
        """)
    A("L_end:\ns_endpgm")

def gen_fallback(A):
    A("L_fallback:\ns_waitcnt lgkmcnt(0)")
    kv_srds(A)
    A(f"""
    v_mov_b32 v{C[0]}, 0xff7fffff
    v_mov_b32 v{C[1]}, 0xff7fffff
    v_mov_b32 v{VA}, 0x3f803f80
    s_mov_b32 s12, 0x0000ffff
    s_mov_b32 s13, 0x0000ffff
    """)
    for i in range(1, 4):
        A(f"v_mov_b32 v{VA+i}, v{VA}")
    for i in range(4):
        A(f"v_mov_b32 v{VB[0]+i}, v{VA}")
    for q in range(2):
        for i in range(16):
            A(f"v_mov_b32 v{O[q]+i}, 0")
    A(f"""
    s_mov_b32 s11, 0
    L_fb_loop:
    buffer_load_dwordx4 {vr(KB[0],4)}, v{vL16}, s[84:87], s11 offen sc1
    s_mov_b64 exec, s[12:13]
    buffer_load_dwordx4 {vr(VA,4)}, v{vVg}, s[88:91], s11 offen sc1
    buffer_load_dwordx4 {vr(VB[0],4)}, v{vVg}, s[88:91], s11 offen offset:512 sc1
    s_mov_b64 exec, -1
    s_waitcnt vmcnt(0)
    """)
    for q in range(2):
        A(f"{mfma(S[0], KB[0], Q2[q], '0')}\ns_nop 15\ns_nop 3")
        rowmax(A, S[0], T0)
        A(f"""
        v_max_f32 v{T0}, v{T0}, v{C[q]}
        v_sub_f32 v{T2}, v{C[q]}, v{T0}
        v_exp_f32 v{T2}, v{T2}
        v_mov_b32 v{C[q]}, v{T0}
        """)
        for i in range(16):
            A(f"v_mul_f32 v{O[q]+i}, v{O[q]+i}, v{T2}")
        for i in range(16):
            A(f"v_sub_f32 v{S[0]+i}, v{S[0]+i}, v{T0}")
        for i in range(16):
            A(ex(S[0], i))
        A("s_nop 0")
        for i in range(8):
            A(cv(S[0], i))
        A(f"s_nop 1\n{mfma(O[q], VA, P)}\n{mfma(O[q], VB[0], P+4)}")
    A(f"""
    s_nop 15
    s_nop 3
    s_add_u32 s11, s11, 1024
    s_cmp_lt_u32 s11, 0x10000
    s_cbranch_scc1 L_fb_loop
    s_branch L_a_fin
    """)
```

```python
from asm import *
from mega1 import *
import asm

vL16, vK, vVa, vVb, vVg, vCNT, vQA, vCQ, vONE = 3, 244, 245, 246, 247, 248, 249, 18, 19
XB = 8
Q2 = [20, 24]
KB = [28, 32]
VA = 36
VB = [40, 44]
P = 48
T0, T1, T2, T3 = 56, 57, 58, 59
C = [64, 80]
O = [96, 112]
S = [128, 144]
E = [160, 176]
vIDX = 60
def sm(d, a, b): return f"v_smfmac_f32_32x32x32_bf16 {vr(d,16)}, {vr(a,4)}, {vr(b,8)}, v{vIDX}"

def ex(s, i): return f"v_exp_f32 v{s+i}, v{s+i}"
def cv(s, i): return f"v_cvt_pk_bf16_f32 v{P+i}, v{s+2*i}, v{s+2*i+1}"

def rowmax(A, src, dst):
    A(f"v_max3_f32 v{dst}, v{src}, v{src+1}, v{src+2}")
    for i in range(3, 15, 2):
        A(f"v_max3_f32 v{dst}, v{dst}, v{src+i}, v{src+i+1}")
    A(f"""
    v_max_f32 v{dst}, v{dst}, v{src+15}
    v_mov_b32 v{T1}, v{dst}
    s_nop 1
    v_permlane32_swap_b32 v{dst}, v{T1}
    s_nop 1
    v_max_f32 v{dst}, v{dst}, v{T1}
    """)

QS = 1088
SRC = 16 * QS
def out_setup(A):
    A(f"""
    s_lshl_b32 s74, s{sTB2}, 3
    s_add_u32 s74, s74, s{sWAVE}
    s_lshl_b32 s74, s74, 13
    v_lshrrev_b32 v5, 3, v1
    v_lshlrev_b32 v5, 10, v5
    v_and_b32 v6, 7, v1
    s_lshl_b32 s75, s{sNB}, 7
    v_lshl_add_u32 v6, v6, 4, s75
    v_add3_u32 v5, v5, v6, s74
    s_mov_b32 s56, s18
    s_mov_b32 s57, s19
    s_mov_b32 s58, 1024
    s_mov_b32 s59, 0x00020000
    s_mov_b32 s60, s20
    s_mov_b32 s61, s21
    s_mov_b32 s62, 0x200000
    s_mov_b32 s63, 0x00020000
    """)

def kv_srds(A):
    A(f"""
    s_lshl_b32 s74, s{sHEAD}, 16
    s_add_u32 s75, s74, {WS_K}
    s_add_u32 s84, s24, s75
    s_addc_u32 s85, s25, 0
    s_mov_b32 s86, 0x10000
    s_mov_b32 s87, 0x00020000
    s_add_u32 s75, s74, {WS_V}
    s_add_u32 s88, s24, s75
    s_addc_u32 s89, s25, 0
    s_mov_b32 s90, 0x10000
    s_mov_b32 s91, 0x00020000
    """)

XB_LOADS = [f"buffer_load_dwordx4 v[{XB}:{XB+3}], v5, s[52:55], 0 offen",
            f"buffer_load_dwordx4 v[{XB+4}:{XB+7}], v6, s[56:59], 0 offen"]

def a_setup(A):
    A(f"""
    v_and_b32 v{vVg}, 15, v1
    v_lshlrev_b32 v{vVg}, 4, v{vVg}
    v_lshl_add_u32 v{vVg}, v7, 8, v{vVg}
    v_and_b32 v{T0}, 16, v1
    v_cmp_eq_u32 vcc, 0, v{T0}
    v_and_b32 v{T1}, 11, v1
    v_cmp_ne_u32 s[74:75], 0, v{T1}
    v_add_u32 v{vVa}, {LDS_V}, v{vVg}
    v_add_u32 v{vVb}, {LDS_V+512}, v{vVg}
    v_mov_b32 v{T0}, {LDS_V+1024}
    v_mov_b32 v{T1}, {LDS_V+1040}
    v_cndmask_b32 v{T0}, v{T0}, v{T1}, s[74:75]
    v_cndmask_b32 v{vVa}, v{T0}, v{vVa}, vcc
    v_cndmask_b32 v{vVb}, v{T0}, v{vVb}, vcc
    v_and_b32 v{vK}, 0x33, v1
    v_bfe_u32 v{T0}, v1, 2, 1
    v_lshl_add_u32 v{vK}, v{T0}, 3, v{vK}
    v_bfe_u32 v{T0}, v1, 3, 1
    v_lshl_add_u32 v{vK}, v{T0}, 2, v{vK}
    v_lshlrev_b32 v{vK}, 4, v{vK}
    v_mov_b32 v{vCNT}, {C_KV}
    s_lshl_b32 s74, s{sW4}, 11
    s_add_u32 s74, s74, {QA}
    v_add_u32 v{vQA}, s74, v{vL16}
    s_lshl_b32 s74, s{sW4}, 2
    s_add_u32 s74, s74, {C_Q}
    v_mov_b32 v{vCQ}, s74
    v_mov_b32 v{vONE}, 1
    """)
    out_setup(A)

def spread(st):
    out = [None] * 14
    for i, x in enumerate(st):
        out[i * 14 // len(st)] = x
    return out

def gen_a(A, spi=8):
    A("L_a:")
    A.region("a")
    for i in range(0, 32, 2):
        A(f"v_mov_b64 {vr(O[0]+i,2)}, 0")
    for i in range(0, 4, 2):
        A(f"v_mov_b64 {vr(VB[1]+i,2)}, 0")
    for i in range(8, 16, 2):
        A(f"v_mov_b64 {vr(E[1]+i,2)}, 0")
    A(f"v_mov_b32 v{vIDX}, 0xdddd")
    A(f"""
    L_a_wait0:
    ds_read_b32 v{T3}, v{vCNT}
    s_waitcnt lgkmcnt(0)
    v_readfirstlane_b32 s74, v{T3}
    s_cmp_lg_u32 s74, 4
    s_cbranch_scc1 L_a_wait0
    """)
    stamp(A, 6)
    A(f"""
    ds_read_b128 {vr(KB[0],4)}, v{vK}
    ds_read_b128 {vr(Q2[0],4)}, v{vQA}
    ds_read_b128 {vr(Q2[1],4)}, v{vQA} offset:1024
    ds_read_b128 {vr(KB[1],4)}, v{vK} offset:1024
    ds_read_b128 {vr(VA,4)}, v{vVa}
    ds_read_b128 {vr(VB[0],4)}, v{vVb}
    s_waitcnt lgkmcnt(3)
    {mfma(S[0], KB[0], Q2[0], "0")}
    {mfma(S[1], KB[0], Q2[1], "0")}
    ds_write_b32 v{vCQ}, v{vONE}
    s_nop 10
    """)
    for q in range(2):
        rowmax(A, S[q], T0)
        A(f"v_sub_f32 v{C[q]}, 0, v{T0}\nv_sub_f32 v{C[q]+1}, 0, v{T0}")
        for i in range(2, 16, 2):
            A(f"v_mov_b64 {vr(C[q]+i,2)}, {vr(C[q],2)}")
        if q == 0:
            A(f"s_nop 1\n{mfma(S[0], KB[0], Q2[0], C[0])}")
    A(f"s_mov_b32 s11, {64 // spi}\ns_waitcnt lgkmcnt(0)")
    stamp(A, 7)
    def body(tag, extra):
        extra = list(extra)
        for t in range(spi):
            for h in range(2):
                cur, nxt = S[h], S[1 - h]
                kf = KB[t & 1] if h == 0 else KB[(t + 1) & 1]
                vb = VB[(t + 1) & 1] if h == 0 else VB[t & 1]
                m1 = m2 = m3 = pre3 = ""
                if h == 0:
                    m2 = "s_waitcnt lgkmcnt(0)"
                    m3 = f"ds_read_b128 {vr(KB[t & 1],4)}, v{vK} offset:{(t+2)*1024}"
                    if t == 6:
                        pre3 = f"v_readfirstlane_b32 s74, v{T3}"
                        m3 = f"s_cmp_lg_u32 s74, 4\ns_cbranch_scc1 L_a_spin{tag}\nL_a_spun{tag}:\n" + m3
                else:
                    if t == 5:
                        m1 = f"ds_read_b32 v{T3}, v{vCNT} offset:4"
                    m2 = f"ds_read_b128 {vr(VB[(t+1) & 1],4)}, v{vVb} offset:{(t+1)*VST}"
                    m3 = f"ds_read_b128 {vr(VA,4)}, v{vVa} offset:{(t+1)*VST}"
                    if t == spi - 1:
                        m1 = "s_sub_u32 s11, s11, 1"
                if extra and not m1:
                    m1 = extra.pop(0) or ""
                e2 = lambda i: f"v_exp_f32 v{E[h]+i}, v{cur+i}"
                A(mfma(nxt, kf, Q2[1-h], C[1-h])); A(m1)
                for i in range(0, 5):
                    A(e2(i))
                A(sm(O[1-h], vb, E[1-h] + 8)); A(m2)
                for i in range(5, 10):
                    A(e2(i))
                    if i == 7:
                        A(pre3)
                A(sm(O[h], VA, E[h])); A(m3)
                for i in range(10, 16):
                    A(e2(i))
        assert not extra
        A(f"""
        v_add_u32 v{vK}, {spi*1024}, v{vK}
        v_add_u32 v{vVa}, {spi*VST}, v{vVa}
        v_add_u32 v{vVb}, {spi*VST}, v{vVb}
        v_add_u32 v{vCNT}, 4, v{vCNT}
        """)
        if asm.STAMPS:
            A("s_memtime s[80:81]\ns_waitcnt lgkmcnt(0)\ns_mov_b32 m0, s11\ns_nop 0\nv_writelane_b32 v252, s80, m0")
    A(".p2align 6\nL_a_loop:")
    body("", [])
    A(f"""
    s_cmp_lg_u32 s11, 0
    s_cbranch_scc1 L_a_loop
    {sm(O[1], VB[(spi-1) & 1], E[1] + 8)}
    """)
    stamp(A, 8)
    for x in XB_LOADS:
        A(x)
    A(f"s_nop 1\nv_add_f32 v{T0}, abs(v{O[0]}), abs(v{O[0]+1})")
    for i in range(2, 9):
        A(f"v_add_f32 v{T0}, v{T0}, abs(v{O[0]+i})")
    for i in range(0, 9):
        A(f"v_add_f32 v{T0}, v{T0}, abs(v{O[1]+i})")
    A(f"""
    v_mov_b32 v{T1}, 0x7f000000
    v_cmp_lt_f32 vcc, v{T0}, v{T1}
    s_nop 4
    s_cmp_eq_u64 vcc, -1
    s_cbranch_scc0 L_fallback
    L_a_fin:
    v_rcp_f32 v{T0}, v{O[0]+8}
    v_rcp_f32 v{T1}, v{O[1]+8}
    """)
    for q in range(2):
        for i in range(8):
            A(f"v_mul_f32 v{O[q]+i}, v{O[q]+i}, v{(T0,T1)[q]}")
        for i in range(4):
            A(f"v_cvt_pk_bf16_f32 v{P+4*q+i}, v{O[q]+2*i}, v{O[q]+2*i+1}")
        for i in range(4):
            A(f"v_min_u32 v{P+4*q+i}, -2, v{P+4*q+i}")
        A(f"buffer_store_dwordx4 {vr(P+4*q,4)}, v{vL16}, s[28:31], s{8+q} offen sc1")
    stamp(A, 9)
    A(f"""
    s_mov_b64 exec, 1
    ds_add_u32 v{vFLG+1}, v{vONE} offset:{C_D - C_H}
    s_mov_b64 exec, -1
    s_waitcnt vmcnt(2)
    s_branch L_final
    """)
    for tag in ("",):
        A(f"""
        L_a_spin{tag}:
        ds_read_b32 v{T3}, v{vCNT} offset:4
        s_waitcnt lgkmcnt(0)
        v_readfirstlane_b32 s74, v{T3}
        s_cmp_lg_u32 s74, 4
        s_cbranch_scc1 L_a_spin{tag}
        s_branch L_a_spun{tag}
        """)

FACC, HB, WF, FB, WO = 32, 96, 120, 96, 160
fSENT, fTAG, fFLG, fCQ, fHK, fP3, fPR, fPROBE, fCD, fRED, fCH, fTW, fTH = 232, 236, 238, 239, 240, 242, 243, 244, 245, 246, 247, 248, 249

def poll(A, name, vaddr, sleep=4):
    A(f"""
    s_mov_b32 s79, 0x8000
    L_{name}:
    buffer_load_dwordx2 v[24:25], v{vaddr}, s[28:31], 0 offen sc1
    s_sub_u32 s79, s79, 1
    s_waitcnt vmcnt(0)
    v_cmp_ne_u64 vcc, s[26:27], v[24:25]
    s_cmp_eq_u32 s79, 0
    s_cbranch_scc1 L_{name}_done
    s_cbranch_vccz L_{name}_done
    s_sleep {sleep}
    s_branch L_{name}
    L_{name}_done:
    """)

def f_setup(A):
    kv_srds(A)
    out_setup(A)
    f = sW4
    A(f"""
    s_mov_b32 s52, s4
    s_mov_b32 s53, s5
    s_mov_b32 s54, 0x200000
    s_mov_b32 s55, 0x00020000
    s_lshl_b32 s74, s{sNB}, 7
    s_add_u32 s44, s16, s74
    s_addc_u32 s45, s17, 0
    s_sub_u32 s46, {1792*1024}, s74
    s_mov_b32 s47, 0x00020000
    s_add_u32 s48, s8, s74
    s_addc_u32 s49, s9, 0
    s_sub_u32 s50, {512*1024}, s74
    s_mov_b32 s51, 0x00020000
    v_mul_u32_u24 v16, {VST}, v1
    v_add_u32 v16, {LDS_V+1024}, v16
    v_mov_b32 v20, 0x3f803f80
    v_mov_b32 v21, v20
    v_mov_b32 v22, v20
    v_mov_b32 v23, v20
    v_mov_b32 v17, 1
    v_mov_b32 v19, {C_KV}
    """)
    if optval("rf", "0") == "1":
        A(f"s_lshl_b32 s74, s{sHEAD}, 3\ns_add_u32 s74, s74, s{sQB}\ns_lshl_b32 s74, s74, 8\ns_add_u32 s74, s74, {WS_F2R}")
    else:
        A(f"s_lshr_b32 s74, s{sHEAD}, 1\ns_lshl_b32 s74, s74, 8\ns_add_u32 s74, s74, {WS_F2}")
    A(f"""
    v_lshl_add_u32 v18, v2, 3, s74
    v_add_u32 v31, {ACT_TB}, v3
    v_lshrrev_b32 v26, 3, v1
    v_bfe_u32 v27, v1, 4, 1
    v_lshlrev_b32 v27, 2, v27
    v_and_b32 v28, 7, v1
    v_xor_b32 v27, v27, v28
    v_lshlrev_b32 v26, 10, v26
    v_lshl_add_u32 v26, v27, 4, v26
    v_add_u32 v27, 0x2000, v26
    v_bfe_u32 v28, v1, 2, 2
    v_lshl_add_u32 v28, v7, 2, v28
    v_lshlrev_b32 v28, 7, v28
    v_bfe_u32 v29, v1, 3, 1
    v_lshl_add_u32 v28, v29, 6, v28
    v_bfe_u32 v29, v1, 4, 1
    v_lshl_add_u32 v28, v29, 5, v28
    v_and_b32 v29, 3, v1
    v_lshl_add_u32 v28, v29, 3, v28
    v_xor_b32 v29, 64, v28
    s_lshl_b32 s77, s{f}, 11
    s_add_u32 s77, s77, {QA}
    v_add_u32 v28, s77, v28
    v_add_u32 v29, s77, v29
    s_mul_i32 s12, s{f}, {28*16384}
    s_lshl_b32 s13, s{f}, 17
    s_mul_i32 s14, s{sTB2}, {2*ACT_TB}
    s_add_u32 s14, s14, {WS_ACT}
    s_lshl_b32 s74, s{f}, 13
    s_add_u32 s15, s14, s74
    s_mul_i32 s74, s{f}, {28*1024}
    s_add_u32 s14, s14, s74
    s_add_u32 s14, s14, {32*1024}
    s_lshl_b32 s10, s{f}, 10
    s_mul_i32 s11, s{f}, {VST}
    s_add_u32 s11, s11, {LDS_V}
    s_lshl_b32 s74, s{sQB}, 2
    s_add_u32 s74, s74, s{f}
    s_lshl_b32 s74, s74, 11
    s_lshl_b32 s75, s{sHEAD}, 16
    s_add_u32 s78, s74, s75
    """)
    A(f"""
    v_mov_b64 {vr(fSENT,2)}, -1
    v_mov_b64 {vr(fSENT+2,2)}, -1
    s_lshl_b32 s74, s{sQB}, 2
    s_add_u32 s74, s74, s{f}
    s_mul_i32 s6, s74, {2*ACT_TB}
    s_lshl_b32 s76, s{sHEAD}, 10
    s_add_u32 s6, s6, s76
    s_add_u32 s6, s6, {WS_ACT}
    s_lshl_b32 s74, s74, 5
    s_add_u32 s74, s74, s{sHEAD}
    s_lshl_b32 s74, s74, 3
    s_add_u32 s74, s74, {WS_FR}
    v_mov_b32 v{fFLG}, s74
    s_lshl_b32 s75, s{sTBK}, 1
    s_lshr_b32 s76, s{f}, 1
    s_add_u32 s75, s75, s76
    s_lshl_b32 s75, s75, 3
    s_add_u32 s75, s75, s{sG}
    s_lshl_b32 s75, s75, 1
    s_and_b32 s76, s{f}, 1
    s_add_u32 s75, s75, s76
    s_lshl_b32 s75, s75, 3
    s_add_u32 s75, s75, {WS_F3}
    s_cmp_eq_u32 s{sTYPE}, 0
    s_cselect_b32 s74, s74, s75
    v_writelane_b32 v{fFLG}, s74, 1
    s_lshl_b32 s74, s{f}, 2
    s_add_u32 s74, s74, {C_Q}
    v_mov_b32 v{fCQ}, s74
    s_add_u32 s74, s10, 32768
    v_add_u32 v{fHK}, s74, v3
    s_add_u32 s74, s11, {32*VST}
    v_add_u32 v{fHK+1}, s74, v3
    s_lshl_b32 s74, s{sTB2}, 7
    s_lshl_b32 s75, s{f}, 5
    s_add_u32 s74, s74, s75
    s_add_u32 s74, s74, {WS_F3}
    v_and_b32 v24, 3, v1
    v_lshl_add_u32 v{fP3}, v24, 3, s74
    s_lshl_b32 s74, s{sTB2}, 8
    s_lshl_b32 s75, s{f}, 6
    s_add_u32 s74, s74, s75
    s_add_u32 s74, s74, {WS_FR}
    v_and_b32 v24, 7, v1
    v_lshl_add_u32 v{fPR}, v24, 3, s74
    v_lshlrev_b32 v24, 10, v24
    v_bfe_u32 v25, v1, 3, 1
    v_mul_u32_u24 v25, {ACT_TB}, v25
    v_add_u32 v{fPROBE}, v24, v25
    v_mov_b32 v{fCD}, {C_D}
    v_lshlrev_b32 v{fTW}, 10, v1
    v_mul_u32_u24 v{fTH}, {ACT_TB}, v7
    v_lshl_add_u32 v{fTH}, v2, 7, v{fTH}
    v_mov_b32 v{fCH}, {C_H}
    s_mul_i32 s74, s{f}, {SRC}
    v_add_u32 v{fRED}, s74, v3
    """)
    for i in range(0, 64, 2):
        A(f"v_mov_b64 {vr(FACC+i,2)}, 0")

def gen_f(A):
    Q = VmQ(A)
    f = sW4
    A("L_f:")
    A.region("f")
    stamp(A, 4)
    A(f"ds_write_b128 v16, v[20:23]\nds_write_b128 v16, {vr(FACC,4)} offset:16")
    def wdma_half(step, srd, so, tag, half, inc=16384):
        sl = (step + 1) % 3
        A(f"s_add_u32 m0, s77, {sl*8192 + half*1024}\ns_nop 0")
        Q.issue(f"buffer_load_dwordx4 v{26+half}, s[{srd}:{srd+3}], s{so} offen lds", tag)
        if half:
            A(f"s_add_u32 s{so}, s{so}, {inc}")
    def wdma(step, srd, so, tag, inc=16384):
        wdma_half(step, srd, so, tag, 0, inc); wdma_half(step, srd, so, tag, 1, inc)
    def trread(step, dst, cb):
        sl = (step + 1) % 3
        A(f"ds_read_b64_tr_b16 {vr(dst,2)}, v{28+cb} offset:{sl*8192}")
        A(f"ds_read_b64_tr_b16 {vr(dst+2,2)}, v{28+cb} offset:{sl*8192+1024}")
    wdma(-9, 48, 13, "o0"); wdma(-8, 48, 13, "o1")
    A(f"""
    s_cmp_eq_u32 s{f}, 0
    s_cselect_b32 s75, 4, 5
    L_f_hw:
    ds_read_b32 v24, v{fCH}
    s_waitcnt lgkmcnt(0)
    v_readfirstlane_b32 s74, v24
    s_cmp_eq_u32 s74, s75
    s_cbranch_scc1 L_f_hw_done
    s_sleep 1
    s_branch L_f_hw
    L_f_hw_done:
    {'s_setprio 3' if '1' in optval('fp', '') else 's_nop 0'}
    s_cmp_lg_u32 s{f}, 0
    s_cbranch_scc1 L_f_go
    """)
    if optval("pp", "0") == "0":
        poll(A, "f_p2", 18, int(optval("ps", "4")))
    else:
        R = [HB, HB + 2, HB + 4]
        ld = lambda r: f"buffer_load_dwordx2 {vr(r,2)}, v18, s[28:31], 0 offen sc1"
        A(f"s_mov_b32 s79, 0x8000\n{ld(R[0])}\ns_sleep 4\n{ld(R[1])}\ns_sleep 4\n{ld(R[2])}\nL_f_pp:")
        for r in R:
            A(f"s_waitcnt vmcnt(2)\nv_cmp_ne_u64 vcc, s[26:27], {vr(r,2)}\ns_cbranch_vccz L_f_pp_done\n{ld(r)}")
        A("s_sub_u32 s79, s79, 1\ns_cmp_lg_u32 s79, 0\ns_cbranch_scc1 L_f_pp\nL_f_pp_done:")
    A(f"""
    s_mov_b64 exec, 1
    ds_add_u32 v{fCH}, v17
    s_mov_b64 exec, -1
    L_f_go:
    """)
    stamp(A, 5)
    def kv_dma(i):
        A(f"s_mov_b32 m0, s10\ns_add_u32 s74, s11, {i*4*VST}")
        Q.issue("buffer_load_dwordx4 v3, s[84:87], s10 offen sc1 lds", i // 2)
        A("s_mov_b32 m0, s74\ns_nop 0")
        Q.issue("buffer_load_dwordx4 v3, s[88:91], s10 offen sc1 lds", i // 2)
        A("s_add_u32 s10, s10, 4096")
    def chunk_done(c):
        Q.wait(c)
        A(f"s_mov_b64 exec, 1\nds_add_u32 v19, v17 offset:{4*c}\ns_mov_b64 exec, -1")
    A("s_mov_b32 m0, s77\ns_nop 0")
    Q.issue("buffer_load_dwordx4 v3, s[28:31], s78 offen sc1 lds", 0)
    Q.issue("buffer_load_dwordx4 v3, s[28:31], s78 offen offset:1024 sc1 lds", 0)
    n0 = int(optval("n0", "6"))
    for i in range(n0):
        kv_dma(i)
    chunk_done(0)
    stamp(A, 6)
    for i in range(n0, 8):
        kv_dma(i)
    for c in range(1, 4):
        chunk_done(c)
    Q.issue(f"buffer_store_dwordx4 {vr(fSENT,4)}, v3, s[28:31], s6 offen sc1", 7)
    Q.issue(f"buffer_store_dwordx4 {vr(fSENT,4)}, v31, s[28:31], s6 offen sc1", 7)
    A(f"""
    L_f_qw:
    ds_read_b32 v24, v{fCQ}
    s_waitcnt lgkmcnt(0)
    v_readfirstlane_b32 s74, v24
    s_cmp_eq_u32 s74, 1
    s_cbranch_scc1 L_f_qw_done
    s_sleep 2
    s_branch L_f_qw
    L_f_qw_done:
    """)
    for i in range(14):
        va, off = h_slot(i)
        A(f"ds_read_b128 {vr(HB+4*i,4)}, v{fHK+va} offset:{off}")
    A("s_waitcnt lgkmcnt(0)")
    for i in range(8, 16):
        kv_dma(i)
    A(f"""
    s_cmp_eq_u32 s{sTYPE}, 0
    s_cbranch_scc1 L_f_noh
    s_lshl_b32 s74, s{sTBK}, 2
    s_add_u32 s74, s74, s{f}
    s_xor_b32 s75, s74, 1
    s_mul_i32 s76, s{sG}, {7*2048}
    s_add_u32 s76, s76, {WS_ACT + 32*1024}
    s_mul_i32 s92, s74, {ACT_TB}
    s_add_u32 s92, s92, s76
    s_mul_i32 s93, s75, {ACT_TB}
    s_add_u32 s93, s93, s76
    s_add_u32 s94, s92, {6*2048}
    s_and_b32 s75, s{f}, 1
    s_mul_i32 s76, s75, 6144
    s_add_u32 s92, s92, s76
    s_add_u32 s93, s93, s76
    s_add_u32 s95, s92, 4096
    s_add_u32 s96, s93, 4096
    """)
    for n, (t, c) in enumerate([(t, c) for c in range(3) for t in range(2)] + [(0, 3)]):
        so, im = (94, 0) if c == 3 else ((92 + t, c * 2048) if c < 2 else (95 + t, 0))
        for hh in range(2):
            A(f"buffer_store_dwordx4 {vr(HB+8*n+4*hh,4)}, v3, s[28:31], s{so} offen offset:{im+hh*1024} sc1")
    A(f"""
    L_f_noh:
    s_mov_b32 s40, s22
    s_mov_b32 s41, s23
    s_mov_b32 s42, 256
    s_waitcnt vmcnt(0)
    s_mov_b64 exec, 3
    buffer_store_dwordx2 {vr(fTAG,2)}, v{fFLG}, s[28:31], 0 offen sc1
    s_mov_b64 exec, 1
    ds_add_u32 v19, v17 offset:16
    ds_add_u32 v19, v17 offset:20
    ds_add_u32 v19, v17 offset:24
    ds_add_u32 v19, v17 offset:28
    s_cmp_lg_u32 s{f}, 0
    s_cbranch_scc1 L_f_noat
    buffer_atomic_add v17, v4, s[40:43], 0 offen sc1
    L_f_noat:
    s_mov_b64 exec, -1
    """)
    stamp(A, 7)
    Q.q = ["st"]
    if optval("pf", "1") == "1":
        A(f"""
        s_and_b32 s74, s{sTB2}, 3
        s_mul_i32 s74, s74, {112*1024}
        s_add_u32 s74, s74, s12
        s_add_u32 s75, s74, {48*1024}
        buffer_load_dword v253, v{fTW}, s[44:47], s74 offen
        buffer_load_dword v253, v{fTW}, s[44:47], s75 offen
        """)
    wdma(-7, 48, 13, "o2")
    for k in range(8):
        Q.wait(f"o{k}")
        trread(k - 9, WO + 8 * k, 0); trread(k - 9, WO + 8 * k + 4, 1)
        A("s_waitcnt lgkmcnt(0)")
        if k + 3 < 8:
            wdma(k - 6, 48, 13, f"o{k+3}")
        elif k >= 6:
            wdma(k - 6, 44, 12, "w")
    wdma(2, 44, 12, "w")
    poll(A, "f_p3", fP3, 8)
    A("s_setprio 0")
    Q.q = []
    def hload(step, t, tag):
        b = HB + 8 * (step % 3) + 4 * t
        Q.issue(f"buffer_load_dwordx4 {vr(b,4)}, v{(3,31)[t]}, s[28:31], s14 offen sc1", tag)
        if t == 1:
            A("s_add_u32 s14, s14, 1024")
    if optval("pf", "1") == "1":
        A(f"""
        s_mul_i32 s74, s{sNB}, 3584
        s_add_u32 s74, s74, s14
        s_mov_b32 exec_lo, 0x0fffffff
        s_mov_b32 exec_hi, 0x0fffffff
        buffer_load_dword v253, v{fTH}, s[28:31], s74 offen sc1
        s_mov_b64 exec, -1
        """)
    for s in range(3):
        hload(s, 0, s); hload(s, 1, s)
    Q.drain()
    stamp(A, 8)
    def fstep(s, nxt):
        h = HB + 8 * (s % 3)
        for n, (t, cb) in enumerate(((0, 0), (0, 1), (1, 0), (1, 1))):
            if n < 3 or not nxt:
                trread(s, WF + 4 * cb, cb)
                A("s_waitcnt lgkmcnt(0)")
            else:
                wdma(s + 3, 44, 12, s + 3)
            A(mfma(FACC + 32 * cb + 16 * t, WF + 4 * cb, h + 4 * t))
            if nxt and n in (1, 3):
                hload(s + 3, t, s + 3)
    A("s_mov_b32 s79, 8\nL_f_loop:")
    for s in range(3):
        A("s_waitcnt vmcnt(8)")
        fstep(s, True)
    A("s_sub_u32 s79, s79, 1\ns_cmp_lg_u32 s79, 0\ns_cbranch_scc1 L_f_loop")
    Q.q = [24]*4 + [25]*4 + [26]*4
    for s in range(24, 28):
        Q.wait(s)
        fstep(s, s == 24)
    for x in XB_LOADS:
        A(x)
    if "2" in optval("fp", ""):
        A("s_setprio 3")
    poll(A, "f_pr", fPR, 8)
    A(f"""
    s_or_b32 s74, s2, s{f}
    s_cmp_lg_u32 s74, 0
    s_cbranch_scc1 L_f_noep
    s_mov_b32 s79, 0x8000
    L_f_ep:
    buffer_load_dword v24, v4, s[40:43], 0 offen sc1
    s_sub_u32 s79, s79, 1
    s_waitcnt vmcnt(0)
    v_readfirstlane_b32 s74, v24
    s_cmp_eq_u32 s79, 0
    s_cbranch_scc1 L_f_ep_done
    s_cmp_lg_u32 s74, 256
    s_cbranch_scc1 L_f_ep
    L_f_ep_done:
    s_mov_b32 s74, {WS_CTL}
    s_mov_b64 exec, 1
    buffer_store_dwordx2 {vr(fTAG,2)}, v4, s[28:31], s74 offen sc1
    s_mov_b64 exec, -1
    L_f_noep:
    """)
    stamp(A, 9)
    A(f"""
    s_add_u32 s14, s15, 4096
    s_mov_b32 s79, 0x10000
    s_mov_b32 s78, 0
    """)
    stamp(A, 10)
    A(f"""
    s_mov_b32 s77, 0
    s_mov_b32 s11, 0
    L_f_probe:
    s_sub_u32 s79, s79, 1
    s_cmp_eq_u32 s79, 0
    s_cselect_b32 s76, 0, -1
    s_cselect_b32 s79, 1, s79
    """)
    if optval("td", "0") == "1":
        A(f"""
        s_mov_b32 s75, s78
        s_cmp_eq_u32 s11, 4
        s_cbranch_scc1 L_f_load
        ds_read_b32 v24, v{fCD}
        """)
    A(f"""
    buffer_load_dword v25, v{fPROBE}, s[28:31], s15 offen offset:1020 sc1
    s_waitcnt vmcnt(0) lgkmcnt(0)
    v_readfirstlane_b32 s11, v24
    v_cmp_eq_u32 vcc, -1, v25
    s_and_b32 s74, vcc_lo, s76
    s_mov_b32 s75, s78
    s_and_b32 s10, s74, 0x0f0f
    s_cselect_b32 s10, 1, 0
    s_or_b32 s75, s75, s10
    s_and_b32 s10, s74, 0xf0f0
    s_cselect_b32 s10, 2, 0
    s_or_b32 s75, s75, s10
    s_cmp_lg_u32 s75, 3
    s_cbranch_scc1 L_f_load
    s_sleep {optval("ts", "2")}
    s_branch L_f_probe
    L_f_load:
    """)
    for g in range(2):
        A(f"s_bitcmp1_b32 s75, {g}\ns_cbranch_scc1 L_f_nl{g}")
        for k in range(4*g, 4*g + 4):
            so, im = (15, k * 1024) if k < 4 else (14, (k - 4) * 1024)
            A(f"""
            buffer_load_dwordx4 {vr(FB+8*k,4)}, v3, s[28:31], s{so} offen offset:{im} sc1
            buffer_load_dwordx4 {vr(FB+8*k+4,4)}, v31, s[28:31], s{so} offen offset:{im} sc1
            """)
        A(f"L_f_nl{g}:")
    for g in range(2):
        b = FB + 32 * g
        A(f"s_bitcmp1_b32 s75, {g}\ns_cbranch_scc1 L_f_nc{g}")
        if g == 0:
            A("s_bitcmp1_b32 s75, 1\ns_cbranch_scc1 L_f_w0\ns_waitcnt vmcnt(8)\ns_branch L_f_w1\nL_f_w0:\ns_waitcnt vmcnt(0)\nL_f_w1:")
        else:
            A("s_waitcnt vmcnt(0)")
        A(f"v_max3_u32 v17, v{b}, v{b+1}, v{b+2}\nv_max3_u32 v18, v{b+3}, v{b+4}, v{b+5}")
        for r in range(6, 30, 4):
            A(f"v_max3_u32 v17, v17, v{b+r}, v{b+r+1}\nv_max3_u32 v18, v18, v{b+r+2}, v{b+r+3}")
        A(f"""
        v_max3_u32 v17, v17, v{b+30}, v{b+31}
        v_max_u32 v17, v17, v18
        v_and_b32 v17, s76, v17
        v_cmp_eq_u32 vcc, -1, v17
        s_cbranch_vccnz L_f_sk{g}
        s_bitset1_b32 s78, {g}
        L_f_nc{g}:
        s_cmp_lg_u32 s77, {g}
        s_cbranch_scc1 L_f_sk{g}
        s_bitcmp1_b32 s78, {g}
        s_cbranch_scc0 L_f_sk{g}
        s_mov_b32 s77, {g+1}
        """)
        if asm.STAMPS:
            A(f"s_memrealtime s[82:83]\ns_waitcnt lgkmcnt(0)\nv_writelane_b32 v255, s82, {g}\nv_writelane_b32 v255, s79, 8")
        for k in range(4*g, 4*g + 4):
            bb, w = FB + 8 * k, WO + 8 * k
            A(f"{mfma(FACC, w, bb)}\n{mfma(FACC+16, w, bb+4)}\n{mfma(FACC+32, w+4, bb)}\n{mfma(FACC+48, w+4, bb+4)}")
        A(f"L_f_sk{g}:")
    A("s_cmp_lg_u32 s77, 2\ns_cbranch_scc1 L_f_probe")
    A(f"""
    L_f_dw:
    ds_read_b32 v24, v{fCD}
    s_waitcnt lgkmcnt(0)
    v_readfirstlane_b32 s74, v24
    s_cmp_eq_u32 s74, 4
    s_cbranch_scc1 L_f_dw_done
    s_sleep 1
    s_branch L_f_dw
    L_f_dw_done:
    """)
    stamp(A, 11)
    A("s_nop 11")
    for q in range(16):
        A(f"ds_write_b128 v{fRED}, {vr(FACC+4*q,4)} offset:{q*QS}")
    A("s_nop 0")

def gen_final(A):
    R = 96
    A(f"""
    L_final:
    v_and_b32 v16, 3, v1
    v_bfe_u32 v17, v1, 2, 1
    v_lshl_add_u32 v16, v17, 3, v16
    v_mul_u32_u24 v16, {QS}, v16
    v_lshrrev_b32 v17, 3, v1
    v_lshl_add_u32 v16, v17, 4, v16
    s_lshr_b32 s74, s{sWAVE}, 2
    s_mul_i32 s74, s74, {4*QS}
    s_lshl_b32 s75, s{sW4}, 7
    s_add_u32 s74, s74, s75
    v_add_u32 v16, s74, v16
    s_mov_b32 s75, 0xffff0000
    """)
    for d in range(4):
        A(f"""
        v_lshlrev_b32 v{20+2*d}, 16, v{XB+d}
        v_and_b32 v{21+2*d}, s75, v{XB+d}
        v_lshlrev_b32 v28, 16, v{XB+4+d}
        v_and_b32 v29, s75, v{XB+4+d}
        v_add_f32 v{20+2*d}, v{20+2*d}, v28
        v_add_f32 v{21+2*d}, v{21+2*d}, v29
        """)
    A("s_waitcnt lgkmcnt(0)\ns_barrier")
    stamp(A, 12)
    for src in range(4):
        for g in range(2):
            A(f"ds_read_b128 {vr(R+8*src+4*g,4)}, v16 offset:{src*SRC + g*512}")
    for src in range(4):
        A(f"s_waitcnt lgkmcnt({6-2*src})")
        for i in range(0, 8, 2):
            A(f"v_pk_add_f32 {vr(20+i,2)}, {vr(20+i,2)}, {vr(R+8*src+i,2)}")
    for i in range(4):
        A(f"v_cvt_pk_bf16_f32 v{28+i}, v{20+2*i}, v{21+2*i}")
    A(f"buffer_store_dwordx4 v[28:31], v5, s[60:63], 0 offen {optval('ost', '')}")
    stamp(A, 13)
    if asm.STAMPS:
        A("s_waitcnt vmcnt(0)")
    stamp(A, 14); stamp(A, 15, True)
    stamp_flush(A, 0, 28, sWAVE)
    if asm.STAMPS:
        A("s_add_u32 s82, s82, 512\ns_mov_b64 exec, 0xffff\nbuffer_store_dword v252, v251, s[28:31], s82 offen\ns_add_u32 s83, s83, 512\nbuffer_store_dword v255, v251, s[28:31], s83 offen")
    if asm.STAMPS and optval("amp", ""):
        a_, b_, w_ = optval("amp", "").split(":")
        A(f"""
        s_lshl_b32 s74, s{sWAVE}, 8
        s_or_b32 s74, s74, s2
        s_cmp_lg_u32 s74, {w_}
        s_cbranch_scc1 L_end
        v_readlane_b32 s74, v254, {a_}
        v_readlane_b32 s75, v254, {b_}
        v_readlane_b32 s76, v254, 15
        s_sub_u32 s74, s75, s74
        s_min_u32 s74, s74, 4000
        s_lshl_b32 s74, s74, 3
        L_amp:
        s_memrealtime s[82:83]
        s_waitcnt lgkmcnt(0)
        s_sub_u32 s75, s82, s76
        s_cmp_lt_u32 s75, s74
        s_cbranch_scc1 L_amp
        """)
    if asm.STAMPS and 'dbgout' in OPT:
        A(f"""
        s_mov_b64 exec, -1
        s_mov_b32 s40, s22
        s_mov_b32 s41, s23
        s_mov_b32 s42, 256
        s_mov_b32 s43, 0x00020000
        v_readlane_b32 s74, v254, 0
        v_readlane_b32 s75, v254, 15
        s_not_b32 s74, s74
        v_mov_b32 v20, s74
        v_mov_b32 v21, s75
        s_mov_b64 exec, 1
        buffer_atomic_umax v20, v4, s[40:43], 0 offen offset:4 sc1
        buffer_atomic_umax v21, v4, s[40:43], 0 offen offset:8 sc1
        s_lshl_b32 s74, s{sWAVE}, 8
        s_or_b32 s74, s74, s2
        s_cmp_lg_u32 s74, {optval('dwg', '8')}
        s_cbranch_scc1 L_end
        s_mov_b64 exec, 0xfff8
        buffer_store_dword v254, v251, s[40:43], 0 offen
        """)
    A("L_end:\ns_endpgm")

def gen_fallback(A):
    A("L_fallback:\ns_waitcnt lgkmcnt(0)")
    kv_srds(A)
    A(f"""
    v_mov_b32 v{C[0]}, 0xff7fffff
    v_mov_b32 v{C[1]}, 0xff7fffff
    v_mov_b32 v{VA}, 0x3f803f80
    s_mov_b32 s12, 0x0000ffff
    s_mov_b32 s13, 0x0000ffff
    """)
    for i in range(1, 4):
        A(f"v_mov_b32 v{VA+i}, v{VA}")
    for i in range(4):
        A(f"v_mov_b32 v{VB[0]+i}, v{VA}")
    for q in range(2):
        for i in range(16):
            A(f"v_mov_b32 v{O[q]+i}, 0")
    A(f"""
    s_mov_b32 s11, 0
    L_fb_loop:
    buffer_load_dwordx4 {vr(KB[0],4)}, v{vL16}, s[84:87], s11 offen sc1
    s_mov_b64 exec, s[12:13]
    buffer_load_dwordx4 {vr(VA,4)}, v{vVg}, s[88:91], s11 offen sc1
    buffer_load_dwordx4 {vr(VB[0],4)}, v{vVg}, s[88:91], s11 offen offset:512 sc1
    s_mov_b64 exec, -1
    s_waitcnt vmcnt(0)
    """)
    for q in range(2):
        A(f"{mfma(S[0], KB[0], Q2[q], '0')}\ns_nop 15\ns_nop 3")
        rowmax(A, S[0], T0)
        A(f"""
        v_max_f32 v{T0}, v{T0}, v{C[q]}
        v_sub_f32 v{T2}, v{C[q]}, v{T0}
        v_exp_f32 v{T2}, v{T2}
        v_mov_b32 v{C[q]}, v{T0}
        """)
        for i in range(16):
            A(f"v_mul_f32 v{O[q]+i}, v{O[q]+i}, v{T2}")
        for i in range(16):
            A(f"v_sub_f32 v{S[0]+i}, v{S[0]+i}, v{T0}")
        for i in range(16):
            A(ex(S[0], i))
        A("s_nop 0")
        for i in range(8):
            A(cv(S[0], i))
        A(f"s_nop 1\n{mfma(O[q], VA, P)}\n{mfma(O[q], VB[0], P+4)}")
    A(f"""
    s_nop 15
    s_nop 3
    s_add_u32 s11, s11, 1024
    s_cmp_lt_u32 s11, 0x10000
    s_cbranch_scc1 L_fb_loop
    s_branch L_a_fin
    """)
```

```python
from asm import *
from mega1 import *
import asm

vL16, vK, vVa, vVb, vVg, vCNT, vQA, vCQ, vONE = 3, 244, 245, 246, 247, 248, 249, 18, 19
XB = 8
Q2 = [20, 24]
KB = [28, 32]
VA = 36
VA2 = [36, 48]
VB = [40, 44]
P = 48
T0, T1, T2, T3 = 56, 57, 58, 59
C = [64, 80]
O = [96, 112]
S = [128, 144]
E = [160, 176]
vIDX = 60
def sm(d, a, b): return f"v_smfmac_f32_32x32x32_bf16 {vr(d,16)}, {vr(a,4)}, {vr(b,8)}, v{vIDX}"

def ex(s, i): return f"v_exp_f32 v{s+i}, v{s+i}"
def cv(s, i): return f"v_cvt_pk_bf16_f32 v{P+i}, v{s+2*i}, v{s+2*i+1}"

def rowmax(A, src, dst):
    A(f"v_max3_f32 v{dst}, v{src}, v{src+1}, v{src+2}")
    for i in range(3, 15, 2):
        A(f"v_max3_f32 v{dst}, v{dst}, v{src+i}, v{src+i+1}")
    A(f"""
    v_max_f32 v{dst}, v{dst}, v{src+15}
    v_mov_b32 v{T1}, v{dst}
    s_nop 1
    v_permlane32_swap_b32 v{dst}, v{T1}
    s_nop 1
    v_max_f32 v{dst}, v{dst}, v{T1}
    """)

QS = 1088
SRC = 16 * QS
def out_setup(A):
    A(f"""
    s_lshl_b32 s74, s{sTB2}, 3
    s_add_u32 s74, s74, s{sWAVE}
    s_lshl_b32 s74, s74, 13
    v_lshrrev_b32 v5, 3, v1
    v_lshlrev_b32 v5, 10, v5
    v_and_b32 v6, 7, v1
    s_lshl_b32 s75, s{sNB}, 7
    v_lshl_add_u32 v6, v6, 4, s75
    v_add3_u32 v5, v5, v6, s74
    s_mov_b32 s56, s18
    s_mov_b32 s57, s19
    s_mov_b32 s58, 1024
    s_mov_b32 s59, 0x00020000
    s_mov_b32 s60, s20
    s_mov_b32 s61, s21
    s_mov_b32 s62, 0x200000
    s_mov_b32 s63, 0x00020000
    """)

def kv_srds(A):
    A(f"""
    s_lshl_b32 s74, s{sHEAD}, 16
    s_add_u32 s75, s74, {WS_K}
    s_add_u32 s84, s24, s75
    s_addc_u32 s85, s25, 0
    s_mov_b32 s86, 0x10000
    s_mov_b32 s87, 0x00020000
    s_add_u32 s75, s74, {WS_V}
    s_add_u32 s88, s24, s75
    s_addc_u32 s89, s25, 0
    s_mov_b32 s90, 0x10000
    s_mov_b32 s91, 0x00020000
    """)

XB_LOADS = [f"buffer_load_dwordx4 v[{XB}:{XB+3}], v5, s[52:55], 0 offen",
            f"buffer_load_dwordx4 v[{XB+4}:{XB+7}], v6, s[56:59], 0 offen"]

def a_setup(A):
    A(f"""
    v_and_b32 v{vVg}, 15, v1
    v_lshlrev_b32 v{vVg}, 4, v{vVg}
    v_lshl_add_u32 v{vVg}, v7, 8, v{vVg}
    v_and_b32 v{T0}, 16, v1
    v_cmp_eq_u32 vcc, 0, v{T0}
    v_and_b32 v{T1}, 11, v1
    v_cmp_ne_u32 s[74:75], 0, v{T1}
    v_add_u32 v{vVa}, {LDS_V}, v{vVg}
    v_add_u32 v{vVb}, {LDS_V+512}, v{vVg}
    v_mov_b32 v{T0}, {LDS_V+1024}
    v_mov_b32 v{T1}, {LDS_V+1040}
    v_cndmask_b32 v{T0}, v{T0}, v{T1}, s[74:75]
    v_cndmask_b32 v{vVa}, v{T0}, v{vVa}, vcc
    v_cndmask_b32 v{vVb}, v{T0}, v{vVb}, vcc
    v_and_b32 v{vK}, 0x33, v1
    v_bfe_u32 v{T0}, v1, 2, 1
    v_lshl_add_u32 v{vK}, v{T0}, 3, v{vK}
    v_bfe_u32 v{T0}, v1, 3, 1
    v_lshl_add_u32 v{vK}, v{T0}, 2, v{vK}
    v_lshlrev_b32 v{vK}, 4, v{vK}
    v_mov_b32 v{vCNT}, {C_KV}
    s_lshl_b32 s74, s{sW4}, 11
    s_add_u32 s74, s74, {QA}
    v_add_u32 v{vQA}, s74, v{vL16}
    s_lshl_b32 s74, s{sW4}, 2
    s_add_u32 s74, s74, {C_Q}
    v_mov_b32 v{vCQ}, s74
    v_mov_b32 v{vONE}, 1
    """)
    out_setup(A)

def spread(st):
    out = [None] * 14
    for i, x in enumerate(st):
        out[i * 14 // len(st)] = x
    return out

def gen_a(A, spi=8):
    A("L_a:")
    A.region("a")
    for i in range(0, 32, 2):
        A(f"v_mov_b64 {vr(O[0]+i,2)}, 0")
    for i in range(0, 4, 2):
        A(f"v_mov_b64 {vr(VB[1]+i,2)}, 0\nv_mov_b64 {vr(VA2[1]+i,2)}, 0")
    for i in range(0, 16, 2):
        A(f"v_mov_b64 {vr(E[1]+i,2)}, 0")
    A(f"v_mov_b32 v{vIDX}, 0xdddd")
    A(f"""
    L_a_wait0:
    ds_read_b32 v{T3}, v{vCNT}
    s_waitcnt lgkmcnt(0)
    v_readfirstlane_b32 s74, v{T3}
    s_cmp_lg_u32 s74, 4
    s_cbranch_scc1 L_a_wait0
    """)
    stamp(A, 6)
    A(f"""
    ds_read_b128 {vr(KB[0],4)}, v{vK}
    ds_read_b128 {vr(Q2[0],4)}, v{vQA}
    ds_read_b128 {vr(Q2[1],4)}, v{vQA} offset:1024
    ds_read_b128 {vr(KB[1],4)}, v{vK} offset:1024
    ds_read_b128 {vr(VA,4)}, v{vVa}
    ds_read_b128 {vr(VB[0],4)}, v{vVb}
    s_waitcnt lgkmcnt(3)
    {mfma(S[0], KB[0], Q2[0], "0")}
    {mfma(S[1], KB[0], Q2[1], "0")}
    ds_write_b32 v{vCQ}, v{vONE}
    s_nop 10
    """)
    for q in range(2):
        rowmax(A, S[q], T0)
        A(f"v_sub_f32 v{C[q]}, 0, v{T0}\nv_sub_f32 v{C[q]+1}, 0, v{T0}")
        for i in range(2, 16, 2):
            A(f"v_mov_b64 {vr(C[q]+i,2)}, {vr(C[q],2)}")
        if q == 0:
            A(f"s_nop 1\n{mfma(S[0], KB[0], Q2[0], C[0])}")
    A(f"s_mov_b32 s11, {64 // spi}\ns_waitcnt lgkmcnt(0)")
    stamp(A, 7)
    def body(tag, extra):
        extra = list(extra)
        for t in range(spi):
            for h in range(2):
                cur, nxt = S[h], S[1 - h]
                kf = KB[t & 1] if h == 0 else KB[(t + 1) & 1]
                vb = VB[(t + 1) & 1] if h == 0 else VB[t & 1]
                va = VA2[(t + 1) & 1] if h == 0 else VA2[t & 1]
                m1 = m2 = m3 = pre3 = ""
                if h == 0:
                    m2 = "s_waitcnt lgkmcnt(0)"
                    m3 = f"ds_read_b128 {vr(KB[t & 1],4)}, v{vK} offset:{(t+2)*1024}"
                    if t == 5:
                        pre3 = f"v_readfirstlane_b32 s74, v{T3}"
                    if t == 6:
                        m1 = "s_cmp_lg_u32 s74, 4"
                        m3 = f"s_cbranch_scc1 L_a_spin{tag}\nL_a_spun{tag}:\n" + m3
                else:
                    m3 = f"ds_read_b128 {vr(VB[(t+1) & 1],4)}, v{vVb} offset:{(t+1)*VST}\nds_read_b128 {vr(VA2[(t+1) & 1],4)}, v{vVa} offset:{(t+1)*VST}"
                    if t == 4:
                        m3 += f"\nds_read_b32 v{T3}, v{vCNT} offset:4"
                    if t == spi - 1:
                        m1 = "s_sub_u32 s11, s11, 1"
                        m2 = "s_cmp_lg_u32 s11, 0"
                e2 = lambda i: f"v_exp_f32 v{E[h]+i}, v{cur+i}"
                c1_, c2_ = [int(x) for x in optval("cl", "3:6").split(":")]
                A(mfma(nxt, kf, Q2[1-h], C[1-h])); A(m1)
                for i in range(0, c1_):
                    A(e2(i))
                A(sm(O[1-h], va, E[1-h])); A(m2)
                for i in range(c1_, c2_):
                    A(e2(i))
                A(sm(O[1-h], vb, E[1-h] + 8)); A(m3)
                for i in range(c2_, 16):
                    A(e2(i))
                    if i == 12:
                        A(pre3)
        assert not extra
        A(f"""
        v_add_u32 v{vK}, {spi*1024}, v{vK}
        v_add_u32 v{vVa}, {spi*VST}, v{vVa}
        v_add_u32 v{vVb}, {spi*VST}, v{vVb}
        v_add_u32 v{vCNT}, 4, v{vCNT}
        """)
        if asm.STAMPS:
            A("s_memtime s[80:81]\ns_waitcnt lgkmcnt(0)\ns_mov_b32 m0, s11\ns_nop 0\nv_writelane_b32 v252, s80, m0")
    A(".p2align 6\nL_a_loop:")
    body("", [])
    A(f"""
    s_cbranch_scc1 L_a_loop
    {sm(O[1], VA2[(spi-1) & 1], E[1])}
    {sm(O[1], VB[(spi-1) & 1], E[1] + 8)}
    """)
    stamp(A, 8)
    for x in XB_LOADS:
        A(x)
    A(f"s_nop 1\nv_add_f32 v{T0}, abs(v{O[0]}), abs(v{O[0]+1})")
    for i in range(2, 9):
        A(f"v_add_f32 v{T0}, v{T0}, abs(v{O[0]+i})")
    for i in range(0, 9):
        A(f"v_add_f32 v{T0}, v{T0}, abs(v{O[1]+i})")
    A(f"""
    v_mov_b32 v{T1}, 0x7f000000
    v_cmp_lt_f32 vcc, v{T0}, v{T1}
    s_nop 4
    s_cmp_eq_u64 vcc, -1
    s_cbranch_scc0 L_fallback
    L_a_fin:
    v_rcp_f32 v{T0}, v{O[0]+8}
    v_rcp_f32 v{T1}, v{O[1]+8}
    """)
    for q in range(2):
        for i in range(8):
            A(f"v_mul_f32 v{O[q]+i}, v{O[q]+i}, v{(T0,T1)[q]}")
        for i in range(4):
            A(f"v_cvt_pk_bf16_f32 v{P+4*q+i}, v{O[q]+2*i}, v{O[q]+2*i+1}")
        for i in range(4):
            A(f"v_min_u32 v{P+4*q+i}, -2, v{P+4*q+i}")
        A(f"buffer_store_dwordx4 {vr(P+4*q,4)}, v{vL16}, s[28:31], s{8+q} offen sc1")
    stamp(A, 9)
    A(f"""
    s_mov_b64 exec, 1
    ds_add_u32 v{vFLG+1}, v{vONE} offset:{C_D - C_H}
    s_mov_b64 exec, -1
    s_waitcnt vmcnt(2)
    s_branch L_final
    """)
    for tag in ("",):
        A(f"""
        L_a_spin{tag}:
        ds_read_b32 v{T3}, v{vCNT} offset:4
        s_waitcnt lgkmcnt(0)
        v_readfirstlane_b32 s74, v{T3}
        s_cmp_lg_u32 s74, 4
        s_cbranch_scc1 L_a_spin{tag}
        s_branch L_a_spun{tag}
        """)

FACC, HB, WF, FB, WO = 32, 96, 120, 96, 160
fSENT, fTAG, fFLG, fCQ, fHK, fP3, fPR, fPROBE, fCD, fRED, fCH, fTW, fTH = 232, 236, 238, 239, 240, 242, 243, 244, 245, 246, 247, 248, 249

def poll(A, name, vaddr, sleep=4):
    A(f"""
    s_mov_b32 s79, 0x8000
    L_{name}:
    buffer_load_dwordx2 v[24:25], v{vaddr}, s[28:31], 0 offen sc1
    s_sub_u32 s79, s79, 1
    s_waitcnt vmcnt(0)
    v_cmp_ne_u64 vcc, s[26:27], v[24:25]
    s_cmp_eq_u32 s79, 0
    s_cbranch_scc1 L_{name}_done
    s_cbranch_vccz L_{name}_done
    s_sleep {sleep}
    s_branch L_{name}
    L_{name}_done:
    """)

def f_setup(A):
    kv_srds(A)
    out_setup(A)
    f = sW4
    A(f"""
    s_mov_b32 s52, s4
    s_mov_b32 s53, s5
    s_mov_b32 s54, 0x200000
    s_mov_b32 s55, 0x00020000
    s_lshl_b32 s74, s{sNB}, 7
    s_add_u32 s44, s16, s74
    s_addc_u32 s45, s17, 0
    s_sub_u32 s46, {1792*1024}, s74
    s_mov_b32 s47, 0x00020000
    s_add_u32 s48, s8, s74
    s_addc_u32 s49, s9, 0
    s_sub_u32 s50, {512*1024}, s74
    s_mov_b32 s51, 0x00020000
    v_mul_u32_u24 v16, {VST}, v1
    v_add_u32 v16, {LDS_V+1024}, v16
    v_mov_b32 v20, 0x3f803f80
    v_mov_b32 v21, v20
    v_mov_b32 v22, v20
    v_mov_b32 v23, v20
    v_mov_b32 v17, 1
    v_mov_b32 v19, {C_KV}
    """)
    if optval("rf", "0") == "1":
        A(f"s_lshl_b32 s74, s{sHEAD}, 3\ns_add_u32 s74, s74, s{sQB}\ns_lshl_b32 s74, s74, 8\ns_add_u32 s74, s74, {WS_F2R}")
    else:
        A(f"s_lshr_b32 s74, s{sHEAD}, 1\ns_lshl_b32 s74, s74, 8\ns_add_u32 s74, s74, {WS_F2}")
    A(f"""
    v_lshl_add_u32 v18, v2, 3, s74
    v_add_u32 v31, {ACT_TB}, v3
    v_lshrrev_b32 v26, 3, v1
    v_bfe_u32 v27, v1, 4, 1
    v_lshlrev_b32 v27, 2, v27
    v_and_b32 v28, 7, v1
    v_xor_b32 v27, v27, v28
    v_lshlrev_b32 v26, 10, v26
    v_lshl_add_u32 v26, v27, 4, v26
    v_add_u32 v27, 0x2000, v26
    v_bfe_u32 v28, v1, 2, 2
    v_lshl_add_u32 v28, v7, 2, v28
    v_lshlrev_b32 v28, 7, v28
    v_bfe_u32 v29, v1, 3, 1
    v_lshl_add_u32 v28, v29, 6, v28
    v_bfe_u32 v29, v1, 4, 1
    v_lshl_add_u32 v28, v29, 5, v28
    v_and_b32 v29, 3, v1
    v_lshl_add_u32 v28, v29, 3, v28
    v_xor_b32 v29, 64, v28
    s_lshl_b32 s77, s{f}, 11
    s_add_u32 s77, s77, {QA}
    v_add_u32 v28, s77, v28
    v_add_u32 v29, s77, v29
    s_mul_i32 s12, s{f}, {28*16384}
    s_lshl_b32 s13, s{f}, 17
    s_mul_i32 s14, s{sTB2}, {2*ACT_TB}
    s_add_u32 s14, s14, {WS_ACT}
    s_lshl_b32 s74, s{f}, 13
    s_add_u32 s15, s14, s74
    s_mul_i32 s74, s{f}, {28*1024}
    s_add_u32 s14, s14, s74
    s_add_u32 s14, s14, {32*1024}
    s_lshl_b32 s10, s{f}, 10
    s_mul_i32 s11, s{f}, {VST}
    s_add_u32 s11, s11, {LDS_V}
    s_lshl_b32 s74, s{sQB}, 2
    s_add_u32 s74, s74, s{f}
    s_lshl_b32 s74, s74, 11
    s_lshl_b32 s75, s{sHEAD}, 16
    s_add_u32 s78, s74, s75
    """)
    A(f"""
    v_mov_b64 {vr(fSENT,2)}, -1
    v_mov_b64 {vr(fSENT+2,2)}, -1
    s_lshl_b32 s74, s{sQB}, 2
    s_add_u32 s74, s74, s{f}
    s_mul_i32 s6, s74, {2*ACT_TB}
    s_lshl_b32 s76, s{sHEAD}, 10
    s_add_u32 s6, s6, s76
    s_add_u32 s6, s6, {WS_ACT}
    s_lshl_b32 s74, s74, 5
    s_add_u32 s74, s74, s{sHEAD}
    s_lshl_b32 s74, s74, 3
    s_add_u32 s74, s74, {WS_FR}
    v_mov_b32 v{fFLG}, s74
    s_lshl_b32 s75, s{sTBK}, 1
    s_lshr_b32 s76, s{f}, 1
    s_add_u32 s75, s75, s76
    s_lshl_b32 s75, s75, 3
    s_add_u32 s75, s75, s{sG}
    s_lshl_b32 s75, s75, 1
    s_and_b32 s76, s{f}, 1
    s_add_u32 s75, s75, s76
    s_lshl_b32 s75, s75, 3
    s_add_u32 s75, s75, {WS_F3}
    s_cmp_eq_u32 s{sTYPE}, 0
    s_cselect_b32 s74, s74, s75
    v_writelane_b32 v{fFLG}, s74, 1
    s_lshl_b32 s74, s{f}, 2
    s_add_u32 s74, s74, {C_Q}
    v_mov_b32 v{fCQ}, s74
    s_add_u32 s74, s10, 32768
    v_add_u32 v{fHK}, s74, v3
    s_add_u32 s74, s11, {32*VST}
    v_add_u32 v{fHK+1}, s74, v3
    s_lshl_b32 s74, s{sTB2}, 7
    s_lshl_b32 s75, s{f}, 5
    s_add_u32 s74, s74, s75
    s_add_u32 s74, s74, {WS_F3}
    v_and_b32 v24, 3, v1
    v_lshl_add_u32 v{fP3}, v24, 3, s74
    s_lshl_b32 s74, s{sTB2}, 8
    s_lshl_b32 s75, s{f}, 6
    s_add_u32 s74, s74, s75
    s_add_u32 s74, s74, {WS_FR}
    v_and_b32 v24, 7, v1
    v_lshl_add_u32 v{fPR}, v24, 3, s74
    v_lshlrev_b32 v24, 10, v24
    v_bfe_u32 v25, v1, 3, 1
    v_mul_u32_u24 v25, {ACT_TB}, v25
    v_add_u32 v{fPROBE}, v24, v25
    v_mov_b32 v{fCD}, {C_D}
    v_lshlrev_b32 v{fTW}, 10, v1
    v_mul_u32_u24 v{fTH}, {ACT_TB}, v7
    v_lshl_add_u32 v{fTH}, v2, 7, v{fTH}
    v_mov_b32 v{fCH}, {C_H}
    s_mul_i32 s74, s{f}, {SRC}
    v_add_u32 v{fRED}, s74, v3
    """)
    for i in range(0, 64, 2):
        A(f"v_mov_b64 {vr(FACC+i,2)}, 0")

def gen_f(A):
    Q = VmQ(A)
    f = sW4
    A("L_f:")
    A.region("f")
    stamp(A, 4)
    A(f"ds_write_b128 v16, v[20:23]\nds_write_b128 v16, {vr(FACC,4)} offset:16")
    def wdma_half(step, srd, so, tag, half, inc=16384):
        sl = (step + 1) % 3
        A(f"s_add_u32 m0, s77, {sl*8192 + half*1024}\ns_nop 0")
        Q.issue(f"buffer_load_dwordx4 v{26+half}, s[{srd}:{srd+3}], s{so} offen lds", tag)
        if half:
            A(f"s_add_u32 s{so}, s{so}, {inc}")
    def wdma(step, srd, so, tag, inc=16384):
        wdma_half(step, srd, so, tag, 0, inc); wdma_half(step, srd, so, tag, 1, inc)
    def trread(step, dst, cb):
        sl = (step + 1) % 3
        A(f"ds_read_b64_tr_b16 {vr(dst,2)}, v{28+cb} offset:{sl*8192}")
        A(f"ds_read_b64_tr_b16 {vr(dst+2,2)}, v{28+cb} offset:{sl*8192+1024}")
    wdma(-9, 48, 13, "o0"); wdma(-8, 48, 13, "o1")
    A(f"""
    s_cmp_eq_u32 s{f}, 0
    s_cselect_b32 s75, 4, 5
    L_f_hw:
    ds_read_b32 v24, v{fCH}
    s_waitcnt lgkmcnt(0)
    v_readfirstlane_b32 s74, v24
    s_cmp_eq_u32 s74, s75
    s_cbranch_scc1 L_f_hw_done
    s_sleep 1
    s_branch L_f_hw
    L_f_hw_done:
    {'s_setprio 3' if '1' in optval('fp', '') else 's_nop 0'}
    s_cmp_lg_u32 s{f}, 0
    s_cbranch_scc1 L_f_go
    """)
    if optval("pp", "0") == "0":
        poll(A, "f_p2", 18, int(optval("ps", "4")))
    else:
        R = [HB, HB + 2, HB + 4]
        ld = lambda r: f"buffer_load_dwordx2 {vr(r,2)}, v18, s[28:31], 0 offen sc1"
        A(f"s_mov_b32 s79, 0x8000\n{ld(R[0])}\ns_sleep 4\n{ld(R[1])}\ns_sleep 4\n{ld(R[2])}\nL_f_pp:")
        for r in R:
            A(f"s_waitcnt vmcnt(2)\nv_cmp_ne_u64 vcc, s[26:27], {vr(r,2)}\ns_cbranch_vccz L_f_pp_done\n{ld(r)}")
        A("s_sub_u32 s79, s79, 1\ns_cmp_lg_u32 s79, 0\ns_cbranch_scc1 L_f_pp\nL_f_pp_done:")
    A(f"""
    s_mov_b64 exec, 1
    ds_add_u32 v{fCH}, v17
    s_mov_b64 exec, -1
    L_f_go:
    """)
    stamp(A, 5)
    def kv_dma(i):
        A(f"s_mov_b32 m0, s10\ns_add_u32 s74, s11, {i*4*VST}")
        Q.issue("buffer_load_dwordx4 v3, s[84:87], s10 offen sc1 lds", i // 2)
        A("s_mov_b32 m0, s74\ns_nop 0")
        Q.issue("buffer_load_dwordx4 v3, s[88:91], s10 offen sc1 lds", i // 2)
        A("s_add_u32 s10, s10, 4096")
    def chunk_done(c):
        Q.wait(c)
        A(f"s_mov_b64 exec, 1\nds_add_u32 v19, v17 offset:{4*c}\ns_mov_b64 exec, -1")
    A("s_mov_b32 m0, s77\ns_nop 0")
    Q.issue("buffer_load_dwordx4 v3, s[28:31], s78 offen sc1 lds", 0)
    Q.issue("buffer_load_dwordx4 v3, s[28:31], s78 offen offset:1024 sc1 lds", 0)
    n0 = int(optval("n0", "6"))
    for i in range(n0):
        kv_dma(i)
    chunk_done(0)
    stamp(A, 6)
    for i in range(n0, 8):
        kv_dma(i)
    for c in range(1, 4):
        chunk_done(c)
    Q.issue(f"buffer_store_dwordx4 {vr(fSENT,4)}, v3, s[28:31], s6 offen sc1", 7)
    Q.issue(f"buffer_store_dwordx4 {vr(fSENT,4)}, v31, s[28:31], s6 offen sc1", 7)
    A(f"""
    L_f_qw:
    ds_read_b32 v24, v{fCQ}
    s_waitcnt lgkmcnt(0)
    v_readfirstlane_b32 s74, v24
    s_cmp_eq_u32 s74, 1
    s_cbranch_scc1 L_f_qw_done
    s_sleep 2
    s_branch L_f_qw
    L_f_qw_done:
    """)
    for i in range(14):
        va, off = h_slot(i)
        A(f"ds_read_b128 {vr(HB+4*i,4)}, v{fHK+va} offset:{off}")
    A("s_waitcnt lgkmcnt(0)")
    for i in range(8, 16):
        kv_dma(i)
    A(f"""
    s_cmp_eq_u32 s{sTYPE}, 0
    s_cbranch_scc1 L_f_noh
    s_lshl_b32 s74, s{sTBK}, 2
    s_add_u32 s74, s74, s{f}
    s_xor_b32 s75, s74, 1
    s_mul_i32 s76, s{sG}, {7*2048}
    s_add_u32 s76, s76, {WS_ACT + 32*1024}
    s_mul_i32 s92, s74, {ACT_TB}
    s_add_u32 s92, s92, s76
    s_mul_i32 s93, s75, {ACT_TB}
    s_add_u32 s93, s93, s76
    s_add_u32 s94, s92, {6*2048}
    s_and_b32 s75, s{f}, 1
    s_mul_i32 s76, s75, 6144
    s_add_u32 s92, s92, s76
    s_add_u32 s93, s93, s76
    s_add_u32 s95, s92, 4096
    s_add_u32 s96, s93, 4096
    """)
    for n, (t, c) in enumerate([(t, c) for c in range(3) for t in range(2)] + [(0, 3)]):
        so, im = (94, 0) if c == 3 else ((92 + t, c * 2048) if c < 2 else (95 + t, 0))
        for hh in range(2):
            A(f"buffer_store_dwordx4 {vr(HB+8*n+4*hh,4)}, v3, s[28:31], s{so} offen offset:{im+hh*1024} sc1")
    A(f"""
    L_f_noh:
    s_mov_b32 s40, s22
    s_mov_b32 s41, s23
    s_mov_b32 s42, 256
    s_waitcnt vmcnt(0)
    s_mov_b64 exec, 3
    buffer_store_dwordx2 {vr(fTAG,2)}, v{fFLG}, s[28:31], 0 offen sc1
    s_mov_b64 exec, 1
    ds_add_u32 v19, v17 offset:16
    ds_add_u32 v19, v17 offset:20
    ds_add_u32 v19, v17 offset:24
    ds_add_u32 v19, v17 offset:28
    s_cmp_lg_u32 s{f}, 0
    s_cbranch_scc1 L_f_noat
    buffer_atomic_add v17, v4, s[40:43], 0 offen sc1
    L_f_noat:
    s_mov_b64 exec, -1
    """)
    stamp(A, 7)
    Q.q = ["st"]
    if optval("pf", "1") == "1":
        A(f"""
        s_and_b32 s74, s{sTB2}, 3
        s_mul_i32 s74, s74, {112*1024}
        s_add_u32 s74, s74, s12
        s_add_u32 s75, s74, {48*1024}
        buffer_load_dword v253, v{fTW}, s[44:47], s74 offen
        buffer_load_dword v253, v{fTW}, s[44:47], s75 offen
        """)
    wdma(-7, 48, 13, "o2")
    for k in range(8):
        Q.wait(f"o{k}")
        trread(k - 9, WO + 8 * k, 0); trread(k - 9, WO + 8 * k + 4, 1)
        A("s_waitcnt lgkmcnt(0)")
        if k + 3 < 8:
            wdma(k - 6, 48, 13, f"o{k+3}")
        elif k >= 6:
            wdma(k - 6, 44, 12, "w")
    wdma(2, 44, 12, "w")
    poll(A, "f_p3", fP3, 8)
    A("s_setprio 0")
    Q.q = []
    def hload(step, t, tag):
        b = HB + 8 * (step % 3) + 4 * t
        Q.issue(f"buffer_load_dwordx4 {vr(b,4)}, v{(3,31)[t]}, s[28:31], s14 offen sc1", tag)
        if t == 1:
            A("s_add_u32 s14, s14, 1024")
    if optval("pf", "1") == "1":
        A(f"""
        s_mul_i32 s74, s{sNB}, 3584
        s_add_u32 s74, s74, s14
        s_mov_b32 exec_lo, 0x0fffffff
        s_mov_b32 exec_hi, 0x0fffffff
        buffer_load_dword v253, v{fTH}, s[28:31], s74 offen sc1
        s_mov_b64 exec, -1
        """)
    for s in range(3):
        hload(s, 0, s); hload(s, 1, s)
    Q.drain()
    stamp(A, 8)
    def fstep(s, nxt):
        h = HB + 8 * (s % 3)
        for n, (t, cb) in enumerate(((0, 0), (0, 1), (1, 0), (1, 1))):
            if n < 3 or not nxt:
                trread(s, WF + 4 * cb, cb)
                A("s_waitcnt lgkmcnt(0)")
            else:
                wdma(s + 3, 44, 12, s + 3)
            A(mfma(FACC + 32 * cb + 16 * t, WF + 4 * cb, h + 4 * t))
            if nxt and n in (1, 3):
                hload(s + 3, t, s + 3)
    A("s_mov_b32 s79, 8\nL_f_loop:")
    for s in range(3):
        A("s_waitcnt vmcnt(8)")
        fstep(s, True)
    A("s_sub_u32 s79, s79, 1\ns_cmp_lg_u32 s79, 0\ns_cbranch_scc1 L_f_loop")
    Q.q = [24]*4 + [25]*4 + [26]*4
    for s in range(24, 28):
        Q.wait(s)
        fstep(s, s == 24)
    for x in XB_LOADS:
        A(x)
    if "2" in optval("fp", ""):
        A("s_setprio 3")
    poll(A, "f_pr", fPR, 8)
    A(f"""
    s_or_b32 s74, s2, s{f}
    s_cmp_lg_u32 s74, 0
    s_cbranch_scc1 L_f_noep
    s_mov_b32 s79, 0x8000
    L_f_ep:
    buffer_load_dword v24, v4, s[40:43], 0 offen sc1
    s_sub_u32 s79, s79, 1
    s_waitcnt vmcnt(0)
    v_readfirstlane_b32 s74, v24
    s_cmp_eq_u32 s79, 0
    s_cbranch_scc1 L_f_ep_done
    s_cmp_lg_u32 s74, 256
    s_cbranch_scc1 L_f_ep
    L_f_ep_done:
    s_mov_b32 s74, {WS_CTL}
    s_mov_b64 exec, 1
    buffer_store_dwordx2 {vr(fTAG,2)}, v4, s[28:31], s74 offen sc1
    s_mov_b64 exec, -1
    L_f_noep:
    """)
    stamp(A, 9)
    A(f"""
    s_add_u32 s14, s15, 4096
    s_mov_b32 s79, 0x10000
    s_mov_b32 s78, 0
    """)
    stamp(A, 10)
    A(f"""
    s_mov_b32 s77, 0
    s_mov_b32 s11, 0
    L_f_probe:
    s_sub_u32 s79, s79, 1
    s_cmp_eq_u32 s79, 0
    s_cselect_b32 s76, 0, -1
    s_cselect_b32 s79, 1, s79
    """)
    if optval("td", "0") == "1":
        A(f"""
        s_mov_b32 s75, s78
        s_cmp_eq_u32 s11, 4
        s_cbranch_scc1 L_f_load
        ds_read_b32 v24, v{fCD}
        """)
    A(f"""
    buffer_load_dword v25, v{fPROBE}, s[28:31], s15 offen offset:1020 sc1
    s_waitcnt vmcnt(0) lgkmcnt(0)
    v_readfirstlane_b32 s11, v24
    v_cmp_eq_u32 vcc, -1, v25
    s_and_b32 s74, vcc_lo, s76
    s_mov_b32 s75, s78
    s_and_b32 s10, s74, 0x0f0f
    s_cselect_b32 s10, 1, 0
    s_or_b32 s75, s75, s10
    s_and_b32 s10, s74, 0xf0f0
    s_cselect_b32 s10, 2, 0
    s_or_b32 s75, s75, s10
    s_cmp_lg_u32 s75, 3
    s_cbranch_scc1 L_f_load
    s_sleep {optval("ts", "2")}
    s_branch L_f_probe
    L_f_load:
    """)
    for g in range(2):
        A(f"s_bitcmp1_b32 s75, {g}\ns_cbranch_scc1 L_f_nl{g}")
        for k in range(4*g, 4*g + 4):
            so, im = (15, k * 1024) if k < 4 else (14, (k - 4) * 1024)
            A(f"""
            buffer_load_dwordx4 {vr(FB+8*k,4)}, v3, s[28:31], s{so} offen offset:{im} sc1
            buffer_load_dwordx4 {vr(FB+8*k+4,4)}, v31, s[28:31], s{so} offen offset:{im} sc1
            """)
        A(f"L_f_nl{g}:")
    for g in range(2):
        b = FB + 32 * g
        A(f"s_bitcmp1_b32 s75, {g}\ns_cbranch_scc1 L_f_nc{g}")
        if g == 0:
            A("s_bitcmp1_b32 s75, 1\ns_cbranch_scc1 L_f_w0\ns_waitcnt vmcnt(8)\ns_branch L_f_w1\nL_f_w0:\ns_waitcnt vmcnt(0)\nL_f_w1:")
        else:
            A("s_waitcnt vmcnt(0)")
        A(f"v_max3_u32 v17, v{b}, v{b+1}, v{b+2}\nv_max3_u32 v18, v{b+3}, v{b+4}, v{b+5}")
        for r in range(6, 30, 4):
            A(f"v_max3_u32 v17, v17, v{b+r}, v{b+r+1}\nv_max3_u32 v18, v18, v{b+r+2}, v{b+r+3}")
        A(f"""
        v_max3_u32 v17, v17, v{b+30}, v{b+31}
        v_max_u32 v17, v17, v18
        v_and_b32 v17, s76, v17
        v_cmp_eq_u32 vcc, -1, v17
        s_cbranch_vccnz L_f_sk{g}
        s_bitset1_b32 s78, {g}
        L_f_nc{g}:
        s_cmp_lg_u32 s77, {g}
        s_cbranch_scc1 L_f_sk{g}
        s_bitcmp1_b32 s78, {g}
        s_cbranch_scc0 L_f_sk{g}
        s_mov_b32 s77, {g+1}
        """)
        if asm.STAMPS:
            A(f"s_memrealtime s[82:83]\ns_waitcnt lgkmcnt(0)\nv_writelane_b32 v255, s82, {g}\nv_writelane_b32 v255, s79, 8")
        for k in range(4*g, 4*g + 4):
            bb, w = FB + 8 * k, WO + 8 * k
            A(f"{mfma(FACC, w, bb)}\n{mfma(FACC+16, w, bb+4)}\n{mfma(FACC+32, w+4, bb)}\n{mfma(FACC+48, w+4, bb+4)}")
        A(f"L_f_sk{g}:")
    A("s_cmp_lg_u32 s77, 2\ns_cbranch_scc1 L_f_probe")
    A(f"""
    L_f_dw:
    ds_read_b32 v24, v{fCD}
    s_waitcnt lgkmcnt(0)
    v_readfirstlane_b32 s74, v24
    s_cmp_eq_u32 s74, 4
    s_cbranch_scc1 L_f_dw_done
    s_sleep 1
    s_branch L_f_dw
    L_f_dw_done:
    """)
    stamp(A, 11)
    A("s_nop 11")
    for q in range(16):
        A(f"ds_write_b128 v{fRED}, {vr(FACC+4*q,4)} offset:{q*QS}")
    A("s_nop 0")

def gen_final(A):
    R = 96
    A(f"""
    L_final:
    v_and_b32 v16, 3, v1
    v_bfe_u32 v17, v1, 2, 1
    v_lshl_add_u32 v16, v17, 3, v16
    v_mul_u32_u24 v16, {QS}, v16
    v_lshrrev_b32 v17, 3, v1
    v_lshl_add_u32 v16, v17, 4, v16
    s_lshr_b32 s74, s{sWAVE}, 2
    s_mul_i32 s74, s74, {4*QS}
    s_lshl_b32 s75, s{sW4}, 7
    s_add_u32 s74, s74, s75
    v_add_u32 v16, s74, v16
    s_mov_b32 s75, 0xffff0000
    """)
    for d in range(4):
        A(f"""
        v_lshlrev_b32 v{20+2*d}, 16, v{XB+d}
        v_and_b32 v{21+2*d}, s75, v{XB+d}
        v_lshlrev_b32 v28, 16, v{XB+4+d}
        v_and_b32 v29, s75, v{XB+4+d}
        v_add_f32 v{20+2*d}, v{20+2*d}, v28
        v_add_f32 v{21+2*d}, v{21+2*d}, v29
        """)
    A("s_waitcnt lgkmcnt(0)\ns_barrier")
    stamp(A, 12)
    for src in range(4):
        for g in range(2):
            A(f"ds_read_b128 {vr(R+8*src+4*g,4)}, v16 offset:{src*SRC + g*512}")
    for src in range(4):
        A(f"s_waitcnt lgkmcnt({6-2*src})")
        for i in range(0, 8, 2):
            A(f"v_pk_add_f32 {vr(20+i,2)}, {vr(20+i,2)}, {vr(R+8*src+i,2)}")
    for i in range(4):
        A(f"v_cvt_pk_bf16_f32 v{28+i}, v{20+2*i}, v{21+2*i}")
    A(f"buffer_store_dwordx4 v[28:31], v5, s[60:63], 0 offen {optval('ost', '')}")
    stamp(A, 13)
    if asm.STAMPS:
        A("s_waitcnt vmcnt(0)")
    stamp(A, 14); stamp(A, 15, True)
    stamp_flush(A, 0, 28, sWAVE)
    if asm.STAMPS:
        A("s_add_u32 s82, s82, 512\ns_mov_b64 exec, 0xffff\nbuffer_store_dword v252, v251, s[28:31], s82 offen\ns_add_u32 s83, s83, 512\nbuffer_store_dword v255, v251, s[28:31], s83 offen")
    if asm.STAMPS and optval("amp", ""):
        a_, b_, w_ = optval("amp", "").split(":")
        A(f"""
        s_lshl_b32 s74, s{sWAVE}, 8
        s_or_b32 s74, s74, s2
        s_cmp_lg_u32 s74, {w_}
        s_cbranch_scc1 L_end
        v_readlane_b32 s74, v254, {a_}
        v_readlane_b32 s75, v254, {b_}
        v_readlane_b32 s76, v254, 15
        s_sub_u32 s74, s75, s74
        s_min_u32 s74, s74, 4000
        s_lshl_b32 s74, s74, 3
        L_amp:
        s_memrealtime s[82:83]
        s_waitcnt lgkmcnt(0)
        s_sub_u32 s75, s82, s76
        s_cmp_lt_u32 s75, s74
        s_cbranch_scc1 L_amp
        """)
    if asm.STAMPS and 'dbgout' in OPT:
        A(f"""
        s_mov_b64 exec, -1
        s_mov_b32 s40, s22
        s_mov_b32 s41, s23
        s_mov_b32 s42, 256
        s_mov_b32 s43, 0x00020000
        v_readlane_b32 s74, v254, 0
        v_readlane_b32 s75, v254, 15
        s_not_b32 s74, s74
        v_mov_b32 v20, s74
        v_mov_b32 v21, s75
        s_mov_b64 exec, 1
        buffer_atomic_umax v20, v4, s[40:43], 0 offen offset:4 sc1
        buffer_atomic_umax v21, v4, s[40:43], 0 offen offset:8 sc1
        s_lshl_b32 s74, s{sWAVE}, 8
        s_or_b32 s74, s74, s2
        s_cmp_lg_u32 s74, {optval('dwg', '8')}
        s_cbranch_scc1 L_end
        s_mov_b64 exec, 0xfff8
        buffer_store_dword v254, v251, s[40:43], 0 offen
        """)
    A("L_end:\ns_endpgm")

def gen_fallback(A):
    A("L_fallback:\ns_waitcnt lgkmcnt(0)")
    kv_srds(A)
    A(f"""
    v_mov_b32 v{C[0]}, 0xff7fffff
    v_mov_b32 v{C[1]}, 0xff7fffff
    v_mov_b32 v{VA}, 0x3f803f80
    s_mov_b32 s12, 0x0000ffff
    s_mov_b32 s13, 0x0000ffff
    """)
    for i in range(1, 4):
        A(f"v_mov_b32 v{VA+i}, v{VA}")
    for i in range(4):
        A(f"v_mov_b32 v{VB[0]+i}, v{VA}")
    for q in range(2):
        for i in range(16):
            A(f"v_mov_b32 v{O[q]+i}, 0")
    A(f"""
    s_mov_b32 s11, 0
    L_fb_loop:
    buffer_load_dwordx4 {vr(KB[0],4)}, v{vL16}, s[84:87], s11 offen sc1
    s_mov_b64 exec, s[12:13]
    buffer_load_dwordx4 {vr(VA,4)}, v{vVg}, s[88:91], s11 offen sc1
    buffer_load_dwordx4 {vr(VB[0],4)}, v{vVg}, s[88:91], s11 offen offset:512 sc1
    s_mov_b64 exec, -1
    s_waitcnt vmcnt(0)
    """)
    for q in range(2):
        A(f"{mfma(S[0], KB[0], Q2[q], '0')}\ns_nop 15\ns_nop 3")
        rowmax(A, S[0], T0)
        A(f"""
        v_max_f32 v{T0}, v{T0}, v{C[q]}
        v_sub_f32 v{T2}, v{C[q]}, v{T0}
        v_exp_f32 v{T2}, v{T2}
        v_mov_b32 v{C[q]}, v{T0}
        """)
        for i in range(16):
            A(f"v_mul_f32 v{O[q]+i}, v{O[q]+i}, v{T2}")
        for i in range(16):
            A(f"v_sub_f32 v{S[0]+i}, v{S[0]+i}, v{T0}")
        for i in range(16):
            A(ex(S[0], i))
        A("s_nop 0")
        for i in range(8):
            A(cv(S[0], i))
        A(f"s_nop 1\n{mfma(O[q], VA, P)}\n{mfma(O[q], VB[0], P+4)}")
    A(f"""
    s_nop 15
    s_nop 3
    s_add_u32 s11, s11, 1024
    s_cmp_lt_u32 s11, 0x10000
    s_cbranch_scc1 L_fb_loop
    s_branch L_a_fin
    """)
```
